```python
import torch

def _softmax(x, axis=-1):
    return torch.softmax(x, dim=axis)
def _gelu(x):
    return torch.nn.functional.gelu(x, approximate="tanh")
def _silu(x):
    return torch.nn.functional.silu(x)
def _sigmoid(x):
    return torch.sigmoid(x)
def _layernorm(x, axis=-1, eps=1e-5):
    m = x.mean(dim=axis, keepdim=True)
    v = x.var(dim=axis, keepdim=True, unbiased=False)
    return (x - m) / torch.sqrt(v + eps)
def _scatter_add(tgt, idx, src, axis=0):
    return tgt.clone().index_add_(axis, idx, src)
def _segment_sum(src, seg, n):
    out = torch.zeros((n,) + src.shape[1:], dtype=src.dtype)
    return out.index_add_(0, seg, src)
def _pad(x, pw):
    flat = tuple(v for pair in reversed(pw) for v in pair)
    return torch.nn.functional.pad(x, flat)

kernel_name = 'recurrent_scan__compressed_kv_cla__dense_activation_silu__decode'

def setup_inputs():

    _w = (lambda a: (lambda t: t.to(torch.bfloat16) if t.is_floating_point() else t)(torch.as_tensor(a)))
    def _A_setup():
        B, H, Sq, Sk, D, M = 1, 32, 1, 32768, 128, 512
        Dc = 4 * D
        return {
            "x": _w((lambda *s: torch.randn(*s, dtype=torch.bfloat16) * 0.1)(B, Sq, M)),
            "c_kv": _w((lambda *s: torch.randn(*s, dtype=torch.bfloat16) * 3.2)(B, Sk, Dc)),
            "w_q": _w((lambda *s: torch.randn(*s, dtype=torch.bfloat16) * 0.8)(M, H, D) * (M ** -0.5)),
            "w_uk": _w((lambda *s: torch.randn(*s, dtype=torch.bfloat16) * 0.8)(Dc, H, D) * (Dc ** -0.5)),
            "w_uv": _w((lambda *s: torch.randn(*s, dtype=torch.bfloat16) * 3.2)(Dc, H, D) * (Dc ** -0.5)),
            "w_o": _w((lambda *s: torch.randn(*s, dtype=torch.bfloat16) * 3.2)(H, D, M) * ((H * D) ** -0.5)),
        }
    _A_in = _A_setup()

    def _B_setup():
        B, S, D, F = 1, 1, 512, 1376
        return {
            "x": _w((lambda *s: torch.randn(*s, dtype=torch.bfloat16) * 0.1)(B, S, D)),
            "w1": _w((lambda *s: torch.randn(*s, dtype=torch.bfloat16) * 3.2)(D, F) * (D ** -0.5)),
            "w2": _w((lambda *s: torch.randn(*s, dtype=torch.bfloat16) * 0.8)(F, D) * (F ** -0.5)),
        }
    _B_in = _B_setup()

    return {
        "A_x": _A_in["x"],
        "A_c_kv": _A_in["c_kv"],
        "A_w_q": _A_in["w_q"],
        "A_w_uk": _A_in["w_uk"],
        "A_w_uv": _A_in["w_uv"],
        "A_w_o": _A_in["w_o"],
        "B_x": _B_in["x"],
        "B_w1": _B_in["w1"],
        "B_w2": _B_in["w2"],
    }

def reference(A_x, A_c_kv, A_w_q, A_w_uk, A_w_uv, A_w_o, B_x, B_w1, B_w2):
    def _A_ref(x, c_kv, w_q, w_uk, w_uv, w_o):
        B, Sq, M = x.shape[0], x.shape[1], x.shape[2]
        Sk = c_kv.shape[1]
        H, D = w_q.shape[1], w_q.shape[2]
        q = torch.einsum("bqm,mhd->bhqd", x, w_q)
        k = torch.einsum("bkc,chd->bhkd", c_kv, w_uk)
        v = torch.einsum("bkc,chd->bhkd", c_kv, w_uv)
        scores = torch.einsum("bhqd,bhkd->bhqk", q, k) * (D ** -0.5)
        off = Sk - Sq
        qi = torch.arange(Sq)[:, None]
        kj = torch.arange(Sk)[None, :]
        cmask = kj <= (qi + off)
        scores = torch.where(cmask[None, None], scores, -1e9)
        p = _softmax(scores, axis=-1)
        ctx = torch.einsum("bhqk,bhkd->bhqd", p, v)
        return torch.einsum("bhqd,hdm->bqm", ctx, w_o)

    def _B_ref(x, w1, w2):
        h = torch.einsum("bsd,df->bsf", x, w1)
        h = _silu(h)
        out = torch.einsum("bsf,fd->bsd", h, w2)
        return out

    x = A_x
    xn = _layernorm(x, axis=-1)
    s = _A_ref(xn, A_c_kv, A_w_q, A_w_uk, A_w_uv, A_w_o)
    g = _silu(_B_ref(xn, B_w1, B_w2))
    return x + s * g
```

```python
KN = 'recurrent_scan__compressed_kv_cla__dense_activation_silu__decode'

class Asm:
    def __init__(self):
        self.lines = []
        self.nlab = 0
    def __call__(self, s):
        for l in s.strip('\n').split('\n'):
            self.lines.append('    ' + l.strip() if l.strip() and not l.strip().endswith(':') else l.strip())
    def label(self, name):
        self.lines.append(name + ':')
    def newlabel(self, p='L'):
        self.nlab += 1
        return '%s_%d' % (p, self.nlab)
    def text(self):
        return '\n'.join(self.lines) + '\n'

HEADER = '''; Kernarg: 0 A_x, 8 A_c_kv, 16 A_w_q, 24 A_w_uk, 32 A_w_uv, 40 A_w_o, 48 B_x, 56 B_w1, 64 B_w2, 72 out, 80 dbg, 88 ws
'''

def kernel_file(launches, kernels):
    out = [HEADER.rstrip('\n')]
    if len(launches) == 1 and launches[0][0] == KN + '_kernel':
        l = launches[0]
        out.append('; @launch grid=(%d,1,1) block=(%d,1,1) lds=%d' % (l[1], l[2], l[3]))
    else:
        for l in launches:
            out.append('; @launch kernel=%s grid=(%d,1,1) block=(%d,1,1) lds=%d' % l)
    out.append('.amdgcn_target "amdgcn-amd-amdhsa--gfx950"')
    out.append('.text')
    for (label, body, vg, sg, acc) in kernels:
        out.append('.globl %s' % label)
        out.append('.p2align 8')
        out.append('.type %s,@function' % label)
        out.append('%s:' % label)
        out.append(body.rstrip('\n'))
        out.append('    s_endpgm')
    out.append('.section .rodata,"a"')
    for (label, body, vg, sg, acc) in kernels:
        out.append('.p2align 6')
        out.append('.amdhsa_kernel %s' % label)
        out.append('  .amdhsa_next_free_vgpr %d' % vg)
        out.append('  .amdhsa_next_free_sgpr %d' % sg)
        out.append('  .amdhsa_accum_offset %d' % acc)
        out.append('  .amdhsa_group_segment_fixed_size 0')
        out.append('  .amdhsa_kernarg_size 96')
        out.append('  .amdhsa_user_sgpr_count 2')
        out.append('  .amdhsa_user_sgpr_kernarg_segment_ptr 1')
        out.append('  .amdhsa_system_sgpr_workgroup_id_x 1')
        out.append('  .amdhsa_float_denorm_mode_32 3')
        out.append('.end_amdhsa_kernel')
    return '\n'.join(out) + '\n'
```

```python
import re

def regs_of(tok):
    tok = tok.strip()
    tok = re.sub(r'^-', '', tok)
    m = re.match(r'^abs\((.*)\)$', tok) or re.match(r'^\|(.*)\|$', tok)
    if m: tok = m.group(1)
    m = re.match(r'^([vsa])(\d+)$', tok)
    if m: return {(m.group(1), int(m.group(2)))}
    m = re.match(r'^([vsa])\[(\d+):(\d+)\]$', tok)
    if m: return {(m.group(1), i) for i in range(int(m.group(2)), int(m.group(3)) + 1)}
    if tok in ('vcc', 'vcc_lo', 'vcc_hi'): return {('x', 'vcc')}
    if tok in ('exec', 'exec_lo', 'exec_hi'): return {('x', 'exec')}
    if tok == 'm0': return {('x', 'm0')}
    return set()

TRANS = ('v_exp_f32', 'v_log_f32', 'v_rcp_f32', 'v_rsq_f32', 'v_sqrt_f32', 'v_sin_f32', 'v_cos_f32')

class Ins:
    def __init__(self, line):
        self.line = line
        t = line.split(';')[0].strip()
        self.op = t.split()[0] if t else ''
        rest = t[len(self.op):].strip()
        ops, cur, depth = [], '', 0
        for ch in rest:
            if ch in '[(': depth += 1
            if ch in '])': depth -= 1
            if ch == ',' and depth == 0:
                ops.append(cur.strip()); cur = ''
            else:
                cur += ch
        if cur.strip(): ops.append(cur.strip())
        self.mods = ''
        if ops:
            parts = ops[-1].split(None, 1)
            ops[-1] = parts[0]
            if len(parts) > 1: self.mods = parts[1]
        self.ops = ops
        op = self.op
        self.is_mfma = op.startswith('v_mfma') or op.startswith('v_smfmac')
        self.is_valu = op.startswith('v_') and not self.is_mfma
        self.is_salu = op.startswith('s_')
        self.is_ds = op.startswith('ds_')
        self.is_vmem = op.startswith('buffer_') or op.startswith('global_')
        self.is_dpp = '_dpp' in op
        self.is_trans = any(op.startswith(x) for x in TRANS)
        self.is_perml = op.startswith('v_permlane')
        self.is_rdlane = op.startswith('v_readlane') or op.startswith('v_readfirstlane')
        self.is_dot = op.startswith('v_dot')
        R = [regs_of(o) for o in ops]
        w, r = set(), set()
        self.srcc = set(); self.srcab = set(); self.stdata = set()
        if self.is_mfma:
            w |= R[0]; self.srcab = R[1] | R[2]; self.srcc = R[3] if len(R) > 3 else set()
            if op.startswith('v_smfmac'):
                self.srcab |= R[3]; self.srcc = R[0]
            r |= self.srcab | self.srcc
            self.passes = 8 if '32x32' in op else 4
        elif self.is_valu:
            if self.is_perml:
                w |= R[0] | R[1]; r |= R[0] | R[1]
            elif op.startswith('v_add_co') or op.startswith('v_addc_co') or op.startswith('v_sub_co'):
                w |= R[0] | R[1]
                for x in R[2:]: r |= x
            else:
                w |= R[0]
                for x in R[1:]: r |= x
                if op.startswith('v_fmac') or op.startswith('v_dot2c') or op.startswith('v_writelane') or self.is_dpp: r |= R[0]
                if op.startswith('v_cmpx'): w.add(('x', 'exec'))
        elif self.is_ds:
            if 'read' in op or 'permute' in op or 'swizzle' in op or '_rtn' in op:
                w |= R[0]
                for x in R[1:]: r |= x
            else:
                for x in R: r |= x
        elif self.is_vmem:
            islds = ' lds' in (' ' + self.mods) or '_lds_' in op
            if 'load' in op and not islds:
                w |= R[0]
                for x in R[1:]: r |= x
            else:
                for x in R: r |= x
                if 'store' in op and ('x4' in op or 'x3' in op):
                    self.stdata = R[0] if op.startswith('buffer') else R[1]
                if islds: r.add(('x', 'm0'))
            self.islds = islds
        elif self.is_salu:
            if op.startswith('s_cmp') or op.startswith('s_bitcmp') or op.startswith('s_cbranch') or op in ('s_waitcnt', 's_nop', 's_barrier', 's_branch', 's_endpgm', 's_sleep', 's_setprio'):
                for x in R: r |= x
            else:
                if R: w |= R[0]
                for x in R[1:]: r |= x
                if 'saveexec' in op: w.add(('x', 'exec'))
        self.w, self.r = w, r
        self.states = 1
        if op == 's_nop': self.states = int(ops[0], 0) + 1

def need(p, c):
    n = 0
    vw = {x for x in p.w if x[0] in 'va'}
    sw = {x for x in p.w if x[0] == 's' or x == ('x', 'vcc')}
    if p.is_valu:
        if c.is_mfma and vw & c.r: n = max(n, 2)
        if c.is_dpp and vw & c.r: n = max(n, 2)
        if c.is_perml and vw & c.r: n = max(n, 2)
        if c.is_rdlane and vw & c.r: n = max(n, 1)
        if p.is_trans and c.is_valu and not c.is_trans and vw & c.r: n = max(n, 1)
        if p.is_trans and (c.is_vmem or c.is_ds) and vw & c.r: n = max(n, 1)
        if sw:
            cr = set(c.r)
            if c.is_valu and c.op.startswith('v_cndmask') and len(c.ops) == 3: cr.add(('x', 'vcc'))
            if c.is_valu and sw & cr: n = max(n, 4 if (c.is_rdlane or c.op.startswith('v_writelane')) else 2)
            if c.is_vmem and sw & cr: n = max(n, 5)
            if c.is_salu and sw & cr: n = max(n, 1)
        if ('x', 'exec') in p.w:
            if c.is_dpp: n = max(n, 5)
            if c.is_mfma or c.is_rdlane or c.is_perml: n = max(n, 4)
        if p.is_dot and (c.is_valu or c.is_mfma or c.is_vmem or c.is_ds) and (vw & (c.r | c.w)):
            if not (c.op == p.op and not (vw & (regs_of(c.ops[1]) | regs_of(c.ops[2])))): n = max(n, 3)
    if p.is_mfma:
        ps = p.passes
        if c.is_mfma:
            if vw & c.srcab: n = max(n, {4: 8, 8: 12}[ps])
            if vw & c.srcc:
                if not (vw == c.srcc and c.passes == ps): n = max(n, {4: 6, 8: 10}[ps])
            elif vw & c.w: n = max(n, {4: 6, 8: 10}[ps])
        elif c.is_valu or c.is_vmem or c.is_ds:
            if vw & (c.r | c.w): n = max(n, {4: 8, 8: 12}[ps])
            if c.is_valu and p.srcc & c.w: n = max(n, {4: 3, 8: 7}[ps])
    if p.is_salu:
        if ('x', 'm0') in p.w and c.is_vmem and getattr(c, 'islds', False): n = max(n, 1)
    if p.is_vmem and p.stdata:
        if (c.is_valu or c.is_mfma) and p.stdata & c.w: n = max(n, 2)
        elif p.stdata & c.w: n = max(n, 1)
    return n

def fix(text, verbose=False):
    out = []
    hist = []
    for line in text.split('\n'):
        s = line.split(';')[0].strip()
        if not s or s.endswith(':') or s.startswith('.'):
            out.append(line); continue
        c = Ins(line)
        dist = 0; req = 0
        for p in reversed(hist):
            n = need(p, c)
            if n - dist > req: req = n - dist
            dist += p.states
            if dist > 20: break
        if req > 0:
            nl = '    s_nop %d' % (req - 1)
            out.append(nl); hist.append(Ins(nl))
        out.append(line); hist.append(c)
        if c.op in ('s_branch', 's_endpgm'): hist = []
    return '\n'.join(out)
```

```python
import sys, struct, math
from gl import *
import hz

def f2u(f): return struct.unpack('<I', struct.pack('<f', f))[0]

QA, QC, ML, SP, FP, OP = 0x0, 0x8000, 0x10000, 0x20000, 0x60000, 0x100000
WS_REC = 0x500000
STAMP_OFF = 0x8000000
NST = 12
SPIN = 60000

class G(Asm):
    def __init__(self, stamps):
        super().__init__()
        self.stamps = stamps
        self.vm = []
        self.lg = []
    def stamp(self, k):
        if self.stamps:
            self('s_memrealtime s[%d:%d]' % (70 + 2 * k, 71 + 2 * k))
            self('s_waitcnt lgkmcnt(0)')
            self.lg = []
    def v(self, ins, tag):
        self(ins); self.vm.append(tag)
    def vwait(self, tag):
        idx = max(i for i, t in enumerate(self.vm) if t == tag)
        n = len(self.vm) - 1 - idx
        self('s_waitcnt vmcnt(%d)' % n)
        self.vm = self.vm[idx + 1:]
    def vwait_n(self, n):
        if len(self.vm) > n:
            self('s_waitcnt vmcnt(%d)' % n)
            self.vm = self.vm[len(self.vm) - n:] if n else []
    def vall(self):
        self('s_waitcnt vmcnt(0)'); self.vm = []
    def d(self, ins, tag):
        self(ins); self.lg.append(tag)
        assert len(self.lg) <= 15, 'too many lgkm outstanding'
    def dwait(self, tag):
        if tag not in self.lg: return
        idx = max(i for i, t in enumerate(self.lg) if t == tag)
        n = len(self.lg) - 1 - idx
        self('s_waitcnt lgkmcnt(%d)' % n)
        self.lg = self.lg[idx + 1:]
    def dall(self):
        self('s_waitcnt lgkmcnt(0)'); self.lg = []
    def srd(self, d, ptr, nrec):
        self('s_mov_b32 s%d, s%d' % (d, ptr))
        self('s_mov_b32 s%d, s%d' % (d + 1, ptr + 1))
        self('s_mov_b32 s%d, 0x%x' % (d + 2, nrec))
        self('s_mov_b32 s%d, 0x20000' % (d + 3))
    def wave_red(self, op, v, t, rows_only=False):
        for m in ('quad_perm:[1,0,3,2]', 'quad_perm:[2,3,0,1]', 'row_half_mirror', 'row_mirror'):
            self('%s_dpp v%d, v%d, v%d %s row_mask:0xf bank_mask:0xf' % (op, v, v, v, m))
        if rows_only: return
        self.swap_red(op, v, t, 16)
        self.swap_red(op, v, t, 32)
    def swap_red(self, op, v, t, w):
        self('v_mov_b32 v%d, v%d' % (t, v))
        self('v_permlane%d_swap_b32 v%d, v%d' % (w, v, t))
        self('%s v%d, v%d, v%d' % (op, v, v, t))
    def rnd_bf16(self, v):
        self('v_cvt_pk_bf16_f32 v%d, v%d, v%d' % (v, v, v))
        self('v_lshlrev_b32 v%d, 16, v%d' % (v, v))
    def silu(self, v, t):
        self('v_mul_f32 v%d, 0x%x, v%d' % (t, f2u(-math.log2(math.e)), v))
        self('v_exp_f32 v%d, v%d' % (t, t))
        self('v_add_f32 v%d, 1.0, v%d' % (t, t))
        self('v_rcp_f32 v%d, v%d' % (t, t))
        self('v_mul_f32 v%d, v%d, v%d' % (v, v, t))
    def write_stamps(self):
        if not self.stamps: return
        self('s_mul_i32 s60, s2, %d' % (NST * 8))
        self('s_add_u32 s60, s38, s60')
        self('s_addc_u32 s61, s39, 0')
        self('s_add_u32 s60, s60, 0x%x' % STAMP_OFF)
        self('s_addc_u32 s61, s61, 0')
        self('s_mov_b64 exec, 1')
        self('v_mov_b32 v250, 0')
        for k in range(NST):
            self('v_mov_b32 v252, s%d' % (70 + 2 * k))
            self('v_mov_b32 v253, s%d' % (71 + 2 * k))
            self('global_store_dwordx2 v250, v[252:253], s[60:61] offset:%d' % (8 * k))
            self('s_nop 1')

def R(b, n): return 'v[%d:%d]' % (b, b + n - 1)

def gen(stamps=False, o=None):
    o = o or {}
    AW = o.get('awin', 8)
    WQPOL = o.get('wqpol', '')
    WOPOL = o.get('wopol', '')
    a = G(stamps)
    X, CKV, WQ, WUK, WUV, WO, W1, W2, OUT, DBG, WS = 16, 18, 20, 22, 24, 26, 30, 32, 34, 36, 38
    a('''
    s_cmp_ge_u32 s2, 256
    s_cbranch_scc1 L_end
    s_load_dwordx16 s[16:31], s[0:1], 0
    s_load_dwordx8 s[32:39], s[0:1], 64
    s_memrealtime s[4:5]
    s_getpc_b64 s[6:7]
    L_pc:
    v_lshrrev_b32 v1, 6, v0
    v_readfirstlane_b32 s3, v1
    v_and_b32 v1, 63, v0
    ''')
    if stamps:
        for k in range(NST):
            a('s_mov_b64 s[%d:%d], 0' % (70 + 2 * k, 71 + 2 * k))
    a('''
    s_cmp_lg_u32 s3, 7
    s_cbranch_scc1 L_nopf
    v_lshlrev_b32 v2, 7, v1
    global_load_dword v255, v2, s[6:7]
    v_add_u32 v2, 0x2000, v2
    v_min_u32 v2, L_end-L_pc, v2
    global_load_dword v255, v2, s[6:7]
    L_nopf:
    s_waitcnt lgkmcnt(0)
    ''')
    if stamps:
        a('s_mov_b64 s[70:71], s[4:5]')
    a.srd(44, WS, WS_REC)
    a('''
    s_mov_b32 s52, 0xffff0000
    s_mov_b32 s53, 0
    s_mov_b32 s54, 0
    s_mov_b32 s55, 0x0000ffff
    s_mov_b32 s56, 0
    s_mov_b32 s57, 0xffff0000
    s_cmp_ge_u32 s2, 128
    s_cbranch_scc1 L_W
    ''')
    STG = 0x20000
    PB = STG
    LB = STG + 0x2000
    a('''
    s_cmp_ge_u32 s3, 4
    s_cbranch_scc1 L_Ag
    ''')
    a.srd(40, CKV, 0x2000000)
    a('''
    v_lshrrev_b32 v12, 4, v1          ; g / r = l/16
    v_and_b32 v13, 15, v1             ; l%16
    v_lshlrev_b32 v14, 2, v12
    v_xor_b32 v14, v14, v13
    v_lshlrev_b32 v14, 4, v14
    v_lshl_add_u32 v3, v12, 10, v14
    v_xor_b32 v0, 32, v3
    s_lshl_b32 s8, s2, 18
    s_lshl_b32 s9, s3, 14
    s_add_u32 s8, s8, s9
    s_mov_b32 s15, 0
    v_mov_b32 v10, 0
    v_mov_b32 v11, 0
    ''')
    def dma_chunk(i, win=None, tagp='C'):
        ops = []
        for seg in range(4):
            for aa in range(4):
                ops.append((seg, aa))
        for (seg, aa) in ops:
            dma_one(i, seg, aa, win)
    def dma_one(i, seg, aa, win=None):
        if win is not None: a.vwait_n(win - 1)
        a('s_add_u32 m0, s9, 0x%x' % ((i % 2) * 65536 + aa * 4096 + seg * 1024))
        a('s_add_u32 s10, s8, 0x%x' % (i * 65536 + aa * 4096 + seg * 256))
        a.v('buffer_load_dwordx4 v%d, s[40:43], s10 offen nt lds' % (3 if aa < 2 else 0), 'C%d_%d' % (i, seg))
    a.label('L_Apass')
    a.vm = []
    dma_one(0, 0, 0); dma_one(0, 0, 1); dma_one(0, 0, 2); dma_one(0, 0, 3)
    a('''
    v_mbcnt_lo_u32_b32 v1, -1, 0
    v_mbcnt_hi_u32_b32 v1, -1, v1
    v_lshrrev_b32 v12, 4, v1          ; g
    v_and_b32 v13, 15, v1             ; key
    v_lshlrev_b32 v5, 4, v1
    v_add_u32 v5, 0x%x, v5            ; p_rd / q frag read = STG + lane*16
    ; p_wr = PB + w*1024 + (q/2)*512 + j*16 + (q%%2)*8   (+hh*256)
    v_lshrrev_b32 v14, 1, v12
    v_lshlrev_b32 v14, 9, v14
    v_lshl_add_u32 v14, v13, 4, v14
    v_and_b32 v15, 1, v12
    v_lshl_add_u32 v14, v15, 3, v14
    s_lshl_b32 s10, s3, 10
    s_add_u32 s10, s10, 0x%x
    v_add_u32 v4, s10, v14
    ; pv_base: lane (g2 = l/32, u = (l/16)&1, r = (l%%16)/4, c = l%%4)
    ;  = w*1024(seg) + (2*g2)*4096 + r*256 + ((r<<2) | ((2u + c/2) ^ 2*g2))*16 + (c&1)*8
    v_lshrrev_b32 v14, 5, v1          ; g2
    v_lshrrev_b32 v16, 2, v13         ; r
    v_bfe_u32 v17, v1, 1, 1           ; c/2
    v_lshl_add_u32 v17, v15, 1, v17   ; 2u + c/2
    v_lshlrev_b32 v18, 1, v14         ; 2*g2
    v_xor_b32 v17, v17, v18
    v_lshl_add_u32 v17, v16, 2, v17
    v_lshlrev_b32 v17, 4, v17
    v_lshl_add_u32 v17, v16, 8, v17
    v_lshl_add_u32 v17, v14, 13, v17
    v_and_b32 v18, 1, v1
    v_lshl_add_u32 v17, v18, 3, v17
    s_lshl_b32 s10, s3, 10
    v_add_u32 v2, s10, v17
    ; qk_base: lane (key = 4a + r, g): w*16384 + a*4096 + r*256 + ((r<<2) | (g ^ (a&2)))*16
    v_and_b32 v17, 3, v13             ; r
    v_and_b32 v18, 2, v16             ; a&2   (v16 = key/4 = a)
    v_xor_b32 v18, v18, v12
    v_lshl_add_u32 v18, v17, 2, v18
    v_lshlrev_b32 v18, 4, v18
    v_lshl_add_u32 v18, v17, 8, v18
    v_lshl_add_u32 v18, v16, 12, v18
    v_add_u32 v1, s9, v18
    v_mov_b32 v6, 0
    v_mov_b32 v7, 0
    v_mov_b32 v8, 0xff800000
    v_mov_b32 v9, 0xff800000
    ''' % (STG, PB))
    for seg in range(1, 4):
        for aa in range(4): dma_one(0, seg, aa, AW)
    dma_chunk(1, AW)
    a.stamp(1)
    a('s_barrier')
    a.stamp(2)
    a('s_cmp_lg_u32 s15, 0')
    a('s_cbranch_scc1 L_Anoq')
    for grp in range(4):
        for k in range(8):
            f = grp * 8 + k
            a.d('ds_read_b128 %s, v5 offset:%d' % (R(128 + 4 * f, 4), f * 1024), 'q')
        a.dall()
    a.label('L_Anoq')
    S = 16
    QKB = [24, 28, 32, 36, 40, 44, 48, 52]
    for i in range(4):
        slot = (i % 2) * 65536
        for k in range(4):
            if slot:
                a('v_xor_b32 v%d, 0x%x, v1' % (12 + k, slot + (k << 6)))
            else:
                a('v_xor_b32 v%d, 0x%x, v1' % (12 + k, k << 6))
        for r in range(4):
            a('v_mov_b32 v%d, v10' % (S + r))
            a('v_mov_b32 v%d, v11' % (S + 4 + r))
        def rd(seg):
            a.vwait('C%d_%d' % (i, seg)) if ('C%d_%d' % (i, seg)) in a.vm else None
            for k in range(4):
                a.d('ds_read_b128 %s, v%d offset:%d' % (R(QKB[(seg % 2) * 4 + k], 4), 12 + k, seg * 1024), 'k%d_%d' % (seg, k))
        def mm(seg):
            for k in range(4):
                a.dwait('k%d_%d' % (seg, k))
                ks = seg * 4 + k
                for hh in range(2):
                    a('v_mfma_f32_16x16x32_bf16 %s, %s, %s, %s' % (R(S + 4 * hh, 4), R(QKB[(seg % 2) * 4 + k], 4), R(128 + (hh * 16 + ks) * 4, 4), R(S + 4 * hh, 4)))
        if i < 3:
            rd(0); rd(1); mm(0); rd(2); mm(1); rd(3); mm(2); mm(3)
        else:
            rd(0); rd(1); mm(0); rd(2); mm(1); mm(2); rd(3); mm(3)
        if i == 3: a.stamp(3)
        E = 24
        for r in range(8):
            a('v_exp_f32 v%d, v%d' % (E + r, S + r))
        for r in range(4):
            a('v_cvt_pk_bf16_f32 v%d, v%d, v%d' % (32 + r, E + 2 * r, E + 2 * r + 1))
        if i == 0:
            a('s_barrier')
        pb = (i % 2) * 4096
        a.d('ds_write_b64 v4, v[32:33] offset:%d' % pb, 'w')
        a.d('ds_write_b64 v4, v[34:35] offset:%d' % (pb + 256), 'w')
        for hh in range(2):
            a('v_max3_f32 v%d, v%d, v%d, v%d' % (8 + hh, 8 + hh, S + 4 * hh, S + 4 * hh + 1))
            a('v_max3_f32 v%d, v%d, v%d, v%d' % (8 + hh, 8 + hh, S + 4 * hh + 2, S + 4 * hh + 3))
            a('v_add_f32 v%d, v%d, v%d' % (E + 4 * hh, E + 4 * hh, E + 4 * hh + 1))
            a('v_add_f32 v%d, v%d, v%d' % (E + 4 * hh + 2, E + 4 * hh + 2, E + 4 * hh + 3))
            a('v_add_f32 v%d, v%d, v%d' % (6 + hh, 6 + hh, E + 4 * hh))
            a('v_add_f32 v%d, v%d, v%d' % (6 + hh, 6 + hh, E + 4 * hh + 2))
        if i == 3:
            a('''
            v_mbcnt_lo_u32_b32 v36, -1, 0
            v_mbcnt_hi_u32_b32 v36, -1, v36
            v_and_b32 v37, 15, v36
            v_lshrrev_b32 v38, 4, v36
            v_lshlrev_b32 v37, 6, v37
            v_lshl_add_u32 v37, v38, 2, v37
            s_lshl_b32 s10, s3, 4
            s_add_u32 s10, s10, 0x%x
            v_add_u32 v37, s10, v37
            ''' % LB)
            a.d('ds_write_b32 v37, v6', 'w')
            a.d('ds_write_b32 v37, v7 offset:1024', 'w')
            a.d('ds_write_b32 v37, v8 offset:2048', 'w')
            a.d('ds_write_b32 v37, v9 offset:3072', 'w')
        for k in range(4):
            a('v_xor_b32 v%d, 0x%x, v2' % (12 + k, slot + (k << 6)))
        a.dall()
        a('s_barrier')
        PVB = [24, 28, 32, 36, 40, 44]
        seq = [(t, ct) for t in range(4) for ct in range(4)]
        def rdv(n):
            t, ct = seq[n]
            b = PVB[n % 6]
            for rdi in range(2):
                a.d('ds_read_b64_tr_b16 %s, v%d offset:%d' % (R(b + 2 * rdi, 2), 12 + ct, t * 16384 + rdi * 4096), 'v%d' % n)
        a.d('ds_read_b128 %s, v5 offset:%d' % (R(48, 4), pb), 'p0')
        rdv(0); rdv(1)
        for t in range(1, 4):
            a.d('ds_read_b128 %s, v5 offset:%d' % (R(48 + 4 * t, 4), pb + t * 1024), 'p%d' % t)
        rdv(2); rdv(3); rdv(4)
        for n in range(16):
            t, ct = seq[n]
            a.dwait('v%d' % n); a.dwait('p%d' % t)
            cin = R(64 + 16 * ct, 16) if not (i == 0 and t == 0) else '0'
            a('v_mfma_f32_32x32x16_bf16 %s, %s, %s, %s' % (R(64 + 16 * ct, 16), R(48 + 4 * t, 4), R(PVB[n % 6], 4), cin))
            if n + 5 < 16: rdv(n + 5)
        if i < 2:
            a('s_barrier')
            dma_chunk(i + 2)
    a.stamp(4)
    a('''
    v_mbcnt_lo_u32_b32 v36, -1, 0
    v_mbcnt_hi_u32_b32 v36, -1, v36
    v_and_b32 v37, 31, v36
    v_lshrrev_b32 v38, 5, v36
    v_lshlrev_b32 v39, 6, v37
    v_lshl_add_u32 v39, v38, 5, v39
    v_add_u32 v39, 0x%x, v39
    ds_read_b128 v[16:19], v39
    ds_read_b128 v[20:23], v39 offset:16
    ds_read_b128 v[24:27], v39 offset:2048
    ds_read_b128 v[28:31], v39 offset:2064
    s_waitcnt lgkmcnt(0)
    v_max3_f32 v24, v24, v25, v26
    v_max3_f32 v27, v27, v28, v29
    v_max3_f32 v24, v24, v30, v31
    v_max_f32 v24, v24, v27
    v_add_f32 v16, v16, v17
    v_add_f32 v18, v18, v19
    v_add_f32 v20, v20, v21
    v_add_f32 v22, v22, v23
    v_add_f32 v16, v16, v18
    v_add_f32 v20, v20, v22
    v_add_f32 v17, v16, v20
    ''' % LB)
    a.swap_red('v_max_f32', 24, 25, 32)
    a.swap_red('v_add_f32', 17, 18, 32)
    a('''
    v_mov_b32 v25, 0x42000000
    v_cmp_gt_f32 vcc, abs(v24), v25
    s_cmp_lg_u32 s15, 0
    s_cbranch_scc1 L_Aok
    s_cbranch_vccz L_Aok
    v_ceil_f32 v24, v24
    v_sub_f32 v10, 0, v24
    v_mov_b32 v11, v10
    v_permlane16_swap_b32 v10, v11
    s_mov_b32 s15, 1
    s_nop 7
    s_nop 7
    s_barrier
    s_branch L_Apass
    L_Aok:
    ''')
    a('''
    v_lshlrev_b32 v40, 3, v37          ; j*8
    v_lshl_add_u32 v40, v38, 19, v40   ; + g'*4*131072
    s_lshl_b32 s10, s3, 15
    s_lshl_b32 s11, s2, 8
    s_add_u32 s10, s10, s11
    s_add_u32 s10, s10, 0x%x
    ''' % OP)
    for r in range(16):
        hr = 8 * (r // 4) + r % 4
        b = 44 + (r % 4) * 2
        a('v_cvt_pk_bf16_f32 v%d, v%d, v%d' % (b, 64 + r, 80 + r))
        a('v_cvt_pk_bf16_f32 v%d, v%d, v%d' % (b + 1, 96 + r, 112 + r))
        a('s_add_u32 s11, s10, 0x%x' % (hr * 131072))
        a('buffer_store_dwordx2 %s, v40, s[44:47], s11 offen sc1' % R(b, 2))
    a('''
    s_cmp_lg_u32 s3, 0
    s_cbranch_scc1 L_end
    ; ML store: lanes 0..31
    v_cndmask_b32 v16, v10, v11, s[52:53]
    v_sub_f32 v16, 0, v16
    v_lshlrev_b32 v41, 10, v37
    s_lshl_b32 s11, s2, 3
    s_add_u32 s11, s11, 0x%x
    s_mov_b32 exec_hi, 0
    buffer_store_dwordx2 v[16:17], v41, s[44:47], s11 offen sc1
    s_mov_b64 exec, -1
    ''' % ML)
    a.stamp(5)
    a.srd(48, WS, FP + 86 * 2048)
    a.srd(40, X, 1024)
    a('''
    s_and_b32 s10, s2, 7
    s_lshl_b32 s10, s10, 6
    s_lshr_b32 s11, s2, 3
    s_lshl_b32 s11, s11, 2
    s_add_u32 s10, s10, s11            ; m0
    s_lshl_b32 s11, s10, 2             ; m0*4
    s_lshl_b32 s12, s10, 1             ; m0*2
    v_lshlrev_b32 v41, 11, v36         ; lane*2048
    v_and_b32 v42, 3, v36
    v_lshlrev_b32 v43, 1, v42          ; (lane&3)*2
    buffer_load_ushort v60, v43, s[40:43], s12 offen
    v_and_b32 v44, 1, v36
    v_cmp_eq_u32 s[58:59], 1, v44
    v_and_b32 v44, 2, v36
    v_cmp_eq_u32 s[62:63], 2, v44
    ''')
    def gather4(base, srd, lab, dst):
        a('s_add_u32 s13, s11, 0x%x' % base)
        a('s_add_u32 s14, s11, 0x%x' % (base + 64 * 2048))
        a('s_mov_b32 s8, 0')
        a.label(lab)
        a('buffer_load_dwordx4 v[16:19], v41, s[%d:%d], s13 offen sc1' % (srd, srd + 3))
        a('buffer_load_dwordx4 v[20:23], v41, s[%d:%d], s14 offen sc1' % (srd, srd + 3))
        a('''
        s_add_u32 s8, s8, 1
        s_waitcnt vmcnt(0)
        v_max3_u32 v24, v16, v17, v18
        v_max3_u32 v25, v19, v20, v21
        v_max3_u32 v24, v24, v22, v23
        v_max_u32 v24, v24, v25
        v_cmp_eq_u32 vcc, -1, v24
        s_cmp_gt_u32 s8, %d
        s_cbranch_scc1 %s_x
        s_cbranch_vccnz %s
        %s_x:
        v_add_f32 v16, v16, v20
        v_add_f32 v17, v17, v21
        v_add_f32 v18, v18, v22
        v_add_f32 v19, v19, v23
        v_cndmask_b32 v20, v16, v17, s[58:59]
        v_cndmask_b32 v21, v17, v16, s[58:59]
        v_cndmask_b32 v22, v18, v19, s[58:59]
        v_cndmask_b32 v23, v19, v18, s[58:59]
        v_add_f32_dpp v20, v21, v20 quad_perm:[1,0,3,2] row_mask:0xf bank_mask:0xf
        v_add_f32_dpp v22, v23, v22 quad_perm:[1,0,3,2] row_mask:0xf bank_mask:0xf
        v_cndmask_b32 v%d, v20, v22, s[62:63]
        v_cndmask_b32 v21, v22, v20, s[62:63]
        v_add_f32_dpp v%d, v21, v%d quad_perm:[2,3,0,1] row_mask:0xf bank_mask:0xf
        v_add_f32_dpp v%d, v%d, v%d row_ror:4 row_mask:0xf bank_mask:0xf
        v_add_f32_dpp v%d, v%d, v%d row_ror:8 row_mask:0xf bank_mask:0xf
        ''' % ((SPIN, lab, lab, lab) + (dst,) * 9))
        a.swap_red('v_add_f32', dst, 21, 16)
        a.swap_red('v_add_f32', dst, 21, 32)
    gather4(FP, 48, 'L_gf', 61)
    a.rnd_bf16(61)
    a.silu(61, 21)
    a.rnd_bf16(61)
    a('v_lshlrev_b32 v60, 16, v60')
    a.srd(40, OUT, 1024)
    a.stamp(6)
    gather4(SP, 44, 'L_gs', 62)
    a.rnd_bf16(62)
    a('v_mul_f32 v62, v62, v61')
    a.rnd_bf16(62)
    a('''
    v_add_f32 v62, v62, v60
    v_cvt_pk_bf16_f32 v62, v62, v62
    s_mov_b64 exec, 15
    buffer_store_short v62, v43, s[40:43], s12 offen
    ''')
    a.stamp(7)
    a.write_stamps()
    a('s_endpgm')
    a.label('L_Ag')
    a('''
    s_setprio 3
    s_sub_u32 s3, s3, 4
    ; nonce publication by WGs 0..7 (wave 4)
    s_cmp_ge_u32 s2, 8
    s_cbranch_scc1 L_Ag1
    s_cmp_lg_u32 s3, 0
    s_cbranch_scc1 L_Ag1
    s_or_b32 s4, s4, 1
    v_mov_b32 v4, s4
    v_mov_b32 v5, 0
    v_mov_b32 v6, 0
    s_mov_b64 exec, 1
    global_atomic_cmpswap v6, v[4:5], s[36:37] sc1
    s_mov_b64 exec, -1
    L_Ag1:
    v_mov_b32 v6, 0
    s_mov_b32 s8, 0
    L_Agn:
    s_sleep 8
    global_load_dword v4, v6, s[36:37] sc1
    s_add_u32 s8, s8, 1
    s_waitcnt vmcnt(0)
    v_readfirstlane_b32 s4, v4
    s_cmp_gt_u32 s8, %d
    s_cbranch_scc1 L_Agn_x
    s_cmp_eq_u32 s4, 0
    s_cbranch_scc1 L_Agn
    L_Agn_x:
    s_lshl_b32 s4, s4, 8              ; expected sum = 256 * nonce
    ; data voffset: (l%%16)*1024 + (l/16)*16 ; soffset = QA + hh*16384 + ks*64, ks = 4u + i
    v_and_b32 v2, 15, v1
    v_lshrrev_b32 v3, 4, v1
    v_lshlrev_b32 v2, 10, v2
    v_lshl_add_u32 v2, v3, 4, v2
    v_lshlrev_b32 v3, 4, v1           ; lane*16
    s_lshl_b32 s9, s3, 8
    s_add_u32 s10, s9, 0x4000
    s_lshl_b32 s11, s3, 10
    s_add_u32 s11, s11, 0x%x
    s_mov_b32 s8, 0
    L_Agp:
    ''' % (SPIN, QC))
    for hh in range(2):
        for i in range(4):
            a('buffer_load_dwordx4 %s, v2, s[44:47], s%d offen offset:%d sc1' % (R(8 + (hh * 4 + i) * 4, 4), 9 + hh, i * 64))
    a('buffer_load_dwordx4 v[40:43], v3, s[44:47], s11 offen sc1')
    a('s_add_u32 s8, s8, 1')
    a('s_waitcnt vmcnt(0)')
    a('v_add3_u32 v4, v8, v9, v10')
    a('v_add3_u32 v5, v11, v12, v13')
    for k in range(14, 42, 4):
        a('v_add3_u32 v4, v4, v%d, v%d' % (k, k + 1))
        a('v_add3_u32 v5, v5, v%d, v%d' % (k + 2, k + 3))
    a('v_add3_u32 v4, v4, v42, v43')
    a('v_add_u32 v4, v4, v5')
    a.wave_red('v_add_u32', 4, 5)
    a('''
    v_readfirstlane_b32 s12, v4
    s_cmp_gt_u32 s8, %d
    s_cbranch_scc1 L_Agp_x
    s_cmp_lg_u32 s12, s4
    s_cbranch_scc1 L_Agp
    L_Agp_x:
    s_lshl_b32 s9, s3, 12
    s_add_u32 s9, s9, 0x%x
    v_add_u32 v3, s9, v3
    ''' % (SPIN, STG))
    for hh in range(2):
        for i in range(4):
            a('ds_write_b128 v3, %s offset:%d' % (R(8 + (hh * 4 + i) * 4, 4), hh * 16384 + i * 1024))
    a('''
    s_waitcnt lgkmcnt(0)
    s_barrier
    s_endpgm
    ''')
    SM = 0x20000
    XN, QB, CB, ROWS, WB = SM, SM + 0x400, SM + 0x500, SM + 0x800, SM + 0x2000
    W1L, W2L, WOL = 0x8000, 0xC000, 0x10000
    a.label('L_W')
    a.vm = []; a.lg = []
    a.srd(40, WQ, 0x400000)
    a.srd(48, X, 1024)
    a('''
    s_and_b32 s8, s2, 7               ; x
    s_lshr_b32 s9, s2, 3
    s_sub_u32 s9, s9, 16              ; k
    s_lshr_b32 s10, s9, 2
    s_lshl_b32 s11, s8, 2
    s_add_u32 s10, s10, s11           ; h
    s_and_b32 s11, s9, 3              ; j
    s_mul_i32 s12, s8, 11
    s_add_u32 s12, s12, s9            ; fb
    s_cmp_lt_u32 s9, 11
    s_cselect_b32 s12, s12, 1000
    s_lshl_b32 s13, s10, 8            ; h*256
    v_lshlrev_b32 v9, 4, v1           ; lane*16
    s_cmp_lg_u32 s3, 7
    s_cbranch_scc1 L_Wx
    buffer_load_dwordx4 v[68:71], v9, s[48:51], 0 offen
    L_Wx:
    v_lshrrev_b32 v6, 4, v1           ; g / r
    v_and_b32 v7, 15, v1              ; pc / i
    v_lshlrev_b32 v8, 1, v6
    v_xor_b32 v8, v8, v7
    v_lshlrev_b32 v8, 4, v8           ; (pc ^ (r<<1))*16
    v_lshl_add_u32 v2, v6, 13, v8
    v_xor_b32 v3, 0x80, v2            ; voffB
    ''')
    def wq_stage(st):
        a('s_add_u32 s14, s11, %d' % st)
        a('s_and_b32 s14, s14, 3')
        a('s_lshl_b32 s14, s14, 3')
        a('s_add_u32 s14, s14, s3')
        a('s_lshl_b32 s15, s14, 17')
        a('s_add_u32 s15, s15, s13')
        a('s_lshl_b32 s14, s14, 12')
        for i in range(4):
            a('s_add_u32 m0, s14, %d' % (i * 1024))
            a('s_add_u32 s60, s15, %d' % (i * 32768))
            a.v('buffer_load_dwordx4 v%d, s[40:43], s60 offen %s lds' % (2 if i < 2 else 3, WQPOL), 'S%d' % st)
    wq_stage(0)
    a.srd(48, WUK, 0x400000)
    a('''
    v_lshlrev_b32 v5, 4, v6           ; g*16
    v_lshl_add_u32 v10, v7, 13, v5
    s_lshl_b32 s14, s11, 3
    s_add_u32 s14, s14, s3            ; 8j + w
    s_lshl_b32 s15, s14, 17
    s_add_u32 s15, s15, s13
    ''')
    for ks in range(4):
        a.v('buffer_load_dwordx4 %s, v10, s[48:51], s15 offen offset:%d nt' % (R(16 + 4 * ks, 4), ks * 64), 'UK')
    a('''
    v_mov_b32 v12, -1
    v_mov_b32 v13, -1
    v_mov_b32 v14, -1
    v_mov_b32 v15, -1
    s_lshl_b32 s60, s10, 2
    s_add_u32 s60, s60, s11           ; cons = 4h + j
    s_lshl_b32 s64, s60, 15
    s_lshl_b32 s61, s3, 12
    s_add_u32 s64, s64, s61
    s_add_u32 s64, s64, 0x%x          ; s64 = inbox base of this wave
    s_lshl_b32 s65, s60, 11
    s_lshl_b32 s61, s3, 8
    s_add_u32 s65, s65, s61
    s_add_u32 s65, s65, 0x%x          ; s65 = SP row of this wave
    s_lshl_b32 s66, s12, 11
    s_add_u32 s66, s66, s61
    s_add_u32 s66, s66, 0x%x          ; s66 = FP row of this wave
    s_lshl_b32 s67, s10, 10
    s_add_u32 s67, s67, 0x%x          ; s67 = ML row of head
    v_lshlrev_b32 v11, 2, v1          ; lane*4
    ''' % (OP, SP, FP, ML))
    for i in range(4):
        a.v('buffer_store_dwordx4 v[12:15], v9, s[44:47], s64 offen offset:%d sc1' % (i * 1024), 'RST')
    a.v('buffer_store_dword v12, v11, s[44:47], s65 offen sc1', 'RST')
    a('''
    s_cmp_lt_u32 s12, 86
    s_cselect_b32 s61, s66, s65
    ''')
    a.v('buffer_store_dword v12, v11, s[44:47], s61 offen sc1', 'RST')
    a('''
    s_lshl_b32 s61, s11, 8
    s_add_u32 s61, s61, s67
    s_cmp_eq_u32 s3, 0
    s_cselect_b32 s61, s61, s65
    ''')
    a.v('buffer_store_dword v12, v11, s[44:47], s61 offen sc1', 'RST')
    for st in range(1, 4): wq_stage(st)
    a('''
    v_lshrrev_b32 v12, 2, v7          ; r'
    v_and_b32 v13, 1, v6
    v_lshl_add_u32 v13, v13, 2, v12
    v_lshlrev_b32 v13, 1, v13         ; swz
    v_bfe_u32 v14, v1, 1, 1
    s_lshl_b32 s14, s3, 1
    v_add_u32 v14, s14, v14
    v_xor_b32 v14, v14, v13
    v_lshlrev_b32 v14, 4, v14
    v_lshl_add_u32 v12, v6, 3, v12    ; 8g + r'
    v_lshl_add_u32 v14, v12, 8, v14
    v_and_b32 v13, 1, v1
    v_lshl_add_u32 v4, v13, 3, v14
    v_add_u32 v5, 0x%x, v5            ; SM + g*16
    s_cmp_lg_u32 s3, 7
    s_cbranch_scc1 L_Wln
    s_waitcnt vmcnt(%d)
    ''' % (SM, len(a.vm)))
    for i in range(4):
        a('v_lshlrev_b32 v%d, 16, v%d' % (72 + 2 * i, 68 + i))
        a('v_and_b32 v%d, 0xffff0000, v%d' % (73 + 2 * i, 68 + i))
    a('''
    v_add_f32 v80, v72, v73
    v_add_f32 v81, v74, v75
    v_add_f32 v82, v76, v77
    v_add_f32 v83, v78, v79
    v_add_f32 v80, v80, v81
    v_add_f32 v82, v82, v83
    v_add_f32 v80, v80, v82
    ''')
    a.wave_red('v_add_f32', 80, 81)
    a('v_mul_f32 v80, 0x%x, v80' % f2u(1 / 512))
    a('v_mov_b32 v82, 0')
    for i in range(8):
        a('v_sub_f32 v83, v%d, v80' % (72 + i))
        a('v_fmac_f32 v82, v83, v83')
    a.wave_red('v_add_f32', 82, 81)
    a('v_mul_f32 v82, 0x%x, v82' % f2u(1 / 512))
    a.rnd_bf16(80)
    a.rnd_bf16(82)
    a('v_add_f32 v82, 0x%x, v82' % f2u(1e-5))
    a.rnd_bf16(82)
    a('v_sqrt_f32 v82, v82')
    a.rnd_bf16(82)
    a('v_rcp_f32 v82, v82')
    for i in range(8):
        a('v_sub_f32 v%d, v%d, v80' % (72 + i, 72 + i))
    for i in range(4):
        a('v_cvt_pk_bf16_f32 v%d, v%d, v%d' % (68 + i, 72 + 2 * i, 73 + 2 * i))
    for i in range(4):
        a('v_lshlrev_b32 v%d, 16, v%d' % (72 + 2 * i, 68 + i))
        a('v_and_b32 v%d, 0xffff0000, v%d' % (73 + 2 * i, 68 + i))
    for i in range(8):
        a('v_mul_f32 v%d, v%d, v82' % (72 + i, 72 + i))
    for i in range(4):
        a('v_cvt_pk_bf16_f32 v%d, v%d, v%d' % (68 + i, 72 + 2 * i, 73 + 2 * i))
    a('''
    v_add_u32 v72, 0x%x, v9
    ds_write_b128 v72, v[68:71]
    s_waitcnt lgkmcnt(0)
    L_Wln:
    ''' % XN)
    for st in range(4):
        a.vwait('S%d' % st)
        a('s_barrier')
        if st == 0: a.stamp(1)
        a('s_add_u32 s14, s11, %d' % st)
        a('s_and_b32 s14, s14, 3')
        a('s_lshl_b32 s15, s14, 15')
        a('v_add_u32 v12, s15, v4')
        a('s_lshl_b32 s15, s14, 8')
        a('v_add_u32 v13, s15, v5')
        for ks in range(4):
            a.d('ds_read_b128 %s, v13 offset:%d' % (R(52 + 4 * ks, 4), ks * 64), 'a%d' % ks)
            for rdi in range(2):
                a.d('ds_read_b64_tr_b16 %s, v12 offset:%d' % (R(36 + 4 * ks + 2 * rdi, 2), ks * 8192 + rdi * 1024), 'a%d' % ks)
        if st == 0:
            a('v_mov_b32 v14, 0')
            a.v('global_load_dword v15, v14, s[36:37] sc1', 'N')
        for ks in range(4):
            a.dwait('a%d' % ks)
            a('v_mfma_f32_16x16x32_bf16 v[32:35], %s, %s, %s' % (R(52 + 4 * ks, 4), R(36 + 4 * ks, 4), 'v[32:35]' if (st or ks) else '0'))
    a.stamp(2)
    a('''
    s_lshl_b32 s14, s3, 5
    s_add_u32 s14, s14, 0x%x
    v_lshl_add_u32 v12, v7, 1, s14    ; QB + (16w + l%%16)*2
    v_cvt_pk_bf16_f32 v32, v32, v32
    ds_write_b16 v12, v32
    s_waitcnt vmcnt(0) lgkmcnt(0)
    s_barrier
    ''' % QB)
    a.vm = []
    for ks in range(4):
        a.d('ds_read_b128 %s, v5 offset:%d' % (R(52 + 4 * ks, 4), QB - SM + ks * 64), 'a%d' % ks)
    a('''
    v_readfirstlane_b32 s4, v15
    s_mov_b32 s60, 0
    s_cmp_lg_u32 s4, 0
    s_cbranch_scc1 L_Wn_x
    L_Wn:
    global_load_dword v15, v14, s[36:37] sc1
    s_add_u32 s60, s60, 1
    s_waitcnt vmcnt(0)
    v_readfirstlane_b32 s4, v15
    s_cmp_gt_u32 s60, %d
    s_cbranch_scc1 L_Wn_x
    s_cmp_eq_u32 s4, 0
    s_cbranch_scc1 L_Wn
    L_Wn_x:
    ''' % SPIN)
    for ks in range(4):
        a.dwait('a%d' % ks)
        a('v_mfma_f32_16x16x32_bf16 v[32:35], %s, %s, %s' % (R(16 + 4 * ks, 4), R(52 + 4 * ks, 4), 'v[32:35]' if ks else '0'))
    sc = f2u(128 ** -0.5 * math.log2(math.e))
    a('''
    s_lshl_b32 s14, s10, 10           ; h*1024
    s_lshl_b32 s15, s11, 8
    s_add_u32 s14, s14, s15
    s_lshl_b32 s15, s3, 5
    s_add_u32 s14, s14, s15           ; QA + h*1024 + j*256 + w*32
    s_lshl_b32 s15, s11, 5
    s_add_u32 s15, s15, s10
    s_lshl_b32 s15, s15, 3
    s_add_u32 s15, s15, s3
    s_lshl_b32 s15, s15, 2
    s_add_u32 s15, s15, 0x%x          ; QC + ((j*32+h)*8+w)*4
    v_lshlrev_b32 v13, 3, v6          ; q*8
    s_mov_b32 s60, 0x00010001
    s_mov_b32 s61, 0x00010001
    v_mul_f32 v32, 0x%x, v32
    v_mul_f32 v33, 0x%x, v33
    v_mul_f32 v34, 0x%x, v34
    v_mul_f32 v35, 0x%x, v35
    v_cvt_pk_bf16_f32 v32, v32, v33
    v_cvt_pk_bf16_f32 v33, v34, v35
    s_mov_b64 exec, s[60:61]
    buffer_store_dwordx2 v[32:33], v13, s[44:47], s14 offen sc1
    s_mov_b64 exec, -1
    v_add_u32 v34, v32, v33
    v_readlane_b32 s60, v34, 0
    v_readlane_b32 s61, v34, 16
    v_readlane_b32 s62, v34, 32
    v_readlane_b32 s63, v34, 48
    s_sub_u32 s4, s4, s60
    s_sub_u32 s4, s4, s61
    s_sub_u32 s4, s4, s62
    s_sub_u32 s4, s4, s63
    v_mov_b32 v34, s4
    s_mov_b64 exec, 1
    buffer_store_dword v34, v14, s[44:47], s15 offen sc1
    s_mov_b64 exec, -1
    ''' % (QC, sc, sc, sc, sc))
    a.stamp(3)
    a('''
    v_lshrrev_b32 v12, 3, v1          ; r8
    v_and_b32 v13, 7, v1              ; c8
    v_lshlrev_b32 v14, 4, v13
    v_lshl_add_u32 v14, v12, 10, v14  ; r8*1024 + c8*16   (w2 voff)
    v_bfe_u32 v15, v1, 4, 1           ; (r8>>1)&1
    v_lshlrev_b32 v15, 5, v15
    v_xor_b32 v68, v14, v15           ; voffC
    v_xor_b32 v69, 64, v68            ; voffD
    s_cmp_ge_u32 s12, 86
    s_cbranch_scc1 L_Wnf1
    ''')
    a.srd(40, W1, 512 * 2752)
    a.srd(48, W2, 1376 * 1024)
    a('''
    v_lshrrev_b32 v12, 1, v1
    v_mul_u32_u24 v12, 2752, v12
    v_and_b32 v13, 1, v1
    v_lshl_add_u32 v12, v13, 4, v12
    s_mul_i32 s14, s3, %d
    s_lshl_b32 s15, s12, 5
    s_add_u32 s14, s14, s15
    s_lshl_b32 s15, s3, 11
    s_add_u32 m0, s15, 0x%x
    s_add_u32 s60, s14, %d
    buffer_load_dwordx4 v12, s[40:43], s14 offen lds
    s_add_u32 m0, s15, 0x%x
    s_lshl_b32 s14, s12, 14
    buffer_load_dwordx4 v12, s[40:43], s60 offen lds
    s_lshl_b32 s60, s3, 7
    s_add_u32 s14, s14, s60
    s_add_u32 m0, s15, 0x%x
    s_add_u32 s60, s14, 8192
    buffer_load_dwordx4 v14, s[48:51], s14 offen nt lds
    s_add_u32 m0, s15, 0x%x
    s_nop 0
    buffer_load_dwordx4 v14, s[48:51], s60 offen nt lds
    L_Wnf1:
    ''' % (64 * 2752, W1L, 32 * 2752, W1L + 1024, W2L, W2L + 1024))
    a.srd(40, WUV, 0x400000)
    a.srd(48, WO, 0x400000)
    a('''
    v_lshl_add_u32 v2, v6, 18, v8
    v_xor_b32 v3, 0x80, v2
    s_lshl_b32 s14, s11, 5
    s_add_u32 s14, s14, s3            ; 32j + w
    s_lshl_b32 s14, s14, 15           ; *4 rows*8192
    s_add_u32 s14, s14, s13
    s_lshl_b32 s15, s3, 12
    ''')
    a.vm = []
    for i in range(4):
        a('s_add_u32 m0, s15, %d' % (i * 1024))
        a('s_add_u32 s60, s14, %d' % (i * 8192))
        a.v('buffer_load_dwordx4 v%d, s[40:43], s60 offen nt lds' % (2 if i < 2 else 3), 'UV')
    a('''
    s_lshl_b32 s14, s10, 17
    s_lshl_b32 s15, s3, 7
    s_add_u32 s14, s14, s15           ; h*128*1024 + w*128
    s_lshl_b32 s15, s3, 13
    s_add_u32 s15, s15, 0x%x          ; WOL + w*8192
    ''' % WOL)
    def wo_round(rho):
        for n in range(8):
            a('s_add_u32 m0, s15, %d' % (n * 1024))
            a('s_add_u32 s60, s14, %d' % ((64 * rho + 8 * n) * 1024))
            a.v('buffer_load_dwordx4 v%d, s[48:51], s60 offen %s lds' % (68 if n % 2 == 0 else 69, WOPOL), 'WO%d' % rho)
    wo_round(0)
    a.vwait('UV')
    a('s_barrier')
    a.stamp(4)
    for ks in range(4):
        for rdi in range(2):
            a.d('ds_read_b64_tr_b16 %s, v4 offset:%d' % (R(16 + 4 * ks + 2 * rdi, 2), ks * 8192 + rdi * 1024), 'uv')
    a.dall()
    a('''
    s_cmp_ge_u32 s12, 86
    s_cbranch_scc1 L_Wnf2
    v_lshrrev_b32 v12, 2, v7
    v_lshl_add_u32 v12, v6, 3, v12    ; 8g + r'
    v_and_b32 v13, 3, v1
    v_lshlrev_b32 v13, 3, v13         ; c'*8
    v_lshl_add_u32 v12, v12, 5, v13
    v_add_u32 v12, 0x%x, v12
    ''' % W1L)
    for grp in range(4):
        for ks in range(4):
            k = grp * 4 + ks
            a.d('ds_read_b128 %s, v5 offset:%d' % (R(52 + 4 * ks, 4), k * 64), 'a%d' % ks)
            for rdi in range(2):
                a.d('ds_read_b64_tr_b16 %s, v12 offset:%d' % (R(36 + 4 * ks + 2 * rdi, 2), k * 1024 + rdi * 128), 'a%d' % ks)
        for ks in range(4):
            a.dwait('a%d' % ks)
            a('v_mfma_f32_16x16x32_bf16 v[32:35], %s, %s, %s' % (R(36 + 4 * ks, 4), R(52 + 4 * ks, 4), 'v[32:35]' if (grp or ks) else '0'))
    a('''
    v_lshrrev_b32 v12, 2, v1
    v_lshl_add_u32 v12, v12, 7, v13
    s_lshl_b32 s60, s3, 11
    s_add_u32 s60, s60, 0x%x
    v_add_u32 v12, s60, v12
    ''' % W2L)
    for mt in range(4):
        a.d('ds_read_b64_tr_b16 %s, v12 offset:%d' % (R(36 + 2 * mt, 2), mt * 32), 'b')
    for r in range(4):
        a.rnd_bf16(32 + r)
        a.silu(32 + r, 44)
    a('v_cvt_pk_bf16_f32 v32, v32, v33')
    a('v_cvt_pk_bf16_f32 v33, v34, v35')
    a.dall()
    for mt in range(4):
        a('v_mfma_f32_16x16x16_bf16 %s, v[32:33], %s, 0' % (R(52 + 4 * mt, 4), R(36 + 2 * mt, 2)))
    a('''
    s_nop 7
    v_cndmask_b32 v52, v52, v56, s[52:53]
    v_cndmask_b32 v52, v52, v60, s[54:55]
    v_cndmask_b32 v52, v52, v64, s[56:57]
    buffer_store_dword v52, v11, s[44:47], s66 offen sc1
    L_Wnf2:
    ''')
    a('''
    v_lshrrev_b32 v12, 2, v7
    v_lshl_add_u32 v12, v6, 3, v12
    v_lshlrev_b32 v12, 7, v12
    v_and_b32 v13, 3, v1
    v_lshl_add_u32 v12, v13, 3, v12
    v_bfe_u32 v13, v1, 3, 2
    v_lshl_add_u32 v12, v13, 5, v12
    v_add_u32 v12, s15, v12
    v_xor_b32 v13, 32, v12
    v_xor_b32 v14, 64, v12
    v_xor_b32 v15, 0x60, v12
    ''')
    WOF = 72
    def wo_read(rho):
        for half in range(2):
            for mt in (0, 1) if half == 0 else (2, 3):
                for ksl in range(2):
                    for rdi in range(2):
                        a.d('ds_read_b64_tr_b16 %s, v%d offset:%d' % (R(WOF + (mt * 4 + 2 * rho + ksl) * 4 + 2 * rdi, 2), 12 + mt, ksl * 4096 + rdi * 512), 'wo')
            a.dall()
    a.vall()
    wo_read(0)
    wo_round(1)
    for p in range(4):
        a('v_cmp_eq_u32 vcc, %d, v7' % (2 * p))
        a('v_mov_b32 v%d, 0' % (56 + p))
        a('v_mov_b32 v64, 0xffff')
        a('v_cndmask_b32 v%d, v%d, v64, vcc' % (56 + p, 56 + p))
        a('v_cmp_eq_u32 vcc, %d, v7' % (2 * p + 1))
        a('v_mov_b32 v64, 0xffff0000')
        a('v_cndmask_b32 v%d, v%d, v64, vcc' % (56 + p, 56 + p))
        a('v_and_b32 v%d, 0x3f803f80, v%d' % (60 + p, 56 + p))
    a('''
    v_lshrrev_b32 v64, 1, v6
    v_mul_u32_u24 v64, 0x%x, v64
    v_lshl_add_u32 v64, v7, 4, v64
    v_and_b32 v65, 1, v6
    v_lshl_add_u32 v64, v65, 3, v64
    s_mul_i32 s60, s3, 288
    s_add_u32 s60, s60, 0x%x
    v_add_u32 v64, s60, v64
    v_and_b32 v65, 7, v1
    v_mul_u32_u24 v65, 288, v65
    v_add_u32 v65, v65, v5
    s_lshl_b32 s60, s3, 5
    s_add_u32 s60, s60, 0x%x
    v_lshl_add_u32 v66, v7, 1, s60
    ''' % (8 * 288, ROWS, CB))
    a.vall()
    wo_read(1)
    a.stamp(5)
    a('s_mov_b32 s60, 0')
    a.label('L_Wg')
    for i in range(4):
        a('buffer_load_dwordx4 %s, v9, s[44:47], s64 offen offset:%d sc1' % (R(36 + 4 * i, 4), i * 1024))
    a('buffer_load_dwordx4 v[52:55], v9, s[44:47], s67 offen sc1')
    a('s_add_u32 s60, s60, 1')
    a('s_waitcnt vmcnt(0)')
    a('v_max3_u32 v12, v36, v37, v38')
    a('v_max3_u32 v13, v39, v40, v41')
    for k in range(42, 54, 4):
        a('v_max3_u32 v12, v12, v%d, v%d' % (k, k + 1))
        a('v_max3_u32 v13, v13, v%d, v%d' % (k + 2, k + 3))
    a('v_max3_u32 v12, v12, v54, v55')
    a('v_max_u32 v12, v12, v13')
    a('''
    v_cmp_eq_u32 vcc, -1, v12
    s_cmp_gt_u32 s60, %d
    s_cbranch_scc1 L_Wg_x
    s_cbranch_vccz L_Wg_x
    s_sleep 2
    s_branch L_Wg
    L_Wg_x:
    ''' % SPIN)
    a.stamp(6)
    a('''
    v_or_b32 v12, v52, v54
    v_lshlrev_b32 v12, 1, v12
    v_cmp_ne_u32 vcc, 0, v12
    s_cbranch_vccnz L_Wgen
    ''')
    for i in range(4):
        a('v_mfma_f32_16x16x32_bf16 v[32:35], v[60:63], %s, %s' % (R(36 + 4 * i, 4), 'v[32:35]' if i else '0'))
    a('v_add_f32 v67, v53, v55')
    a.label('L_Wj')
    a('''
    s_nop 6
    v_cvt_pk_bf16_f32 v32, v32, v33
    v_cvt_pk_bf16_f32 v33, v34, v35
    ds_write_b64 v64, v[32:33]
    s_waitcnt lgkmcnt(0)
    s_barrier
    ''')
    for ks in range(4):
        a.d('ds_read_b128 %s, v65 offset:%d' % (R(36 + 4 * ks, 4), ROWS - SM + ks * 64), 'a%d' % ks)
    a.wave_red('v_add_f32', 67, 12)
    a('v_rcp_f32 v67, v67')
    for ks in range(4):
        a.dwait('a%d' % ks)
        a('v_mfma_f32_16x16x32_bf16 v[32:35], %s, %s, %s' % (R(36 + 4 * ks, 4), R(16 + 4 * ks, 4), 'v[32:35]' if ks else '0'))
    a('''
    v_add_f32 v32, v32, v33
    v_add_f32 v34, v34, v35
    v_add_f32 v32, v32, v34
    ''')
    a.swap_red('v_add_f32', 32, 33, 16)
    a('''
    v_mul_f32 v32, v32, v67
    v_cvt_pk_bf16_f32 v32, v32, v32
    ds_write_b16 v66, v32
    s_waitcnt lgkmcnt(0)
    s_barrier
    ''')
    for ks in range(4):
        a.d('ds_read_b128 %s, v5 offset:%d' % (R(36 + 4 * ks, 4), CB - SM + ks * 64), 'a%d' % ks)
    for ks in range(4):
        a.dwait('a%d' % ks)
        for mt in range(4):
            a('v_mfma_f32_16x16x32_bf16 %s, %s, %s, %s' % (R(16 + 4 * mt, 4), R(36 + 4 * ks, 4), R(WOF + (mt * 4 + ks) * 4, 4), R(16 + 4 * mt, 4) if ks else '0'))
    a('''
    v_cndmask_b32 v16, v16, v20, s[52:53]
    v_cndmask_b32 v16, v16, v24, s[54:55]
    v_cndmask_b32 v16, v16, v28, s[56:57]
    buffer_store_dword v16, v11, s[44:47], s65 offen sc1
    ''')
    a.stamp(7)
    if stamps:
        a('s_cmp_lg_u32 s3, 0')
        a('s_cbranch_scc1 L_end')
        a.write_stamps()
    a('s_endpgm')
    a.label('L_Wgen')
    a('v_max_f32 v12, v52, v54')
    a.wave_red('v_max_f32', 12, 13)
    a('''
    v_sub_f32 v52, v52, v12
    v_sub_f32 v54, v54, v12
    v_exp_f32 v52, v52
    v_exp_f32 v54, v54
    v_and_b32 v52, 0xffff0000, v52
    v_and_b32 v54, 0xffff0000, v54
    v_mul_f32 v67, v52, v53
    v_fmac_f32 v67, v54, v55
    v_mov_b32 v53, v54
    s_lshl_b32 s60, s3, 9
    s_add_u32 s60, s60, 0x%x
    v_lshl_add_u32 v12, v1, 3, s60
    ds_write_b64 v12, v[52:53]
    s_lshl_b32 s61, s3, 6
    s_add_u32 s60, s60, s61
    v_lshl_add_u32 v12, v6, 2, s60    ; WB + w*512 + (16w + g)*4
    s_waitcnt lgkmcnt(0)
    ds_read_b32 v52, v12
    ds_read_b32 v53, v12 offset:16
    ds_read_b32 v54, v12 offset:32
    ds_read_b32 v55, v12 offset:48
    s_waitcnt lgkmcnt(0)
    ''' % WB)
    for i in range(4):
        a('v_lshrrev_b32 v12, 16, v%d' % (52 + i))
        a('v_or_b32 v12, v12, v%d' % (52 + i))
        for p in range(4):
            a('v_and_b32 v%d, v12, v%d' % (60 + p, 56 + p))
        a('v_mfma_f32_16x16x32_bf16 v[32:35], v[60:63], %s, %s' % (R(36 + 4 * i, 4), 'v[32:35]' if i else '0'))
    a('s_nop 1')
    a('s_branch L_Wj')
    a.label('L_end')
    body = hz.fix(a.text())
    return kernel_file([(KN + '_kernel', 256, 512, 163840)], [(KN + '_kernel', body, 256, 96, 256)])

if __name__ == '__main__':
    out = sys.argv[1]
    stamps = 'stamps' in sys.argv[2:]
    o = {}
    for kv in sys.argv[2:]:
        if '=' in kv:
            k, v = kv.split('=')
            o[k] = int(v) if v.lstrip('-').isdigit() else v.replace('_', ' ')
    open(out, 'w').write(gen(stamps, o))
```

```python
import sys, struct, math
from gl import *
import hz

def f2u(f): return struct.unpack('<I', struct.pack('<f', f))[0]

WS_REC = 0x500000
STAMP_OFF = 0x8000000
NST = 12
SPIN = 60000

class G(Asm):
    def __init__(self, stamps):
        super().__init__()
        self.stamps = stamps
        self.vm = []
        self.lg = []
    def stamp(self, k):
        if getattr(self, 'stamps_hold', False) and k >= 5: return
        if getattr(self, 'stamps_mute', False): return
        if self.stamps:
            self('s_memrealtime s[%d:%d]' % (70 + 2 * k, 71 + 2 * k))
            self('s_waitcnt lgkmcnt(0)')
            self.lg = []
    def v(self, ins, tag):
        self(ins); self.vm.append(tag)
    def vwait(self, tag):
        idx = max(i for i, t in enumerate(self.vm) if t == tag)
        n = len(self.vm) - 1 - idx
        self('s_waitcnt vmcnt(%d)' % n)
        self.vm = self.vm[idx + 1:]
    def vwait_n(self, n):
        if len(self.vm) > n:
            self('s_waitcnt vmcnt(%d)' % n)
            self.vm = self.vm[len(self.vm) - n:] if n else []
    def vall(self):
        self('s_waitcnt vmcnt(0)'); self.vm = []
    def d(self, ins, tag):
        if len(self.lg) >= 15:
            self('s_waitcnt lgkmcnt(14)'); self.lg = self.lg[len(self.lg) - 14:]
        self(ins); self.lg.append(tag)
    def dwait(self, tag):
        if tag not in self.lg: return
        idx = max(i for i, t in enumerate(self.lg) if t == tag)
        n = len(self.lg) - 1 - idx
        self('s_waitcnt lgkmcnt(%d)' % n)
        self.lg = self.lg[idx + 1:]
    def dall(self):
        self('s_waitcnt lgkmcnt(0)'); self.lg = []
    def srd(self, d, ptr, nrec):
        self('s_mov_b32 s%d, s%d' % (d, ptr))
        self('s_mov_b32 s%d, s%d' % (d + 1, ptr + 1))
        self('s_mov_b32 s%d, 0x%x' % (d + 2, nrec))
        self('s_mov_b32 s%d, 0x20000' % (d + 3))
    def wave_red(self, op, v, t, rows_only=False):
        for m in ('quad_perm:[1,0,3,2]', 'quad_perm:[2,3,0,1]', 'row_half_mirror', 'row_mirror'):
            self('%s_dpp v%d, v%d, v%d %s row_mask:0xf bank_mask:0xf' % (op, v, v, v, m))
        if rows_only: return
        self.swap_red(op, v, t, 16)
        self.swap_red(op, v, t, 32)
    def swap_red(self, op, v, t, w):
        self('v_mov_b32 v%d, v%d' % (t, v))
        self('v_permlane%d_swap_b32 v%d, v%d' % (w, v, t))
        self('%s v%d, v%d, v%d' % (op, v, v, t))
    def rnd_bf16(self, v):
        self('v_cvt_pk_bf16_f32 v%d, v%d, v%d' % (v, v, v))
        self('v_lshlrev_b32 v%d, 16, v%d' % (v, v))
    def silu(self, v, t):
        self('v_mul_f32 v%d, 0x%x, v%d' % (t, f2u(-math.log2(math.e)), v))
        self('v_exp_f32 v%d, v%d' % (t, t))
        self('v_add_f32 v%d, 1.0, v%d' % (t, t))
        self('v_rcp_f32 v%d, v%d' % (t, t))
        self('v_mul_f32 v%d, v%d, v%d' % (v, v, t))
    def write_stamps(self, vb=250):
        if not self.stamps: return
        self('s_mul_i32 s60, s2, %d' % (NST * 8))
        self('s_add_u32 s60, s38, s60')
        self('s_addc_u32 s61, s39, 0')
        self('s_add_u32 s60, s60, 0x%x' % STAMP_OFF)
        self('s_addc_u32 s61, s61, 0')
        self('s_mov_b64 exec, 1')
        self('v_mov_b32 v%d, 0' % vb)
        for k in range(NST):
            self('v_mov_b32 v%d, s%d' % (vb + 2, 70 + 2 * k))
            self('v_mov_b32 v%d, s%d' % (vb + 3, 71 + 2 * k))
            self('global_store_dwordx2 v%d, v[%d:%d], s[60:61] offset:%d' % (vb, vb + 2, vb + 3, 8 * k))
            self('s_nop 1')

def R(b, n): return 'v[%d:%d]' % (b, b + n - 1)
```

```python
from gb import *
WS_REC = 0x520000
HP = 0x500000

QA, QC, RT = 0x0, 0x8000, 0x10000
SP, FP, ML, QP, OP = 0x20000, 0x60000, 0xA0000, 0xE0000, 0x100000
X, CKV, WQ, WUK, WUV, WO, W1, W2, OUT, DBG, WS = 16, 18, 20, 22, 24, 26, 30, 32, 34, 36, 38

def prologue(a, o):
    a('''
    s_load_dwordx16 s[16:31], s[0:1], 0
    s_load_dwordx8 s[32:39], s[0:1], 64
    s_memrealtime s[4:5]
    s_cmp_ge_u32 s2, 256
    s_cbranch_scc1 L_end
    s_getpc_b64 s[6:7]
    L_pc:
    v_lshrrev_b32 v1, 6, v0
    v_readfirstlane_b32 s3, v1
    v_and_b32 v1, 63, v0
    ''')
    if a.stamps:
        for k in range(NST):
            a('s_mov_b64 s[%d:%d], 0' % (70 + 2 * k, 71 + 2 * k))
    a('''
    s_cmp_ge_u32 s2, 128
    s_cbranch_scc1 L_W
    s_cmp_lg_u32 s3, 6
    s_cbranch_scc1 L_nopf
    v_lshlrev_b32 v2, 7, v1
    global_load_dword v255, v2, s[6:7]
    v_add_u32 v2, 0x2000, v2
    v_min_u32 v3, L_end-L_pc, v2
    global_load_dword v255, v3, s[6:7]
    v_add_u32 v2, 0x2000, v2
    v_min_u32 v3, L_end-L_pc, v2
    global_load_dword v255, v3, s[6:7]
    L_nopf:
    s_lshl_b32 s8, s3, 3
    s_or_b32 s8, s8, s2
    s_sub_u32 s8, s8, 56
    v_mov_b32 v5, 0
    v_mov_b32 v6, 0
    s_waitcnt lgkmcnt(0)
    s_cmp_ge_u32 s2, 8
    s_cbranch_scc1 L_A
    s_cmp_ge_u32 s8, 8
    s_cbranch_scc1 L_A
    s_or_b32 s8, s4, 1
    v_mov_b32 v4, s8
    s_mov_b64 exec, 1
    global_atomic_cmpswap v6, v[4:5], s[36:37] sc1
    s_mov_b64 exec, -1
    s_branch L_A
    ''')

def common2(a):
    if a.stamps:
        a('s_mov_b64 s[70:71], s[4:5]')
    a.srd(44, WS, WS_REC)
    a('''
    s_mov_b32 s52, 0xffff0000
    s_mov_b32 s53, 0
    s_mov_b32 s54, 0
    s_mov_b32 s55, 0x0000ffff
    s_mov_b32 s56, 0
    s_mov_b32 s57, 0xffff0000
    ''')

STG = 0x20000
PB = STG
LB = STG + 0x2000

FL = STG + 0x3000

def role_A(a, o):
    AW = o.get('awin', 8); AW0 = o.get('awin0', 1); AN0 = o.get('an0', 3)
    a.label('L_A')
    a.stamps_hold = False
    a.vm = []; a.lg = []
    common2(a)
    a.srd(40, CKV, 0x2000000)
    a("""
    v_lshrrev_b32 v12, 4, v1          ; r = l/16
    v_and_b32 v13, 15, v1
    v_lshlrev_b32 v14, 2, v12
    v_xor_b32 v14, v14, v13
    v_lshlrev_b32 v14, 4, v14
    v_lshl_add_u32 v3, v12, 10, v14
    v_xor_b32 v0, 32, v3
    s_and_b32 s59, s2, 7
    s_lshl_b32 s59, s59, 4
    s_lshr_b32 s8, s2, 3
    s_add_u32 s59, s59, s8            ; p
    s_lshl_b32 s8, s59, 18
    s_cmp_ge_u32 s3, 4
    s_cbranch_scc1 L_As
    s_lshl_b32 s9, s3, 14
    s_add_u32 s8, s8, s9
    s_mov_b32 s15, 0
    v_mov_b32 v10, 0
    v_mov_b32 v11, 0
    """)
    def dma_one(i, seg, aa, win=None, track=True):
        if win is not None: a.vwait_n(win - 1)
        a('s_add_u32 m0, s9, 0x%x' % ((i % 2) * 65536 + aa * 4096 + seg * 1024))
        a('s_add_u32 s10, s8, 0x%x' % (i * 65536 + aa * 4096 + seg * 256))
        ins = 'buffer_load_dwordx4 v%d, s[40:43], s10 offen nt lds' % (3 if aa < 2 else 0)
        if track: a.v(ins, 'C%d_%d' % (i, seg))
        else: a(ins)
    def chunk_ops(i, segs=(0, 1, 2, 3)): return [(i, seg, aa) for seg in segs for aa in range(4)]
    a.label('L_Apass')
    a.vm = []
    first = chunk_ops(0) + chunk_ops(1)
    if o.get('amaj', 1): first = [(i, seg, aa) for i in range(2) for aa in range(4) for seg in range(4)]
    for n in range(AW0): dma_one(*first[n])
    a("""
    v_mbcnt_lo_u32_b32 v1, -1, 0
    v_mbcnt_hi_u32_b32 v1, -1, v1
    v_lshrrev_b32 v12, 4, v1          ; g
    v_and_b32 v13, 15, v1             ; key
    s_lshl_b32 s10, s3, 10
    s_add_u32 s11, s10, 0x%x
    v_lshl_add_u32 v5, v1, 4, s11     ; p_rd (own tile) = PB + w*1024 + lane*16
    v_lshlrev_b32 v56, 4, v1
    v_add_u32 v56, 0x%x, v56
    v_lshlrev_b32 v15, 4, v12
    v_xor_b32 v56, v56, v15           ; q frag read (even ks)
    v_xor_b32 v57, 64, v56            ; (odd ks)
    v_lshrrev_b32 v14, 1, v12
    v_lshlrev_b32 v14, 9, v14
    v_lshl_add_u32 v14, v13, 4, v14
    v_and_b32 v15, 1, v12
    v_lshl_add_u32 v14, v15, 3, v14
    v_add_u32 v4, s11, v14            ; p_wr
    v_lshrrev_b32 v14, 5, v1          ; g2
    v_lshrrev_b32 v16, 2, v13         ; r (pv) / a (qk)
    v_bfe_u32 v17, v1, 1, 1
    v_lshl_add_u32 v17, v15, 1, v17
    v_lshlrev_b32 v18, 1, v14
    v_xor_b32 v17, v17, v18
    v_lshl_add_u32 v17, v16, 2, v17
    v_lshlrev_b32 v17, 4, v17
    v_lshl_add_u32 v17, v16, 8, v17
    v_lshl_add_u32 v17, v14, 13, v17
    v_and_b32 v18, 1, v1
    v_lshl_add_u32 v17, v18, 3, v17
    s_add_u32 s10, s10, s9
    v_add_u32 v2, s10, v17            ; pv_base (own tile)
    v_and_b32 v17, 3, v13
    v_and_b32 v18, 2, v16
    v_xor_b32 v18, v18, v12
    v_lshl_add_u32 v18, v17, 2, v18
    v_lshlrev_b32 v18, 4, v18
    v_lshl_add_u32 v18, v17, 8, v18
    v_lshl_add_u32 v18, v16, 12, v18
    v_add_u32 v1, s9, v18             ; qk_base
    v_mov_b32 v6, 0
    v_mov_b32 v7, 0
    v_mov_b32 v8, 0xff800000
    v_mov_b32 v9, 0xff800000
    """ % (PB, STG))
    S = 16
    def qk_addr(i):
        for k in range(4):
            a('v_xor_b32 v%d, 0x%x, v1' % (12 + k, (i % 2) * 65536 + (k << 6)))
    def s_init(hh):
        for r in range(4):
            a('v_mov_b32 v%d, v%d' % (S + 4 * hh + r, 10 + hh))
    qk_addr(0); s_init(0); s_init(1)
    NPRE = o.get('npre', 22); NSO = o.get('nsoft', 99); SW = o.get('swin', 2)
    for n in range(AW0, NPRE): dma_one(*first[n], AW0 if n < AN0 else (AW if n < NSO else SW))
    SETS = [[24, 28, 32, 36], [40, 44, 48, 52]]
    def rd(i, seg, ks=(0, 1, 2, 3)):
        st = SETS[(i + seg) % 2]
        if ('C%d_%d' % (i, seg)) in a.vm: a.vwait('C%d_%d' % (i, seg))
        for k in ks:
            a.d('ds_read_b128 %s, v%d offset:%d' % (R(st[k], 4), 12 + k, seg * 1024), 'k%d_%d' % (seg, k))
    def mf(i, seg, k, hh):
        st = SETS[(i + seg) % 2]
        a.dwait('k%d_%d' % (seg, k))
        a('v_mfma_f32_16x16x32_bf16 %s, %s, %s, %s' % (R(S + 4 * hh, 4), R(st[k], 4), R(128 + (hh * 16 + seg * 4 + k) * 4, 4), R(S + 4 * hh, 4)))
    def mm(i, seg):
        for k in range(4):
            for hh in range(2): mf(i, seg, k, hh)
    a.stamp(10)
    a('s_barrier')
    a.stamp(11)
    a('v_mov_b32 v59, 0')
    a.v('global_load_dword v58, v59, s[36:37] sc1', 'N')
    for n in range(NPRE, 32): dma_one(*first[n])
    rd(0, 0); rd(0, 1)
    a('''
    v_mbcnt_lo_u32_b32 v0, -1, 0
    v_and_b32 v0, 3, v0
    v_lshlrev_b32 v0, 2, v0
    v_add_u32 v0, 0x%x, v0            ; flag read addr
    s_lshl_b32 s10, s3, 2
    s_add_u32 s10, s10, 0x%x
    v_mov_b32 v3, s10                 ; own flag addr
    ''' % (FL, FL))
    a.dall()
    a.slow = []
    def hcheck(need):
        lab = a.newlabel('L_Ahc')
        a('s_cmp_ge_u32 s62, %d' % need)
        a('s_cbranch_scc0 %s' % lab)
        a.label(lab + 'b')
        a.slow.append('''
        %s:
        s_mov_b32 s11, 0
        %sl:
        ds_read_b32 v57, v3 offset:32
        s_add_u32 s11, s11, 1
        s_waitcnt lgkmcnt(0)
        v_readfirstlane_b32 s62, v57
        s_sub_u32 s62, s62, s57
        s_cmp_gt_u32 s62, 15
        s_cselect_b32 s62, 0, s62
        s_cmp_gt_u32 s11, LSPIN
        s_cbranch_scc1 %sb
        s_cmp_lt_u32 s62, %d
        s_cbranch_scc1 %sl
        s_branch %sb
        ''' % (lab, lab, lab, need, lab, lab))
    def pcheck(reg):
        lab = a.newlabel('L_Apc')
        a('v_subrev_u32 v%d, s63, v%d' % (reg, reg))
        a('v_cmp_lt_u32 vcc, 7, v%d' % reg)
        a('s_cbranch_vccnz %s' % lab)
        a.label(lab + 'b')
        a.slow.append('''
        %s:
        s_mov_b32 s11, 0
        %sl:
        ds_read_b32 v%d, v0
        s_add_u32 s11, s11, 1
        s_waitcnt lgkmcnt(0)
        v_subrev_u32 v%d, s63, v%d
        v_cmp_lt_u32 vcc, 7, v%d
        s_cmp_gt_u32 s11, LSPIN
        s_cbranch_scc1 %sb
        s_cbranch_vccnz %sl
        s_branch %sb
        ''' % (lab, lab, reg, reg, reg, reg, lab, lab, lab))
    DA = o.get('diaga', -1)
    def ds(i, k):
        if DA == i:
            sv = a.lg[:]
            a('s_memrealtime s[%d:%d]' % (70 + 2 * k, 71 + 2 * k))
            a('s_waitcnt lgkmcnt(0)'); a.lg = []
    a.stamp(1)
    a('s_barrier')
    a.stamp(2)
    if o.get('clk', 0): a('s_memtime s[90:91]\ns_waitcnt lgkmcnt(0)')
    if DA >= 0: a.stamps_mute = True
    for i in range(4):
        slot = (i % 2) * 65536
        A_, B_ = SETS[i % 2], SETS[(i + 1) % 2]
        ring = A_ + B_[:2]
        PF = [B_[2], B_[3], 56, 60]
        seq = [(t, ct) for t in range(4) for ct in range(4)]
        def rdv(n):
            t, ct = seq[n]
            b = ring[n % 6]
            a('v_xor_b32 v%d, 0x%x, v2' % (12 + n % 4, slot + (t << 14) + (ct << 6)))
            for rdi in range(2):
                a.d('ds_read_b64_tr_b16 %s, v%d offset:%d' % (R(b + 2 * rdi, 2), 12 + n % 4, rdi * 4096), 'v%d' % n)
        ds(i, 3)
        def step(seg, k, nxt):
            mf(i, seg, k, 0); mf(i, seg, k, 1)
            if nxt is not None: rd(i, nxt[0], (nxt[1],))
        order = [(sg, k) for sg in range(4) for k in range(4)]
        if i == 0:
            a('s_cmp_lg_u32 s15, 0')
            a('s_cbranch_scc1 L_Anoq')
            def rq(ks):
                for hh in range(2):
                    f = hh * 16 + ks
                    a.d('ds_read_b128 %s, v%d offset:%d' % (R(128 + 4 * f, 4), 56 + (ks & 1), f * 1024), 'q%d' % ks)
            QD = 4
            for ks in range(QD): rq(ks)
            for ks in range(12):
                a.dwait('q%d' % ks)
                step(ks // 4, ks % 4, order[ks + 7] if 1 <= ks <= 8 else None)
                if ks + QD < 16: rq(ks + QD)
            a.dall()
            a('s_branch L_Aq2')
            a.label('L_Anoq')
            a('s_waitcnt vmcnt(0)')
            a('s_add_u32 s10, s58, 24')
            a('v_mov_b32 v56, s10')
            a('ds_write_b32 v3, v56 offset:32')
            mm(0, 0); rd(0, 2); mm(0, 1); rd(0, 3); mm(0, 2)
            a.dall()
            a.label('L_Aq2')
            if 'N' in a.vm: a.vwait('N')
            a('''
            v_readfirstlane_b32 s58, v58
            s_lshl_b32 s10, s15, 4
            s_add_u32 s57, s58, s10
            ''')
        elif i == 1:
            for ks in range(12):
                step(ks // 4, ks % 4, order[ks + 4])
        elif i == 2:
            for ks in range(12):
                if ks % 4 == 0: hcheck(ks // 4 + 2)
                step(ks // 4, ks % 4, order[ks + 4])
        elif o.get('amaj', 1):
            for ks in range(4): step(0, ks, order[ks + 4])
            mm(i, 1)
            hcheck(8)
            a.stamp(3)
            rd(i, 2)
            for ks in range(8, 12): step(2, ks % 4, order[ks + 4])
        else:
            for ks in range(8):
                if ks % 4 == 0: hcheck(4 + ks // 4 + 2)
                step(ks // 4, ks % 4, order[ks + 4])
            mm(i, 2)
            hcheck(8)
            a.stamp(3)
            rd(i, 3)
        ds(i, 4)
        early = (i == 3 and not o.get('amaj', 1))
        if early:
            for n in range(4): rdv(n)
        for k in range(4):
            mf(i, 3, k, 0)
            if not early: rdv(k)
        for k in range(4): mf(i, 3, k, 1)
        if i == 3:
            a("""
            v_mbcnt_lo_u32_b32 v1, -1, 0
            v_mbcnt_hi_u32_b32 v1, -1, v1
            s_lshl_b32 s10, s3, 4
            s_add_u32 s10, s10, 0x%x
            """ % LB)
        a('s_add_u32 s63, s57, %d' % i)
        E = 56
        pb = (i % 2) * 4096
        for hh in range(2):
            for r in range(4):
                a('v_exp_f32 v%d, v%d' % (E + 4 * hh + r, S + 4 * hh + r))
            for r in range(2):
                a('v_cvt_pk_bf16_f32 v%d, v%d, v%d' % (12 + 2 * hh + r, E + 4 * hh + 2 * r, E + 4 * hh + 2 * r + 1))
            if hh == 0: ds(i, 5)
            if i == 0 and hh == 0: a('s_barrier')
            if hh == 0: ds(i, 6)
            a.d('ds_write_b64 v4, %s offset:%d' % (R(12 + 2 * hh, 2), pb + 256 * hh), 'w')
        a('v_mov_b32 v12, s63')
        a.d('ds_write_b32 v3, v12', 'w')
        a.d('ds_read_b128 %s, v5 offset:%d' % (R(PF[0], 4), pb), 'p0')
        for hh in range(2):
            a('v_add_f32 v%d, v%d, v%d' % (E + 4 * hh, E + 4 * hh, E + 4 * hh + 1))
            a('v_add_f32 v%d, v%d, v%d' % (E + 4 * hh + 2, E + 4 * hh + 2, E + 4 * hh + 3))
            a('v_max3_f32 v%d, v%d, v%d, v%d' % (8 + hh, 8 + hh, S + 4 * hh, S + 4 * hh + 1))
            a('v_add_f32 v%d, v%d, v%d' % (6 + hh, 6 + hh, E + 4 * hh))
            a('v_max3_f32 v%d, v%d, v%d, v%d' % (8 + hh, 8 + hh, S + 4 * hh + 2, S + 4 * hh + 3))
            a('v_add_f32 v%d, v%d, v%d' % (6 + hh, 6 + hh, E + 4 * hh + 2))
        a.d('ds_read_b32 v13, v0', 'pf')
        ds(i, 7)
        fill = {}
        if i < 3:
            fill = {1: lambda: s_init(0), 2: lambda: s_init(1)}
        if i == 3:
            def fw():
                a("""
                v_and_b32 v16, 15, v1
                v_lshrrev_b32 v17, 4, v1
                v_lshlrev_b32 v16, 6, v16
                v_lshl_add_u32 v16, v17, 2, v16
                v_add_u32 v16, s10, v16
                s_add_u32 s63, s57, 4
                v_mov_b32 v17, s63
                """)
                a.d('ds_write2st64_b32 v16, v6, v7 offset0:0 offset1:4', 'w')
                a.d('ds_write2st64_b32 v16, v8, v9 offset0:8 offset1:12', 'w')
                a.d('ds_write_b32 v3, v17', 'w')
            def f0():
                a("""
                v_bfe_u32 v4, v1, 4, 1
                v_bfe_u32 v6, v1, 3, 1
                v_lshl_add_u32 v4, v6, 1, v4
                v_lshrrev_b32 v6, 5, v1
                v_lshl_add_u32 v4, v6, 2, v4
                v_bfe_u32 v7, v1, 2, 1
                """)
            def f0b():
                a("""
                v_lshl_add_u32 v4, v7, 3, v4
                v_and_b32 v7, 1, v1
                v_lshl_add_u32 v4, v7, 4, v4
                v_and_b32 v7, 2, v1
                v_lshlrev_b32 v7, 4, v7
                v_lshl_add_u32 v7, v4, 6, v7
                """)
                a('v_add_u32 v7, 0x%x, v7' % LB)
                a.d('ds_read_b32 v16, v0', 'lf')
            def f0c():
                a.dwait('lf')
                pcheck(16)
                a.d('ds_read_b128 v[16:19], v7 offset:2048', 'm')
                a.d('ds_read_b128 v[20:23], v7 offset:2064', 'm')
            def f1():
                a.dwait('m')
                a("""
                v_max3_f32 v8, v16, v17, v18
                v_max3_f32 v9, v19, v20, v21
                v_max3_f32 v8, v8, v22, v23
                v_max_f32 v8, v8, v9
                """)
                a.d('ds_read_b128 v[16:19], v7', 'l')
                a.d('ds_read_b128 v[20:23], v7 offset:16', 'l')
            def f2():
                a("""
                v_max_f32_dpp v8, v8, v8 quad_perm:[2,3,0,1] row_mask:0xf bank_mask:0xf
                v_mov_b32 v9, 0x42000000
                v_cmp_gt_f32 vcc, abs(v8), v9
                """)
            def f3():
                a.dwait('l')
                a("""
                v_add_f32 v16, v16, v17
                v_add_f32 v18, v18, v19
                v_add_f32 v20, v20, v21
                v_add_f32 v22, v22, v23
                s_or_b32 s14, vcc_lo, vcc_hi
                s_cmp_lg_u32 s15, 0
                s_cselect_b32 s14, 0, s14
                """)
            def f4():
                a("""
                v_add_f32 v16, v16, v18
                v_add_f32 v20, v20, v22
                v_add_f32 v21, v16, v20
                v_mov_b32 v20, 0
                v_mov_b32 v23, s58
                v_add_f32_dpp v21, v21, v21 quad_perm:[2,3,0,1] row_mask:0xf bank_mask:0xf
                """)
            def f6():
                a("""
                v_mov_b32 v16, v1
                v_and_b32 v17, 15, v1
                v_lshlrev_b32 v17, 4, v17
                v_bfe_u32 v18, v1, 4, 1
                v_lshl_add_u32 v17, v18, 17, v17
                """)
            def f7():
                a("""
                v_lshl_add_u32 v17, v6, 19, v17
                v_lshlrev_b32 v18, 4, v4          ; MLC voffset = h*16
                s_lshl_b32 s10, s3, 15
                s_lshl_b32 s11, s59, 8
                s_add_u32 s10, s10, s11
                s_add_u32 s10, s10, 0x%x
                s_lshl_b32 s12, s59, 2
                s_add_u32 s12, s12, s3
                s_lshl_b32 s12, s12, 9
                s_add_u32 s12, s12, 0x%x
                s_mov_b32 s60, 0xaaaaaaaa
                s_mov_b32 s61, 0xaaaaaaaa
                s_mov_b32 s62, 0x33333333
                s_mov_b32 s63, 0x33333333
                """ % (OP, ML))
            fill = {1: fw, 2: f0, 3: f0b, 5: f0c, 7: f1, 8: f2, 9: f3, 10: f4, 11: f6, 12: f7}
        def rdp(t):
            a('v_xor_b32 v%d, 0x%x, v5' % (PF[t], t << 10))
            a.d('ds_read_b128 %s, v%d offset:%d' % (R(PF[t], 4), PF[t], pb), 'p%d' % t)
        for n in range(16):
            t, ct = seq[n]
            a.dwait('v%d' % n); a.dwait('p%d' % t)
            cin = R(64 + 16 * ct, 16) if not (i == 0 and t == 0) else '0'
            a('v_mfma_f32_32x32x16_bf16 %s, %s, %s, %s' % (R(64 + 16 * ct, 16), R(PF[t], 4), R(ring[n % 6], 4), cin))
            if n == 0:
                a.dwait('pf')
                pcheck(13)
                ds(i, 8)
                rdp(1)
            if n + 4 < 16: rdv(n + 4)
            if n == 3: rdp(2)
            if n == 7: rdp(3)
            if n in fill: fill[n]()
            if i < 3 and n == 12:
                qk_addr(i + 1)
                if i >= 1: a.d('ds_read_b32 v57, v3 offset:32', 'hf')
            if i < 3 and n == 13:
                a.dall()
                ds(i, 9)
                if i < 2:
                    a('v_mov_b32 v56, s63')
                    a.d('ds_write_b32 v3, v56 offset:16', 'w')
                    a.stamp(8 + i)
                    a('s_cmp_lg_u32 s15, 0')
                    a('s_cbranch_scc1 L_Arf%d' % i)
                    a.label('L_Arb%d' % i)
                if i >= 1:
                    a('''
                    v_readfirstlane_b32 s62, v57
                    s_sub_u32 s62, s62, s57
                    s_cmp_gt_u32 s62, 15
                    s_cselect_b32 s62, 0, s62
                    ''')
            if i == 0 and n == 13: rd(i + 1, 0, (0, 1))
            if i == 0 and n == 14: rd(i + 1, 0, (2, 3))
            if i in (1, 2) and n == 14:
                hcheck(4 * (i - 1) + 1)
                rd(i + 1, 0)
        ds(i, 11)
    def voffs(x, y):
        a('''
        v_mbcnt_lo_u32_b32 v%d, -1, 0
        v_mbcnt_hi_u32_b32 v%d, -1, v%d
        v_lshrrev_b32 v%d, 4, v%d
        v_and_b32 v%d, 15, v%d
        v_lshlrev_b32 v%d, 4, v%d
        v_mul_u32_u24 v%d, 0x440, v%d
        v_xor_b32 v%d, v%d, v%d
        v_xor_b32 v%d, 32, v%d
        ''' % (x, x, x, y, x, x, x, x, x, y, y, x, x, y, y, x))
    a.voffs = voffs
    def refills():
        for i in range(2):
            a.label('L_Arf%d' % i)
            a('s_waitcnt lgkmcnt(0)')
            a('s_barrier')
            voffs(58, 59)
            for (c, seg, aa) in chunk_ops(i + 2):
                a('s_add_u32 m0, s9, 0x%x' % ((c % 2) * 65536 + aa * 4096 + seg * 1024))
                a('s_add_u32 s10, s8, 0x%x' % (c * 65536 + aa * 4096 + seg * 256))
                a('buffer_load_dwordx4 v%d, s[40:43], s10 offen nt lds' % (58 if aa < 2 else 59))
            a('s_waitcnt vmcnt(0)')
            a('s_branch L_Arb%d' % i)
        for t in a.slow: a(t)
    a.refills = refills
    a.stamp(4)
    if o.get('clk', 0): a('s_memtime s[92:93]\ns_waitcnt lgkmcnt(0)')
    a("""
    s_or_b32 s11, s14, s15
    s_cbranch_scc1 L_Aslow
    s_nop 8
    L_Aok:
    """)
    def pack(pr):
        r = 2 * pr
        b = 24 + pr * 4
        a('v_cvt_pk_bf16_f32 v%d, v%d, v%d' % (b, 64 + r, 80 + r))
        a('v_cvt_pk_bf16_f32 v%d, v%d, v%d' % (b + 2, 64 + r + 1, 80 + r + 1))
        a('v_cvt_pk_bf16_f32 v%d, v%d, v%d' % (b + 1, 96 + r, 112 + r))
        a('v_cvt_pk_bf16_f32 v%d, v%d, v%d' % (b + 3, 96 + r + 1, 112 + r + 1))
    def swp(pr):
        b = 24 + pr * 4
        a('v_permlane16_swap_b32 v%d, v%d' % (b, b + 2))
        a('v_permlane16_swap_b32 v%d, v%d' % (b + 1, b + 3))
    def st(pr):
        hr = 8 * (pr // 2) + 2 * (pr % 2)
        a('s_add_u32 s11, s10, 0x%x' % (hr * 131072))
        a('buffer_store_dwordx4 %s, v17, s[44:47], s11 offen sc1' % R(24 + pr * 4, 4))
    def cs(pr):
        b = 24 + pr * 4
        a('v_add3_u32 v%d, v%d, v%d, v%d' % (56 + pr, b, b + 1, b + 2))
        a('v_add_u32 v%d, v%d, v%d' % (56 + pr, 56 + pr, b + 3))
    def stepA(i):
        a('v_add_u32_dpp v%d, v%d, v%d row_ror:8 row_mask:0xf bank_mask:0x3' % (12 + i, 56 + 2 * i, 56 + 2 * i))
        a('v_add_u32_dpp v%d, v%d, v%d row_ror:8 row_mask:0xf bank_mask:0xc' % (12 + i, 57 + 2 * i, 57 + 2 * i))
    NE = o.get('nearly', 4)
    pack(0)
    for pr in range(8):
        if pr < 7: pack(pr + 1)
        swp(pr)
        if pr < NE: st(pr)
        cs(pr)
        if pr >= 2 and pr % 2 == 0: stepA(pr // 2 - 1)
    a('v_add_u32_dpp v56, v12, v12 row_half_mirror row_mask:0xf bank_mask:0x5')
    a('v_add_u32_dpp v56, v13, v13 row_half_mirror row_mask:0xf bank_mask:0xa')
    stepA(3)
    a('v_add_u32_dpp v56, v56, v56 quad_perm:[1,0,3,2] row_mask:0xf bank_mask:0xf')
    a('v_add_u32_dpp v57, v14, v14 row_half_mirror row_mask:0xf bank_mask:0x5')
    a('v_add_u32_dpp v57, v15, v15 row_half_mirror row_mask:0xf bank_mask:0xa')
    a('v_add_u32_dpp v57, v57, v57 quad_perm:[1,0,3,2] row_mask:0xf bank_mask:0xf')
    a('v_cndmask_b32 v56, v56, v57, s[60:61]')
    a('v_add_u32_dpp v56, v56, v56 quad_perm:[2,3,0,1] row_mask:0xf bank_mask:0xf')
    a("""
    v_sub_u32 v22, v23, v56
    s_mov_b64 exec, s[62:63]
    buffer_store_dwordx4 v[20:23], v18, s[44:47], s12 offen sc1
    s_mov_b64 exec, -1
    """)
    for pr in range(NE, 8): st(pr)
    a('''
    s_cmp_lg_u32 s3, 0
    s_cbranch_scc1 L_end
    ''')
    a.stamp(5)
    a.srd(48, WS, FP + 86 * 2048)
    a.srd(40, X, 1024)
    a('''
    v_mov_b32 v40, v16
    s_and_b32 s10, s2, 7
    s_lshl_b32 s10, s10, 6
    s_lshr_b32 s11, s2, 3
    s_lshl_b32 s11, s11, 2
    s_add_u32 s10, s10, s11            ; m0
    s_lshl_b32 s11, s10, 2
    s_lshl_b32 s12, s10, 1
    v_lshlrev_b32 v41, 11, v40
    v_and_b32 v42, 3, v40
    v_lshlrev_b32 v43, 1, v42
    buffer_load_ushort v60, v43, s[40:43], s12 offen
    v_and_b32 v44, 1, v40
    v_cmp_eq_u32 s[60:61], 1, v44
    v_and_b32 v44, 2, v40
    v_cmp_eq_u32 s[62:63], 2, v44
    ''')
    def gather4(base, srd, lab, dst):
        a('s_add_u32 s13, s11, 0x%x' % base)
        a('s_add_u32 s14, s11, 0x%x' % (base + 64 * 2048))
        a('s_mov_b32 s8, 0')
        a('s_mov_b64 s[64:65], -1')
        a('s_mov_b64 s[66:67], -1')
        a.label(lab)
        a('s_sleep FIN_SLEEP')
        a('s_mov_b64 exec, s[64:65]')
        a('s_cbranch_execz %s_a' % lab)
        a('buffer_load_dwordx4 v[48:51], v41, s[%d:%d], s13 offen sc1' % (srd, srd + 3))
        a.label(lab + '_a')
        a('s_mov_b64 exec, s[66:67]')
        a('s_cbranch_execz %s_b' % lab)
        a('buffer_load_dwordx4 v[52:55], v41, s[%d:%d], s14 offen sc1' % (srd, srd + 3))
        a.label(lab + '_b')
        a('''
        s_mov_b64 exec, -1
        s_add_u32 s8, s8, 1
        s_waitcnt vmcnt(0)
        v_max3_u32 v56, v48, v49, v50
        v_max3_u32 v57, v52, v53, v54
        v_max_u32 v56, v56, v51
        v_max_u32 v57, v57, v55
        v_cmp_eq_u32 s[64:65], -1, v56
        v_cmp_eq_u32 s[66:67], -1, v57
        s_cmp_gt_u32 s8, SPIN_N
        s_cbranch_scc1 %s_x
        s_or_b64 s[68:69], s[64:65], s[66:67]
        s_cbranch_scc1 %s
        %s_x:
        v_add_f32 v48, v48, v52
        v_add_f32 v49, v49, v53
        v_add_f32 v50, v50, v54
        v_add_f32 v51, v51, v55
        v_cndmask_b32 v52, v48, v49, s[60:61]
        v_cndmask_b32 v53, v49, v48, s[60:61]
        v_cndmask_b32 v54, v50, v51, s[60:61]
        v_cndmask_b32 v55, v51, v50, s[60:61]
        v_add_f32_dpp v52, v53, v52 quad_perm:[1,0,3,2] row_mask:0xf bank_mask:0xf
        v_add_f32_dpp v54, v55, v54 quad_perm:[1,0,3,2] row_mask:0xf bank_mask:0xf
        v_cndmask_b32 v%d, v52, v54, s[62:63]
        v_cndmask_b32 v53, v54, v52, s[62:63]
        v_add_f32_dpp v%d, v53, v%d quad_perm:[2,3,0,1] row_mask:0xf bank_mask:0xf
        v_add_f32_dpp v%d, v%d, v%d row_ror:4 row_mask:0xf bank_mask:0xf
        v_add_f32_dpp v%d, v%d, v%d row_ror:8 row_mask:0xf bank_mask:0xf
        ''' % ((lab, lab, lab) + (dst,) * 9))
        a.swap_red('v_add_f32', dst, 53, 16)
        a.swap_red('v_add_f32', dst, 53, 32)
    gather4(FP, 48, 'L_gf', 61)
    a.rnd_bf16(61)
    a.silu(61, 53)
    a.rnd_bf16(61)
    a('v_lshlrev_b32 v60, 16, v60')
    a.srd(40, OUT, 1024)
    a.stamp(6)
    gather4(SP, 44, 'L_gs', 62)
    a.rnd_bf16(62)
    a('v_mul_f32 v62, v62, v61')
    a.rnd_bf16(62)
    a('''
    v_add_f32 v62, v62, v60
    v_cvt_pk_bf16_f32 v62, v62, v62
    s_mov_b64 exec, 15
    buffer_store_short v62, v43, s[40:43], s12 offen
    ''')
    a.stamp(7)
    a.write_stamps()
    a('s_endpgm')

def role_As(a, o):
    a.stamps_mute = False
    a.label('L_As')
    ops = [(c, seg, aa) for c in range(2) for seg in range(4) for aa in range(4)]
    AM = o.get('amaj', 1)
    if AM: ops = [(0, seg, aa) for aa in range(4) for seg in range(4)] + [(1, sp * 2 + sg, aa) for sp in range(2) for aa in range(4) for sg in range(2)]
    def prog(n):
        if not AM: return n // 4 + 1 if n % 4 == 3 else None
        return {15: 4, 23: 6, 31: 8}.get(n)
    def loads(lo, hi):
        for n in range(lo, hi):
            c, seg, aa = ops[n]
            a('s_add_u32 s10, s64, 0x%x' % (c * 65536 + aa * 4096 + seg * 256))
            a.v('buffer_load_dwordx4 %s, v%d, s[40:43], s10 offen nt' % (R(128 + 4 * n, 4), 3 if aa < 2 else 0), 'L%d' % n)
    def writes(lo, hi):
        for n in range(lo, hi):
            c, seg, aa = ops[n]
            if ('L%d' % n) in a.vm: a.vwait('L%d' % n)
            a('ds_write_b128 v%d, %s offset:%d' % (100 + c, R(128 + 4 * n, 4), aa * 4096 + seg * 1024))
        a('s_waitcnt lgkmcnt(0)')
    c = [int(x, 16) for x in str(o.get('hsch', 'x48'))[1:]]
    a("""
    s_setprio 3
    s_sub_u32 s3, s3, 4
    s_lshl_b32 s9, s3, 14
    s_add_u32 s64, s8, s9
    s_add_u32 s64, s64, 0x20000
    v_lshl_add_u32 v100, v1, 4, s9
    v_add_u32 v101, 0x10000, v100
    v_mov_b32 v2, 0
    s_mov_b32 s8, 0
    L_Agn:
    s_sleep 8
    global_load_dword v5, v2, s[36:37] sc1
    s_add_u32 s8, s8, 1
    s_waitcnt vmcnt(0)
    v_readfirstlane_b32 s4, v5
    s_cmp_gt_u32 s8, SPIN_N
    s_cbranch_scc1 L_Agn_x
    s_cmp_eq_u32 s4, 0
    s_cbranch_scc1 L_Agn
    L_Agn_x:
    v_lshlrev_b32 v2, QCSH, v1        ; tag voffset
    v_lshlrev_b32 v98, 4, v1          ; data voffset
    s_lshl_b32 s9, s3, 13             ; QA + u*8192
    s_add_u32 s65, s9, 4096
    s_lshl_b32 s11, s3, QCSH+5
    s_add_u32 s11, s11, 0x%x          ; QC + u*32 entries
    s_lshr_b32 s12, s3, 1
    s_lshl_b32 s12, s12, 14
    s_and_b32 s13, s3, 1
    s_lshl_b32 s13, s13, 7
    s_add_u32 s12, s12, s13
    s_add_u32 s12, s12, 0x%x
    v_and_b32 v6, 7, v1
    v_lshlrev_b32 v6, 4, v6
    v_lshl_add_u32 v6, v1, 8, v6
    v_add_u32 v6, s12, v6             ; LDS write base
    s_lshl_b32 s4, s4, 5              ; expected sum = 32 * nonce
    v_mov_b32 v72, 0
    v_mov_b32 v73, 0
    s_mov_b32 s12, REP_MASK
    s_mov_b32 s13, 0
    NODEP s_branch L_Agt_x
    L_Agt:
    s_sleep QT_SLEEP
    s_mov_b64 exec, s[12:13]
    buffer_load_dwordx2 v[72:73], v2, s[44:47], s11 offen sc1
    s_add_u32 s8, s8, 1
    s_waitcnt vmcnt(0)
    v_cmp_ne_u32 s[12:13], v73, v5
    s_cmp_gt_u32 s8, SPIN_N
    s_cbranch_scc1 L_Agt_x
    s_cmp_lg_u32 s12, 0
    s_cbranch_scc1 L_Agt
    L_Agt_x:
    s_mov_b32 exec_lo, -1
    buffer_load_dwordx2 v[72:73], v2, s[44:47], s11 offen sc1
    s_mov_b64 exec, -1
    """ % (QC, STG))
    def dload(i):
        a('buffer_load_dwordx4 %s, v98, s[44:47], s%d offen offset:%d sc1' % (R(8 + 4 * i, 4), 9 if i < 4 else 65, (i % 4) * 1024))
    def dproc(i):
        a('ds_write_b128 v%d, %s' % (40 + i, R(8 + 4 * i, 4)))
        a('v_add3_u32 v%d, v%d, v%d, v%d' % (80 + i, 8 + 4 * i, 9 + 4 * i, 10 + 4 * i))
        a('v_add_u32 v%d, v%d, v%d' % (80 + i, 80 + i, 11 + 4 * i))
    for i in range(8): dload(i)
    a.stamp(1)
    if a.stamps: a('s_mov_b32 s8, 1')
    a('s_barrier')
    a.vm = []
    loads(0, c[0]); p = c[0]
    for i in range(8): a('v_xor_b32 v%d, %d, v6' % (40 + i, i << 4))
    for i in range(8):
        a('s_waitcnt vmcnt(%d)' % (7 - i + c[0]))
        dproc(i)
    a("""
    NODEP s_branch L_Agp_x
    v_cmp_ne_u32 s[12:13], v73, v5
    s_cmp_eq_u32 s12, 0
    s_cbranch_scc1 L_Agc
    L_Agp:
    s_mov_b32 s13, 0
    s_quadmask_b32 s67, s12
    s_mov_b64 exec, s[12:13]
    buffer_load_dwordx2 v[72:73], v2, s[44:47], s11 offen sc1
    s_mov_b64 exec, -1
    """)
    for i in range(8):
        a('s_bitcmp1_b32 s67, %d' % i)
        a('s_cbranch_scc0 L_Agl%d' % i)
        dload(i)
        a.label('L_Agl%d' % i)
    a("""
    s_add_u32 s8, s8, 1
    s_waitcnt vmcnt(0)
    v_cmp_ne_u32 s[12:13], v73, v5
    """)
    for i in range(8):
        a('s_bitcmp1_b32 s67, %d' % i)
        a('s_cbranch_scc0 L_Agw%d' % i)
        dproc(i)
        a.label('L_Agw%d' % i)
    a("""
    s_cmp_gt_u32 s8, SPIN_N
    s_cbranch_scc1 L_Agp_x
    s_cmp_lg_u32 s12, 0
    s_cbranch_scc1 L_Agp
    L_Agc:
    v_add3_u32 v4, v72, v80, v81
    v_add3_u32 v74, v82, v83, v84
    v_add3_u32 v4, v4, v85, v86
    v_add3_u32 v4, v4, v74, v87
    """)
    a.wave_red('v_add_u32', 4, 74)
    a("""
    v_readfirstlane_b32 s10, v4
    s_mov_b32 s12, -1
    s_cmp_lg_u32 s10, s4
    s_cbranch_scc1 L_Agp
    L_Agp_x:
    s_waitcnt lgkmcnt(0)
    """)
    a.stamp(3)
    a('s_barrier')
    a('s_setprio 0')
    loads(p, p + c[1]); p += c[1]
    a('''
    v_and_b32 v102, 3, v1
    v_lshlrev_b32 v102, 2, v102
    v_add_u32 v102, 0x%x, v102        ; YF read addr
    s_lshl_b32 s10, s3, 2
    s_add_u32 s10, s10, 0x%x
    v_mov_b32 v103, s10               ; own HF addr
    s_barrier                         ; B1
    ''' % (FL + 16, FL + 32))
    K = o.get('hk', 20)
    loads(p, K); p = max(p, K)
    def yspin(i):
        a('''
        s_mov_b32 s11, 0
        L_Ay%d:
        ds_read_b32 v99, v102
        s_add_u32 s11, s11, 1
        s_waitcnt lgkmcnt(0)
        v_sub_u32 v99, v99, v5
        v_subrev_u32 v99, %d, v99
        v_cmp_lt_u32 vcc, 7, v99
        s_cmp_gt_u32 s11, LSPIN
        s_cbranch_scc1 L_Ay%dx
        s_cbranch_vccz L_Ay%dx
        s_sleep 1
        s_branch L_Ay%d
        L_Ay%dx:
        ''' % (i, i, i, i, i, i))
    for n in range(32):
        if n % 16 == 0:
            if n == 16: loads(p, 32); p = 32
            yspin(n // 16)
        cc, seg, aa = ops[n]
        if prog(n): a('v_add_u32 v99, %d, v5' % prog(n))
        if ('L%d' % n) in a.vm: a.vwait('L%d' % n)
        a('ds_write_b128 v%d, %s offset:%d' % (100 + cc, R(128 + 4 * n, 4), aa * 4096 + seg * 1024))
        if prog(n): a('ds_write_b32 v103, v99')
        if p < 32: loads(p, p + 1); p += 1
    if a.stamps:
        a('s_mul_i32 s78, s8, 100')
        a('s_add_u32 s78, s78, s70')
        a('s_addc_u32 s79, s71, 0')
        a('s_lshl_b32 s2, s2, 2')
        a('s_add_u32 s2, s2, s3')
        a('s_add_u32 s2, s2, 256')
        a('s_sleep 127')
        a.write_stamps(vb=104)
    a('s_endpgm')

SM = 0x20000
XN, QB, CB, NB, LW, QO, ROWS = SM, SM + 0x400, SM + 0x500, SM + 0x600, SM + 0x640, SM + 0x700, SM + 0x800
UKL, W1L, W2L, WOL = 0x8000, 0x8000, 0xC000, 0x10000

def layernorm(a):
    for i in range(4):
        a('v_lshlrev_b32 v%d, 16, v%d' % (72 + 2 * i, 68 + i))
        a('v_and_b32 v%d, 0xffff0000, v%d' % (73 + 2 * i, 68 + i))
    a('''
    v_add_f32 v80, v72, v73
    v_add_f32 v81, v74, v75
    v_add_f32 v82, v76, v77
    v_add_f32 v83, v78, v79
    v_add_f32 v80, v80, v81
    v_add_f32 v82, v82, v83
    v_add_f32 v80, v80, v82
    ''')
    a.wave_red('v_add_f32', 80, 81)
    a('v_mul_f32 v80, 0x%x, v80' % f2u(1 / 512))
    for i in range(8):
        a('v_sub_f32 v%d, v%d, v80' % (84 + i, 72 + i))
    a('v_mul_f32 v82, v84, v84')
    a('v_mul_f32 v83, v85, v85')
    for i in range(2, 8):
        a('v_fmac_f32 v%d, v%d, v%d' % (82 + i % 2, 84 + i, 84 + i))
    a('v_add_f32 v82, v82, v83')
    a.rnd_bf16(80)
    a.wave_red('v_add_f32', 82, 81)
    for i in range(8):
        a('v_sub_f32 v%d, v%d, v80' % (72 + i, 72 + i))
    a('v_mul_f32 v82, 0x%x, v82' % f2u(1 / 512))
    a.rnd_bf16(82)
    a('v_add_f32 v82, 0x%x, v82' % f2u(1e-5))
    a.rnd_bf16(82)
    a('v_sqrt_f32 v82, v82')
    for i in range(4):
        a('v_cvt_pk_bf16_f32 v%d, v%d, v%d' % (68 + i, 72 + 2 * i, 73 + 2 * i))
    a.rnd_bf16(82)
    a('v_rcp_f32 v82, v82')
    for i in range(4):
        a('v_lshlrev_b32 v%d, 16, v%d' % (72 + 2 * i, 68 + i))
        a('v_and_b32 v%d, 0xffff0000, v%d' % (73 + 2 * i, 68 + i))
    for i in range(8):
        a('v_mul_f32 v%d, v%d, v82' % (72 + i, 72 + i))
    for i in range(4):
        a('v_cvt_pk_bf16_f32 v%d, v%d, v%d' % (68 + i, 72 + 2 * i, 73 + 2 * i))

def role_W(a, o):
    WOPOL = o.get('wopol', 'nt'); W1POL = o.get('w1pol', 'nt')
    a.label('L_W')
    a.vm = []; a.lg = []
    a('''
    s_and_b32 s8, s2, 7               ; x
    s_lshr_b32 s9, s2, 3
    s_sub_u32 s9, s9, 16              ; k
    s_lshr_b32 s10, s9, 2
    s_lshl_b32 s11, s8, 2
    s_add_u32 s10, s10, s11           ; h
    s_and_b32 s11, s9, 3              ; j
    s_lshl_b32 s13, s10, 8            ; h*256
    v_lshlrev_b32 v9, 4, v1           ; lane*16
    v_lshrrev_b32 v6, 4, v1           ; g / r
    v_and_b32 v7, 15, v1              ; pc / i
    v_lshlrev_b32 v8, 1, v6
    v_xor_b32 v8, v8, v7
    v_lshlrev_b32 v8, 4, v8           ; (pc ^ (r<<1))*16
    v_lshl_add_u32 v2, v6, 13, v8
    v_xor_b32 v3, 0x80, v2            ; voffB
    s_lshl_b32 s14, s11, 3
    s_add_u32 s14, s14, s3            ; 8j + w
    s_lshl_b32 s15, s14, 17
    s_add_u32 s15, s15, s13           ; (128j + 16w)*8192 + h*256
    s_lshl_b32 s14, s3, 12            ; LDS w*4096
    v_lshlrev_b32 v10, 2, v6
    v_xor_b32 v10, v10, v7
    v_lshlrev_b32 v10, 4, v10
    v_lshl_add_u32 v10, v6, 13, v10
    v_xor_b32 v11, 32, v10
    s_mov_b32 s42, 0x400000
    s_mov_b32 s43, 0x20000
    s_mov_b32 s50, 0x400000
    s_mov_b32 s51, 0x20000
    s_mov_b32 m0, s14
    s_waitcnt lgkmcnt(0)
    s_mov_b32 s40, s20
    s_mov_b32 s41, s21
    s_cmp_lg_u32 s3, 0
    s_cbranch_scc1 L_Wx
    global_load_dwordx4 v[68:71], v9, s[16:17]
    L_Wx:
    ''')
    for i in range(4):
        if i:
            a('s_add_u32 m0, s14, %d' % (i * 1024))
            a('s_add_u32 s60, s15, %d' % (i * 32768))
        a.v('buffer_load_dwordx4 v%d, s[40:43], %s offen nt lds' % (2 if i < 2 else 3, 's60' if i else 's15'), 'WQ')
    a('s_mov_b32 s48, s22')
    a('s_mov_b32 s49, s23')
    if o.get('ukbar', 1): a('s_barrier')
    for i in range(4):
        a('s_add_u32 m0, s14, %d' % (UKL + i * 1024))
        a('s_add_u32 s60, s15, %d' % (i * 32768))
        a.v('buffer_load_dwordx4 v%d, s[48:51], s60 offen nt lds' % (10 if i < 2 else 11), 'UK')
    common2(a)
    if o.get('diag', 0) == 2: a.stamp(5)
    a('''
    s_lshl_b32 s12, s9, 3
    s_add_u32 s12, s12, s8            ; fb = 8k + x
    s_cmp_lt_u32 s9, 11
    s_cselect_b32 s12, s12, 1000
    v_mov_b32 v14, 0
    v_lshrrev_b32 v12, 2, v7          ; r' / a
    v_and_b32 v13, 1, v6
    v_lshl_add_u32 v13, v13, 2, v12
    v_lshlrev_b32 v13, 1, v13
    v_bfe_u32 v16, v1, 1, 1
    s_lshl_b32 s60, s3, 1
    v_add_u32 v16, s60, v16
    v_xor_b32 v16, v16, v13
    v_lshlrev_b32 v16, 4, v16
    v_lshl_add_u32 v13, v6, 3, v12
    v_lshl_add_u32 v16, v13, 8, v16
    v_and_b32 v13, 1, v1
    v_lshl_add_u32 v4, v13, 3, v16    ; tr-read base
    v_lshlrev_b32 v5, 4, v6
    v_add_u32 v5, 0x%x, v5            ; SM + g*16
    v_and_b32 v13, 3, v7
    v_and_b32 v16, 2, v12
    v_xor_b32 v16, v16, v6
    v_lshl_add_u32 v16, v13, 2, v16
    v_lshlrev_b32 v16, 4, v16
    v_lshl_add_u32 v16, v7, 8, v16
    s_add_u32 s60, s14, 0x%x
    v_add_u32 v64, s60, v16           ; uk frag read addrs
    v_xor_b32 v65, 64, v64
    v_xor_b32 v66, 0x80, v64
    v_xor_b32 v67, 0xc0, v64
    ''' % (SM, UKL))
    a('''
    s_lshl_b32 s68, s10, 2
    s_add_u32 s68, s68, s11           ; mi = 4h + j
    s_lshl_b32 s64, s68, 15
    s_lshl_b32 s61, s3, 12
    s_add_u32 s69, s64, s61
    s_add_u32 s69, s69, 0x%x          ; s69 = inbox base of this wave
    s_lshl_b32 s58, s68, 11
    s_lshl_b32 s61, s3, 8
    s_add_u32 s58, s58, s61
    s_add_u32 s58, s58, 0x%x          ; s58 = SP row of this wave
    s_lshl_b32 s66, s12, 11
    s_add_u32 s66, s66, s61
    s_add_u32 s66, s66, 0x%x          ; s66 = FP row of this wave
    s_cmp_lt_u32 s12, 86
    s_cselect_b32 s66, s66, s58
    s_lshl_b32 s67, s3, 6
    s_add_u32 s67, s67, s11
    s_lshl_b32 s67, s67, 9
    s_lshl_b32 s61, s10, 4
    s_add_u32 s67, s67, s61
    s_add_u32 s67, s67, 0x%x          ; s67 = MLC + (64w + j)*512 + h*16
    v_lshlrev_b32 v11, 2, v1
    v_mov_b32 v16, -1
    ''' % (OP, SP, FP, ML))
    a.v('buffer_store_dword v16, v11, s[44:47], s58 offen sc1', 'PT')
    a.v('buffer_store_dword v16, v11, s[44:47], s66 offen sc1', 'PT')
    a('''
    s_cmp_lg_u32 s3, 0
    s_cbranch_scc1 L_Wln
    s_waitcnt vmcnt(%d)
    s_load_dword s4, s[36:37], 0
    ''' % len(a.vm))
    if o.get('diag', 0) == 2: a.stamp(6)
    layernorm(a)
    if o.get('diag', 0) == 2: a.stamp(7)
    a('''
    v_add_u32 v72, 0x%x, v9
    ds_write_b128 v72, v[68:71]
    s_waitcnt lgkmcnt(0)
    s_mov_b32 s60, 0
    s_branch L_Wn_c
    L_Wn:
    global_load_dword v15, v14, s[36:37] sc1
    s_add_u32 s60, s60, 1
    s_waitcnt vmcnt(0)
    v_readfirstlane_b32 s4, v15
    s_cmp_gt_u32 s60, SPIN_N
    s_cbranch_scc1 L_Wn_x
    L_Wn_c:
    s_cmp_eq_u32 s4, 0
    s_cbranch_scc1 L_Wn
    L_Wn_x:
    v_mov_b32 v72, 0x%x
    v_mov_b32 v15, s4
    ds_write_b32 v72, v15
    s_waitcnt lgkmcnt(0)
    L_Wln:
    ''' % (XN, NB))
    if o.get('diag', 0) == 2: a.stamp(8)
    a.vwait('WQ')
    if o.get('diag', 0) == 2: a.stamp(9)
    a('s_barrier')
    a.stamp(1)
    a('s_lshl_b32 s60, s11, 8')
    a('v_add_u32 v13, s60, v5')
    for ks in range(4):
        a.d('ds_read_b128 %s, v13 offset:%d' % (R(52 + 4 * ks - 16 + 16, 4), ks * 64) if False else 'ds_read_b128 %s, v13 offset:%d' % (R(16 + 4 * ks, 4), ks * 64), 'a%d' % ks)
        for rdi in range(2):
            a.d('ds_read_b64_tr_b16 %s, v4 offset:%d' % (R(36 + 4 * ks + 2 * rdi, 2), ks * 8192 + rdi * 1024), 'a%d' % ks)
    a('v_mov_b32 v12, 0x%x' % NB)
    a.d('ds_read_b32 v53, v12', 'n')
    a('''
    s_lshl_b32 s60, s10, 12
    s_lshl_b32 s61, s3, 7
    s_add_u32 s60, s60, s61
    s_add_u32 s60, s60, 0x%x          ; QP + h*4096 + w*128
    s_lshl_b32 s61, s11, 10
    s_add_u32 s61, s61, s60           ; + j*1024
    v_lshlrev_b32 v12, 3, v7          ; d*8
    v_lshl_add_u32 v13, v6, 10, v12   ; jj*1024 + d*8
    v_cmp_ne_u32 s[64:65], s11, v6    ; lanes of the other three
    ''' % QP)
    for ks in range(4):
        a.dwait('a%d' % ks)
        a('v_mfma_f32_16x16x32_bf16 v[32:35], %s, %s, %s' % (R(16 + 4 * ks, 4), R(36 + 4 * ks, 4), 'v[32:35]' if ks else '0'))
    a.dall()
    a('''
    s_lshl_b32 s62, s3, 5
    s_add_u32 s62, s62, 0x%x
    v_lshl_add_u32 v15, v7, 1, s62    ; QB + (16w + d)*2
    v_mov_b32 v55, v53
    v_mov_b32 v52, v32
    v_mov_b32 v54, v32
    s_mov_b64 exec, 0xffff
    buffer_store_dwordx2 v[52:53], v12, s[44:47], s61 offen sc1
    ''' % QB)
    if o.get('qpack', 1): a('s_waitcnt vmcnt(0)')
    a.stamp(2)
    a('''
    s_mov_b32 s62, 0
    L_Wq:
    s_mov_b64 exec, s[64:65]
    buffer_load_dwordx2 v[54:55], v13, s[44:47], s60 offen sc1
    s_add_u32 s62, s62, 1
    s_waitcnt vmcnt(0)
    v_cmp_ne_u32 s[64:65], v55, v53
    s_cmp_gt_u32 s62, SPIN_N
    s_cbranch_scc1 L_Wq_x
    s_cmp_lg_u64 s[64:65], 0
    s_cbranch_scc1 L_Wq
    L_Wq_x:
    s_mov_b64 exec, -1
    ''')
    a.vm = []
    for ks in range(4):
        a.d('ds_read_b128 %s, v%d' % (R(16 + 4 * ks, 4), 64 + ks), 'uk')
    a.swap_red('v_add_f32', 54, 55, 16)
    a.swap_red('v_add_f32', 54, 55, 32)
    a('''
    v_cvt_pk_bf16_f32 v54, v54, v54
    ds_write_b16 v15, v54
    ''')
    a.dall()
    a('s_barrier')
    a.stamp(3)
    for ks in range(4):
        a.d('ds_read_b128 %s, v5 offset:%d' % (R(36 + 4 * ks, 4), QB - SM + ks * 64), 'a%d' % ks)
    a('''
    s_lshl_b32 s14, s3, 5
    s_add_u32 s14, s14, 0x%x
    v_lshl_add_u32 v13, v6, 3, s14    ; QO + w*32 + q*8
    v_lshlrev_b32 v12, 4, v7
    v_add_u32 v15, 0x%x, v12          ; QO + (l%%16)*16
    s_lshl_b32 s14, s68, 8
    s_lshl_b32 s15, s68, QCSH
    s_add_u32 s15, s15, 0x%x
    v_add_u32 v56, s14, v12
    v_add_u32 v57, s15, v12
    v_cndmask_b32 v56, v56, v57, s[52:53]
    ''' % (QO, QO, QC))
    for ks in range(4):
        a.dwait('a%d' % ks)
        a('v_mfma_f32_16x16x32_bf16 v[32:35], %s, %s, %s' % (R(16 + 4 * ks, 4), R(36 + 4 * ks, 4), 'v[32:35]' if ks else '0'))
    sc = f2u(128 ** -0.5 * math.log2(math.e))
    a('''
    v_mul_f32 v32, 0x%x, v32
    v_mul_f32 v33, 0x%x, v33
    v_mul_f32 v34, 0x%x, v34
    v_mul_f32 v35, 0x%x, v35
    v_cvt_pk_bf16_f32 v32, v32, v33
    v_cvt_pk_bf16_f32 v33, v34, v35
    ds_write_b64 v13, v[32:33]
    s_waitcnt lgkmcnt(0)
    s_barrier
    s_cmp_lg_u32 s3, 0
    s_cbranch_scc1 L_Wpub
    ds_read_b128 v[32:35], v15
    s_waitcnt lgkmcnt(0)
    v_add3_u32 v36, v32, v33, v34
    v_add_u32 v36, v36, v35
    ''' % (sc, sc, sc, sc))
    a.wave_red('v_add_u32', 36, 37, rows_only=True)
    a('''
    v_sub_u32 v36, v53, v36
    v_cndmask_b32 v32, v32, v36, s[52:53]
    v_cndmask_b32 v33, v33, v53, s[52:53]
    s_mov_b64 exec, QCEX
    buffer_store_dwordx4 v[32:35], v56, s[44:47], 0 offen sc1
    s_mov_b64 exec, -1
    L_Wpub:
    s_barrier
    ''')
    a.stamp(4)
    WW = o.get('wwin', 4); WW2 = o.get('wwin2', 0)
    a.srd(40, WUV, 0x400000)
    a("""
    v_readfirstlane_b32 s4, v53
    v_lshl_add_u32 v2, v6, 18, v8
    v_xor_b32 v3, 0x80, v2
    s_lshl_b32 s14, s11, 6
    s_add_u32 s14, s14, s3            ; 64j + w
    s_lshl_b32 s14, s14, 14           ; (128j + 2w)*8192
    s_add_u32 s14, s14, s13
    s_lshl_b32 s15, s3, 12
    """)
    a.vm = []
    for i in range(4):
        if WW2: a('s_waitcnt vmcnt(%d)' % (WW2 - 1))
        a('s_add_u32 m0, s15, %d' % (i * 1024))
        a('s_add_u32 s60, s14, %d' % ((16 * (i & 1) + (i >> 1)) * 8192))
        a('buffer_load_dwordx4 v%d, s[40:43], s60 offen nt lds' % (2 if i < 2 else 3))
    a("""
    v_lshrrev_b32 v12, 3, v1          ; r8
    v_and_b32 v13, 7, v1              ; c8
    v_lshlrev_b32 v70, 4, v13
    v_lshl_add_u32 v70, v12, 10, v70  ; r8*1024 + c8*16   (w2 voff)
    v_bfe_u32 v15, v1, 4, 1
    v_lshlrev_b32 v15, 5, v15
    v_xor_b32 v68, v70, v15           ; voffC
    v_xor_b32 v69, 64, v68            ; voffD
    s_cmp_ge_u32 s12, 88
    s_cbranch_scc1 L_Wnf1
    """)
    a.srd(40, W1, 512 * 2752)
    a.srd(48, W2, 1376 * 1024)
    wt = ('s_waitcnt vmcnt(%d)' % (WW2 - 1)) if WW2 else 's_nop 0'
    a("""
    v_mul_u32_u24 v14, 2752, v6
    s_and_b32 s60, s3, 1
    s_lshl_b32 s60, s60, 7
    v_xor_b32 v13, s60, v8
    v_add_u32 v14, v14, v13           ; r*2752 + swizzled chunk
    s_lshl_b32 s14, s8, 3
    s_add_u32 s14, s14, s3            ; 8x + w
    s_mul_i32 s14, s14, %d            ; row (64x + 8w)
    s_lshl_b32 s60, s9, 8
    s_add_u32 s14, s14, s60           ; + block*256
    s_lshl_b32 s15, s3, 11
    s_add_u32 m0, s15, 0x%x
    s_add_u32 s60, s14, %d
    %s
    buffer_load_dwordx4 v14, s[40:43], s14 offen %s lds
    s_add_u32 m0, s15, 0x%x
    %s
    buffer_load_dwordx4 v14, s[40:43], s60 offen %s lds
    s_lshl_b32 s14, s12, 14
    s_lshl_b32 s60, s3, 7
    s_add_u32 s14, s14, s60
    s_add_u32 m0, s15, 0x%x
    s_add_u32 s60, s14, 8192
    %s
    buffer_load_dwordx4 v70, s[48:51], s14 offen nt lds
    s_add_u32 m0, s15, 0x%x
    %s
    buffer_load_dwordx4 v70, s[48:51], s60 offen nt lds
    L_Wnf1:
    """ % (8 * 2752, W1L, 4 * 2752, wt, W1POL, W1L + 1024, wt, W1POL, W2L, wt, W2L + 1024, wt))
    a.srd(48, WO, 0x400000)
    a("""
    s_lshl_b32 s14, s10, 17
    s_lshl_b32 s15, s3, 7
    s_add_u32 s14, s14, s15
    s_lshl_b32 s15, s3, 13
    s_lshl_b32 s5, s11, 1             ; rotation 2j
    v_lshrrev_b32 v71, 2, v7
    v_lshl_add_u32 v71, v6, 3, v71
    v_lshlrev_b32 v71, 7, v71
    v_and_b32 v13, 3, v1
    v_lshl_add_u32 v71, v13, 3, v71
    v_bfe_u32 v13, v1, 3, 2
    v_lshl_add_u32 v71, v13, 5, v71
    v_add_u32 v71, s15, v71
    """)
    def wo_dma(rho, lo, hi, win):
        for n in range(lo, hi):
            if win: a('s_waitcnt vmcnt(%d)' % (win - 1))
            if o.get('rot', 0):
                a('s_add_u32 s61, s5, %d' % n)
                a('s_and_b32 s61, s61, 7')
                a('s_lshl_b32 s62, s61, 10')
                a('s_add_u32 s62, s62, s15')
                a('s_add_u32 m0, s62, %d' % ((1 - rho) * 65536))
                a('s_lshl_b32 s61, s61, 13')
                a('s_add_u32 s61, s61, s14')
                a('s_add_u32 s60, s61, %d' % (rho * 65536))
            else:
                a('s_add_u32 m0, s15, %d' % ((1 - rho) * 65536 + n * 1024))
                a('s_add_u32 s60, s14, %d' % ((64 * rho + 8 * n) * 1024))
            a('buffer_load_dwordx4 v%d, s[48:51], s60 offen %s lds' % (68 if n % 2 == 0 else 69, WOPOL))
    WOF = 72
    def wo_read(rho):
        for mt in range(4):
            a('v_xor_b32 v13, 0x%x, v71' % ((1 - rho) * 65536 + mt * 32))
            for ksl in range(2):
                for rdi in range(2):
                    a.d('ds_read_b64_tr_b16 %s, v13 offset:%d' % (R(WOF + (mt * 4 + 2 * rho + ksl) * 4 + 2 * rdi, 2), ksl * 4096 + rdi * 512), 'wo')
            if mt % 2: a.dall()
    NW0 = o.get('nwo0', 4)
    wo_dma(0, 0, NW0, 0)
    a('s_waitcnt vmcnt(%d)' % NW0)
    a('s_barrier')
    a.stamp(5)
    for ks in range(4):
        for rdi in range(2):
            a.d('ds_read_b64_tr_b16 %s, v4 offset:%d' % (R(16 + 4 * ks + 2 * rdi, 2), ks * 8192 + rdi * 1024), 'uv')
    a("""
    s_cmp_ge_u32 s12, 88
    s_cbranch_scc1 L_Wnf2
    s_lshl_b32 s60, s8, 7
    v_add_u32 v13, s60, v5            ; xn + 64x*2 + g*16
    """)
    for ks in range(2):
        a('ds_read_b128 %s, v13 offset:%d' % (R(52 + 4 * ks, 4), ks * 64))
        for rdi in range(2):
            a('ds_read_b64_tr_b16 %s, v4 offset:%d' % (R(36 + 4 * ks + 2 * rdi, 2), W1L + ks * 8192 + rdi * 1024))
    a("""
    v_lshrrev_b32 v12, 2, v1
    v_and_b32 v13, 3, v1
    v_lshlrev_b32 v13, 3, v13
    v_lshl_add_u32 v12, v12, 7, v13
    s_lshl_b32 s60, s3, 11
    s_add_u32 s60, s60, 0x%x
    v_add_u32 v12, s60, v12
    s_waitcnt lgkmcnt(0)
    v_mfma_f32_16x16x32_bf16 v[32:35], v[52:55], v[36:39], 0
    v_mfma_f32_16x16x32_bf16 v[32:35], v[56:59], v[40:43], v[32:35]
    """ % W2L)
    for mt in range(4):
        a('ds_read_b64_tr_b16 %s, v12 offset:%d' % (R(44 + 2 * mt, 2), mt * 32))
    a("""
    s_lshl_b32 s60, s12, 10
    s_lshl_b32 s61, s3, 7
    s_add_u32 s60, s60, s61
    s_add_u32 s60, s60, 0x%x          ; HP + (8k+x)*1024 + w*128
    v_lshlrev_b32 v12, 3, v7
    v_mov_b32 v33, s4
    s_mov_b64 exec, 0xffff
    buffer_store_dwordx2 v[32:33], v12, s[44:47], s60 offen sc1
    s_mov_b64 exec, -1
    L_Wnf2:
    s_waitcnt lgkmcnt(0)
    s_barrier
    """ % HP)
    a.lg = []
    wo_dma(0, NW0, 8, WW)
    a.stamp(10)
    wo_dma(1, 0, 8, WW)
    a('s_waitcnt vmcnt(8)')
    wo_read(0)
    a('''
    s_cmp_ge_u32 s12, 86
    s_cbranch_scc1 L_Wnf3
    s_lshl_b32 s60, s9, 13
    s_lshl_b32 s61, s8, 7
    s_add_u32 s60, s60, s61
    s_add_u32 s60, s60, 0x%x          ; HP + k*8192 + x*128
    v_and_b32 v12, 7, v1
    v_lshlrev_b32 v12, 10, v12
    v_lshl_add_u32 v12, v6, 5, v12    ; producer*1024 + g*32
    s_mov_b32 s61, 0
    L_Wh:
    buffer_load_dwordx4 v[52:55], v12, s[44:47], s60 offen sc1
    buffer_load_dwordx4 v[56:59], v12, s[44:47], s60 offen offset:16 sc1
    s_add_u32 s61, s61, 1
    s_waitcnt vmcnt(0)
    v_xor_b32 v13, v53, v55
    v_xor_b32 v14, v57, v59
    v_xor_b32 v15, s4, v53
    v_or3_b32 v13, v13, v14, v15
    v_xor_b32 v14, v53, v57
    v_or_b32 v13, v13, v14
    v_cmp_ne_u32 vcc, 0, v13
    s_cmp_gt_u32 s61, SPIN_N
    s_cbranch_scc1 L_Wh_x
    s_cbranch_vccnz L_Wh
    L_Wh_x:
    ''' % HP)
    for m in ('quad_perm:[1,0,3,2]', 'quad_perm:[2,3,0,1]', 'row_half_mirror'):
        for r in range(4):
            a('v_add_f32_dpp v%d, v%d, v%d %s row_mask:0xf bank_mask:0xf' % (52 + 2 * r, 52 + 2 * r, 52 + 2 * r, m))
    for r in range(4):
        a.rnd_bf16(52 + 2 * r)
        a.silu(52 + 2 * r, 53)
    a('v_cvt_pk_bf16_f32 v32, v52, v54')
    a('v_cvt_pk_bf16_f32 v33, v56, v58')
    for mt in range(4):
        a('v_mfma_f32_16x16x16_bf16 %s, v[32:33], %s, 0' % (R(52 + 4 * mt, 4), R(44 + 2 * mt, 2)))
    a('''
    v_cndmask_b32 v52, v52, v56, s[52:53]
    v_cndmask_b32 v52, v52, v60, s[54:55]
    v_cndmask_b32 v52, v52, v64, s[56:57]
    buffer_store_dword v52, v11, s[44:47], s66 offen sc1
    L_Wnf3:
    ''')
    for p in range(4):
        a('v_cmp_eq_u32 vcc, %d, v7' % (2 * p))
        a('v_mov_b32 v%d, 0' % (56 + p))
        a('v_mov_b32 v64, 0xffff')
        a('v_cndmask_b32 v%d, v%d, v64, vcc' % (56 + p, 56 + p))
        a('v_cmp_eq_u32 vcc, %d, v7' % (2 * p + 1))
        a('v_mov_b32 v64, 0xffff0000')
        a('v_cndmask_b32 v%d, v%d, v64, vcc' % (56 + p, 56 + p))
        a('v_and_b32 v%d, 0x3f803f80, v%d' % (60 + p, 56 + p))
    a("""
    v_lshrrev_b32 v64, 1, v6
    v_mul_u32_u24 v64, 0x%x, v64
    v_lshl_add_u32 v64, v7, 4, v64
    v_and_b32 v65, 1, v6
    v_lshl_add_u32 v64, v65, 3, v64
    s_mul_i32 s60, s3, 288
    s_add_u32 s60, s60, 0x%x
    v_add_u32 v64, s60, v64
    v_and_b32 v65, 7, v1
    v_mul_u32_u24 v65, 288, v65
    v_add_u32 v65, v65, v5
    s_lshl_b32 s60, s3, 5
    s_add_u32 s60, s60, 0x%x
    v_lshl_add_u32 v66, v7, 1, s60
    """ % (8 * 288, ROWS, CB))
    a('s_waitcnt vmcnt(0)')
    wo_read(1)
    a.stamp(6)
    a('''
    v_lshlrev_b32 v14, 11, v7
    s_lshl_b32 s60, s3, 3
    s_add_u32 s60, s60, 0x%x
    v_mov_b32 v70, s60                ; LW + w*8
    v_and_b32 v71, 7, v1
    v_lshlrev_b32 v71, 3, v71
    v_add_u32 v71, 0x%x, v71          ; LW + (l%%8)*8
    s_mov_b32 s60, 0
    s_mov_b64 s[62:63], -1
    L_Wg1:
    s_sleep ML_SLEEP
    s_mov_b64 exec, s[62:63]
    buffer_load_dwordx4 v[52:55], v14, s[44:47], s67 offen sc1
    s_add_u32 s60, s60, 1
    s_waitcnt vmcnt(0)
    v_cmp_ne_u32 s[62:63], s4, v55
    s_cmp_gt_u32 s60, SPIN_N
    s_cbranch_scc1 L_Wg
    s_cmp_lg_u64 s[62:63], 0
    s_cbranch_scc1 L_Wg1
    ''' % (LW, LW))
    if a.stamps: a('s_mov_b32 s60, 0')
    a.label('L_Wg')
    a('s_mov_b64 exec, -1')
    for i in range(4):
        a('buffer_load_dwordx4 %s, v9, s[44:47], s69 offen offset:%d sc1' % (R(36 + 4 * i, 4), i * 1024))
    a("""
    v_sub_u32 v15, v54, v55
    v_cmp_gt_u32 vcc, 16, v1
    v_cndmask_b32 v15, 0, v15, vcc
    s_add_u32 s60, s60, 1
    """)
    for i in range(4):
        a('s_waitcnt vmcnt(%d)' % (3 - i))
        a('v_mfma_f32_16x16x32_bf16 v[32:35], v[60:63], %s, %s' % (R(36 + 4 * i, 4), 'v[32:35]' if i else '0'))
        a('v_add3_u32 v15, v15, v%d, v%d' % (36 + 4 * i, 37 + 4 * i))
        a('v_add3_u32 v15, v15, v%d, v%d' % (38 + 4 * i, 39 + 4 * i))
    a.wave_red('v_add_u32', 15, 13)
    a("""
    v_cmp_ne_u32 vcc, 0, v15
    s_cmp_gt_u32 s60, SPIN_N
    s_cbranch_scc1 L_Wg_x
    s_cbranch_vccnz L_Wg
    L_Wg_x:
    """)
    a.stamp(7)
    if a.stamps:
        a('s_mul_i32 s92, s60, 100')
        a('s_add_u32 s92, s92, s70')
        a('s_addc_u32 s93, s71, 0')
    a("""
    v_cmp_neq_f32 vcc, 0, v52
    s_cbranch_vccnz L_Wgen
    """)
    a.label('L_Wj')
    a.wave_red('v_add_f32', 53, 12, rows_only=True)
    a('''
    ds_write_b64 v70, v[52:53]
    v_cvt_pk_bf16_f32 v32, v32, v33
    v_cvt_pk_bf16_f32 v33, v34, v35
    ds_write_b64 v64, v[32:33]
    s_waitcnt lgkmcnt(0)
    s_barrier
    ''')
    a.stamp(8)
    for ks in range(4):
        a.d('ds_read_b128 %s, v65 offset:%d' % (R(36 + 4 * ks, 4), ROWS - SM + ks * 64), 'a%d' % ks)
    a.d('ds_read_b64 v[52:53], v71', 'lw')
    for ks in range(4):
        a.dwait('a%d' % ks)
        a('v_mfma_f32_16x16x32_bf16 v[32:35], %s, %s, %s' % (R(36 + 4 * ks, 4), R(16 + 4 * ks, 4), 'v[32:35]' if ks else '0'))
    a.dall()
    a('''
    v_cmp_neq_f32 vcc, 0, v52
    s_cbranch_vccnz L_Wgen2
    L_Wj2:
    v_add_f32_dpp v53, v53, v53 quad_perm:[1,0,3,2] row_mask:0xf bank_mask:0xf
    s_nop 1
    v_add_f32_dpp v53, v53, v53 quad_perm:[2,3,0,1] row_mask:0xf bank_mask:0xf
    s_nop 1
    v_add_f32_dpp v53, v53, v53 row_half_mirror row_mask:0xf bank_mask:0xf
    v_add_f32 v32, v32, v33
    v_add_f32 v34, v34, v35
    v_rcp_f32 v67, v53
    v_add_f32 v32, v32, v34
    ''')
    a.swap_red('v_add_f32', 32, 33, 16)
    a('''
    v_mul_f32 v32, v32, v67
    v_cvt_pk_bf16_f32 v32, v32, v32
    ds_write_b16 v66, v32
    s_waitcnt lgkmcnt(0)
    s_barrier
    ''')
    for ks in range(4):
        a.d('ds_read_b128 %s, v5 offset:%d' % (R(36 + 4 * ks, 4), CB - SM + ks * 64), 'a%d' % ks)
    for ks in range(4):
        a.dwait('a%d' % ks)
        for mt in range(4):
            a('v_mfma_f32_16x16x32_bf16 %s, %s, %s, %s' % (R(16 + 4 * mt, 4), R(36 + 4 * ks, 4), R(WOF + (mt * 4 + ks) * 4, 4), R(16 + 4 * mt, 4) if ks else '0'))
    a('''
    v_cndmask_b32 v16, v16, v20, s[52:53]
    v_cndmask_b32 v16, v16, v24, s[54:55]
    v_cndmask_b32 v16, v16, v28, s[56:57]
    buffer_store_dword v16, v11, s[44:47], s58 offen sc1
    ''')
    a.stamp(9)
    if a.stamps:
        a('s_cmp_lg_u32 s3, %d' % o.get('stw', 0))
        a('s_cbranch_scc1 L_end')
        a.write_stamps()
    a('s_endpgm')

def role_Wslow(a, o):
    a.refills()
    RB = STG + 0x3100
    a.label('L_Aslow')
    a("""
    v_lshlrev_b32 v12, 2, v4
    v_add_u32 v12, 0x%x, v12
    s_cmp_lg_u32 s15, 0
    s_cbranch_scc1 L_Aslow2
    ; first pass was unsafe: rerun with the true (rounded up) per-head max
    v_ceil_f32 v8, v8
    ds_write_b32 v12, v8
    v_and_b32 v13, 15, v1
    v_lshlrev_b32 v13, 2, v13
    v_add_u32 v13, 0x%x, v13
    s_waitcnt lgkmcnt(0)
    ds_read_b32 v10, v13
    ds_read_b32 v11, v13 offset:64
    s_mov_b32 s15, 1
    s_waitcnt lgkmcnt(0)
    v_sub_f32 v10, 0, v10
    v_sub_f32 v11, 0, v11
    """ % (RB, RB))
    a.voffs(3, 0)
    a("""
    s_barrier
    s_branch L_Apass
    L_Aslow2:
    ds_read_b32 v20, v12
    s_waitcnt lgkmcnt(0)
    s_nop 7
    s_branch L_Aok
    """)
    a.label('L_Wgen')
    a('v_mov_b32 v12, v52')
    a.wave_red('v_max_f32', 12, 13, rows_only=True)
    a('''
    v_sub_f32 v54, v52, v12
    v_exp_f32 v54, v54
    v_mov_b32 v52, v12                ; Mw
    v_and_b32 v54, 0xffff0000, v54
    v_mul_f32 v53, v53, v54
    v_lshrrev_b32 v55, 16, v54
    v_or_b32 v54, v54, v55
    v_lshlrev_b32 v13, 2, v6
    ''')
    for i in range(4):
        a('ds_bpermute_b32 v12, v13, v54 offset:%d' % (16 * i))
        a('s_waitcnt lgkmcnt(0)')
        for p in range(4):
            a('v_and_b32 v%d, v12, v%d' % (60 + p, 56 + p))
        a('v_mfma_f32_16x16x32_bf16 v[32:35], v[60:63], %s, %s' % (R(36 + 4 * i, 4), 'v[32:35]' if i else '0'))
    a('s_nop 7')
    a('s_branch L_Wj')
    a.label('L_Wgen2')
    a('''
    v_mov_b32 v12, v52
    v_max_f32_dpp v12, v12, v12 quad_perm:[1,0,3,2] row_mask:0xf bank_mask:0xf
    v_max_f32_dpp v12, v12, v12 quad_perm:[2,3,0,1] row_mask:0xf bank_mask:0xf
    v_max_f32_dpp v12, v12, v12 row_half_mirror row_mask:0xf bank_mask:0xf
    v_sub_f32 v54, v52, v12
    v_exp_f32 v54, v54
    v_and_b32 v13, 1, v6
    v_lshlrev_b32 v13, 4, v13
    v_mul_f32 v53, v53, v54
    ''')
    for r in range(4):
        a('ds_bpermute_b32 v12, v13, v54 offset:%d' % (4 * r))
        a('s_waitcnt lgkmcnt(0)')
        a('v_mul_f32 v%d, v%d, v12' % (32 + r, 32 + r))
    a('s_nop 1')
    a('s_branch L_Wj2')

def gen(stamps=False, o=None):
    o = o or {}
    a = G(stamps)
    prologue(a, o)
    role_W(a, o)
    role_A(a, o)
    role_As(a, o)
    role_Wslow(a, o)
    a.label('L_end')
    txt = a.text()
    for k, v in (('QT_SLEEP', o.get('qtsleep', 1)), ('QT_THR', o.get('qtthr', 2)), ('REP_MASK', o.get('repmask', '0x00010001')), ('LSPIN', 200000), ('SPIN_N', SPIN),
                 ('ML_SLEEP', o.get('mlsleep', 2)), ('FIN_SLEEP', o.get('finsleep', 1)), ('UKGATE', o.get('ukgate', 3))):
        txt = txt.replace(k, str(v))
    txt = txt.replace('W1A ', '; ' if o.get('now1', 0) else '')
    txt = txt.replace('PTA ', '' if o.get('pre', 0) else '; ').replace('ML_OFF', '0x%x' % ML)
    qs = o.get('qcsh', 7)
    txt = txt.replace('QCSH+5', str(qs + 5)).replace('QCSH', str(qs)).replace('QCEX', {5: '0x3ffff', 6: '0xfffff', 7: '0xffffff'}[qs]).replace('REP_N', str(o.get('repn', 1)))
    txt = txt.replace('NODEP ', '' if o.get('nodep', 0) else '; ')
    if o.get('nodep', 0): txt = txt.replace('s_or_b32 s14, vcc_lo, vcc_hi', 's_mov_b32 s14, 0')
    if o.get('now1', 0): txt = txt.replace('buffer_load_dwordx4 v14, s[40:43], s14 offen', '; ').replace('buffer_load_dwordx4 v14, s[40:43], s60 offen', '; ')
    body = hz.fix(txt)
    return kernel_file([(KN + '_kernel', 256, 512, 163840)], [(KN + '_kernel', body, 256, 96, 256)])

if __name__ == '__main__':
    out = sys.argv[1]
    stamps = 'stamps' in sys.argv[2:]
    o = {}
    for kv in sys.argv[2:]:
        if '=' in kv:
            k, v = kv.split('=')
            o[k] = int(v) if v.lstrip('-').isdigit() else v.replace('_', ' ')
    open(out, 'w').write(gen(stamps, o))
```

```python
from gb import *
WS_REC = 0x520000
HP = 0x500000

QA, QC, RT = 0x0, 0x8000, 0x10000
SP, FP, ML, QP, OP = 0x20000, 0x60000, 0xA0000, 0xE0000, 0x100000
X, CKV, WQ, WUK, WUV, WO, W1, W2, OUT, DBG, WS = 16, 18, 20, 22, 24, 26, 30, 32, 34, 36, 38

def prologue(a, o):
    a('''
    s_load_dwordx16 s[16:31], s[0:1], 0
    s_load_dwordx8 s[32:39], s[0:1], 64
    s_memrealtime s[4:5]
    s_cmp_ge_u32 s2, 256
    s_cbranch_scc1 L_end
    s_getpc_b64 s[6:7]
    L_pc:
    v_lshrrev_b32 v1, 6, v0
    v_readfirstlane_b32 s3, v1
    v_and_b32 v1, 63, v0
    ''')
    if a.stamps:
        for k in range(NST):
            a('s_mov_b64 s[%d:%d], 0' % (70 + 2 * k, 71 + 2 * k))
    a('''
    s_cmp_ge_u32 s2, 128
    s_cbranch_scc1 L_W
    s_cmp_lg_u32 s3, 6
    s_cbranch_scc1 L_nopf
    v_lshlrev_b32 v2, 7, v1
    global_load_dword v255, v2, s[6:7]
    v_add_u32 v2, 0x2000, v2
    v_min_u32 v3, L_end-L_pc, v2
    global_load_dword v255, v3, s[6:7]
    v_add_u32 v2, 0x2000, v2
    v_min_u32 v3, L_end-L_pc, v2
    global_load_dword v255, v3, s[6:7]
    L_nopf:
    s_lshl_b32 s8, s3, 3
    s_or_b32 s8, s8, s2
    s_sub_u32 s8, s8, 56
    v_mov_b32 v5, 0
    v_mov_b32 v6, 0
    s_waitcnt lgkmcnt(0)
    s_cmp_ge_u32 s2, 8
    s_cbranch_scc1 L_A
    s_cmp_ge_u32 s8, 8
    s_cbranch_scc1 L_A
    s_or_b32 s8, s4, 1
    v_mov_b32 v4, s8
    s_mov_b64 exec, 1
    global_atomic_cmpswap v6, v[4:5], s[36:37] sc1
    s_mov_b64 exec, -1
    s_branch L_A
    ''')

def common2(a):
    if a.stamps:
        a('s_mov_b64 s[70:71], s[4:5]')
    a.srd(44, WS, WS_REC)
    a('''
    s_mov_b32 s52, 0xffff0000
    s_mov_b32 s53, 0
    s_mov_b32 s54, 0
    s_mov_b32 s55, 0x0000ffff
    s_mov_b32 s56, 0
    s_mov_b32 s57, 0xffff0000
    ''')

STG = 0x20000
PB = STG
LB = STG + 0x2000

FL = STG + 0x3000

def role_A(a, o):
    AW = o.get('awin', 8); AW0 = o.get('awin0', 1); AN0 = o.get('an0', 3)
    a.label('L_A')
    a.stamps_hold = False
    a.vm = []; a.lg = []
    common2(a)
    a.srd(40, CKV, 0x2000000)
    a("""
    v_lshrrev_b32 v12, 4, v1          ; r = l/16
    v_and_b32 v13, 15, v1
    v_lshlrev_b32 v14, 2, v12
    v_xor_b32 v14, v14, v13
    v_lshlrev_b32 v14, 4, v14
    v_lshl_add_u32 v3, v12, 10, v14
    v_xor_b32 v0, 32, v3
    s_and_b32 s59, s2, 7
    s_lshl_b32 s59, s59, 4
    s_lshr_b32 s8, s2, 3
    s_add_u32 s59, s59, s8            ; p
    s_lshl_b32 s8, s59, 18
    s_cmp_ge_u32 s3, 4
    s_cbranch_scc1 L_As
    s_lshl_b32 s9, s3, 14
    s_add_u32 s8, s8, s9
    s_mov_b32 s15, 0
    v_mov_b32 v10, 0
    v_mov_b32 v11, 0
    """)
    def dma_one(i, seg, aa, win=None, track=True):
        if win is not None: a.vwait_n(win - 1)
        a('s_add_u32 m0, s9, 0x%x' % ((i % 2) * 65536 + aa * 4096 + seg * 1024))
        a('s_add_u32 s10, s8, 0x%x' % (i * 65536 + aa * 4096 + seg * 256))
        ins = 'buffer_load_dwordx4 v%d, s[40:43], s10 offen nt lds' % (3 if aa < 2 else 0)
        if track: a.v(ins, 'C%d_%d' % (i, seg))
        else: a(ins)
    def chunk_ops(i, segs=(0, 1, 2, 3)): return [(i, seg, aa) for seg in segs for aa in range(4)]
    a.label('L_Apass')
    a.vm = []
    first = chunk_ops(0) + chunk_ops(1)
    if o.get('amaj', 1): first = [(i, seg, aa) for i in range(2) for aa in range(4) for seg in range(4)]
    for n in range(AW0): dma_one(*first[n])
    a("""
    v_mbcnt_lo_u32_b32 v1, -1, 0
    v_mbcnt_hi_u32_b32 v1, -1, v1
    v_lshrrev_b32 v12, 4, v1          ; g
    v_and_b32 v13, 15, v1             ; key
    s_lshl_b32 s10, s3, 10
    s_add_u32 s11, s10, 0x%x
    v_lshl_add_u32 v5, v1, 4, s11     ; p_rd (own tile) = PB + w*1024 + lane*16
    v_lshlrev_b32 v56, 4, v1
    v_add_u32 v56, 0x%x, v56
    v_lshlrev_b32 v15, 4, v12
    v_xor_b32 v56, v56, v15           ; q frag read (even ks)
    v_xor_b32 v57, 64, v56            ; (odd ks)
    v_lshrrev_b32 v14, 1, v12
    v_lshlrev_b32 v14, 9, v14
    v_lshl_add_u32 v14, v13, 4, v14
    v_and_b32 v15, 1, v12
    v_lshl_add_u32 v14, v15, 3, v14
    v_add_u32 v4, s11, v14            ; p_wr
    v_lshrrev_b32 v14, 5, v1          ; g2
    v_lshrrev_b32 v16, 2, v13         ; r (pv) / a (qk)
    v_bfe_u32 v17, v1, 1, 1
    v_lshl_add_u32 v17, v15, 1, v17
    v_lshlrev_b32 v18, 1, v14
    v_xor_b32 v17, v17, v18
    v_lshl_add_u32 v17, v16, 2, v17
    v_lshlrev_b32 v17, 4, v17
    v_lshl_add_u32 v17, v16, 8, v17
    v_lshl_add_u32 v17, v14, 13, v17
    v_and_b32 v18, 1, v1
    v_lshl_add_u32 v17, v18, 3, v17
    s_add_u32 s10, s10, s9
    v_add_u32 v2, s10, v17            ; pv_base (own tile)
    v_and_b32 v17, 3, v13
    v_and_b32 v18, 2, v16
    v_xor_b32 v18, v18, v12
    v_lshl_add_u32 v18, v17, 2, v18
    v_lshlrev_b32 v18, 4, v18
    v_lshl_add_u32 v18, v17, 8, v18
    v_lshl_add_u32 v18, v16, 12, v18
    v_add_u32 v1, s9, v18             ; qk_base
    v_mov_b32 v6, 0
    v_mov_b32 v7, 0
    v_mov_b32 v8, 0xff800000
    v_mov_b32 v9, 0xff800000
    """ % (PB, STG))
    S = 16
    def qk_addr(i):
        for k in range(4):
            a('v_xor_b32 v%d, 0x%x, v1' % (12 + k, (i % 2) * 65536 + (k << 6)))
    def s_init(hh):
        for r in range(4):
            a('v_mov_b32 v%d, v%d' % (S + 4 * hh + r, 10 + hh))
    qk_addr(0); s_init(0); s_init(1)
    NPRE = o.get('npre', 22); NSO = o.get('nsoft', 99); SW = o.get('swin', 2)
    for n in range(AW0, NPRE): dma_one(*first[n], AW0 if n < AN0 else (AW if n < NSO else SW))
    SETS = [[24, 28, 32, 36], [40, 44, 48, 52]]
    def rd(i, seg, ks=(0, 1, 2, 3)):
        st = SETS[(i + seg) % 2]
        if ('C%d_%d' % (i, seg)) in a.vm: a.vwait('C%d_%d' % (i, seg))
        for k in ks:
            a.d('ds_read_b128 %s, v%d offset:%d' % (R(st[k], 4), 12 + k, seg * 1024), 'k%d_%d' % (seg, k))
    def mf(i, seg, k, hh):
        st = SETS[(i + seg) % 2]
        a.dwait('k%d_%d' % (seg, k))
        a('v_mfma_f32_16x16x32_bf16 %s, %s, %s, %s' % (R(S + 4 * hh, 4), R(st[k], 4), R(128 + (hh * 16 + seg * 4 + k) * 4, 4), R(S + 4 * hh, 4)))
    def mm(i, seg):
        for k in range(4):
            for hh in range(2): mf(i, seg, k, hh)
    def pretouch():
        a('''
        v_mbcnt_lo_u32_b32 v60, -1, 0
        v_mbcnt_hi_u32_b32 v60, -1, v60
        v_and_b32 v61, 15, v60
        v_lshlrev_b32 v61, 4, v61
        v_bfe_u32 v62, v60, 4, 1
        v_lshl_add_u32 v61, v62, 17, v61
        v_lshrrev_b32 v62, 5, v60
        v_lshl_add_u32 v61, v62, 19, v61
        s_lshl_b32 s10, s3, 15
        s_lshl_b32 s11, s59, 8
        s_add_u32 s10, s10, s11
        s_add_u32 s10, s10, 0x%x
        ''' % OP)
        for pr in range(8):
            hr = 8 * (pr // 2) + 2 * (pr % 2)
            a('s_add_u32 s11, s10, 0x%x' % (hr * 131072))
            a.v('buffer_store_dwordx4 v[64:67], v61, s[44:47], s11 offen sc1', 'PT')
    if o.get('pt', 0) == 1: pretouch()
    a.stamp(10)
    a('s_barrier')
    a.stamp(11)
    a('v_mov_b32 v59, 0')
    a.v('global_load_dword v58, v59, s[36:37] sc1', 'N')
    for n in range(NPRE, 32): dma_one(*first[n])
    rd(0, 0); rd(0, 1)
    a('''
    v_mbcnt_lo_u32_b32 v0, -1, 0
    v_and_b32 v0, 3, v0
    v_lshlrev_b32 v0, 2, v0
    v_add_u32 v0, 0x%x, v0            ; flag read addr
    s_lshl_b32 s10, s3, 2
    s_add_u32 s10, s10, 0x%x
    v_mov_b32 v3, s10                 ; own flag addr
    ''' % (FL, FL))
    a.dall()
    a.slow = []
    def hcheck(need):
        lab = a.newlabel('L_Ahc')
        a('s_cmp_ge_u32 s62, %d' % need)
        a('s_cbranch_scc0 %s' % lab)
        a.label(lab + 'b')
        a.slow.append('''
        %s:
        s_mov_b32 s11, 0
        %sl:
        ds_read_b32 v57, v3 offset:32
        s_add_u32 s11, s11, 1
        s_waitcnt lgkmcnt(0)
        v_readfirstlane_b32 s62, v57
        s_sub_u32 s62, s62, s57
        s_cmp_gt_u32 s62, 15
        s_cselect_b32 s62, 0, s62
        s_cmp_gt_u32 s11, LSPIN
        s_cbranch_scc1 %sb
        s_cmp_lt_u32 s62, %d
        s_cbranch_scc1 %sl
        s_branch %sb
        ''' % (lab, lab, lab, need, lab, lab))
    def pcheck(reg):
        lab = a.newlabel('L_Apc')
        a('v_subrev_u32 v%d, s63, v%d' % (reg, reg))
        a('v_cmp_lt_u32 vcc, 7, v%d' % reg)
        a('s_cbranch_vccnz %s' % lab)
        a.label(lab + 'b')
        a.slow.append('''
        %s:
        s_mov_b32 s11, 0
        %sl:
        ds_read_b32 v%d, v0
        s_add_u32 s11, s11, 1
        s_waitcnt lgkmcnt(0)
        v_subrev_u32 v%d, s63, v%d
        v_cmp_lt_u32 vcc, 7, v%d
        s_cmp_gt_u32 s11, LSPIN
        s_cbranch_scc1 %sb
        s_cbranch_vccnz %sl
        s_branch %sb
        ''' % (lab, lab, reg, reg, reg, reg, lab, lab, lab))
    DA = o.get('diaga', -1)
    def ds(i, k):
        if DA == i:
            sv = a.lg[:]
            a('s_memrealtime s[%d:%d]' % (70 + 2 * k, 71 + 2 * k))
            a('s_waitcnt lgkmcnt(0)'); a.lg = []
    a.stamp(1)
    a('s_barrier')
    a.stamp(2)
    if o.get('clk', 0): a('s_memtime s[90:91]\ns_waitcnt lgkmcnt(0)')
    if DA >= 0: a.stamps_mute = True
    for i in range(4):
        slot = (i % 2) * 65536
        A_, B_ = SETS[i % 2], SETS[(i + 1) % 2]
        ring = A_ + B_[:2]
        PF = [B_[2], B_[3], 56, 60]
        seq = [(t, ct) for t in range(4) for ct in range(4)]
        def rdv(n):
            t, ct = seq[n]
            b = ring[n % 6]
            a('v_xor_b32 v%d, 0x%x, v2' % (12 + n % 4, slot + (t << 14) + (ct << 6)))
            for rdi in range(2):
                a.d('ds_read_b64_tr_b16 %s, v%d offset:%d' % (R(b + 2 * rdi, 2), 12 + n % 4, rdi * 4096), 'v%d' % n)
        ds(i, 3)
        def step(seg, k, nxt):
            mf(i, seg, k, 0); mf(i, seg, k, 1)
            if nxt is not None: rd(i, nxt[0], (nxt[1],))
        order = [(sg, k) for sg in range(4) for k in range(4)]
        if i == 0:
            a('s_cmp_lg_u32 s15, 0')
            a('s_cbranch_scc1 L_Anoq')
            def rq(ks):
                for hh in range(2):
                    f = hh * 16 + ks
                    a.d('ds_read_b128 %s, v%d offset:%d' % (R(128 + 4 * f, 4), 56 + (ks & 1), f * 1024), 'q%d' % ks)
            QD = 4
            for ks in range(QD): rq(ks)
            for ks in range(12):
                a.dwait('q%d' % ks)
                step(ks // 4, ks % 4, order[ks + 7] if 1 <= ks <= 8 else None)
                if ks + QD < 16: rq(ks + QD)
            a.dall()
            a('s_branch L_Aq2')
            a.label('L_Anoq')
            a('s_waitcnt vmcnt(0)')
            a('s_add_u32 s10, s58, 24')
            a('v_mov_b32 v56, s10')
            a('ds_write_b32 v3, v56 offset:32')
            mm(0, 0); rd(0, 2); mm(0, 1); rd(0, 3); mm(0, 2)
            a.dall()
            a.label('L_Aq2')
            if 'N' in a.vm: a.vwait('N')
            a('''
            v_readfirstlane_b32 s58, v58
            s_lshl_b32 s10, s15, 4
            s_add_u32 s57, s58, s10
            ''')
        elif i == 1:
            for ks in range(12):
                step(ks // 4, ks % 4, order[ks + 4])
        elif i == 2:
            for ks in range(12):
                if ks % 4 == 0: hcheck(ks // 4 + 2)
                step(ks // 4, ks % 4, order[ks + 4])
        elif o.get('amaj', 1):
            for ks in range(4): step(0, ks, order[ks + 4])
            mm(i, 1)
            hcheck(8)
            a.stamp(3)
            rd(i, 2)
            for ks in range(8, 12): step(2, ks % 4, order[ks + 4])
        else:
            for ks in range(8):
                if ks % 4 == 0: hcheck(4 + ks // 4 + 2)
                step(ks // 4, ks % 4, order[ks + 4])
            mm(i, 2)
            hcheck(8)
            a.stamp(3)
            rd(i, 3)
        ds(i, 4)
        early = (i == 3 and not o.get('amaj', 1))
        if early:
            for n in range(4): rdv(n)
        for k in range(4):
            mf(i, 3, k, 0)
            if not early: rdv(k)
        for k in range(4): mf(i, 3, k, 1)
        if i == 3:
            a("""
            v_mbcnt_lo_u32_b32 v1, -1, 0
            v_mbcnt_hi_u32_b32 v1, -1, v1
            s_lshl_b32 s10, s3, 4
            s_add_u32 s10, s10, 0x%x
            """ % LB)
        a('s_add_u32 s63, s57, %d' % i)
        E = 56
        pb = (i % 2) * 4096
        for hh in range(2):
            for r in range(4):
                a('v_exp_f32 v%d, v%d' % (E + 4 * hh + r, S + 4 * hh + r))
            for r in range(2):
                a('v_cvt_pk_bf16_f32 v%d, v%d, v%d' % (12 + 2 * hh + r, E + 4 * hh + 2 * r, E + 4 * hh + 2 * r + 1))
            if hh == 0: ds(i, 5)
            if i == 0 and hh == 0: a('s_barrier')
            if hh == 0: ds(i, 6)
            a.d('ds_write_b64 v4, %s offset:%d' % (R(12 + 2 * hh, 2), pb + 256 * hh), 'w')
        a('v_mov_b32 v12, s63')
        a.d('ds_write_b32 v3, v12', 'w')
        a.d('ds_read_b128 %s, v5 offset:%d' % (R(PF[0], 4), pb), 'p0')
        for hh in range(2):
            a('v_add_f32 v%d, v%d, v%d' % (E + 4 * hh, E + 4 * hh, E + 4 * hh + 1))
            a('v_add_f32 v%d, v%d, v%d' % (E + 4 * hh + 2, E + 4 * hh + 2, E + 4 * hh + 3))
            a('v_max3_f32 v%d, v%d, v%d, v%d' % (8 + hh, 8 + hh, S + 4 * hh, S + 4 * hh + 1))
            a('v_add_f32 v%d, v%d, v%d' % (6 + hh, 6 + hh, E + 4 * hh))
            a('v_max3_f32 v%d, v%d, v%d, v%d' % (8 + hh, 8 + hh, S + 4 * hh + 2, S + 4 * hh + 3))
            a('v_add_f32 v%d, v%d, v%d' % (6 + hh, 6 + hh, E + 4 * hh + 2))
        a.d('ds_read_b32 v13, v0', 'pf')
        ds(i, 7)
        fill = {}
        if i < 3:
            fill = {1: lambda: s_init(0), 2: lambda: s_init(1)}
        if i == 3:
            def fw():
                a("""
                v_and_b32 v16, 15, v1
                v_lshrrev_b32 v17, 4, v1
                v_lshlrev_b32 v16, 6, v16
                v_lshl_add_u32 v16, v17, 2, v16
                v_add_u32 v16, s10, v16
                s_add_u32 s63, s57, 4
                v_mov_b32 v17, s63
                """)
                a.d('ds_write2st64_b32 v16, v6, v7 offset0:0 offset1:4', 'w')
                a.d('ds_write2st64_b32 v16, v8, v9 offset0:8 offset1:12', 'w')
                a.d('ds_write_b32 v3, v17', 'w')
            def f0():
                a("""
                v_bfe_u32 v4, v1, 4, 1
                v_bfe_u32 v6, v1, 3, 1
                v_lshl_add_u32 v4, v6, 1, v4
                v_lshrrev_b32 v6, 5, v1
                v_lshl_add_u32 v4, v6, 2, v4
                v_bfe_u32 v7, v1, 2, 1
                """)
            def f0b():
                a("""
                v_lshl_add_u32 v4, v7, 3, v4
                v_and_b32 v7, 1, v1
                v_lshl_add_u32 v4, v7, 4, v4
                v_and_b32 v7, 2, v1
                v_lshlrev_b32 v7, 4, v7
                v_lshl_add_u32 v7, v4, 6, v7
                """)
                a('v_add_u32 v7, 0x%x, v7' % LB)
                a.d('ds_read_b32 v16, v0', 'lf')
            def f0c():
                a.dwait('lf')
                pcheck(16)
                a.d('ds_read_b128 v[16:19], v7 offset:2048', 'm')
                a.d('ds_read_b128 v[20:23], v7 offset:2064', 'm')
            def f1():
                a.dwait('m')
                a("""
                v_max3_f32 v8, v16, v17, v18
                v_max3_f32 v9, v19, v20, v21
                v_max3_f32 v8, v8, v22, v23
                v_max_f32 v8, v8, v9
                """)
                a.d('ds_read_b128 v[16:19], v7', 'l')
                a.d('ds_read_b128 v[20:23], v7 offset:16', 'l')
            def f2():
                a("""
                v_max_f32_dpp v8, v8, v8 quad_perm:[2,3,0,1] row_mask:0xf bank_mask:0xf
                v_mov_b32 v9, 0x42000000
                v_cmp_gt_f32 vcc, abs(v8), v9
                """)
            def f3():
                a.dwait('l')
                a("""
                v_add_f32 v16, v16, v17
                v_add_f32 v18, v18, v19
                v_add_f32 v20, v20, v21
                v_add_f32 v22, v22, v23
                s_or_b32 s14, vcc_lo, vcc_hi
                s_cmp_lg_u32 s15, 0
                s_cselect_b32 s14, 0, s14
                """)
            def f4():
                a("""
                v_add_f32 v16, v16, v18
                v_add_f32 v20, v20, v22
                v_add_f32 v21, v16, v20
                v_mov_b32 v20, 0
                v_mov_b32 v23, s58
                v_add_f32_dpp v21, v21, v21 quad_perm:[2,3,0,1] row_mask:0xf bank_mask:0xf
                """)
            def f6():
                a("""
                v_mov_b32 v16, v1
                v_and_b32 v17, 15, v1
                v_lshlrev_b32 v17, 4, v17
                v_bfe_u32 v18, v1, 4, 1
                v_lshl_add_u32 v17, v18, 17, v17
                """)
            def f7():
                a("""
                v_lshl_add_u32 v17, v6, 19, v17
                v_lshlrev_b32 v18, 4, v4          ; MLC voffset = h*16
                s_lshl_b32 s10, s3, 15
                s_lshl_b32 s11, s59, 8
                s_add_u32 s10, s10, s11
                s_add_u32 s10, s10, 0x%x
                s_lshl_b32 s12, s59, 2
                s_add_u32 s12, s12, s3
                s_lshl_b32 s12, s12, 9
                s_add_u32 s12, s12, 0x%x
                s_mov_b32 s60, 0xaaaaaaaa
                s_mov_b32 s61, 0xaaaaaaaa
                s_mov_b32 s62, 0x33333333
                s_mov_b32 s63, 0x33333333
                """ % (OP, ML))
            fill = {1: fw, 2: f0, 3: f0b, 5: f0c, 7: f1, 8: f2, 9: f3, 10: f4, 11: f6, 12: f7}
            def hint():
                a("""
                s_lshl_b32 s12, s59, 2
                s_add_u32 s12, s12, s3
                s_lshl_b32 s12, s12, 9
                s_add_u32 s12, s12, 0x%x
                s_add_u32 s11, s58, 1
                v_mov_b32 v128, s11
                v_mov_b32 v129, s11
                v_lshlrev_b32 v130, 3, v1
                buffer_store_dwordx2 v[128:129], v130, s[44:47], s12 offen sc1
                """ % ML)
            HI = o.get('hint', -1)
            if HI >= 0:
                old = fill.get(HI)
                fill[HI] = (lambda: (old(), hint())) if old else hint
        def rdp(t):
            a('v_xor_b32 v%d, 0x%x, v5' % (PF[t], t << 10))
            a.d('ds_read_b128 %s, v%d offset:%d' % (R(PF[t], 4), PF[t], pb), 'p%d' % t)
        for n in range(16):
            t, ct = seq[n]
            a.dwait('v%d' % n); a.dwait('p%d' % t)
            cin = R(64 + 16 * ct, 16) if not (i == 0 and t == 0) else '0'
            a('v_mfma_f32_32x32x16_bf16 %s, %s, %s, %s' % (R(64 + 16 * ct, 16), R(PF[t], 4), R(ring[n % 6], 4), cin))
            if n == 0:
                a.dwait('pf')
                pcheck(13)
                ds(i, 8)
                rdp(1)
            if n + 4 < 16: rdv(n + 4)
            if n == 3: rdp(2)
            if n == 7: rdp(3)
            if n in fill: fill[n]()
            if i < 3 and n == 12:
                qk_addr(i + 1)
                if i >= 1: a.d('ds_read_b32 v57, v3 offset:32', 'hf')
            if i < 3 and n == 13:
                a.dall()
                ds(i, 9)
                if i < 2:
                    a('v_mov_b32 v56, s63')
                    a.d('ds_write_b32 v3, v56 offset:16', 'w')
                    a.stamp(8 + i)
                    a('s_cmp_lg_u32 s15, 0')
                    a('s_cbranch_scc1 L_Arf%d' % i)
                    a.label('L_Arb%d' % i)
                if i >= 1:
                    a('''
                    v_readfirstlane_b32 s62, v57
                    s_sub_u32 s62, s62, s57
                    s_cmp_gt_u32 s62, 15
                    s_cselect_b32 s62, 0, s62
                    ''')
            if i == 0 and n == 13: rd(i + 1, 0, (0, 1))
            if i == 0 and n == 14: rd(i + 1, 0, (2, 3))
            if i in (1, 2) and n == 14:
                hcheck(4 * (i - 1) + 1)
                rd(i + 1, 0)
        ds(i, 11)
    def voffs(x, y):
        a('''
        v_mbcnt_lo_u32_b32 v%d, -1, 0
        v_mbcnt_hi_u32_b32 v%d, -1, v%d
        v_lshrrev_b32 v%d, 4, v%d
        v_and_b32 v%d, 15, v%d
        v_lshlrev_b32 v%d, 4, v%d
        v_mul_u32_u24 v%d, 0x440, v%d
        v_xor_b32 v%d, v%d, v%d
        v_xor_b32 v%d, 32, v%d
        ''' % (x, x, x, y, x, x, x, x, x, y, y, x, x, y, y, x))
    a.voffs = voffs
    def refills():
        for i in range(2):
            a.label('L_Arf%d' % i)
            a('s_waitcnt lgkmcnt(0)')
            a('s_barrier')
            voffs(58, 59)
            for (c, seg, aa) in chunk_ops(i + 2):
                a('s_add_u32 m0, s9, 0x%x' % ((c % 2) * 65536 + aa * 4096 + seg * 1024))
                a('s_add_u32 s10, s8, 0x%x' % (c * 65536 + aa * 4096 + seg * 256))
                a('buffer_load_dwordx4 v%d, s[40:43], s10 offen nt lds' % (58 if aa < 2 else 59))
            a('s_waitcnt vmcnt(0)')
            a('s_branch L_Arb%d' % i)
        for t in a.slow: a(t)
    a.refills = refills
    a.stamp(4)
    if o.get('clk', 0): a('s_memtime s[92:93]\ns_waitcnt lgkmcnt(0)')
    a("""
    s_or_b32 s11, s14, s15
    s_cbranch_scc1 L_Aslow
    s_nop 8
    L_Aok:
    """)
    def pack(pr):
        r = 2 * pr
        b = 24 + pr * 4
        a('v_cvt_pk_bf16_f32 v%d, v%d, v%d' % (b, 64 + r, 80 + r))
        a('v_cvt_pk_bf16_f32 v%d, v%d, v%d' % (b + 2, 64 + r + 1, 80 + r + 1))
        a('v_cvt_pk_bf16_f32 v%d, v%d, v%d' % (b + 1, 96 + r, 112 + r))
        a('v_cvt_pk_bf16_f32 v%d, v%d, v%d' % (b + 3, 96 + r + 1, 112 + r + 1))
    def swp(pr):
        b = 24 + pr * 4
        a('v_permlane16_swap_b32 v%d, v%d' % (b, b + 2))
        a('v_permlane16_swap_b32 v%d, v%d' % (b + 1, b + 3))
    def st(pr):
        hr = 8 * (pr // 2) + 2 * (pr % 2)
        a('s_add_u32 s11, s10, 0x%x' % (hr * 131072))
        a('buffer_store_dwordx4 %s, v17, s[44:47], s11 offen %s' % (R(24 + pr * 4, 4), o.get('oppol', 'sc1')))
    def cs(pr):
        b = 24 + pr * 4
        a('v_add3_u32 v%d, v%d, v%d, v%d' % (56 + pr, b, b + 1, b + 2))
        a('v_add_u32 v%d, v%d, v%d' % (56 + pr, 56 + pr, b + 3))
    def stepA(i):
        a('v_add_u32_dpp v%d, v%d, v%d row_ror:8 row_mask:0xf bank_mask:0x3' % (12 + i, 56 + 2 * i, 56 + 2 * i))
        a('v_add_u32_dpp v%d, v%d, v%d row_ror:8 row_mask:0xf bank_mask:0xc' % (12 + i, 57 + 2 * i, 57 + 2 * i))
    NE = o.get('nearly', 4)
    pack(0)
    for pr in range(8):
        if pr < 7: pack(pr + 1)
        swp(pr)
        if pr < NE: st(pr)
        cs(pr)
        if pr >= 2 and pr % 2 == 0: stepA(pr // 2 - 1)
    a('v_add_u32_dpp v56, v12, v12 row_half_mirror row_mask:0xf bank_mask:0x5')
    a('v_add_u32_dpp v56, v13, v13 row_half_mirror row_mask:0xf bank_mask:0xa')
    stepA(3)
    a('v_add_u32_dpp v56, v56, v56 quad_perm:[1,0,3,2] row_mask:0xf bank_mask:0xf')
    a('v_add_u32_dpp v57, v14, v14 row_half_mirror row_mask:0xf bank_mask:0x5')
    a('v_add_u32_dpp v57, v15, v15 row_half_mirror row_mask:0xf bank_mask:0xa')
    a('v_add_u32_dpp v57, v57, v57 quad_perm:[1,0,3,2] row_mask:0xf bank_mask:0xf')
    a('v_cndmask_b32 v56, v56, v57, s[60:61]')
    a('v_add_u32_dpp v56, v56, v56 quad_perm:[2,3,0,1] row_mask:0xf bank_mask:0xf')
    a("""
    v_sub_u32 v22, v23, v56
    s_mov_b64 exec, s[62:63]
    buffer_store_dwordx4 v[20:23], v18, s[44:47], s12 offen sc1
    s_mov_b64 exec, -1
    """)
    a.stamp(10)
    for pr in range(NE, 8): st(pr)
    a('''
    s_cmp_lg_u32 s3, 0
    s_cbranch_scc1 L_end
    ''')
    a.stamp(5)
    if a.stamps:
        a('s_waitcnt vmcnt(0)')
        a.stamp(11)
    a.srd(48, WS, FP + 86 * 2048)
    a.srd(40, X, 1024)
    a('''
    v_mov_b32 v40, v16
    s_and_b32 s10, s2, 7
    s_lshl_b32 s10, s10, 6
    s_lshr_b32 s11, s2, 3
    s_lshl_b32 s11, s11, 2
    s_add_u32 s10, s10, s11            ; m0
    s_lshl_b32 s11, s10, 2
    s_lshl_b32 s12, s10, 1
    v_lshlrev_b32 v41, 11, v40
    v_and_b32 v42, 3, v40
    v_lshlrev_b32 v43, 1, v42
    buffer_load_ushort v60, v43, s[40:43], s12 offen
    v_and_b32 v44, 1, v40
    v_cmp_eq_u32 s[60:61], 1, v44
    v_and_b32 v44, 2, v40
    v_cmp_eq_u32 s[62:63], 2, v44
    ''')
    def gather4(base, srd, lab, dst):
        a('s_add_u32 s13, s11, 0x%x' % base)
        a('s_add_u32 s14, s11, 0x%x' % (base + 64 * 2048))
        a('s_mov_b32 s8, 0')
        a('s_mov_b64 s[64:65], -1')
        a('s_mov_b64 s[66:67], -1')
        a.label(lab)
        a('s_sleep FIN_SLEEP')
        a('s_mov_b64 exec, s[64:65]')
        a('s_cbranch_execz %s_a' % lab)
        a('buffer_load_dwordx4 v[48:51], v41, s[%d:%d], s13 offen sc1' % (srd, srd + 3))
        a.label(lab + '_a')
        a('s_mov_b64 exec, s[66:67]')
        a('s_cbranch_execz %s_b' % lab)
        a('buffer_load_dwordx4 v[52:55], v41, s[%d:%d], s14 offen sc1' % (srd, srd + 3))
        a.label(lab + '_b')
        a('''
        s_mov_b64 exec, -1
        s_add_u32 s8, s8, 1
        s_waitcnt vmcnt(0)
        v_max3_u32 v56, v48, v49, v50
        v_max3_u32 v57, v52, v53, v54
        v_max_u32 v56, v56, v51
        v_max_u32 v57, v57, v55
        v_cmp_eq_u32 s[64:65], -1, v56
        v_cmp_eq_u32 s[66:67], -1, v57
        s_cmp_gt_u32 s8, SPIN_N
        s_cbranch_scc1 %s_x
        s_or_b64 s[68:69], s[64:65], s[66:67]
        s_cbranch_scc1 %s
        %s_x:
        v_add_f32 v48, v48, v52
        v_add_f32 v49, v49, v53
        v_add_f32 v50, v50, v54
        v_add_f32 v51, v51, v55
        v_cndmask_b32 v52, v48, v49, s[60:61]
        v_cndmask_b32 v53, v49, v48, s[60:61]
        v_cndmask_b32 v54, v50, v51, s[60:61]
        v_cndmask_b32 v55, v51, v50, s[60:61]
        v_add_f32_dpp v52, v53, v52 quad_perm:[1,0,3,2] row_mask:0xf bank_mask:0xf
        v_add_f32_dpp v54, v55, v54 quad_perm:[1,0,3,2] row_mask:0xf bank_mask:0xf
        v_cndmask_b32 v%d, v52, v54, s[62:63]
        v_cndmask_b32 v53, v54, v52, s[62:63]
        v_add_f32_dpp v%d, v53, v%d quad_perm:[2,3,0,1] row_mask:0xf bank_mask:0xf
        v_add_f32_dpp v%d, v%d, v%d row_ror:4 row_mask:0xf bank_mask:0xf
        v_add_f32_dpp v%d, v%d, v%d row_ror:8 row_mask:0xf bank_mask:0xf
        ''' % ((lab, lab, lab) + (dst,) * 9))
        a.swap_red('v_add_f32', dst, 53, 16)
        a.swap_red('v_add_f32', dst, 53, 32)
    gather4(FP, 48, 'L_gf', 61)
    a.rnd_bf16(61)
    a.silu(61, 53)
    a.rnd_bf16(61)
    a('v_lshlrev_b32 v60, 16, v60')
    a.srd(40, OUT, 1024)
    a.stamp(6)
    gather4(SP, 44, 'L_gs', 62)
    a.rnd_bf16(62)
    a('v_mul_f32 v62, v62, v61')
    a.rnd_bf16(62)
    a('''
    v_add_f32 v62, v62, v60
    v_cvt_pk_bf16_f32 v62, v62, v62
    s_mov_b64 exec, 15
    buffer_store_short v62, v43, s[40:43], s12 offen
    ''')
    a.stamp(7)
    a.write_stamps()
    a('s_endpgm')

def role_As(a, o):
    a.stamps_mute = False
    a.label('L_As')
    ops = [(c, seg, aa) for c in range(2) for seg in range(4) for aa in range(4)]
    AM = o.get('amaj', 1)
    if AM: ops = [(0, seg, aa) for aa in range(4) for seg in range(4)] + [(1, sp * 2 + sg, aa) for sp in range(2) for aa in range(4) for sg in range(2)]
    def prog(n):
        if not AM: return n // 4 + 1 if n % 4 == 3 else None
        return {15: 4, 23: 6, 31: 8}.get(n)
    def loads(lo, hi):
        for n in range(lo, hi):
            c, seg, aa = ops[n]
            a('s_add_u32 s10, s64, 0x%x' % (c * 65536 + aa * 4096 + seg * 256))
            a.v('buffer_load_dwordx4 %s, v%d, s[40:43], s10 offen nt' % (R(128 + 4 * n, 4), 3 if aa < 2 else 0), 'L%d' % n)
    def writes(lo, hi):
        for n in range(lo, hi):
            c, seg, aa = ops[n]
            if ('L%d' % n) in a.vm: a.vwait('L%d' % n)
            a('ds_write_b128 v%d, %s offset:%d' % (100 + c, R(128 + 4 * n, 4), aa * 4096 + seg * 1024))
        a('s_waitcnt lgkmcnt(0)')
    c = [int(x, 16) for x in str(o.get('hsch', 'x48'))[1:]]
    a("""
    s_setprio 3
    s_sub_u32 s3, s3, 4
    s_lshl_b32 s9, s3, 14
    s_add_u32 s64, s8, s9
    s_add_u32 s64, s64, 0x20000
    v_lshl_add_u32 v100, v1, 4, s9
    v_add_u32 v101, 0x10000, v100
    v_mov_b32 v2, 0
    s_mov_b32 s8, 0
    L_Agn:
    s_sleep 8
    global_load_dword v5, v2, s[36:37] sc1
    s_add_u32 s8, s8, 1
    s_waitcnt vmcnt(0)
    v_readfirstlane_b32 s4, v5
    s_cmp_gt_u32 s8, SPIN_N
    s_cbranch_scc1 L_Agn_x
    s_cmp_eq_u32 s4, 0
    s_cbranch_scc1 L_Agn
    L_Agn_x:
    v_lshlrev_b32 v2, QCSH, v1        ; tag voffset
    v_lshlrev_b32 v98, 4, v1          ; data voffset
    s_lshl_b32 s9, s3, 13             ; QA + u*8192
    s_add_u32 s65, s9, 4096
    s_lshl_b32 s11, s3, QCSH+5
    s_add_u32 s11, s11, 0x%x          ; QC + u*32 entries
    s_lshr_b32 s12, s3, 1
    s_lshl_b32 s12, s12, 14
    s_and_b32 s13, s3, 1
    s_lshl_b32 s13, s13, 7
    s_add_u32 s12, s12, s13
    s_add_u32 s12, s12, 0x%x
    v_and_b32 v6, 7, v1
    v_lshlrev_b32 v6, 4, v6
    v_lshl_add_u32 v6, v1, 8, v6
    v_add_u32 v6, s12, v6             ; LDS write base
    s_lshl_b32 s4, s4, 5              ; expected sum = 32 * nonce
    v_mov_b32 v72, 0
    v_mov_b32 v73, 0
    s_mov_b32 s12, REP_MASK
    s_mov_b32 s13, 0
    NODEP s_branch L_Agt_x
    L_Agt:
    s_sleep QT_SLEEP
    s_mov_b64 exec, s[12:13]
    buffer_load_dwordx2 v[72:73], v2, s[44:47], s11 offen sc1
    s_add_u32 s8, s8, 1
    s_waitcnt vmcnt(0)
    v_cmp_ne_u32 s[12:13], v73, v5
    s_cmp_gt_u32 s8, SPIN_N
    s_cbranch_scc1 L_Agt_x
    s_cmp_lg_u32 s12, 0
    s_cbranch_scc1 L_Agt
    L_Agt_x:
    s_mov_b32 exec_lo, -1
    buffer_load_dwordx2 v[72:73], v2, s[44:47], s11 offen sc1
    s_mov_b64 exec, -1
    """ % (QC, STG))
    def dload(i):
        a('buffer_load_dwordx4 %s, v98, s[44:47], s%d offen offset:%d sc1' % (R(8 + 4 * i, 4), 9 if i < 4 else 65, (i % 4) * 1024))
    def dproc(i):
        a('ds_write_b128 v%d, %s' % (40 + i, R(8 + 4 * i, 4)))
        a('v_add3_u32 v%d, v%d, v%d, v%d' % (80 + i, 8 + 4 * i, 9 + 4 * i, 10 + 4 * i))
        a('v_add_u32 v%d, v%d, v%d' % (80 + i, 80 + i, 11 + 4 * i))
    for i in range(8): dload(i)
    a.stamp(1)
    if a.stamps: a('s_mov_b32 s8, 1')
    if o.get('rlate', 1):
        a("""
        s_waitcnt vmcnt(8)
        L_Agr:
        v_cmp_ne_u32 s[12:13], v73, v5
        s_cmp_eq_u32 s12, 0
        s_cbranch_scc1 L_Agr_x
        s_add_u32 s8, s8, 1
        s_cmp_gt_u32 s8, SPIN_N
        s_cbranch_scc1 L_Agr_x
        s_mov_b32 s13, 0
        s_quadmask_b32 s67, s12
        s_mov_b64 exec, s[12:13]
        buffer_load_dwordx2 v[72:73], v2, s[44:47], s11 offen sc1
        s_mov_b64 exec, -1
        """)
        for i in range(8):
            a('s_bitcmp1_b32 s67, %d' % i)
            a('s_cbranch_scc0 L_Agk%d' % i)
            dload(i)
            a.label('L_Agk%d' % i)
        a("""
        s_waitcnt vmcnt(0)
        s_branch L_Agr
        L_Agr_x:
        """)
    a('s_barrier')
    a.vm = []
    loads(0, c[0]); p = c[0]
    for i in range(8): a('v_xor_b32 v%d, %d, v6' % (40 + i, i << 4))
    for i in range(8):
        a('s_waitcnt vmcnt(%d)' % (7 - i + c[0]))
        dproc(i)
    a("""
    NODEP s_branch L_Agp_x
    v_cmp_ne_u32 s[12:13], v73, v5
    s_cmp_eq_u32 s12, 0
    s_cbranch_scc1 L_Agc
    L_Agp:
    s_mov_b32 s13, 0
    s_quadmask_b32 s67, s12
    s_mov_b64 exec, s[12:13]
    buffer_load_dwordx2 v[72:73], v2, s[44:47], s11 offen sc1
    s_mov_b64 exec, -1
    """)
    for i in range(8):
        a('s_bitcmp1_b32 s67, %d' % i)
        a('s_cbranch_scc0 L_Agl%d' % i)
        dload(i)
        a.label('L_Agl%d' % i)
    a("""
    s_add_u32 s8, s8, 1
    s_waitcnt vmcnt(0)
    v_cmp_ne_u32 s[12:13], v73, v5
    """)
    for i in range(8):
        a('s_bitcmp1_b32 s67, %d' % i)
        a('s_cbranch_scc0 L_Agw%d' % i)
        dproc(i)
        a.label('L_Agw%d' % i)
    a("""
    s_cmp_gt_u32 s8, SPIN_N
    s_cbranch_scc1 L_Agp_x
    s_cmp_lg_u32 s12, 0
    s_cbranch_scc1 L_Agp
    L_Agc:
    v_add3_u32 v4, v72, v80, v81
    v_add3_u32 v74, v82, v83, v84
    v_add3_u32 v4, v4, v85, v86
    v_add3_u32 v4, v4, v74, v87
    """)
    a.wave_red('v_add_u32', 4, 74)
    a("""
    v_readfirstlane_b32 s10, v4
    s_mov_b32 s12, -1
    s_cmp_lg_u32 s10, s4
    s_cbranch_scc1 L_Agp
    L_Agp_x:
    s_waitcnt lgkmcnt(0)
    """)
    a.stamp(3)
    a('s_barrier')
    a('s_setprio 0')
    loads(p, p + c[1]); p += c[1]
    a('''
    v_and_b32 v102, 3, v1
    v_lshlrev_b32 v102, 2, v102
    v_add_u32 v102, 0x%x, v102        ; YF read addr
    s_lshl_b32 s10, s3, 2
    s_add_u32 s10, s10, 0x%x
    v_mov_b32 v103, s10               ; own HF addr
    s_barrier                         ; B1
    ''' % (FL + 16, FL + 32))
    K = o.get('hk', 20)
    loads(p, K); p = max(p, K)
    def yspin(i):
        a('''
        s_mov_b32 s11, 0
        L_Ay%d:
        ds_read_b32 v99, v102
        s_add_u32 s11, s11, 1
        s_waitcnt lgkmcnt(0)
        v_sub_u32 v99, v99, v5
        v_subrev_u32 v99, %d, v99
        v_cmp_lt_u32 vcc, 7, v99
        s_cmp_gt_u32 s11, LSPIN
        s_cbranch_scc1 L_Ay%dx
        s_cbranch_vccz L_Ay%dx
        s_sleep 1
        s_branch L_Ay%d
        L_Ay%dx:
        ''' % (i, i, i, i, i, i))
    for n in range(32):
        if n % 16 == 0:
            if n == 16: loads(p, 32); p = 32
            yspin(n // 16)
        cc, seg, aa = ops[n]
        if prog(n): a('v_add_u32 v99, %d, v5' % prog(n))
        if ('L%d' % n) in a.vm: a.vwait('L%d' % n)
        a('ds_write_b128 v%d, %s offset:%d' % (100 + cc, R(128 + 4 * n, 4), aa * 4096 + seg * 1024))
        if prog(n): a('ds_write_b32 v103, v99')
        if p < 32: loads(p, p + 1); p += 1
    if a.stamps:
        a('s_mul_i32 s78, s8, 100')
        a('s_add_u32 s78, s78, s70')
        a('s_addc_u32 s79, s71, 0')
        a('s_lshl_b32 s2, s2, 2')
        a('s_add_u32 s2, s2, s3')
        a('s_add_u32 s2, s2, 256')
        a('s_sleep 127')
        a.write_stamps(vb=104)
    a('s_endpgm')

SM = 0x20000
XN, QB, CB, NB, LW, QO, ROWS = SM, SM + 0x400, SM + 0x500, SM + 0x600, SM + 0x640, SM + 0x700, SM + 0x800
UKL, W1L, W2L, WOL = 0x8000, 0x8000, 0xC000, 0x10000

def layernorm(a):
    for i in range(4):
        a('v_lshlrev_b32 v%d, 16, v%d' % (72 + 2 * i, 68 + i))
        a('v_and_b32 v%d, 0xffff0000, v%d' % (73 + 2 * i, 68 + i))
    a('''
    v_add_f32 v80, v72, v73
    v_add_f32 v81, v74, v75
    v_add_f32 v82, v76, v77
    v_add_f32 v83, v78, v79
    v_add_f32 v80, v80, v81
    v_add_f32 v82, v82, v83
    v_add_f32 v80, v80, v82
    ''')
    a.wave_red('v_add_f32', 80, 81)
    a('v_mul_f32 v80, 0x%x, v80' % f2u(1 / 512))
    for i in range(8):
        a('v_sub_f32 v%d, v%d, v80' % (84 + i, 72 + i))
    a('v_mul_f32 v82, v84, v84')
    a('v_mul_f32 v83, v85, v85')
    for i in range(2, 8):
        a('v_fmac_f32 v%d, v%d, v%d' % (82 + i % 2, 84 + i, 84 + i))
    a('v_add_f32 v82, v82, v83')
    a.rnd_bf16(80)
    a.wave_red('v_add_f32', 82, 81)
    for i in range(8):
        a('v_sub_f32 v%d, v%d, v80' % (72 + i, 72 + i))
    a('v_mul_f32 v82, 0x%x, v82' % f2u(1 / 512))
    a.rnd_bf16(82)
    a('v_add_f32 v82, 0x%x, v82' % f2u(1e-5))
    a.rnd_bf16(82)
    a('v_sqrt_f32 v82, v82')
    for i in range(4):
        a('v_cvt_pk_bf16_f32 v%d, v%d, v%d' % (68 + i, 72 + 2 * i, 73 + 2 * i))
    a.rnd_bf16(82)
    a('v_rcp_f32 v82, v82')
    for i in range(4):
        a('v_lshlrev_b32 v%d, 16, v%d' % (72 + 2 * i, 68 + i))
        a('v_and_b32 v%d, 0xffff0000, v%d' % (73 + 2 * i, 68 + i))
    for i in range(8):
        a('v_mul_f32 v%d, v%d, v82' % (72 + i, 72 + i))
    for i in range(4):
        a('v_cvt_pk_bf16_f32 v%d, v%d, v%d' % (68 + i, 72 + 2 * i, 73 + 2 * i))

def role_W(a, o):
    WOPOL = o.get('wopol', 'nt'); W1POL = o.get('w1pol', 'nt')
    a.label('L_W')
    a.vm = []; a.lg = []
    a('''
    s_and_b32 s8, s2, 7               ; x
    s_lshr_b32 s9, s2, 3
    s_sub_u32 s9, s9, 16              ; k
    s_lshr_b32 s10, s9, 2
    s_lshl_b32 s11, s8, 2
    s_add_u32 s10, s10, s11           ; h
    s_and_b32 s11, s9, 3              ; j
    s_lshl_b32 s13, s10, 8            ; h*256
    v_lshlrev_b32 v9, 4, v1           ; lane*16
    v_lshrrev_b32 v6, 4, v1           ; g / r
    v_and_b32 v7, 15, v1              ; pc / i
    v_lshlrev_b32 v8, 1, v6
    v_xor_b32 v8, v8, v7
    v_lshlrev_b32 v8, 4, v8           ; (pc ^ (r<<1))*16
    v_lshl_add_u32 v2, v6, 13, v8
    v_xor_b32 v3, 0x80, v2            ; voffB
    s_lshl_b32 s14, s11, 3
    s_add_u32 s14, s14, s3            ; 8j + w
    s_lshl_b32 s15, s14, 17
    s_add_u32 s15, s15, s13           ; (128j + 16w)*8192 + h*256
    s_lshl_b32 s14, s3, 12            ; LDS w*4096
    v_lshlrev_b32 v10, 2, v6
    v_xor_b32 v10, v10, v7
    v_lshlrev_b32 v10, 4, v10
    v_lshl_add_u32 v10, v6, 13, v10
    v_xor_b32 v11, 32, v10
    s_mov_b32 s42, 0x400000
    s_mov_b32 s43, 0x20000
    s_mov_b32 s50, 0x400000
    s_mov_b32 s51, 0x20000
    s_mov_b32 m0, s14
    s_waitcnt lgkmcnt(0)
    s_mov_b32 s40, s20
    s_mov_b32 s41, s21
    s_cmp_lg_u32 s3, 0
    s_cbranch_scc1 L_Wx
    global_load_dwordx4 v[68:71], v9, s[16:17]
    L_Wx:
    ''')
    for i in range(4):
        if i:
            a('s_add_u32 m0, s14, %d' % (i * 1024))
            a('s_add_u32 s60, s15, %d' % (i * 32768))
        a.v('buffer_load_dwordx4 v%d, s[40:43], %s offen nt lds' % (2 if i < 2 else 3, 's60' if i else 's15'), 'WQ')
    a('s_mov_b32 s48, s22')
    a('s_mov_b32 s49, s23')
    if o.get('ukbar', 1): a('s_barrier')
    for i in range(4):
        a('s_add_u32 m0, s14, %d' % (UKL + i * 1024))
        a('s_add_u32 s60, s15, %d' % (i * 32768))
        a.v('buffer_load_dwordx4 v%d, s[48:51], s60 offen nt lds' % (10 if i < 2 else 11), 'UK')
    common2(a)
    if o.get('diag', 0) == 2: a.stamp(5)
    a('''
    s_lshl_b32 s12, s9, 3
    s_add_u32 s12, s12, s8            ; fb = 8k + x
    s_cmp_lt_u32 s9, 11
    s_cselect_b32 s12, s12, 1000
    v_mov_b32 v14, 0
    v_lshrrev_b32 v12, 2, v7          ; r' / a
    v_and_b32 v13, 1, v6
    v_lshl_add_u32 v13, v13, 2, v12
    v_lshlrev_b32 v13, 1, v13
    v_bfe_u32 v16, v1, 1, 1
    s_lshl_b32 s60, s3, 1
    v_add_u32 v16, s60, v16
    v_xor_b32 v16, v16, v13
    v_lshlrev_b32 v16, 4, v16
    v_lshl_add_u32 v13, v6, 3, v12
    v_lshl_add_u32 v16, v13, 8, v16
    v_and_b32 v13, 1, v1
    v_lshl_add_u32 v4, v13, 3, v16    ; tr-read base
    v_lshlrev_b32 v5, 4, v6
    v_add_u32 v5, 0x%x, v5            ; SM + g*16
    v_and_b32 v13, 3, v7
    v_and_b32 v16, 2, v12
    v_xor_b32 v16, v16, v6
    v_lshl_add_u32 v16, v13, 2, v16
    v_lshlrev_b32 v16, 4, v16
    v_lshl_add_u32 v16, v7, 8, v16
    s_add_u32 s60, s14, 0x%x
    v_add_u32 v64, s60, v16           ; uk frag read addrs
    v_xor_b32 v65, 64, v64
    v_xor_b32 v66, 0x80, v64
    v_xor_b32 v67, 0xc0, v64
    ''' % (SM, UKL))
    a('''
    s_lshl_b32 s68, s10, 2
    s_add_u32 s68, s68, s11           ; mi = 4h + j
    s_lshl_b32 s64, s68, 15
    s_lshl_b32 s61, s3, 12
    s_add_u32 s69, s64, s61
    s_add_u32 s69, s69, 0x%x          ; s69 = inbox base of this wave
    s_lshl_b32 s58, s68, 11
    s_lshl_b32 s61, s3, 8
    s_add_u32 s58, s58, s61
    s_add_u32 s58, s58, 0x%x          ; s58 = SP row of this wave
    s_lshl_b32 s66, s12, 11
    s_add_u32 s66, s66, s61
    s_add_u32 s66, s66, 0x%x          ; s66 = FP row of this wave
    s_cmp_lt_u32 s12, 86
    s_cselect_b32 s66, s66, s58
    s_lshl_b32 s67, s3, 6
    s_add_u32 s67, s67, s11
    s_lshl_b32 s67, s67, 9
    s_lshl_b32 s61, s10, 4
    s_add_u32 s67, s67, s61
    s_add_u32 s67, s67, 0x%x          ; s67 = MLC + (64w + j)*512 + h*16
    v_lshlrev_b32 v11, 2, v1
    v_mov_b32 v16, -1
    ''' % (OP, SP, FP, ML))
    a.v('buffer_store_dword v16, v11, s[44:47], s58 offen sc1', 'PT')
    a.v('buffer_store_dword v16, v11, s[44:47], s66 offen sc1', 'PT')
    a('''
    s_cmp_lg_u32 s3, 0
    s_cbranch_scc1 L_Wln
    s_waitcnt vmcnt(%d)
    s_load_dword s4, s[36:37], 0
    ''' % len(a.vm))
    if o.get('diag', 0) == 2: a.stamp(6)
    layernorm(a)
    if o.get('diag', 0) == 2: a.stamp(7)
    a('''
    v_add_u32 v72, 0x%x, v9
    ds_write_b128 v72, v[68:71]
    s_waitcnt lgkmcnt(0)
    s_mov_b32 s60, 0
    s_branch L_Wn_c
    L_Wn:
    global_load_dword v15, v14, s[36:37] sc1
    s_add_u32 s60, s60, 1
    s_waitcnt vmcnt(0)
    v_readfirstlane_b32 s4, v15
    s_cmp_gt_u32 s60, SPIN_N
    s_cbranch_scc1 L_Wn_x
    L_Wn_c:
    s_cmp_eq_u32 s4, 0
    s_cbranch_scc1 L_Wn
    L_Wn_x:
    v_mov_b32 v72, 0x%x
    v_mov_b32 v15, s4
    ds_write_b32 v72, v15
    s_waitcnt lgkmcnt(0)
    L_Wln:
    ''' % (XN, NB))
    if o.get('diag', 0) == 2: a.stamp(8)
    a.vwait('WQ')
    if o.get('diag', 0) == 2: a.stamp(9)
    a('s_barrier')
    a.stamp(1)
    a('s_lshl_b32 s60, s11, 8')
    a('v_add_u32 v13, s60, v5')
    for ks in range(4):
        a.d('ds_read_b128 %s, v13 offset:%d' % (R(52 + 4 * ks - 16 + 16, 4), ks * 64) if False else 'ds_read_b128 %s, v13 offset:%d' % (R(16 + 4 * ks, 4), ks * 64), 'a%d' % ks)
        for rdi in range(2):
            a.d('ds_read_b64_tr_b16 %s, v4 offset:%d' % (R(36 + 4 * ks + 2 * rdi, 2), ks * 8192 + rdi * 1024), 'a%d' % ks)
    a('v_mov_b32 v12, 0x%x' % NB)
    a.d('ds_read_b32 v53, v12', 'n')
    a('''
    s_lshl_b32 s60, s10, 12
    s_lshl_b32 s61, s3, 7
    s_add_u32 s60, s60, s61
    s_add_u32 s60, s60, 0x%x          ; QP + h*4096 + w*128
    s_lshl_b32 s61, s11, 10
    s_add_u32 s61, s61, s60           ; + j*1024
    v_lshlrev_b32 v12, 3, v7          ; d*8
    v_lshl_add_u32 v13, v6, 10, v12   ; jj*1024 + d*8
    v_cmp_ne_u32 s[64:65], s11, v6    ; lanes of the other three
    ''' % QP)
    for ks in range(4):
        a.dwait('a%d' % ks)
        a('v_mfma_f32_16x16x32_bf16 v[32:35], %s, %s, %s' % (R(16 + 4 * ks, 4), R(36 + 4 * ks, 4), 'v[32:35]' if ks else '0'))
    a.dall()
    a('''
    s_lshl_b32 s62, s3, 5
    s_add_u32 s62, s62, 0x%x
    v_lshl_add_u32 v15, v7, 1, s62    ; QB + (16w + d)*2
    v_mov_b32 v55, v53
    v_mov_b32 v52, v32
    v_mov_b32 v54, v32
    s_mov_b64 exec, 0xffff
    buffer_store_dwordx2 v[52:53], v12, s[44:47], s61 offen sc1
    ''' % QB)
    if o.get('qpack', 1): a('s_waitcnt vmcnt(0)')
    a.stamp(2)
    a('''
    s_mov_b32 s62, 0
    L_Wq:
    s_mov_b64 exec, s[64:65]
    buffer_load_dwordx2 v[54:55], v13, s[44:47], s60 offen sc1
    s_add_u32 s62, s62, 1
    s_waitcnt vmcnt(0)
    v_cmp_ne_u32 s[64:65], v55, v53
    s_cmp_gt_u32 s62, SPIN_N
    s_cbranch_scc1 L_Wq_x
    s_cmp_lg_u64 s[64:65], 0
    s_cbranch_scc1 L_Wq
    L_Wq_x:
    s_mov_b64 exec, -1
    ''')
    a.vm = []
    for ks in range(4):
        a.d('ds_read_b128 %s, v%d' % (R(16 + 4 * ks, 4), 64 + ks), 'uk')
    a.swap_red('v_add_f32', 54, 55, 16)
    a.swap_red('v_add_f32', 54, 55, 32)
    a('''
    v_cvt_pk_bf16_f32 v54, v54, v54
    ds_write_b16 v15, v54
    ''')
    a.dall()
    a('s_barrier')
    a.stamp(3)
    for ks in range(4):
        a.d('ds_read_b128 %s, v5 offset:%d' % (R(36 + 4 * ks, 4), QB - SM + ks * 64), 'a%d' % ks)
    a('''
    s_lshl_b32 s14, s3, 5
    s_add_u32 s14, s14, 0x%x
    v_lshl_add_u32 v13, v6, 3, s14    ; QO + w*32 + q*8
    v_lshlrev_b32 v12, 4, v7
    v_add_u32 v15, 0x%x, v12          ; QO + (l%%16)*16
    s_lshl_b32 s14, s68, 8
    s_lshl_b32 s15, s68, QCSH
    s_add_u32 s15, s15, 0x%x
    v_add_u32 v56, s14, v12
    v_add_u32 v57, s15, v12
    v_cndmask_b32 v56, v56, v57, s[52:53]
    ''' % (QO, QO, QC))
    for ks in range(4):
        a.dwait('a%d' % ks)
        a('v_mfma_f32_16x16x32_bf16 v[32:35], %s, %s, %s' % (R(16 + 4 * ks, 4), R(36 + 4 * ks, 4), 'v[32:35]' if ks else '0'))
    sc = f2u(128 ** -0.5 * math.log2(math.e))
    a('''
    v_mul_f32 v32, 0x%x, v32
    v_mul_f32 v33, 0x%x, v33
    v_mul_f32 v34, 0x%x, v34
    v_mul_f32 v35, 0x%x, v35
    v_cvt_pk_bf16_f32 v32, v32, v33
    v_cvt_pk_bf16_f32 v33, v34, v35
    ds_write_b64 v13, v[32:33]
    s_waitcnt lgkmcnt(0)
    s_barrier
    s_cmp_lg_u32 s3, 0
    s_cbranch_scc1 L_Wpub
    ds_read_b128 v[32:35], v15
    s_waitcnt lgkmcnt(0)
    v_add3_u32 v36, v32, v33, v34
    v_add_u32 v36, v36, v35
    ''' % (sc, sc, sc, sc))
    a.wave_red('v_add_u32', 36, 37, rows_only=True)
    a('''
    v_sub_u32 v36, v53, v36
    v_cndmask_b32 v32, v32, v36, s[52:53]
    v_cndmask_b32 v33, v33, v53, s[52:53]
    s_mov_b64 exec, QCEX
    buffer_store_dwordx4 v[32:35], v56, s[44:47], 0 offen sc1
    s_mov_b64 exec, -1
    L_Wpub:
    s_barrier
    ''')
    a.stamp(4)
    WW = o.get('wwin', 3); WW2 = o.get('wwin2', 0)
    a.srd(40, WUV, 0x400000)
    a("""
    v_readfirstlane_b32 s4, v53
    v_lshl_add_u32 v2, v6, 18, v8
    v_xor_b32 v3, 0x80, v2
    s_lshl_b32 s14, s11, 6
    s_add_u32 s14, s14, s3            ; 64j + w
    s_lshl_b32 s14, s14, 14           ; (128j + 2w)*8192
    s_add_u32 s14, s14, s13
    s_lshl_b32 s15, s3, 12
    """)
    a.vm = []
    for i in range(4):
        if WW2: a('s_waitcnt vmcnt(%d)' % (WW2 - 1))
        a('s_add_u32 m0, s15, %d' % (i * 1024))
        a('s_add_u32 s60, s14, %d' % ((16 * (i & 1) + (i >> 1)) * 8192))
        a('buffer_load_dwordx4 v%d, s[40:43], s60 offen nt lds' % (2 if i < 2 else 3))
    a("""
    v_lshrrev_b32 v12, 3, v1          ; r8
    v_and_b32 v13, 7, v1              ; c8
    v_lshlrev_b32 v70, 4, v13
    v_lshl_add_u32 v70, v12, 10, v70  ; r8*1024 + c8*16   (w2 voff)
    v_bfe_u32 v15, v1, 4, 1
    v_lshlrev_b32 v15, 5, v15
    v_xor_b32 v68, v70, v15           ; voffC
    v_xor_b32 v69, 64, v68            ; voffD
    s_cmp_ge_u32 s12, 88
    s_cbranch_scc1 L_Wnf1
    """)
    a.srd(40, W1, 512 * 2752)
    a.srd(48, W2, 1376 * 1024)
    wt = ('s_waitcnt vmcnt(%d)' % (WW2 - 1)) if WW2 else 's_nop 0'
    a("""
    v_mul_u32_u24 v14, 2752, v6
    s_and_b32 s60, s3, 1
    s_lshl_b32 s60, s60, 7
    v_xor_b32 v13, s60, v8
    v_add_u32 v14, v14, v13           ; r*2752 + swizzled chunk
    s_lshl_b32 s14, s8, 3
    s_add_u32 s14, s14, s3            ; 8x + w
    s_mul_i32 s14, s14, %d            ; row (64x + 8w)
    s_lshl_b32 s60, s9, 8
    s_add_u32 s14, s14, s60           ; + block*256
    s_lshl_b32 s15, s3, 11
    s_add_u32 m0, s15, 0x%x
    s_add_u32 s60, s14, %d
    %s
    buffer_load_dwordx4 v14, s[40:43], s14 offen %s lds
    s_add_u32 m0, s15, 0x%x
    %s
    buffer_load_dwordx4 v14, s[40:43], s60 offen %s lds
    s_lshl_b32 s14, s12, 14
    s_lshl_b32 s60, s3, 7
    s_add_u32 s14, s14, s60
    s_add_u32 m0, s15, 0x%x
    s_add_u32 s60, s14, 8192
    %s
    buffer_load_dwordx4 v70, s[48:51], s14 offen nt lds
    s_add_u32 m0, s15, 0x%x
    %s
    buffer_load_dwordx4 v70, s[48:51], s60 offen nt lds
    L_Wnf1:
    """ % (8 * 2752, W1L, 4 * 2752, wt, W1POL, W1L + 1024, wt, W1POL, W2L, wt, W2L + 1024, wt))
    a.srd(48, WO, 0x400000)
    a("""
    s_lshl_b32 s14, s10, 17
    s_lshl_b32 s15, s3, 7
    s_add_u32 s14, s14, s15
    s_lshl_b32 s15, s3, 13
    s_lshl_b32 s5, s11, 1             ; rotation 2j
    v_lshrrev_b32 v71, 2, v7
    v_lshl_add_u32 v71, v6, 3, v71
    v_lshlrev_b32 v71, 7, v71
    v_and_b32 v13, 3, v1
    v_lshl_add_u32 v71, v13, 3, v71
    v_bfe_u32 v13, v1, 3, 2
    v_lshl_add_u32 v71, v13, 5, v71
    v_add_u32 v71, s15, v71
    """)
    def wo_dma(rho, lo, hi, win):
        for n in range(lo, hi):
            if win: a('s_waitcnt vmcnt(%d)' % (win - 1))
            if o.get('rot', 0):
                a('s_add_u32 s61, s5, %d' % n)
                a('s_and_b32 s61, s61, 7')
                a('s_lshl_b32 s62, s61, 10')
                a('s_add_u32 s62, s62, s15')
                a('s_add_u32 m0, s62, %d' % ((1 - rho) * 65536))
                a('s_lshl_b32 s61, s61, 13')
                a('s_add_u32 s61, s61, s14')
                a('s_add_u32 s60, s61, %d' % (rho * 65536))
            else:
                a('s_add_u32 m0, s15, %d' % ((1 - rho) * 65536 + n * 1024))
                a('s_add_u32 s60, s14, %d' % ((64 * rho + 8 * n) * 1024))
            a('buffer_load_dwordx4 v%d, s[48:51], s60 offen %s lds' % (68 if n % 2 == 0 else 69, WOPOL))
    WOF = 72
    def wo_read(rho):
        for mt in range(4):
            a('v_xor_b32 v13, 0x%x, v71' % ((1 - rho) * 65536 + mt * 32))
            for ksl in range(2):
                for rdi in range(2):
                    a.d('ds_read_b64_tr_b16 %s, v13 offset:%d' % (R(WOF + (mt * 4 + 2 * rho + ksl) * 4 + 2 * rdi, 2), ksl * 4096 + rdi * 512), 'wo')
            if mt % 2: a.dall()
    NW0 = o.get('nwo0', 2)
    wo_dma(0, 0, NW0, 0)
    a('s_waitcnt vmcnt(%d)' % NW0)
    a('s_barrier')
    a.stamp(5)
    for ks in range(4):
        for rdi in range(2):
            a.d('ds_read_b64_tr_b16 %s, v4 offset:%d' % (R(16 + 4 * ks + 2 * rdi, 2), ks * 8192 + rdi * 1024), 'uv')
    a("""
    s_cmp_ge_u32 s12, 88
    s_cbranch_scc1 L_Wnf2
    s_lshl_b32 s60, s8, 7
    v_add_u32 v13, s60, v5            ; xn + 64x*2 + g*16
    """)
    for ks in range(2):
        a('ds_read_b128 %s, v13 offset:%d' % (R(52 + 4 * ks, 4), ks * 64))
        for rdi in range(2):
            a('ds_read_b64_tr_b16 %s, v4 offset:%d' % (R(36 + 4 * ks + 2 * rdi, 2), W1L + ks * 8192 + rdi * 1024))
    a("""
    v_lshrrev_b32 v12, 2, v1
    v_and_b32 v13, 3, v1
    v_lshlrev_b32 v13, 3, v13
    v_lshl_add_u32 v12, v12, 7, v13
    s_lshl_b32 s60, s3, 11
    s_add_u32 s60, s60, 0x%x
    v_add_u32 v12, s60, v12
    s_waitcnt lgkmcnt(0)
    v_mfma_f32_16x16x32_bf16 v[32:35], v[52:55], v[36:39], 0
    v_mfma_f32_16x16x32_bf16 v[32:35], v[56:59], v[40:43], v[32:35]
    """ % W2L)
    for mt in range(4):
        a('ds_read_b64_tr_b16 %s, v12 offset:%d' % (R(44 + 2 * mt, 2), mt * 32))
    a("""
    s_lshl_b32 s60, s12, 10
    s_lshl_b32 s61, s3, 7
    s_add_u32 s60, s60, s61
    s_add_u32 s60, s60, 0x%x          ; HP + (8k+x)*1024 + w*128
    v_lshlrev_b32 v12, 3, v7
    v_mov_b32 v33, s4
    s_mov_b64 exec, 0xffff
    buffer_store_dwordx2 v[32:33], v12, s[44:47], s60 offen sc1
    s_mov_b64 exec, -1
    L_Wnf2:
    s_waitcnt lgkmcnt(0)
    s_barrier
    """ % HP)
    a.lg = []
    wo_dma(0, NW0, 8, WW)
    a.stamp(10)
    wo_dma(1, 0, 8, WW)
    a('s_waitcnt vmcnt(8)')
    wo_read(0)
    a('''
    s_cmp_ge_u32 s12, 86
    s_cbranch_scc1 L_Wnf3
    s_lshl_b32 s60, s9, 13
    s_lshl_b32 s61, s8, 7
    s_add_u32 s60, s60, s61
    s_add_u32 s60, s60, 0x%x          ; HP + k*8192 + x*128
    v_and_b32 v12, 7, v1
    v_lshlrev_b32 v12, 10, v12
    v_lshl_add_u32 v12, v6, 5, v12    ; producer*1024 + g*32
    s_mov_b32 s61, 0
    L_Wh:
    buffer_load_dwordx4 v[52:55], v12, s[44:47], s60 offen sc1
    buffer_load_dwordx4 v[56:59], v12, s[44:47], s60 offen offset:16 sc1
    s_add_u32 s61, s61, 1
    s_waitcnt vmcnt(0)
    v_xor_b32 v13, v53, v55
    v_xor_b32 v14, v57, v59
    v_xor_b32 v15, s4, v53
    v_or3_b32 v13, v13, v14, v15
    v_xor_b32 v14, v53, v57
    v_or_b32 v13, v13, v14
    v_cmp_ne_u32 vcc, 0, v13
    s_cmp_gt_u32 s61, SPIN_N
    s_cbranch_scc1 L_Wh_x
    s_cbranch_vccnz L_Wh
    L_Wh_x:
    ''' % HP)
    for m in ('quad_perm:[1,0,3,2]', 'quad_perm:[2,3,0,1]', 'row_half_mirror'):
        for r in range(4):
            a('v_add_f32_dpp v%d, v%d, v%d %s row_mask:0xf bank_mask:0xf' % (52 + 2 * r, 52 + 2 * r, 52 + 2 * r, m))
    for r in range(4):
        a.rnd_bf16(52 + 2 * r)
        a.silu(52 + 2 * r, 53)
    a('v_cvt_pk_bf16_f32 v32, v52, v54')
    a('v_cvt_pk_bf16_f32 v33, v56, v58')
    for mt in range(4):
        a('v_mfma_f32_16x16x16_bf16 %s, v[32:33], %s, 0' % (R(52 + 4 * mt, 4), R(44 + 2 * mt, 2)))
    a('''
    v_cndmask_b32 v52, v52, v56, s[52:53]
    v_cndmask_b32 v52, v52, v60, s[54:55]
    v_cndmask_b32 v52, v52, v64, s[56:57]
    buffer_store_dword v52, v11, s[44:47], s66 offen sc1
    L_Wnf3:
    ''')
    for p in range(4):
        a('v_cmp_eq_u32 vcc, %d, v7' % (2 * p))
        a('v_mov_b32 v%d, 0' % (56 + p))
        a('v_mov_b32 v64, 0xffff')
        a('v_cndmask_b32 v%d, v%d, v64, vcc' % (56 + p, 56 + p))
        a('v_cmp_eq_u32 vcc, %d, v7' % (2 * p + 1))
        a('v_mov_b32 v64, 0xffff0000')
        a('v_cndmask_b32 v%d, v%d, v64, vcc' % (56 + p, 56 + p))
        a('v_and_b32 v%d, 0x3f803f80, v%d' % (60 + p, 56 + p))
    a("""
    v_lshrrev_b32 v64, 1, v6
    v_mul_u32_u24 v64, 0x%x, v64
    v_lshl_add_u32 v64, v7, 4, v64
    v_and_b32 v65, 1, v6
    v_lshl_add_u32 v64, v65, 3, v64
    s_mul_i32 s60, s3, 288
    s_add_u32 s60, s60, 0x%x
    v_add_u32 v64, s60, v64
    v_and_b32 v65, 7, v1
    v_mul_u32_u24 v65, 288, v65
    v_add_u32 v65, v65, v5
    s_lshl_b32 s60, s3, 5
    s_add_u32 s60, s60, 0x%x
    v_lshl_add_u32 v66, v7, 1, s60
    """ % (8 * 288, ROWS, CB))
    a('s_waitcnt vmcnt(0)')
    wo_read(1)
    a.stamp(6)
    a('''
    v_lshlrev_b32 v14, 11, v7
    s_lshl_b32 s60, s3, 3
    s_add_u32 s60, s60, 0x%x
    v_mov_b32 v70, s60                ; LW + w*8
    v_and_b32 v71, 7, v1
    v_lshlrev_b32 v71, 3, v71
    v_add_u32 v71, 0x%x, v71          ; LW + (l%%8)*8
    s_mov_b32 s60, 0
    s_mov_b64 s[62:63], -1
    L_Wg1:
    s_sleep ML_SLEEP
    s_mov_b64 exec, s[62:63]
    buffer_load_dwordx4 v[52:55], v14, s[44:47], s67 offen sc1
    s_add_u32 s60, s60, 1
    s_waitcnt vmcnt(0)
    v_subrev_u32 v12, s4, v55
    v_cmp_lt_u32 s[62:63], 1, v12
    s_cmp_gt_u32 s60, SPIN_N
    s_cbranch_scc1 L_Wg
    s_cmp_lg_u64 s[62:63], 0
    s_cbranch_scc1 L_Wg1
    ''' % (LW, LW))
    if a.stamps: a('s_mov_b32 s60, 0')
    a.stamp(10)
    a.label('L_Wg')
    a('s_mov_b64 exec, -1')
    for i in range(4):
        a('buffer_load_dwordx4 %s, v9, s[44:47], s69 offen offset:%d sc1' % (R(36 + 4 * i, 4), i * 1024))
    a('buffer_load_dwordx4 v[52:55], v14, s[44:47], s67 offen sc1')
    a('s_add_u32 s60, s60, 1')
    a('v_cmp_gt_u32 s[62:63], 16, v1')
    for i in range(4):
        a('s_waitcnt vmcnt(%d)' % (4 - i))
        a('v_mfma_f32_16x16x32_bf16 v[32:35], v[60:63], %s, %s' % (R(36 + 4 * i, 4), 'v[32:35]' if i else '0'))
        if i == 0:
            a('v_add3_u32 v15, v36, v37, v38')
            a('v_add_u32 v15, v15, v39')
        else:
            a('v_add3_u32 v15, v15, v%d, v%d' % (36 + 4 * i, 37 + 4 * i))
            a('v_add3_u32 v15, v15, v%d, v%d' % (38 + 4 * i, 39 + 4 * i))
    a("""
    s_waitcnt vmcnt(0)
    v_subrev_u32 v12, s4, v54
    v_cndmask_b32 v12, 0, v12, s[62:63]
    v_add_u32 v15, v15, v12
    v_xor_b32 v12, s4, v55
    """)
    a.wave_red('v_add_u32', 15, 13)
    a("""
    v_or_b32 v15, v15, v12
    v_cmp_ne_u32 vcc, 0, v15
    s_cmp_gt_u32 s60, SPIN_N
    s_cbranch_scc1 L_Wg_x
    s_cbranch_vccnz L_Wg
    L_Wg_x:
    """)
    a.stamp(7)
    if a.stamps:
        a('s_mul_i32 s92, s60, 100')
        a('s_add_u32 s92, s92, s70')
        a('s_addc_u32 s93, s71, 0')
    a("""
    v_cmp_neq_f32 vcc, 0, v52
    s_cbranch_vccnz L_Wgen
    """)
    a.label('L_Wj')
    a.wave_red('v_add_f32', 53, 12, rows_only=True)
    a('''
    ds_write_b64 v70, v[52:53]
    v_cvt_pk_bf16_f32 v32, v32, v33
    v_cvt_pk_bf16_f32 v33, v34, v35
    ds_write_b64 v64, v[32:33]
    s_waitcnt lgkmcnt(0)
    s_barrier
    ''')
    a.stamp(8)
    for ks in range(4):
        a.d('ds_read_b128 %s, v65 offset:%d' % (R(36 + 4 * ks, 4), ROWS - SM + ks * 64), 'a%d' % ks)
    a.d('ds_read_b64 v[52:53], v71', 'lw')
    for ks in range(4):
        a.dwait('a%d' % ks)
        a('v_mfma_f32_16x16x32_bf16 v[32:35], %s, %s, %s' % (R(36 + 4 * ks, 4), R(16 + 4 * ks, 4), 'v[32:35]' if ks else '0'))
    a.dall()
    a('''
    v_cmp_neq_f32 vcc, 0, v52
    s_cbranch_vccnz L_Wgen2
    L_Wj2:
    v_add_f32_dpp v53, v53, v53 quad_perm:[1,0,3,2] row_mask:0xf bank_mask:0xf
    s_nop 1
    v_add_f32_dpp v53, v53, v53 quad_perm:[2,3,0,1] row_mask:0xf bank_mask:0xf
    s_nop 1
    v_add_f32_dpp v53, v53, v53 row_half_mirror row_mask:0xf bank_mask:0xf
    v_add_f32 v32, v32, v33
    v_add_f32 v34, v34, v35
    v_rcp_f32 v67, v53
    v_add_f32 v32, v32, v34
    ''')
    a.swap_red('v_add_f32', 32, 33, 16)
    a('''
    v_mul_f32 v32, v32, v67
    v_cvt_pk_bf16_f32 v32, v32, v32
    ds_write_b16 v66, v32
    s_waitcnt lgkmcnt(0)
    s_barrier
    ''')
    for ks in range(4):
        a.d('ds_read_b128 %s, v5 offset:%d' % (R(36 + 4 * ks, 4), CB - SM + ks * 64), 'a%d' % ks)
    for ks in range(4):
        a.dwait('a%d' % ks)
        for mt in range(4):
            a('v_mfma_f32_16x16x32_bf16 %s, %s, %s, %s' % (R(16 + 4 * mt, 4), R(36 + 4 * ks, 4), R(WOF + (mt * 4 + ks) * 4, 4), R(16 + 4 * mt, 4) if ks else '0'))
    a('''
    v_cndmask_b32 v16, v16, v20, s[52:53]
    v_cndmask_b32 v16, v16, v24, s[54:55]
    v_cndmask_b32 v16, v16, v28, s[56:57]
    buffer_store_dword v16, v11, s[44:47], s58 offen sc1
    ''')
    a.stamp(9)
    if a.stamps:
        a('s_cmp_lg_u32 s3, %d' % o.get('stw', 0))
        a('s_cbranch_scc1 L_end')
        a.write_stamps()
    a('s_endpgm')

def role_Wslow(a, o):
    a.refills()
    RB = STG + 0x3100
    a.label('L_Aslow')
    a("""
    v_lshlrev_b32 v12, 2, v4
    v_add_u32 v12, 0x%x, v12
    s_cmp_lg_u32 s15, 0
    s_cbranch_scc1 L_Aslow2
    ; first pass was unsafe: rerun with the true (rounded up) per-head max
    v_ceil_f32 v8, v8
    ds_write_b32 v12, v8
    v_and_b32 v13, 15, v1
    v_lshlrev_b32 v13, 2, v13
    v_add_u32 v13, 0x%x, v13
    s_waitcnt lgkmcnt(0)
    ds_read_b32 v10, v13
    ds_read_b32 v11, v13 offset:64
    s_mov_b32 s15, 1
    s_waitcnt lgkmcnt(0)
    v_sub_f32 v10, 0, v10
    v_sub_f32 v11, 0, v11
    """ % (RB, RB))
    a.voffs(3, 0)
    a("""
    s_barrier
    s_branch L_Apass
    L_Aslow2:
    ds_read_b32 v20, v12
    s_waitcnt lgkmcnt(0)
    s_nop 7
    s_branch L_Aok
    """)
    a.label('L_Wgen')
    a('v_mov_b32 v12, v52')
    a.wave_red('v_max_f32', 12, 13, rows_only=True)
    a('''
    v_sub_f32 v54, v52, v12
    v_exp_f32 v54, v54
    v_mov_b32 v52, v12                ; Mw
    v_and_b32 v54, 0xffff0000, v54
    v_mul_f32 v53, v53, v54
    v_lshrrev_b32 v55, 16, v54
    v_or_b32 v54, v54, v55
    v_lshlrev_b32 v13, 2, v6
    ''')
    for i in range(4):
        a('ds_bpermute_b32 v12, v13, v54 offset:%d' % (16 * i))
        a('s_waitcnt lgkmcnt(0)')
        for p in range(4):
            a('v_and_b32 v%d, v12, v%d' % (60 + p, 56 + p))
        a('v_mfma_f32_16x16x32_bf16 v[32:35], v[60:63], %s, %s' % (R(36 + 4 * i, 4), 'v[32:35]' if i else '0'))
    a('s_nop 7')
    a('s_branch L_Wj')
    a.label('L_Wgen2')
    a('''
    v_mov_b32 v12, v52
    v_max_f32_dpp v12, v12, v12 quad_perm:[1,0,3,2] row_mask:0xf bank_mask:0xf
    v_max_f32_dpp v12, v12, v12 quad_perm:[2,3,0,1] row_mask:0xf bank_mask:0xf
    v_max_f32_dpp v12, v12, v12 row_half_mirror row_mask:0xf bank_mask:0xf
    v_sub_f32 v54, v52, v12
    v_exp_f32 v54, v54
    v_and_b32 v13, 1, v6
    v_lshlrev_b32 v13, 4, v13
    v_mul_f32 v53, v53, v54
    ''')
    for r in range(4):
        a('ds_bpermute_b32 v12, v13, v54 offset:%d' % (4 * r))
        a('s_waitcnt lgkmcnt(0)')
        a('v_mul_f32 v%d, v%d, v12' % (32 + r, 32 + r))
    a('s_nop 1')
    a('s_branch L_Wj2')

def gen(stamps=False, o=None):
    o = o or {}
    a = G(stamps)
    prologue(a, o)
    role_W(a, o)
    role_A(a, o)
    role_As(a, o)
    role_Wslow(a, o)
    a.label('L_end')
    txt = a.text()
    for k, v in (('QT_SLEEP', o.get('qtsleep', 1)), ('QT_THR', o.get('qtthr', 2)), ('REP_MASK', o.get('repmask', '0x00010001')), ('LSPIN', 200000), ('SPIN_N', SPIN),
                 ('ML_SLEEP', o.get('mlsleep', 2)), ('FIN_SLEEP', o.get('finsleep', 1)), ('UKGATE', o.get('ukgate', 3))):
        txt = txt.replace(k, str(v))
    txt = txt.replace('W1A ', '; ' if o.get('now1', 0) else '')
    txt = txt.replace('PTA ', '' if o.get('pre', 0) else '; ').replace('ML_OFF', '0x%x' % ML)
    qs = o.get('qcsh', 7)
    txt = txt.replace('QCSH+5', str(qs + 5)).replace('QCSH', str(qs)).replace('QCEX', {5: '0x3ffff', 6: '0xfffff', 7: '0xffffff'}[qs]).replace('REP_N', str(o.get('repn', 1)))
    txt = txt.replace('NODEP ', '' if o.get('nodep', 0) else '; ')
    if o.get('nodep', 0): txt = txt.replace('s_or_b32 s14, vcc_lo, vcc_hi', 's_mov_b32 s14, 0')
    if o.get('now1', 0): txt = txt.replace('buffer_load_dwordx4 v14, s[40:43], s14 offen', '; ').replace('buffer_load_dwordx4 v14, s[40:43], s60 offen', '; ')
    body = hz.fix(txt)
    return kernel_file([(KN + '_kernel', 256, 512, 163840)], [(KN + '_kernel', body, 256, 96, 256)])

if __name__ == '__main__':
    out = sys.argv[1]
    stamps = 'stamps' in sys.argv[2:]
    o = {}
    for kv in sys.argv[2:]:
        if '=' in kv:
            k, v = kv.split('=')
            o[k] = int(v) if v.lstrip('-').isdigit() else v.replace('_', ' ')
    open(out, 'w').write(gen(stamps, o))
```

```python
from gen14 import *

RLB = STG + 0x2000
RB = STG + 0x3100

def role_A(a, o):
    AW = o.get('awin', 8); AW0 = o.get('awin0', 1); AN0 = o.get('an0', 3); NPRE = o.get('npre', 26)
    a.label('L_A')
    a.stamps_hold = False
    a.vm = []; a.lg = []; a.slow = []
    common2(a)
    a.srd(40, CKV, 0x2000000)
    def voffs(x, y):
        a('''
        v_mbcnt_lo_u32_b32 v%d, -1, 0
        v_mbcnt_hi_u32_b32 v%d, -1, v%d
        v_lshrrev_b32 v%d, 4, v%d
        v_and_b32 v%d, 15, v%d
        v_lshlrev_b32 v%d, 4, v%d
        v_mul_u32_u24 v%d, 0x440, v%d
        v_xor_b32 v%d, v%d, v%d
        v_xor_b32 v%d, 32, v%d
        ''' % (x, x, x, y, x, x, x, x, x, y, y, x, x, y, y, x))
    voffs(3, 0)
    a("""
    s_and_b32 s59, s2, 7
    s_lshl_b32 s59, s59, 4
    s_lshr_b32 s8, s2, 3
    s_add_u32 s59, s59, s8            ; p
    s_lshl_b32 s8, s59, 18
    s_cmp_ge_u32 s3, 4
    s_cbranch_scc1 L_As
    s_lshl_b32 s9, s3, 14
    s_add_u32 s8, s8, s9
    s_lshl_b32 s10, s3, 8
    s_or_b32 s66, s8, s10
    s_lshl_b32 s10, s3, 10
    s_or_b32 s67, s9, s10
    s_mov_b32 s15, 0
    v_mov_b32 v10, 0
    v_mov_b32 v11, 0
    """)
    def dma_one(i, seg, aa, win=None):
        if win is not None: a.vwait_n(win - 1)
        a('s_xor_b32 m0, s67, 0x%x' % ((i % 2) * 65536 + aa * 4096 + seg * 1024))
        a('s_xor_b32 s10, s66, 0x%x' % (i * 65536 + aa * 4096 + seg * 256))
        a.v('buffer_load_dwordx4 v%d, s[40:43], s10 offen nt lds' % (3 if aa < 2 else 0), 'C%d' % i)
    a.label('L_Apass')
    a.vm = []
    first = [(i, seg, aa) for i in range(2) for aa in range(4) for seg in range(4)]
    for n in range(AW0): dma_one(*first[n])
    a("""
    v_mbcnt_lo_u32_b32 v1, -1, 0
    v_mbcnt_hi_u32_b32 v1, -1, v1
    v_lshrrev_b32 v16, 4, v1          ; g / q
    v_and_b32 v17, 15, v1             ; l%%16
    v_lshlrev_b32 v5, 4, v1
    v_add_u32 v5, 0x%x, v5            ; p_rd
    v_lshlrev_b32 v18, 4, v16
    v_xor_b32 v32, v5, v18            ; q frag read (even ks)
    v_xor_b32 v33, 64, v32            ; (odd ks)
    ; p_wr = PB + (w>>1)*2048 + (2(w&1) + (q>>1))*256 + h16*16 + (q&1)*8
    s_lshr_b32 s10, s3, 1
    s_lshl_b32 s10, s10, 11
    s_and_b32 s11, s3, 1
    s_lshl_b32 s11, s11, 9
    s_add_u32 s10, s10, s11
    s_add_u32 s10, s10, 0x%x
    v_lshrrev_b32 v18, 1, v16         ; q>>1
    v_lshlrev_b32 v19, 8, v18
    v_lshl_add_u32 v19, v17, 4, v19
    v_and_b32 v20, 1, v16             ; q&1
    v_lshl_add_u32 v19, v20, 3, v19
    v_add_u32 v4, s10, v19
    ; pv addr: (g>>1)*16384 + 2(g&1)*4096 + w*1024 + r*256 + ((c'/2) ^ ((r<<2) | 2(g&1)))*16 + (c'&1)*8
    v_lshrrev_b32 v21, 2, v17         ; r (pv) / a (qk)
    v_bfe_u32 v22, v1, 1, 1
    v_lshl_add_u32 v22, v20, 1, v22
    v_lshl_add_u32 v22, v21, 2, v22
    v_lshlrev_b32 v22, 4, v22
    v_lshl_add_u32 v22, v21, 8, v22
    v_lshl_add_u32 v22, v20, 13, v22
    v_lshl_add_u32 v22, v18, 14, v22
    v_and_b32 v23, 1, v1
    v_lshl_add_u32 v22, v23, 3, v22
    s_lshl_b32 s10, s3, 10
    v_add_u32 v2, s10, v22
    ; qk addr: w*16384 + a*4096 + r*256 + ((r<<2) | (g ^ (a&2)))*16
    v_and_b32 v22, 3, v17
    v_and_b32 v23, 2, v21
    v_xor_b32 v23, v23, v16
    v_lshl_add_u32 v23, v22, 2, v23
    v_lshlrev_b32 v23, 4, v23
    v_lshl_add_u32 v23, v22, 8, v23
    v_lshl_add_u32 v23, v21, 12, v23
    v_add_u32 v12, s9, v23
    v_xor_b32 v13, 64, v12
    v_xor_b32 v14, 0x80, v12
    v_xor_b32 v15, 0xc0, v12
    v_mov_b32 v6, 0
    v_mov_b32 v7, 0
    v_mov_b32 v8, 0xff800000
    v_mov_b32 v9, 0xff800000
    """ % (PB, PB))
    SS = [[16, 20], [24, 28]]; P = [32, 36, 40, 44]; XQ = [48, 52, 56, 60]
    def O(hh, ct): return 64 + (hh * 8 + ct) * 4
    def QF(hh, ks): return 128 + (hh * 16 + ks) * 4
    def s_init(i, hh):
        for r in range(4): a('v_mov_b32 v%d, v%d' % (SS[i % 2][hh] + r, 10 + hh))
    s_init(0, 0); s_init(0, 1)
    for n in range(AW0, NPRE): dma_one(*first[n], AW0 if n < AN0 else AW)
    if o.get('diaga', -1) < 0: a.stamp(10)
    a('s_barrier')
    if o.get('diaga', -1) < 0: a.stamp(11)
    a('v_mov_b32 v35, 0')
    a.v('global_load_dword v34, v35, s[36:37] sc1', 'N')
    for n in range(NPRE, 32): dma_one(*first[n])

    def hcheck(need):
        lab = a.newlabel('L_Ahc')
        a('s_cmp_ge_u32 s62, %d' % need)
        a('s_cbranch_scc0 %s' % lab)
        a.label(lab + 'b')
        a.slow.append('''
        %s:
        s_mov_b32 s11, 0
        %sl:
        ds_read_b32 v1, v3 offset:32
        s_add_u32 s11, s11, 1
        s_waitcnt lgkmcnt(0)
        v_readfirstlane_b32 s62, v1
        s_sub_u32 s62, s62, s57
        s_cmp_gt_u32 s62, 15
        s_cselect_b32 s62, 0, s62
        s_cmp_gt_u32 s11, LSPIN
        s_cbranch_scc1 %sb
        s_cmp_lt_u32 s62, %d
        s_cbranch_scc1 %sl
        s_branch %sb
        ''' % (lab, lab, lab, need, lab, lab))
    def pcheck(off=0):
        lab = a.newlabel('L_Apc')
        a('v_subrev_u32 v1, s63, v1')
        a('v_cmp_lt_u32 vcc, 7, v1')
        a('s_cbranch_vccnz %s' % lab)
        a.label(lab + 'b')
        a.slow.append('''
        %s:
        s_mov_b32 s11, 0
        %sl:
        ds_read_b32 v1, v0 offset:%d
        s_add_u32 s11, s11, 1
        s_waitcnt lgkmcnt(0)
        v_subrev_u32 v1, s63, v1
        v_cmp_lt_u32 vcc, 7, v1
        s_cmp_gt_u32 s11, LSPIN
        s_cbranch_scc1 %sb
        s_cbranch_vccnz %sl
        s_branch %sb
        ''' % (lab, lab, off, lab, lab, lab))
    def kphase(g): return 2 * (g // 16)
    def kbuf(g): return XQ[(g + kphase(g)) % 4]
    def rk(g):
        i, seg, k = g // 16, (g % 16) // 4, g % 4
        if ('C%d' % i) in a.vm: a.vwait('C%d' % i)
        if i >= 2 and g % 8 == 0: hcheck((i - 2) * 4 + seg + 2)
        if i and seg == 0: a('v_xor_b32 v%d, 0x10000, v%d' % (12 + k, 12 + k))
        a.d('ds_read_b128 %s, v%d offset:%d' % (R(kbuf(g), 4), 12 + k, seg * 1024), 'k%d' % g)
    def step(g, nxt=True):
        i = g // 16
        a.dwait('k%d' % g)
        for hh in range(2):
            s = SS[0][hh]
            a('v_mfma_f32_16x16x32_bf16 %s, %s, %s, %s' % (R(s, 4), R(kbuf(g), 4), R(QF(hh, g % 16), 4), R(s, 4)))
        if nxt: rk(g + 3)
    for g in range(3): rk(g)
    a('''
    v_and_b32 v0, 3, v1
    v_lshlrev_b32 v0, 2, v0
    v_add_u32 v0, 0x%x, v0            ; flag read addr
    s_lshl_b32 s10, s3, 2
    s_add_u32 s10, s10, 0x%x
    v_mov_b32 v3, s10                 ; own flag addr
    s_mov_b32 s62, 0
    ''' % (FL, FL))
    a.dall()
    DA = o.get('diaga', -1)
    def ds(i, k):
        if DA == i:
            a('s_memrealtime s[%d:%d]' % (70 + 2 * k, 71 + 2 * k))
            a('s_waitcnt lgkmcnt(0)'); a.lg = []
    a.stamp(1)
    a('s_barrier')
    a.stamp(2)
    if DA >= 0: a.stamps_mute = True
    a('s_cmp_lg_u32 s15, 0')
    a('s_cbranch_scc1 L_Anoq')
    def rq(ks):
        for hh in range(2):
            a.d('ds_read_b128 %s, v%d offset:%d' % (R(QF(hh, ks), 4), 32 + (ks & 1), (hh * 16 + ks) * 1024), 'q%d' % ks)
    QD = 4
    for ks in range(QD): rq(ks)
    vm0 = list(a.vm)
    for g in range(12):
        a.dwait('q%d' % g)
        step(g)
        rq(g + QD)
    a.dall()
    a('s_branch L_Aq2')
    a.label('L_Anoq')
    vm1 = list(a.vm)
    a('s_waitcnt vmcnt(0)')
    a('s_add_u32 s10, s58, 24')
    a('v_mov_b32 v1, s10')
    a('ds_write_b32 v3, v1 offset:32')
    for g in range(12): step(g)
    a.dall()
    a.vm = vm1
    a.label('L_Aq2')
    if 'N' in a.vm: a.vwait('N')
    a('''
    v_readfirstlane_b32 s58, v34
    s_lshl_b32 s10, s15, 4
    s_add_u32 s57, s58, s10
    s_barrier                         ; B1
    ''')
    for g in range(12, 16): step(g, g < 13)
    E = 36
    pvstate = [0]
    def pv_addr(i, ct):
        want = (i % 2) * 65536 + (ct << 5)
        if want != pvstate[0]:
            a('v_xor_b32 v2, 0x%x, v2' % (want ^ pvstate[0]))
            pvstate[0] = want
    def rv(i, ct, ks2, dst):
        pv_addr(i, ct)
        for rdi in range(2):
            a.d('ds_read_b64_tr_b16 %s, v2 offset:%d' % (R(dst + 2 * rdi, 2), ks2 * 32768 + rdi * 4096), 'v%d_%d' % (ct, ks2))
    def sm_ops(i):
        S = SS[0]; pb = (i % 2) * 4096
        def ex(hh, rs): return [(lambda hh=hh, r=r: a('v_exp_f32 v%d, v%d' % (E + 4 * hh + r, S[hh] + r))) for r in rs]
        def cw(hh):
            def f():
                for r in range(2):
                    a('v_cvt_pk_bf16_f32 v%d, v%d, v%d' % (32 + 2 * hh + r, E + 4 * hh + 2 * r, E + 4 * hh + 2 * r + 1))
                a.d('ds_write_b64 v4, %s offset:%d' % (R(32 + 2 * hh, 2), pb + 1024 * hh), 'w')
            return f
        def flag():
            a('s_add_u32 s63, s57, %d' % i)
            a('v_mov_b32 v1, s63')
            a.d('ds_write_b32 v3, v1', 'w')
            a.d('ds_read_b32 v1, v0', 'pf')
        def mxl(hh):
            def f():
                a('v_add_f32 v%d, v%d, v%d' % (E + 4 * hh, E + 4 * hh, E + 4 * hh + 1))
                a('v_add_f32 v%d, v%d, v%d' % (E + 4 * hh + 2, E + 4 * hh + 2, E + 4 * hh + 3))
                a('v_max3_f32 v%d, v%d, v%d, v%d' % (8 + hh, 8 + hh, S[hh], S[hh] + 1))
                a('v_add_f32 v%d, v%d, v%d' % (6 + hh, 6 + hh, E + 4 * hh))
                a('v_max3_f32 v%d, v%d, v%d, v%d' % (8 + hh, 8 + hh, S[hh] + 2, S[hh] + 3))
                a('v_add_f32 v%d, v%d, v%d' % (6 + hh, 6 + hh, E + 4 * hh + 2))
            return f
        def chk():
            a.dwait('pf')
            pcheck()
            for f in ((0, 1, 2, 3) if i < 3 else (0, 2, 1, 3)):
                a.d('ds_read_b128 %s, v5 offset:%d' % (R(P[f], 4), pb + f * 1024), 'p%d' % f)
        return ex, cw, flag, mxl, chk
    for i in range(3):
        ds(i, 3)
        ex, cw, flag, mxl, chk = sm_ops(i)
        g0 = 16 * (i + 1)
        ph = kphase(16 * i)
        pairs = [SS[1], [XQ[ph % 4], XQ[(ph + 1) % 4]], [XQ[(ph + 2) % 4], XQ[(ph + 3) % 4]]]
        def rvp(ct):
            for ks2 in range(2): rv(i, ct, ks2, pairs[ct % 3][ks2])
        if i == 0: rvp(0); rvp(1)
        for f in ex(0, range(4)): f()
        cw(0)()
        for f in ex(1, range(4)): f()
        cw(1)()
        flag()
        mxl(0)(); mxl(1)()
        chk()
        if i: rvp(0); rvp(1)
        s_init(0, 0); s_init(0, 1)
        ds(i, 4)
        for ct in range(8):
            for ks2 in range(2):
                a.dwait('v%d_%d' % (ct, ks2))
                for hh in range(2):
                    a.dwait('p%d' % (ks2 * 2 + hh))
                    cin = '0' if (i == 0 and ks2 == 0) else R(O(hh, ct), 4)
                    a('v_mfma_f32_16x16x32_bf16 %s, %s, %s, %s' % (R(O(hh, ct), 4), R(P[ks2 * 2 + hh], 4), R(pairs[ct % 3][ks2], 4), cin))
                    if ct + 2 < 8:
                        if hh == 0: pv_addr(i, ct + 2)
                        a.d('ds_read_b64_tr_b16 %s, v2 offset:%d' % (R(pairs[(ct + 2) % 3][ks2] + 2 * hh, 2), ks2 * 32768 + hh * 4096), 'v%d_%d' % (ct + 2, ks2))
                if ct == 5 and ks2 == 1 and i >= 1: a.d('ds_read_b32 v1, v3 offset:32', 'hf')
                if ct == 6 and ks2 == 1:
                    a.dall()
                    if i >= 1:
                        a('''
                    v_readfirstlane_b32 s62, v1
                    s_sub_u32 s62, s62, s57
                    s_cmp_gt_u32 s62, 15
                    s_cselect_b32 s62, 0, s62
                    ''')
                    if i < 2:
                        a('v_mov_b32 v1, s63')
                        a.d('ds_write_b32 v3, v1 offset:16', 'w')
                        a.stamp(8 + i)
                        a('s_cmp_lg_u32 s15, 0')
                        a('s_cbranch_scc1 L_Arf%d' % i)
                        a.label('L_Arb%d' % i)
                if ct == 7 and ks2 == 0: rk(g0); rk(g0 + 1)
        ds(i, 5)
        rk(g0 + 2)
        if i < 2:
            for s in range(16): step(g0 + s, s < 13)
        else:
            for s in range(8): step(g0 + s, s < 5)
        ds(i, 6)
    a('''
    v_mbcnt_lo_u32_b32 v24, -1, 0
    v_mbcnt_hi_u32_b32 v24, -1, v24
    v_and_b32 v25, 15, v24
    v_lshrrev_b32 v27, 4, v24
    v_lshlrev_b32 v26, 6, v25
    v_lshl_add_u32 v26, v27, 2, v26
    s_lshl_b32 s10, s3, 4
    s_add_u32 s10, s10, 0x%x
    v_add_u32 v26, s10, v26           ; l write addr
    v_lshlrev_b32 v25, 4, v25
    v_lshl_add_u32 v25, v27, 19, v25  ; O store voffset
    v_bfe_u32 v28, v24, 3, 1
    v_lshl_add_u32 v27, v27, 2, v28
    v_bfe_u32 v28, v24, 2, 1
    v_lshl_add_u32 v27, v28, 1, v27
    v_and_b32 v28, 1, v24
    v_lshl_add_u32 v27, v28, 4, v27   ; h(lane)
    v_and_b32 v28, 2, v24
    v_lshlrev_b32 v28, 4, v28
    v_lshl_add_u32 v28, v27, 6, v28
    v_add_u32 v28, 0x%x, v28          ; l read addr
    v_lshlrev_b32 v29, 4, v27         ; MLC voffset
    s_lshl_b32 s10, s3, 15
    s_lshl_b32 s12, s59, 8
    s_add_u32 s10, s10, s12
    s_add_u32 s13, s10, 0x%x
    s_lshl_b32 s12, s59, 2
    s_add_u32 s12, s12, s3
    s_lshl_b32 s12, s12, 9
    s_add_u32 s12, s12, 0x%x
    s_mov_b32 s60, 0xaaaaaaaa
    s_mov_b32 s61, 0xaaaaaaaa
    s_mov_b32 s64, 0x33333333
    s_mov_b32 s65, 0x33333333
    s_add_u32 s63, s57, 8
    ''' % (RLB, RLB, OP, ML))
    rk(56)
    a.stamp(3)
    ds(3, 3)
    rk(57); rk(58)
    a.d('ds_read_b32 v1, v0 offset:32', 'ha')
    def VF(ct, ks2): return (128 if ct < 4 else 192) + ((ct % 4) * 2 + ks2) * 4
    vl = [(ct, ks2) for ct in range(8) for ks2 in range(2)]
    vi = 0
    for g in range(56, 64):
        step(g, g < 61)
        if g == 56:
            a.dwait('ha')
            pcheck(32)
        else:
            rv(3, vl[vi][0], vl[vi][1], VF(*vl[vi])); vi += 1
    ex, cw, flag, mxl, chk = sm_ops(3)
    def more(n):
        nonlocal vi
        for _ in range(n):
            if vi < 16:
                rv(3, vl[vi][0], vl[vi][1], VF(*vl[vi])); vi += 1
    more(2)
    for f in ex(0, range(4)): f()
    cw(0)()
    for f in ex(1, range(4)): f()
    cw(1)()
    flag()
    mxl(0)(); mxl(1)()
    chk()
    ds(3, 4)
    ds(4, 3)
    more(3)
    PK = [XQ, [16, 20, 160, 164]]
    CS = 168
    def pack(hh, r):
        for k in range(4):
            a('v_cvt_pk_bf16_f32 v%d, v%d, v%d' % (PK[hh][r] + k, O(hh, 2 * k) + r, O(hh, 2 * k + 1) + r))
    def st(hh, r):
        a('s_add_u32 s11, s13, 0x%x' % ((16 * hh + r) * 131072))
        a('buffer_store_dwordx4 %s, v25, s[44:47], s11 offen sc1' % R(PK[hh][r], 4))
    def cs(hh, r):
        b = PK[hh][r]; c = CS + 4 * hh + r
        a('v_add3_u32 v%d, v%d, v%d, v%d' % (c, b, b + 1, b + 2))
        a('v_add_u32 v%d, v%d, v%d' % (c, c, b + 3))
    T = 176
    def stepA(i):
        a('v_add_u32_dpp v%d, v%d, v%d row_ror:8 row_mask:0xf bank_mask:0x3' % (T + i, CS + 2 * i, CS + 2 * i))
        a('v_add_u32_dpp v%d, v%d, v%d row_ror:8 row_mask:0xf bank_mask:0xc' % (T + i, CS + 2 * i + 1, CS + 2 * i + 1))
    def stepB(hh):
        a('v_add_u32_dpp v%d, v%d, v%d row_half_mirror row_mask:0xf bank_mask:0x5' % (T + 4 + hh, T + 2 * hh, T + 2 * hh))
        a('v_add_u32_dpp v%d, v%d, v%d row_half_mirror row_mask:0xf bank_mask:0xa' % (T + 4 + hh, T + 2 * hh + 1, T + 2 * hh + 1))
        a('v_add_u32_dpp v%d, v%d, v%d quad_perm:[1,0,3,2] row_mask:0xf bank_mask:0xf' % (T + 4 + hh, T + 4 + hh, T + 4 + hh))
    def lw():
        a.d('ds_write2st64_b32 v26, v6, v7 offset0:0 offset1:4', 'w')
        a('s_add_u32 s63, s57, 4')
        a('v_mov_b32 v1, s63')
        a.d('ds_write_b32 v3, v1', 'w')
    def lf(): a.d('ds_read_b32 v1, v0', 'lf')
    def lchk():
        a.dwait('lf'); pcheck()
        a.d('ds_read_b128 v[224:227], v28', 'rl')
        a.d('ds_read_b128 v[228:231], v28 offset:16', 'rl')
    def ls1():
        a.dwait('rl')
        a('''
        v_add_f32 v224, v224, v225
        v_add_f32 v226, v226, v227
        v_add_f32 v228, v228, v229
        v_add_f32 v230, v230, v231
        ''')
    def ls2():
        a('''
        v_add_f32 v224, v224, v226
        v_add_f32 v228, v228, v230
        v_add_f32 v185, v224, v228
        v_mov_b32 v187, s58
        ''')
    f0 = {0: lambda: (lw(), more(2)), 1: lambda: more(2), 3: lf, 5: lchk, 7: ls1}
    f1 = {0: ls2, 1: lambda: a('v_add_f32_dpp v185, v185, v185 quad_perm:[2,3,0,1] row_mask:0xf bank_mask:0xf'), 2: lambda: pack(0, 0), 3: lambda: (st(0, 0), pack(0, 1)), 4: lambda: (st(0, 1), pack(0, 2)), 5: lambda: (st(0, 2), pack(0, 3)),
          6: lambda: (st(0, 3), cs(0, 0), cs(0, 1)), 7: lambda: (cs(0, 2), cs(0, 3), stepA(0))}
    for hh in range(2):
        for ct in range(8):
            for ks2 in range(2):
                a.dwait('v%d_%d' % (ct, ks2)); a.dwait('p%d' % (ks2 * 2 + hh))
                a('v_mfma_f32_16x16x32_bf16 %s, %s, %s, %s' % (R(O(hh, ct), 4), R(P[ks2 * 2 + hh], 4), R(VF(ct, ks2), 4), R(O(hh, ct), 4)))
            f = (f0 if hh == 0 else f1).get(ct)
            if f: f()
            if hh == 0 and ct in (1, 2, 4, 7): ds(4, {1: 4, 2: 5, 4: 6, 7: 7}[ct])
            if hh == 1 and ct in (2, 7): ds(4, {2: 8, 7: 9}[ct])
    a.stamp(4)
    ds(3, 5)
    stepA(1)
    a("""
    v_subrev_u32 v186, 0x2f800000, v185
    v_cmp_le_u32 vcc, 0x24000000, v186
    """)
    NE = o.get('nearly', 2)
    pack(1, 0)
    stepB(0)
    for r in range(4):
        if r < 3: pack(1, r + 1)
        if r < NE: st(1, r)
        cs(1, r)
        if r == 2: stepA(2)
    a("""
    s_or_b32 s14, vcc_lo, vcc_hi
    s_or_b32 s11, s14, s15
    s_cbranch_scc1 L_Aslow
    v_mov_b32 v184, 0
    L_Aok:
    """)
    stepA(3)
    stepB(1)
    a('v_cndmask_b32 v%d, v%d, v%d, s[60:61]' % (T + 4, T + 4, T + 5))
    a('v_add_u32_dpp v%d, v%d, v%d quad_perm:[2,3,0,1] row_mask:0xf bank_mask:0xf' % (T + 4, T + 4, T + 4))
    a("""
    v_sub_u32 v186, v187, v%d
    s_mov_b64 exec, s[64:65]
    buffer_store_dwordx4 v[184:187], v29, s[44:47], s12 offen sc1
    s_mov_b64 exec, -1
    """ % (T + 4))
    for r in range(NE, 4): st(1, r)
    ds(3, 6)

    def slow():
        for i in range(2):
            a.label('L_Arf%d' % i)
            a('s_waitcnt lgkmcnt(0)')
            a('s_barrier')
            voffs(1, 0)
            for seg in range(4):
                for aa in range(4):
                    a('s_add_u32 m0, s9, 0x%x' % (i * 65536 + aa * 4096 + seg * 1024))
                    a('s_add_u32 s10, s8, 0x%x' % ((i + 2) * 65536 + aa * 4096 + seg * 256))
                    a('buffer_load_dwordx4 v%d, s[40:43], s10 offen nt lds' % (1 if aa < 2 else 0))
            a('''
            v_mbcnt_lo_u32_b32 v0, -1, 0
            v_and_b32 v0, 3, v0
            v_lshlrev_b32 v0, 2, v0
            v_add_u32 v0, 0x%x, v0
            s_waitcnt vmcnt(0)
            s_barrier
            s_branch L_Arb%d
            ''' % (FL, i))
        for t in a.slow: a(t)
        a.label('L_Aslow')
        a("""
        v_lshlrev_b32 v30, 2, v27
        v_add_u32 v30, 0x%x, v30
        s_cmp_lg_u32 s15, 0
        s_cbranch_scc1 L_Aslow2
        ; first pass was unsafe: rerun with the true (rounded up) per-head max
        ds_write2st64_b32 v26, v8, v9 offset0:8 offset1:12
        s_waitcnt lgkmcnt(0)
        s_barrier
        ds_read_b128 v[224:227], v28 offset:2048
        ds_read_b128 v[228:231], v28 offset:2064
        s_waitcnt lgkmcnt(0)
        v_max3_f32 v224, v224, v225, v226
        v_max3_f32 v227, v227, v228, v229
        v_max3_f32 v224, v224, v230, v231
        v_max_f32 v184, v224, v227
        v_max_f32_dpp v184, v184, v184 quad_perm:[2,3,0,1] row_mask:0xf bank_mask:0xf
        v_ceil_f32 v184, v184
        ds_write_b32 v30, v184
        v_and_b32 v31, 15, v24
        v_lshlrev_b32 v30, 2, v31
        v_add_u32 v30, 0x%x, v30
        v_lshrrev_b32 v232, 4, v24
        v_lshlrev_b32 v232, 4, v232
        v_lshl_add_u32 v31, v31, 10, v232
        s_mov_b32 s10, 0x4000
        s_waitcnt vmcnt(0) lgkmcnt(0)
        ds_read_b32 v10, v30
        ds_read_b32 v11, v30 offset:64
        """ % (RB, RB))
        for hh in range(2):
            for ks in range(16):
                a('buffer_load_dwordx4 %s, v31, s[44:47], %s offen offset:%d sc1' % (R(QF(hh, ks), 4), 's10' if hh else '0', ks * 64))
        a("""
        s_mov_b32 s15, 1
        s_waitcnt vmcnt(0) lgkmcnt(0)
        v_sub_f32 v10, 0, v10
        v_sub_f32 v11, 0, v11
        """)
        voffs(3, 0)
        a("""
        s_barrier
        s_branch L_Apass
        L_Aslow2:
        ds_read_b32 v184, v30
        s_waitcnt lgkmcnt(0)
        s_branch L_Aok
        """)
    a.aslow = slow
```

```python
from roleA19 import *

def role_final(a, o):
    a('''
    s_cmp_lg_u32 s3, 0
    s_cbranch_scc1 L_end
    ''')
    a.stamp(5)
    a.srd(48, WS, FP + 86 * 2048)
    a.srd(40, X, 1024)
    a('''
    v_mov_b32 v40, v24
    s_and_b32 s10, s2, 7
    s_lshl_b32 s10, s10, 6
    s_lshr_b32 s11, s2, 3
    s_lshl_b32 s11, s11, 2
    s_add_u32 s10, s10, s11            ; m0
    s_lshl_b32 s11, s10, 2
    s_lshl_b32 s12, s10, 1
    v_lshlrev_b32 v41, 11, v40
    v_and_b32 v42, 3, v40
    v_lshlrev_b32 v43, 1, v42
    buffer_load_ushort v60, v43, s[40:43], s12 offen
    v_and_b32 v44, 1, v40
    v_cmp_eq_u32 s[60:61], 1, v44
    v_and_b32 v44, 2, v40
    v_cmp_eq_u32 s[62:63], 2, v44
    ''')
    def gather4(base, srd, lab, dst):
        a('s_add_u32 s13, s11, 0x%x' % base)
        a('s_add_u32 s14, s11, 0x%x' % (base + 64 * 2048))
        a('s_mov_b32 s8, 0')
        a('s_mov_b64 s[64:65], -1')
        a('s_mov_b64 s[66:67], -1')
        a.label(lab)
        a('s_sleep FIN_SLEEP')
        a('s_mov_b64 exec, s[64:65]')
        a('s_cbranch_execz %s_a' % lab)
        a('buffer_load_dwordx4 v[48:51], v41, s[%d:%d], s13 offen sc1' % (srd, srd + 3))
        a.label(lab + '_a')
        a('s_mov_b64 exec, s[66:67]')
        a('s_cbranch_execz %s_b' % lab)
        a('buffer_load_dwordx4 v[52:55], v41, s[%d:%d], s14 offen sc1' % (srd, srd + 3))
        a.label(lab + '_b')
        a('''
        s_mov_b64 exec, -1
        s_add_u32 s8, s8, 1
        s_waitcnt vmcnt(0)
        v_max3_u32 v56, v48, v49, v50
        v_max3_u32 v57, v52, v53, v54
        v_max_u32 v56, v56, v51
        v_max_u32 v57, v57, v55
        v_cmp_eq_u32 s[64:65], -1, v56
        v_cmp_eq_u32 s[66:67], -1, v57
        s_cmp_gt_u32 s8, SPIN_N
        s_cbranch_scc1 %s_x
        s_or_b64 s[68:69], s[64:65], s[66:67]
        s_cbranch_scc1 %s
        %s_x:
        v_add_f32 v48, v48, v52
        v_add_f32 v49, v49, v53
        v_add_f32 v50, v50, v54
        v_add_f32 v51, v51, v55
        v_cndmask_b32 v52, v48, v49, s[60:61]
        v_cndmask_b32 v53, v49, v48, s[60:61]
        v_cndmask_b32 v54, v50, v51, s[60:61]
        v_cndmask_b32 v55, v51, v50, s[60:61]
        v_add_f32_dpp v52, v53, v52 quad_perm:[1,0,3,2] row_mask:0xf bank_mask:0xf
        v_add_f32_dpp v54, v55, v54 quad_perm:[1,0,3,2] row_mask:0xf bank_mask:0xf
        v_cndmask_b32 v%d, v52, v54, s[62:63]
        v_cndmask_b32 v53, v54, v52, s[62:63]
        v_add_f32_dpp v%d, v53, v%d quad_perm:[2,3,0,1] row_mask:0xf bank_mask:0xf
        v_add_f32_dpp v%d, v%d, v%d row_ror:4 row_mask:0xf bank_mask:0xf
        v_add_f32_dpp v%d, v%d, v%d row_ror:8 row_mask:0xf bank_mask:0xf
        ''' % ((lab, lab, lab) + (dst,) * 9))
        a.swap_red('v_add_f32', dst, 53, 16)
        a.swap_red('v_add_f32', dst, 53, 32)
    gather4(FP, 48, 'L_gf', 61)
    a.rnd_bf16(61)
    a.silu(61, 53)
    a.rnd_bf16(61)
    a('v_lshlrev_b32 v60, 16, v60')
    a.srd(40, OUT, 1024)
    a.stamp(6)
    gather4(SP, 44, 'L_gs', 62)
    a.rnd_bf16(62)
    a('v_mul_f32 v62, v62, v61')
    a.rnd_bf16(62)
    a('''
    v_add_f32 v62, v62, v60
    v_cvt_pk_bf16_f32 v62, v62, v62
    s_mov_b64 exec, 15
    buffer_store_short v62, v43, s[40:43], s12 offen
    ''')
    a.stamp(7)
    a.write_stamps()
    a('s_endpgm')

def role_As(a, o):
    a.stamps_mute = False
    a.label('L_As')
    ops = [(c, seg, aa) for c in range(2) for seg in range(4) for aa in range(4)]
    AM = o.get('amaj', 1)
    ops = [(c, sp * 2 + sg, aa) for c in range(2) for sp in range(2) for aa in range(4) for sg in range(2)]
    def prog(n):
        return {7: 2, 15: 4, 23: 6, 31: 8}.get(n)
    def loads(lo, hi):
        for n in range(lo, hi):
            c, seg, aa = ops[n]
            a('s_add_u32 s10, s64, 0x%x' % (c * 65536 + aa * 4096 + seg * 256))
            a.v('buffer_load_dwordx4 %s, v%d, s[40:43], s10 offen nt' % (R(128 + 4 * n, 4), 3 if aa < 2 else 0), 'L%d' % n)
    def writes(lo, hi):
        for n in range(lo, hi):
            c, seg, aa = ops[n]
            if ('L%d' % n) in a.vm: a.vwait('L%d' % n)
            a('ds_write_b128 v%d, %s offset:%d' % (100 + c, R(128 + 4 * n, 4), aa * 4096 + seg * 1024))
        a('s_waitcnt lgkmcnt(0)')
    c = [int(x, 16) for x in str(o.get('hsch', 'x48'))[1:]]
    a("""
    s_setprio 3
    s_sub_u32 s3, s3, 4
    s_lshl_b32 s9, s3, 14
    s_add_u32 s64, s8, s9
    s_add_u32 s64, s64, 0x20000
    v_lshl_add_u32 v100, v1, 4, s9
    v_add_u32 v101, 0x10000, v100
    v_mov_b32 v2, 0
    s_mov_b32 s8, 0
    L_Agn:
    s_sleep 8
    global_load_dword v5, v2, s[36:37] sc1
    s_add_u32 s8, s8, 1
    s_waitcnt vmcnt(0)
    v_readfirstlane_b32 s4, v5
    s_cmp_gt_u32 s8, SPIN_N
    s_cbranch_scc1 L_Agn_x
    s_cmp_eq_u32 s4, 0
    s_cbranch_scc1 L_Agn
    L_Agn_x:
    v_lshlrev_b32 v2, QCSH, v1        ; tag voffset
    v_lshlrev_b32 v98, 4, v1          ; data voffset
    s_lshl_b32 s9, s3, 13             ; QA + u*8192
    s_add_u32 s65, s9, 4096
    s_lshl_b32 s11, s3, QCSH+5
    s_add_u32 s11, s11, 0x%x          ; QC + u*32 entries
    s_lshr_b32 s12, s3, 1
    s_lshl_b32 s12, s12, 14
    s_and_b32 s13, s3, 1
    s_lshl_b32 s13, s13, 7
    s_add_u32 s12, s12, s13
    s_add_u32 s12, s12, 0x%x
    v_and_b32 v6, 7, v1
    v_lshlrev_b32 v6, 4, v6
    v_lshl_add_u32 v6, v1, 8, v6
    v_add_u32 v6, s12, v6             ; LDS write base
    s_lshl_b32 s4, s4, 5              ; expected sum = 32 * nonce
    v_mov_b32 v72, 0
    v_mov_b32 v73, 0
    s_mov_b32 s12, REP_MASK
    s_mov_b32 s13, 0
    NODEP s_branch L_Agt_x
    L_Agt:
    s_sleep QT_SLEEP
    s_mov_b64 exec, s[12:13]
    buffer_load_dwordx2 v[72:73], v2, s[44:47], s11 offen sc1
    s_add_u32 s8, s8, 1
    s_waitcnt vmcnt(0)
    v_cmp_ne_u32 s[12:13], v73, v5
    s_cmp_gt_u32 s8, SPIN_N
    s_cbranch_scc1 L_Agt_x
    s_cmp_lg_u32 s12, 0
    s_cbranch_scc1 L_Agt
    L_Agt_x:
    s_mov_b32 exec_lo, -1
    buffer_load_dwordx2 v[72:73], v2, s[44:47], s11 offen sc1
    s_mov_b64 exec, -1
    """ % (QC, STG))
    def dload(i):
        a('buffer_load_dwordx4 %s, v98, s[44:47], s%d offen offset:%d sc1' % (R(8 + 4 * i, 4), 9 if i < 4 else 65, (i % 4) * 1024))
    def dproc(i):
        a('ds_write_b128 v%d, %s' % (40 + i, R(8 + 4 * i, 4)))
        a('v_add3_u32 v%d, v%d, v%d, v%d' % (80 + i, 8 + 4 * i, 9 + 4 * i, 10 + 4 * i))
        a('v_add_u32 v%d, v%d, v%d' % (80 + i, 80 + i, 11 + 4 * i))
    for i in range(8): dload(i)
    a.stamp(1)
    if a.stamps: a('s_mov_b32 s8, 1')
    if o.get('rlate', 1):
        a("""
        s_waitcnt vmcnt(8)
        L_Agr:
        v_cmp_ne_u32 s[12:13], v73, v5
        s_cmp_eq_u32 s12, 0
        s_cbranch_scc1 L_Agr_x
        s_add_u32 s8, s8, 1
        s_cmp_gt_u32 s8, SPIN_N
        s_cbranch_scc1 L_Agr_x
        s_mov_b32 s13, 0
        s_quadmask_b32 s67, s12
        s_mov_b64 exec, s[12:13]
        buffer_load_dwordx2 v[72:73], v2, s[44:47], s11 offen sc1
        s_mov_b64 exec, -1
        """)
        for i in range(8):
            a('s_bitcmp1_b32 s67, %d' % i)
            a('s_cbranch_scc0 L_Agk%d' % i)
            dload(i)
            a.label('L_Agk%d' % i)
        a("""
        s_waitcnt vmcnt(0)
        s_branch L_Agr
        L_Agr_x:
        """)
    a('s_barrier')
    a.vm = []
    loads(0, c[0]); p = c[0]
    for i in range(8): a('v_xor_b32 v%d, %d, v6' % (40 + i, i << 4))
    for i in range(8):
        a('s_waitcnt vmcnt(%d)' % (7 - i + c[0]))
        dproc(i)
    a("""
    NODEP s_branch L_Agp_x
    v_cmp_ne_u32 s[12:13], v73, v5
    s_cmp_eq_u32 s12, 0
    s_cbranch_scc1 L_Agc
    L_Agp:
    s_mov_b32 s13, 0
    s_quadmask_b32 s67, s12
    s_mov_b64 exec, s[12:13]
    buffer_load_dwordx2 v[72:73], v2, s[44:47], s11 offen sc1
    s_mov_b64 exec, -1
    """)
    for i in range(8):
        a('s_bitcmp1_b32 s67, %d' % i)
        a('s_cbranch_scc0 L_Agl%d' % i)
        dload(i)
        a.label('L_Agl%d' % i)
    a("""
    s_add_u32 s8, s8, 1
    s_waitcnt vmcnt(0)
    v_cmp_ne_u32 s[12:13], v73, v5
    """)
    for i in range(8):
        a('s_bitcmp1_b32 s67, %d' % i)
        a('s_cbranch_scc0 L_Agw%d' % i)
        dproc(i)
        a.label('L_Agw%d' % i)
    a("""
    s_cmp_gt_u32 s8, SPIN_N
    s_cbranch_scc1 L_Agp_x
    s_cmp_lg_u32 s12, 0
    s_cbranch_scc1 L_Agp
    L_Agc:
    v_add3_u32 v4, v72, v80, v81
    v_add3_u32 v74, v82, v83, v84
    v_add3_u32 v4, v4, v85, v86
    v_add3_u32 v4, v4, v74, v87
    """)
    a.wave_red('v_add_u32', 4, 74)
    a("""
    v_readfirstlane_b32 s10, v4
    s_mov_b32 s12, -1
    s_cmp_lg_u32 s10, s4
    s_cbranch_scc1 L_Agp
    L_Agp_x:
    s_waitcnt lgkmcnt(0)
    """)
    a.stamp(3)
    a('s_barrier')
    a('s_setprio 0')
    loads(p, p + c[1]); p += c[1]
    a('''
    v_and_b32 v102, 3, v1
    v_lshlrev_b32 v102, 2, v102
    v_add_u32 v102, 0x%x, v102        ; YF read addr
    s_lshl_b32 s10, s3, 2
    s_add_u32 s10, s10, 0x%x
    v_mov_b32 v103, s10               ; own HF addr
    s_barrier                         ; B1
    ''' % (FL + 16, FL + 32))
    K = o.get('hk', 20)
    loads(p, K); p = max(p, K)
    def yspin(i):
        a('''
        s_mov_b32 s11, 0
        L_Ay%d:
        ds_read_b32 v99, v102
        s_add_u32 s11, s11, 1
        s_waitcnt lgkmcnt(0)
        v_sub_u32 v99, v99, v5
        v_subrev_u32 v99, %d, v99
        v_cmp_lt_u32 vcc, 7, v99
        s_cmp_gt_u32 s11, LSPIN
        s_cbranch_scc1 L_Ay%dx
        s_cbranch_vccz L_Ay%dx
        s_sleep 1
        s_branch L_Ay%d
        L_Ay%dx:
        ''' % (i, i, i, i, i, i))
    for n in range(32):
        if n % 16 == 0:
            if n == 16: loads(p, 32); p = 32
            yspin(n // 16)
        cc, seg, aa = ops[n]
        if prog(n): a('v_add_u32 v99, %d, v5' % prog(n))
        if ('L%d' % n) in a.vm: a.vwait('L%d' % n)
        a('ds_write_b128 v%d, %s offset:%d' % (100 + cc, R(128 + 4 * n, 4), aa * 4096 + seg * 1024))
        if prog(n): a('ds_write_b32 v103, v99')
        if p < 32: loads(p, p + 1); p += 1
    if a.stamps:
        a('s_mul_i32 s78, s8, 100')
        a('s_add_u32 s78, s78, s70')
        a('s_addc_u32 s79, s71, 0')
        a('s_lshl_b32 s2, s2, 2')
        a('s_add_u32 s2, s2, s3')
        a('s_add_u32 s2, s2, 256')
        a('s_sleep 127')
        a.write_stamps(vb=104)
    a('s_endpgm')

def role_W(a, o):
    WOPOL = o.get('wopol', 'nt'); W1POL = o.get('w1pol', 'nt')
    a.label('L_W')
    a.vm = []; a.lg = []
    a('''
    s_and_b32 s8, s2, 7               ; x
    s_lshr_b32 s9, s2, 3
    s_sub_u32 s9, s9, 16              ; k
    s_lshr_b32 s10, s9, 2
    s_lshl_b32 s11, s8, 2
    s_add_u32 s10, s10, s11           ; h
    s_and_b32 s11, s9, 3              ; j
    s_lshl_b32 s13, s10, 8            ; h*256
    v_lshlrev_b32 v9, 4, v1           ; lane*16
    v_lshrrev_b32 v6, 4, v1           ; g / r
    v_and_b32 v7, 15, v1              ; pc / i
    v_lshlrev_b32 v8, 1, v6
    v_xor_b32 v8, v8, v7
    v_lshlrev_b32 v8, 4, v8           ; (pc ^ (r<<1))*16
    v_lshl_add_u32 v2, v6, 13, v8
    v_xor_b32 v3, 0x80, v2            ; voffB
    s_lshl_b32 s14, s11, 3
    s_add_u32 s14, s14, s3            ; 8j + w
    s_lshl_b32 s15, s14, 17
    s_add_u32 s15, s15, s13           ; (128j + 16w)*8192 + h*256
    s_lshl_b32 s14, s3, 12            ; LDS w*4096
    v_lshlrev_b32 v10, 2, v6
    v_xor_b32 v10, v10, v7
    v_lshlrev_b32 v10, 4, v10
    v_lshl_add_u32 v10, v6, 13, v10
    v_xor_b32 v11, 32, v10
    s_mov_b32 s42, 0x400000
    s_mov_b32 s43, 0x20000
    s_mov_b32 s50, 0x400000
    s_mov_b32 s51, 0x20000
    s_mov_b32 m0, s14
    s_waitcnt lgkmcnt(0)
    s_mov_b32 s40, s20
    s_mov_b32 s41, s21
    s_cmp_lg_u32 s3, 0
    s_cbranch_scc1 L_Wx
    global_load_dwordx4 v[68:71], v9, s[16:17]
    L_Wx:
    ''')
    for i in range(4):
        if i:
            a('s_add_u32 m0, s14, %d' % (i * 1024))
            a('s_add_u32 s60, s15, %d' % (i * 32768))
        a.v('buffer_load_dwordx4 v%d, s[40:43], %s offen nt lds' % (2 if i < 2 else 3, 's60' if i else 's15'), 'WQ')
    a('s_mov_b32 s48, s22')
    a('s_mov_b32 s49, s23')
    if o.get('ukbar', 1): a('s_barrier')
    for i in range(4):
        a('s_add_u32 m0, s14, %d' % (UKL + i * 1024))
        a('s_add_u32 s60, s15, %d' % (i * 32768))
        a.v('buffer_load_dwordx4 v%d, s[48:51], s60 offen nt lds' % (10 if i < 2 else 11), 'UK')
    common2(a)
    if o.get('diag', 0) == 2: a.stamp(5)
    a('''
    s_lshl_b32 s12, s9, 3
    s_add_u32 s12, s12, s8            ; fb = 8k + x
    s_cmp_lt_u32 s9, 11
    s_cselect_b32 s12, s12, 1000
    v_mov_b32 v14, 0
    v_lshrrev_b32 v12, 2, v7          ; r' / a
    v_and_b32 v13, 1, v6
    v_lshl_add_u32 v13, v13, 2, v12
    v_lshlrev_b32 v13, 1, v13
    v_bfe_u32 v16, v1, 1, 1
    s_lshl_b32 s60, s3, 1
    v_add_u32 v16, s60, v16
    v_xor_b32 v16, v16, v13
    v_lshlrev_b32 v16, 4, v16
    v_lshl_add_u32 v13, v6, 3, v12
    v_lshl_add_u32 v16, v13, 8, v16
    v_and_b32 v13, 1, v1
    v_lshl_add_u32 v4, v13, 3, v16    ; tr-read base
    v_lshlrev_b32 v5, 4, v6
    v_add_u32 v5, 0x%x, v5            ; SM + g*16
    v_and_b32 v13, 3, v7
    v_and_b32 v16, 2, v12
    v_xor_b32 v16, v16, v6
    v_lshl_add_u32 v16, v13, 2, v16
    v_lshlrev_b32 v16, 4, v16
    v_lshl_add_u32 v16, v7, 8, v16
    s_add_u32 s60, s14, 0x%x
    v_add_u32 v64, s60, v16           ; uk frag read addrs
    v_xor_b32 v65, 64, v64
    v_xor_b32 v66, 0x80, v64
    v_xor_b32 v67, 0xc0, v64
    ''' % (SM, UKL))
    a('''
    s_lshl_b32 s68, s10, 2
    s_add_u32 s68, s68, s11           ; mi = 4h + j
    s_lshl_b32 s64, s68, 15
    s_lshl_b32 s61, s3, 12
    s_add_u32 s69, s64, s61
    s_add_u32 s69, s69, 0x%x          ; s69 = inbox base of this wave
    s_lshl_b32 s58, s68, 11
    s_lshl_b32 s61, s3, 8
    s_add_u32 s58, s58, s61
    s_add_u32 s58, s58, 0x%x          ; s58 = SP row of this wave
    s_lshl_b32 s66, s12, 11
    s_add_u32 s66, s66, s61
    s_add_u32 s66, s66, 0x%x          ; s66 = FP row of this wave
    s_cmp_lt_u32 s12, 86
    s_cselect_b32 s66, s66, s58
    s_lshl_b32 s67, s3, 6
    s_add_u32 s67, s67, s11
    s_lshl_b32 s67, s67, 9
    s_lshl_b32 s61, s10, 4
    s_add_u32 s67, s67, s61
    s_add_u32 s67, s67, 0x%x          ; s67 = MLC + (64w + j)*512 + h*16
    v_lshlrev_b32 v11, 2, v1
    v_mov_b32 v16, -1
    ''' % (OP, SP, FP, ML))
    a.v('buffer_store_dword v16, v11, s[44:47], s58 offen sc1', 'PT')
    a.v('buffer_store_dword v16, v11, s[44:47], s66 offen sc1', 'PT')
    a('''
    s_cmp_lg_u32 s3, 0
    s_cbranch_scc1 L_Wln
    s_waitcnt vmcnt(%d)
    s_load_dword s4, s[36:37], 0
    ''' % len(a.vm))
    if o.get('diag', 0) == 2: a.stamp(6)
    layernorm(a)
    if o.get('diag', 0) == 2: a.stamp(7)
    a('''
    v_add_u32 v72, 0x%x, v9
    ds_write_b128 v72, v[68:71]
    s_waitcnt lgkmcnt(0)
    s_mov_b32 s60, 0
    s_branch L_Wn_c
    L_Wn:
    global_load_dword v15, v14, s[36:37] sc1
    s_add_u32 s60, s60, 1
    s_waitcnt vmcnt(0)
    v_readfirstlane_b32 s4, v15
    s_cmp_gt_u32 s60, SPIN_N
    s_cbranch_scc1 L_Wn_x
    L_Wn_c:
    s_cmp_eq_u32 s4, 0
    s_cbranch_scc1 L_Wn
    L_Wn_x:
    v_mov_b32 v72, 0x%x
    v_mov_b32 v15, s4
    ds_write_b32 v72, v15
    s_waitcnt lgkmcnt(0)
    L_Wln:
    ''' % (XN, NB))
    if o.get('diag', 0) == 2: a.stamp(8)
    a.vwait('WQ')
    if o.get('diag', 0) == 2: a.stamp(9)
    a('s_barrier')
    a.stamp(1)
    a('s_lshl_b32 s60, s11, 8')
    a('v_add_u32 v13, s60, v5')
    for ks in range(4):
        a.d('ds_read_b128 %s, v13 offset:%d' % (R(52 + 4 * ks - 16 + 16, 4), ks * 64) if False else 'ds_read_b128 %s, v13 offset:%d' % (R(16 + 4 * ks, 4), ks * 64), 'a%d' % ks)
        for rdi in range(2):
            a.d('ds_read_b64_tr_b16 %s, v4 offset:%d' % (R(36 + 4 * ks + 2 * rdi, 2), ks * 8192 + rdi * 1024), 'a%d' % ks)
    a('v_mov_b32 v12, 0x%x' % NB)
    a.d('ds_read_b32 v53, v12', 'n')
    a('''
    s_lshl_b32 s60, s10, 12
    s_lshl_b32 s61, s3, 7
    s_add_u32 s60, s60, s61
    s_add_u32 s60, s60, 0x%x          ; QP + h*4096 + w*128
    s_lshl_b32 s61, s11, 10
    s_add_u32 s61, s61, s60           ; + j*1024
    v_lshlrev_b32 v12, 3, v7          ; d*8
    v_lshl_add_u32 v13, v6, 10, v12   ; jj*1024 + d*8
    v_cmp_ne_u32 s[64:65], s11, v6    ; lanes of the other three
    ''' % QP)
    for ks in range(4):
        a.dwait('a%d' % ks)
        a('v_mfma_f32_16x16x32_bf16 v[32:35], %s, %s, %s' % (R(16 + 4 * ks, 4), R(36 + 4 * ks, 4), 'v[32:35]' if ks else '0'))
    a.dall()
    a('''
    s_lshl_b32 s62, s3, 5
    s_add_u32 s62, s62, 0x%x
    v_lshl_add_u32 v15, v7, 1, s62    ; QB + (16w + d)*2
    v_mov_b32 v55, v53
    v_mov_b32 v52, v32
    v_mov_b32 v54, v32
    s_mov_b64 exec, 0xffff
    buffer_store_dwordx2 v[52:53], v12, s[44:47], s61 offen sc1
    ''' % QB)
    if o.get('qpack', 1): a('s_waitcnt vmcnt(0)')
    a.stamp(2)
    a('''
    s_mov_b32 s62, 0
    L_Wq:
    s_mov_b64 exec, s[64:65]
    buffer_load_dwordx2 v[54:55], v13, s[44:47], s60 offen sc1
    s_add_u32 s62, s62, 1
    s_waitcnt vmcnt(0)
    v_cmp_ne_u32 s[64:65], v55, v53
    s_cmp_gt_u32 s62, SPIN_N
    s_cbranch_scc1 L_Wq_x
    s_cmp_lg_u64 s[64:65], 0
    s_cbranch_scc1 L_Wq
    L_Wq_x:
    s_mov_b64 exec, -1
    ''')
    a.vm = []
    for ks in range(4):
        a.d('ds_read_b128 %s, v%d' % (R(16 + 4 * ks, 4), 64 + ks), 'uk')
    a.swap_red('v_add_f32', 54, 55, 16)
    a.swap_red('v_add_f32', 54, 55, 32)
    a('''
    v_cvt_pk_bf16_f32 v54, v54, v54
    ds_write_b16 v15, v54
    ''')
    a.dall()
    a('s_barrier')
    a.stamp(3)
    for ks in range(4):
        a.d('ds_read_b128 %s, v5 offset:%d' % (R(36 + 4 * ks, 4), QB - SM + ks * 64), 'a%d' % ks)
    a('''
    s_lshl_b32 s14, s3, 5
    s_add_u32 s14, s14, 0x%x
    v_lshl_add_u32 v13, v6, 3, s14    ; QO + w*32 + q*8
    v_lshlrev_b32 v12, 4, v7
    v_add_u32 v15, 0x%x, v12          ; QO + (l%%16)*16
    s_lshl_b32 s14, s68, 8
    s_lshl_b32 s15, s68, QCSH
    s_add_u32 s15, s15, 0x%x
    v_add_u32 v56, s14, v12
    v_add_u32 v57, s15, v12
    v_cndmask_b32 v56, v56, v57, s[52:53]
    ''' % (QO, QO, QC))
    for ks in range(4):
        a.dwait('a%d' % ks)
        a('v_mfma_f32_16x16x32_bf16 v[32:35], %s, %s, %s' % (R(16 + 4 * ks, 4), R(36 + 4 * ks, 4), 'v[32:35]' if ks else '0'))
    sc = f2u(128 ** -0.5 * math.log2(math.e))
    a('''
    v_mul_f32 v32, 0x%x, v32
    v_mul_f32 v33, 0x%x, v33
    v_mul_f32 v34, 0x%x, v34
    v_mul_f32 v35, 0x%x, v35
    v_cvt_pk_bf16_f32 v32, v32, v33
    v_cvt_pk_bf16_f32 v33, v34, v35
    ds_write_b64 v13, v[32:33]
    s_waitcnt lgkmcnt(0)
    s_barrier
    s_cmp_lg_u32 s3, 0
    s_cbranch_scc1 L_Wpub
    ds_read_b128 v[32:35], v15
    s_waitcnt lgkmcnt(0)
    v_add3_u32 v36, v32, v33, v34
    v_add_u32 v36, v36, v35
    ''' % (sc, sc, sc, sc))
    a.wave_red('v_add_u32', 36, 37, rows_only=True)
    a('''
    v_sub_u32 v36, v53, v36
    v_cndmask_b32 v32, v32, v36, s[52:53]
    v_cndmask_b32 v33, v33, v53, s[52:53]
    s_mov_b64 exec, QCEX
    buffer_store_dwordx4 v[32:35], v56, s[44:47], 0 offen sc1
    s_mov_b64 exec, -1
    L_Wpub:
    s_barrier
    ''')
    a.stamp(4)
    WW = o.get('wwin', 3); WW2 = o.get('wwin2', 0)
    a.srd(40, WUV, 0x400000)
    a("""
    v_readfirstlane_b32 s4, v53
    v_lshl_add_u32 v2, v6, 17, v8     ; r4*16 rows
    v_xor_b32 v3, 0x80, v2
    s_lshl_b32 s14, s11, 6
    s_add_u32 s14, s14, s3            ; 64j + w
    s_lshl_b32 s14, s14, 14           ; (128j + 2w)*8192
    s_add_u32 s14, s14, s13
    s_lshl_b32 s15, s3, 12
    """)
    a.vm = []
    for i in range(4):
        if WW2: a('s_waitcnt vmcnt(%d)' % (WW2 - 1))
        a('s_add_u32 m0, s15, %d' % (i * 1024))
        a('s_add_u32 s60, s14, %d' % ((64 * (i & 1) + (i >> 1)) * 8192))
        a('buffer_load_dwordx4 v%d, s[40:43], s60 offen nt lds' % (2 if i < 2 else 3))
    a("""
    v_lshrrev_b32 v12, 3, v1          ; r8
    v_and_b32 v13, 7, v1              ; c8
    v_lshlrev_b32 v70, 4, v13
    v_lshl_add_u32 v70, v12, 10, v70  ; r8*1024 + c8*16   (w2 voff)
    v_bfe_u32 v15, v1, 4, 1
    v_lshlrev_b32 v15, 5, v15
    v_xor_b32 v68, v70, v15           ; voffC
    v_xor_b32 v69, 64, v68            ; voffD
    s_cmp_ge_u32 s12, 88
    s_cbranch_scc1 L_Wnf1
    """)
    a.srd(40, W1, 512 * 2752)
    a.srd(48, W2, 1376 * 1024)
    wt = ('s_waitcnt vmcnt(%d)' % (WW2 - 1)) if WW2 else 's_nop 0'
    a("""
    v_mul_u32_u24 v14, 2752, v6
    s_and_b32 s60, s3, 1
    s_lshl_b32 s60, s60, 7
    v_xor_b32 v13, s60, v8
    v_add_u32 v14, v14, v13           ; r*2752 + swizzled chunk
    s_lshl_b32 s14, s8, 3
    s_add_u32 s14, s14, s3            ; 8x + w
    s_mul_i32 s14, s14, %d            ; row (64x + 8w)
    s_lshl_b32 s60, s9, 8
    s_add_u32 s14, s14, s60           ; + block*256
    s_lshl_b32 s15, s3, 11
    s_add_u32 m0, s15, 0x%x
    s_add_u32 s60, s14, %d
    %s
    buffer_load_dwordx4 v14, s[40:43], s14 offen %s lds
    s_add_u32 m0, s15, 0x%x
    %s
    buffer_load_dwordx4 v14, s[40:43], s60 offen %s lds
    s_lshl_b32 s14, s12, 14
    s_lshl_b32 s60, s3, 7
    s_add_u32 s14, s14, s60
    s_add_u32 m0, s15, 0x%x
    s_add_u32 s60, s14, 8192
    %s
    buffer_load_dwordx4 v70, s[48:51], s14 offen nt lds
    s_add_u32 m0, s15, 0x%x
    %s
    buffer_load_dwordx4 v70, s[48:51], s60 offen nt lds
    L_Wnf1:
    """ % (8 * 2752, W1L, 4 * 2752, wt, W1POL, W1L + 1024, wt, W1POL, W2L, wt, W2L + 1024, wt))
    a.srd(48, WO, 0x400000)
    a("""
    s_lshl_b32 s14, s10, 17
    s_lshl_b32 s15, s3, 7
    s_add_u32 s14, s14, s15
    s_lshl_b32 s15, s3, 13
    s_lshl_b32 s5, s11, 1             ; rotation 2j
    v_lshrrev_b32 v71, 2, v7
    v_lshl_add_u32 v71, v6, 3, v71
    v_lshlrev_b32 v71, 7, v71
    v_and_b32 v13, 3, v1
    v_lshl_add_u32 v71, v13, 3, v71
    v_bfe_u32 v13, v1, 3, 2
    v_lshl_add_u32 v71, v13, 5, v71
    v_add_u32 v71, s15, v71
    """)
    def wo_dma(rho, lo, hi, win):
        for n in range(lo, hi):
            if win: a('s_waitcnt vmcnt(%d)' % (win - 1))
            if o.get('rot', 0):
                a('s_add_u32 s61, s5, %d' % n)
                a('s_and_b32 s61, s61, 7')
                a('s_lshl_b32 s62, s61, 10')
                a('s_add_u32 s62, s62, s15')
                a('s_add_u32 m0, s62, %d' % ((1 - rho) * 65536))
                a('s_lshl_b32 s61, s61, 13')
                a('s_add_u32 s61, s61, s14')
                a('s_add_u32 s60, s61, %d' % (rho * 65536))
            else:
                a('s_add_u32 m0, s15, %d' % ((1 - rho) * 65536 + n * 1024))
                a('s_add_u32 s60, s14, %d' % ((64 * rho + 8 * n) * 1024))
            a('buffer_load_dwordx4 v%d, s[48:51], s60 offen %s lds' % (68 if n % 2 == 0 else 69, WOPOL))
    WOF = 72
    def wo_read(rho):
        for mt in range(4):
            a('v_xor_b32 v13, 0x%x, v71' % ((1 - rho) * 65536 + mt * 32))
            for ksl in range(2):
                for rdi in range(2):
                    a.d('ds_read_b64_tr_b16 %s, v13 offset:%d' % (R(WOF + (mt * 4 + 2 * rho + ksl) * 4 + 2 * rdi, 2), ksl * 4096 + rdi * 512), 'wo')
            if mt % 2: a.dall()
    NW0 = o.get('nwo0', 2)
    wo_dma(0, 0, NW0, 0)
    a('s_waitcnt vmcnt(%d)' % NW0)
    a('s_barrier')
    a.stamp(5)
    for ks in range(4):
        for rdi in range(2):
            a.d('ds_read_b64_tr_b16 %s, v4 offset:%d' % (R(16 + 4 * ks + 2 * rdi, 2), ks * 8192 + rdi * 1024), 'uv')
    a("""
    s_cmp_ge_u32 s12, 88
    s_cbranch_scc1 L_Wnf2
    s_lshl_b32 s60, s8, 7
    v_add_u32 v13, s60, v5            ; xn + 64x*2 + g*16
    """)
    for ks in range(2):
        a('ds_read_b128 %s, v13 offset:%d' % (R(52 + 4 * ks, 4), ks * 64))
        for rdi in range(2):
            a('ds_read_b64_tr_b16 %s, v4 offset:%d' % (R(36 + 4 * ks + 2 * rdi, 2), W1L + ks * 8192 + rdi * 1024))
    a("""
    v_lshrrev_b32 v12, 2, v1
    v_and_b32 v13, 3, v1
    v_lshlrev_b32 v13, 3, v13
    v_lshl_add_u32 v12, v12, 7, v13
    s_lshl_b32 s60, s3, 11
    s_add_u32 s60, s60, 0x%x
    v_add_u32 v12, s60, v12
    s_waitcnt lgkmcnt(0)
    v_mfma_f32_16x16x32_bf16 v[32:35], v[52:55], v[36:39], 0
    v_mfma_f32_16x16x32_bf16 v[32:35], v[56:59], v[40:43], v[32:35]
    """ % W2L)
    for mt in range(4):
        a('ds_read_b64_tr_b16 %s, v12 offset:%d' % (R(44 + 2 * mt, 2), mt * 32))
    a("""
    s_lshl_b32 s60, s12, 10
    s_lshl_b32 s61, s3, 7
    s_add_u32 s60, s60, s61
    s_add_u32 s60, s60, 0x%x          ; HP + (8k+x)*1024 + w*128
    v_lshlrev_b32 v12, 3, v7
    v_mov_b32 v33, s4
    s_mov_b64 exec, 0xffff
    buffer_store_dwordx2 v[32:33], v12, s[44:47], s60 offen sc1
    s_mov_b64 exec, -1
    L_Wnf2:
    s_waitcnt lgkmcnt(0)
    s_barrier
    """ % HP)
    a.lg = []
    wo_dma(0, NW0, 8, WW)
    a.stamp(10)
    wo_dma(1, 0, 8, WW)
    a('s_waitcnt vmcnt(8)')
    wo_read(0)
    a('''
    s_cmp_ge_u32 s12, 86
    s_cbranch_scc1 L_Wnf3
    s_lshl_b32 s60, s9, 13
    s_lshl_b32 s61, s8, 7
    s_add_u32 s60, s60, s61
    s_add_u32 s60, s60, 0x%x          ; HP + k*8192 + x*128
    v_and_b32 v12, 7, v1
    v_lshlrev_b32 v12, 10, v12
    v_lshl_add_u32 v12, v6, 5, v12    ; producer*1024 + g*32
    s_mov_b32 s61, 0
    L_Wh:
    buffer_load_dwordx4 v[52:55], v12, s[44:47], s60 offen sc1
    buffer_load_dwordx4 v[56:59], v12, s[44:47], s60 offen offset:16 sc1
    s_add_u32 s61, s61, 1
    s_waitcnt vmcnt(0)
    v_xor_b32 v13, v53, v55
    v_xor_b32 v14, v57, v59
    v_xor_b32 v15, s4, v53
    v_or3_b32 v13, v13, v14, v15
    v_xor_b32 v14, v53, v57
    v_or_b32 v13, v13, v14
    v_cmp_ne_u32 vcc, 0, v13
    s_cmp_gt_u32 s61, SPIN_N
    s_cbranch_scc1 L_Wh_x
    s_cbranch_vccnz L_Wh
    L_Wh_x:
    ''' % HP)
    for m in ('quad_perm:[1,0,3,2]', 'quad_perm:[2,3,0,1]', 'row_half_mirror'):
        for r in range(4):
            a('v_add_f32_dpp v%d, v%d, v%d %s row_mask:0xf bank_mask:0xf' % (52 + 2 * r, 52 + 2 * r, 52 + 2 * r, m))
    for r in range(4):
        a.rnd_bf16(52 + 2 * r)
        a.silu(52 + 2 * r, 53)
    a('v_cvt_pk_bf16_f32 v32, v52, v54')
    a('v_cvt_pk_bf16_f32 v33, v56, v58')
    for mt in range(4):
        a('v_mfma_f32_16x16x16_bf16 %s, v[32:33], %s, 0' % (R(52 + 4 * mt, 4), R(44 + 2 * mt, 2)))
    a('''
    v_cndmask_b32 v52, v52, v56, s[52:53]
    v_cndmask_b32 v52, v52, v60, s[54:55]
    v_cndmask_b32 v52, v52, v64, s[56:57]
    buffer_store_dword v52, v11, s[44:47], s66 offen sc1
    L_Wnf3:
    ''')
    for p in range(4):
        a('v_cmp_eq_u32 vcc, %d, v7' % (2 * p))
        a('v_mov_b32 v%d, 0' % (56 + p))
        a('v_mov_b32 v64, 0xffff')
        a('v_cndmask_b32 v%d, v%d, v64, vcc' % (56 + p, 56 + p))
        a('v_cmp_eq_u32 vcc, %d, v7' % (2 * p + 1))
        a('v_mov_b32 v64, 0xffff0000')
        a('v_cndmask_b32 v%d, v%d, v64, vcc' % (56 + p, 56 + p))
        a('v_and_b32 v%d, 0x3f803f80, v%d' % (60 + p, 56 + p))
    a("""
    v_lshrrev_b32 v64, 1, v6
    v_mul_u32_u24 v64, 0x%x, v64
    v_lshl_add_u32 v64, v7, 4, v64
    v_and_b32 v65, 1, v6
    v_lshl_add_u32 v64, v65, 3, v64
    s_mul_i32 s60, s3, 288
    s_add_u32 s60, s60, 0x%x
    v_add_u32 v64, s60, v64
    v_and_b32 v65, 7, v1
    v_mul_u32_u24 v65, 288, v65
    v_add_u32 v65, v65, v5
    s_lshl_b32 s60, s3, 5
    s_add_u32 s60, s60, 0x%x
    v_lshl_add_u32 v66, v7, 1, s60
    """ % (8 * 288, ROWS, CB))
    a('s_waitcnt vmcnt(0)')
    wo_read(1)
    a.stamp(6)
    a('''
    v_lshlrev_b32 v14, 11, v7
    s_lshl_b32 s60, s3, 3
    s_add_u32 s60, s60, 0x%x
    v_mov_b32 v70, s60                ; LW + w*8
    v_and_b32 v71, 7, v1
    v_lshlrev_b32 v71, 3, v71
    v_add_u32 v71, 0x%x, v71          ; LW + (l%%8)*8
    s_mov_b32 s60, 0
    s_mov_b64 s[62:63], -1
    L_Wg1:
    s_sleep ML_SLEEP
    s_mov_b64 exec, s[62:63]
    buffer_load_dwordx4 v[52:55], v14, s[44:47], s67 offen sc1
    s_add_u32 s60, s60, 1
    s_waitcnt vmcnt(0)
    v_subrev_u32 v12, s4, v55
    v_cmp_lt_u32 s[62:63], 1, v12
    s_cmp_gt_u32 s60, SPIN_N
    s_cbranch_scc1 L_Wg
    s_cmp_lg_u64 s[62:63], 0
    s_cbranch_scc1 L_Wg1
    ''' % (LW, LW))
    if a.stamps: a('s_mov_b32 s60, 0')
    a.stamp(10)
    a.label('L_Wg')
    a('s_mov_b64 exec, -1')
    for i in range(4):
        a('buffer_load_dwordx4 %s, v9, s[44:47], s69 offen offset:%d sc1' % (R(36 + 4 * i, 4), i * 1024))
    a('buffer_load_dwordx4 v[52:55], v14, s[44:47], s67 offen sc1')
    a('s_add_u32 s60, s60, 1')
    a('v_cmp_gt_u32 s[62:63], 16, v1')
    for i in range(4):
        a('s_waitcnt vmcnt(%d)' % (4 - i))
        a('v_mfma_f32_16x16x32_bf16 v[32:35], v[60:63], %s, %s' % (R(36 + 4 * i, 4), 'v[32:35]' if i else '0'))
        if i == 0:
            a('v_add3_u32 v15, v36, v37, v38')
            a('v_add_u32 v15, v15, v39')
        else:
            a('v_add3_u32 v15, v15, v%d, v%d' % (36 + 4 * i, 37 + 4 * i))
            a('v_add3_u32 v15, v15, v%d, v%d' % (38 + 4 * i, 39 + 4 * i))
    a("""
    s_waitcnt vmcnt(0)
    v_subrev_u32 v12, s4, v54
    v_cndmask_b32 v12, 0, v12, s[62:63]
    v_add_u32 v15, v15, v12
    v_xor_b32 v12, s4, v55
    """)
    a.wave_red('v_add_u32', 15, 13)
    a("""
    v_or_b32 v15, v15, v12
    v_cmp_ne_u32 vcc, 0, v15
    s_cmp_gt_u32 s60, SPIN_N
    s_cbranch_scc1 L_Wg_x
    s_cbranch_vccnz L_Wg
    L_Wg_x:
    """)
    a.stamp(7)
    if a.stamps:
        a('s_mul_i32 s92, s60, 100')
        a('s_add_u32 s92, s92, s70')
        a('s_addc_u32 s93, s71, 0')
    a("""
    v_cmp_neq_f32 vcc, 0, v52
    s_cbranch_vccnz L_Wgen
    """)
    a.label('L_Wj')
    a.wave_red('v_add_f32', 53, 12, rows_only=True)
    a('''
    ds_write_b64 v70, v[52:53]
    v_cvt_pk_bf16_f32 v32, v32, v33
    v_cvt_pk_bf16_f32 v33, v34, v35
    ds_write_b64 v64, v[32:33]
    s_waitcnt lgkmcnt(0)
    s_barrier
    ''')
    a.stamp(8)
    for ks in range(4):
        a.d('ds_read_b128 %s, v65 offset:%d' % (R(36 + 4 * ks, 4), ROWS - SM + ks * 64), 'a%d' % ks)
    a.d('ds_read_b64 v[52:53], v71', 'lw')
    for ks in range(4):
        a.dwait('a%d' % ks)
        a('v_mfma_f32_16x16x32_bf16 v[32:35], %s, %s, %s' % (R(36 + 4 * ks, 4), R(16 + 4 * ks, 4), 'v[32:35]' if ks else '0'))
    a.dall()
    a('''
    v_cmp_neq_f32 vcc, 0, v52
    s_cbranch_vccnz L_Wgen2
    L_Wj2:
    v_add_f32_dpp v53, v53, v53 quad_perm:[1,0,3,2] row_mask:0xf bank_mask:0xf
    s_nop 1
    v_add_f32_dpp v53, v53, v53 quad_perm:[2,3,0,1] row_mask:0xf bank_mask:0xf
    s_nop 1
    v_add_f32_dpp v53, v53, v53 row_half_mirror row_mask:0xf bank_mask:0xf
    v_add_f32 v32, v32, v33
    v_add_f32 v34, v34, v35
    v_rcp_f32 v67, v53
    v_add_f32 v32, v32, v34
    ''')
    a.swap_red('v_add_f32', 32, 33, 16)
    a('''
    v_mul_f32 v32, v32, v67
    v_cvt_pk_bf16_f32 v32, v32, v32
    ds_write_b16 v66, v32
    s_waitcnt lgkmcnt(0)
    s_barrier
    ''')
    for ks in range(4):
        a.d('ds_read_b128 %s, v5 offset:%d' % (R(36 + 4 * ks, 4), CB - SM + ks * 64), 'a%d' % ks)
    for ks in range(4):
        a.dwait('a%d' % ks)
        for mt in range(4):
            a('v_mfma_f32_16x16x32_bf16 %s, %s, %s, %s' % (R(16 + 4 * mt, 4), R(36 + 4 * ks, 4), R(WOF + (mt * 4 + ks) * 4, 4), R(16 + 4 * mt, 4) if ks else '0'))
    a('''
    v_cndmask_b32 v16, v16, v20, s[52:53]
    v_cndmask_b32 v16, v16, v24, s[54:55]
    v_cndmask_b32 v16, v16, v28, s[56:57]
    buffer_store_dword v16, v11, s[44:47], s58 offen sc1
    ''')
    a.stamp(9)
    if a.stamps:
        a('s_cmp_lg_u32 s3, %d' % o.get('stw', 0))
        a('s_cbranch_scc1 L_end')
        a.write_stamps()
    a('s_endpgm')

def role_Wslow(a, o):
    a.aslow()
    a.label('L_Wgen')
    a('v_mov_b32 v12, v52')
    a.wave_red('v_max_f32', 12, 13, rows_only=True)
    a('''
    v_sub_f32 v54, v52, v12
    v_exp_f32 v54, v54
    v_mov_b32 v52, v12                ; Mw
    v_and_b32 v54, 0xffff0000, v54
    v_mul_f32 v53, v53, v54
    v_lshrrev_b32 v55, 16, v54
    v_or_b32 v54, v54, v55
    v_lshlrev_b32 v13, 2, v6
    ''')
    for i in range(4):
        a('ds_bpermute_b32 v12, v13, v54 offset:%d' % (16 * i))
        a('s_waitcnt lgkmcnt(0)')
        for p in range(4):
            a('v_and_b32 v%d, v12, v%d' % (60 + p, 56 + p))
        a('v_mfma_f32_16x16x32_bf16 v[32:35], v[60:63], %s, %s' % (R(36 + 4 * i, 4), 'v[32:35]' if i else '0'))
    a('s_nop 7')
    a('s_branch L_Wj')
    a.label('L_Wgen2')
    a('''
    v_mov_b32 v12, v52
    v_max_f32_dpp v12, v12, v12 quad_perm:[1,0,3,2] row_mask:0xf bank_mask:0xf
    v_max_f32_dpp v12, v12, v12 quad_perm:[2,3,0,1] row_mask:0xf bank_mask:0xf
    v_max_f32_dpp v12, v12, v12 row_half_mirror row_mask:0xf bank_mask:0xf
    v_sub_f32 v54, v52, v12
    v_exp_f32 v54, v54
    v_and_b32 v13, 1, v6
    v_lshlrev_b32 v13, 4, v13
    v_mul_f32 v53, v53, v54
    ''')
    for r in range(4):
        a('ds_bpermute_b32 v12, v13, v54 offset:%d' % (4 * r))
        a('s_waitcnt lgkmcnt(0)')
        a('v_mul_f32 v%d, v%d, v12' % (32 + r, 32 + r))
    a('s_nop 1')
    a('s_branch L_Wj2')

def gen(stamps=False, o=None):
    o = o or {}
    a = G(stamps)
    prologue(a, o)
    role_W(a, o)
    role_A(a, o)
    role_final(a, o)
    role_As(a, o)
    role_Wslow(a, o)
    a.label('L_end')
    txt = a.text()
    for k, v in (('QT_SLEEP', o.get('qtsleep', 1)), ('QT_THR', o.get('qtthr', 2)), ('REP_MASK', o.get('repmask', '0x00010001')), ('LSPIN', 200000), ('SPIN_N', SPIN),
                 ('ML_SLEEP', o.get('mlsleep', 2)), ('FIN_SLEEP', o.get('finsleep', 1)), ('UKGATE', o.get('ukgate', 3))):
        txt = txt.replace(k, str(v))
    txt = txt.replace('W1A ', '; ' if o.get('now1', 0) else '')
    txt = txt.replace('PTA ', '' if o.get('pre', 0) else '; ').replace('ML_OFF', '0x%x' % ML)
    qs = o.get('qcsh', 7)
    txt = txt.replace('QCSH+5', str(qs + 5)).replace('QCSH', str(qs)).replace('QCEX', {5: '0x3ffff', 6: '0xfffff', 7: '0xffffff'}[qs]).replace('REP_N', str(o.get('repn', 1)))
    txt = txt.replace('NODEP ', '' if o.get('nodep', 0) else '; ')
    if o.get('nodep', 0): txt = txt.replace('s_or_b32 s14, vcc_lo, vcc_hi', 's_mov_b32 s14, 0')
    if o.get('now1', 0): txt = txt.replace('buffer_load_dwordx4 v14, s[40:43], s14 offen', '; ').replace('buffer_load_dwordx4 v14, s[40:43], s60 offen', '; ')
    body = hz.fix(txt)
    return kernel_file([(KN + '_kernel', 256, 512, 163840)], [(KN + '_kernel', body, 256, 96, 256)])

if __name__ == '__main__':
    out = sys.argv[1]
    stamps = 'stamps' in sys.argv[2:]
    o = {}
    for kv in sys.argv[2:]:
        if '=' in kv:
            k, v = kv.split('=')
            o[k] = int(v) if v.lstrip('-').isdigit() else v.replace('_', ' ')
    open(out, 'w').write(gen(stamps, o))
```

```python
import sys, struct, math
from gl import *
import hz

def f2u(f): return struct.unpack('<I', struct.pack('<f', f))[0]

WS_REC = 0x500000
STAMP_OFF = 0x8000000
NST = 12
SPIN = 60000

class G(Asm):
    def __init__(self, stamps):
        super().__init__()
        self.stamps = stamps
        self.vm = []
        self.lg = []
    def stamp(self, k):
        if getattr(self, 'stamps_hold', False) and k >= 5: return
        if getattr(self, 'stamps_mute', False): return
        if self.stamps:
            self('s_memrealtime s[%d:%d]' % (70 + 2 * k, 71 + 2 * k))
            self('s_waitcnt lgkmcnt(0)')
            self.lg = []
    def v(self, ins, tag):
        self(ins); self.vm.append(tag)
    def vwait(self, tag):
        idx = max(i for i, t in enumerate(self.vm) if t == tag)
        n = len(self.vm) - 1 - idx
        self('s_waitcnt vmcnt(%d)' % n)
        self.vm = self.vm[idx + 1:]
    def vwait_n(self, n):
        if len(self.vm) > n:
            self('s_waitcnt vmcnt(%d)' % n)
            self.vm = self.vm[len(self.vm) - n:] if n else []
    def vall(self):
        self('s_waitcnt vmcnt(0)'); self.vm = []
    def d(self, ins, tag):
        if len(self.lg) >= 15:
            self('s_waitcnt lgkmcnt(14)'); self.lg = self.lg[len(self.lg) - 14:]
        self(ins); self.lg.append(tag)
    def dwait(self, tag):
        if tag not in self.lg: return
        idx = max(i for i, t in enumerate(self.lg) if t == tag)
        n = len(self.lg) - 1 - idx
        self('s_waitcnt lgkmcnt(%d)' % n)
        self.lg = self.lg[idx + 1:]
    def dall(self):
        self('s_waitcnt lgkmcnt(0)'); self.lg = []
    def srd(self, d, ptr, nrec):
        self('s_mov_b32 s%d, s%d' % (d, ptr))
        self('s_mov_b32 s%d, s%d' % (d + 1, ptr + 1))
        self('s_mov_b32 s%d, 0x%x' % (d + 2, nrec))
        self('s_mov_b32 s%d, 0x20000' % (d + 3))
    def wave_red(self, op, v, t, rows_only=False):
        for m in ('quad_perm:[1,0,3,2]', 'quad_perm:[2,3,0,1]', 'row_half_mirror', 'row_mirror'):
            self('%s_dpp v%d, v%d, v%d %s row_mask:0xf bank_mask:0xf' % (op, v, v, v, m))
        if rows_only: return
        self.swap_red(op, v, t, 16)
        self.swap_red(op, v, t, 32)
    def swap_red(self, op, v, t, w):
        self('v_mov_b32 v%d, v%d' % (t, v))
        self('v_permlane%d_swap_b32 v%d, v%d' % (w, v, t))
        self('%s v%d, v%d, v%d' % (op, v, v, t))
    def rnd_bf16(self, v):
        self('v_cvt_pk_bf16_f32 v%d, v%d, v%d' % (v, v, v))
        self('v_lshlrev_b32 v%d, 16, v%d' % (v, v))
    def silu(self, v, t):
        self('v_mul_f32 v%d, 0x%x, v%d' % (t, f2u(-math.log2(math.e)), v))
        self('v_exp_f32 v%d, v%d' % (t, t))
        self('v_add_f32 v%d, 1.0, v%d' % (t, t))
        self('v_rcp_f32 v%d, v%d' % (t, t))
        self('v_mul_f32 v%d, v%d, v%d' % (v, v, t))
    def dbg_stamps(self, vb, base, ks):
        self('s_mov_b64 exec, 1')
        self('v_mov_b32 v%d, 0' % vb)
        self('global_load_dword v%d, v%d, s[36:37] sc1' % (vb + 1, vb))
        self('s_waitcnt vmcnt(0)')
        for n, k in enumerate(ks):
            self('v_sub_u32 v%d, s%d, v%d' % (vb + 2, 70 + 2 * k, vb + 1))
            self('v_add_u32 v%d, 1000, v%d' % (vb + 2, vb + 2))
            self('global_atomic_umax v%d, v%d, s[36:37] offset:%d sc1' % (vb, vb + 2, 4 * (base + n)))
            self('s_nop 1')
    def write_stamps(self, vb=250):
        if not self.stamps: return
        if getattr(self, 'dbgmode', None):
            m = self.dbgmode.pop(0)
            if m: self.dbg_stamps(vb, *m)
            return
        self('s_mul_i32 s60, s2, %d' % (NST * 8))
        self('s_add_u32 s60, s38, s60')
        self('s_addc_u32 s61, s39, 0')
        self('s_add_u32 s60, s60, 0x%x' % STAMP_OFF)
        self('s_addc_u32 s61, s61, 0')
        self('s_mov_b64 exec, 1')
        self('v_mov_b32 v%d, 0' % vb)
        for k in range(NST):
            self('v_mov_b32 v%d, s%d' % (vb + 2, 70 + 2 * k))
            self('v_mov_b32 v%d, s%d' % (vb + 3, 71 + 2 * k))
            self('global_store_dwordx2 v%d, v[%d:%d], s[60:61] offset:%d' % (vb, vb + 2, vb + 3, 8 * k))
            self('s_nop 1')

def R(b, n): return 'v[%d:%d]' % (b, b + n - 1)
```

```python
from gb import *
WS_REC = 0x520000
HP = 0x500000

QA, QC, RT = 0x0, 0x8000, 0x10000
SP, FP, ML, QP, OP = 0x20000, 0x60000, 0xA0000, 0xE0000, 0x100000
X, CKV, WQ, WUK, WUV, WO, W1, W2, OUT, DBG, WS = 16, 18, 20, 22, 24, 26, 30, 32, 34, 36, 38

def prologue(a, o):
    a('''
    s_load_dwordx16 s[16:31], s[0:1], 0
    s_load_dwordx8 s[32:39], s[0:1], 64
    s_memrealtime s[4:5]
    s_cmp_ge_u32 s2, 256
    s_cbranch_scc1 L_end
    s_getpc_b64 s[6:7]
    L_pc:
    v_lshrrev_b32 v1, 6, v0
    v_readfirstlane_b32 s3, v1
    v_and_b32 v1, 63, v0
    ''')
    if a.stamps:
        for k in range(NST):
            a('s_mov_b64 s[%d:%d], 0' % (70 + 2 * k, 71 + 2 * k))
    a('''
    s_cmp_ge_u32 s2, 128
    s_cbranch_scc1 L_W
    s_cmp_lg_u32 s3, 6
    s_cbranch_scc1 L_nopf
    v_lshlrev_b32 v2, 7, v1
    global_load_dword v255, v2, s[6:7]
    v_add_u32 v2, 0x2000, v2
    v_min_u32 v3, L_end-L_pc, v2
    global_load_dword v255, v3, s[6:7]
    v_add_u32 v2, 0x2000, v2
    v_min_u32 v3, L_end-L_pc, v2
    global_load_dword v255, v3, s[6:7]
    L_nopf:
    s_lshl_b32 s8, s3, 3
    s_or_b32 s8, s8, s2
    s_sub_u32 s8, s8, 56
    v_mov_b32 v5, 0
    v_mov_b32 v6, 0
    s_waitcnt lgkmcnt(0)
    s_cmp_ge_u32 s2, 8
    s_cbranch_scc1 L_A
    s_cmp_ge_u32 s8, 8
    s_cbranch_scc1 L_A
    s_or_b32 s8, s4, 1
    v_mov_b32 v4, s8
    s_mov_b64 exec, 1
    global_atomic_cmpswap v6, v[4:5], s[36:37] sc1
    s_mov_b64 exec, -1
    s_branch L_A
    ''')

def common2(a):
    if a.stamps:
        a('s_mov_b64 s[70:71], s[4:5]')
    a.srd(44, WS, WS_REC)
    a('''
    s_mov_b32 s52, 0xffff0000
    s_mov_b32 s53, 0
    s_mov_b32 s54, 0
    s_mov_b32 s55, 0x0000ffff
    s_mov_b32 s56, 0
    s_mov_b32 s57, 0xffff0000
    ''')

STG = 0x20000
PB = STG
LB = STG + 0x2000

FL = STG + 0x3000

def role_A(a, o):
    AW = o.get('awin', 8); AW0 = o.get('awin0', 1); AN0 = o.get('an0', 3)
    a.label('L_A')
    a.stamps_hold = False
    a.vm = []; a.lg = []
    common2(a)
    a.srd(40, CKV, 0x2000000)
    a("""
    v_lshrrev_b32 v12, 4, v1          ; r = l/16
    v_and_b32 v13, 15, v1
    v_lshlrev_b32 v14, 2, v12
    v_xor_b32 v14, v14, v13
    v_lshlrev_b32 v14, 4, v14
    v_lshl_add_u32 v3, v12, 10, v14
    v_xor_b32 v0, 32, v3
    s_and_b32 s59, s2, 7
    s_lshl_b32 s59, s59, 4
    s_lshr_b32 s8, s2, 3
    s_add_u32 s59, s59, s8            ; p
    s_and_b32 s8, s59, 63
    s_lshl_b32 s8, s8, 19
    s_lshr_b32 s9, s8, 21
    s_lshr_b32 s10, s2, 2
    s_xor_b32 s9, s9, s10
    s_xor_b32 s9, s9, PARITY
    s_and_b32 s9, s9, 1
    s_lshl_b32 s9, s9, 13
    s_add_u32 s8, s8, s9
    s_cmp_ge_u32 s3, 4
    s_cbranch_scc1 L_As
    s_lshl_b32 s9, s3, 14
    s_add_u32 s8, s8, s9
    s_add_u32 s8, s8, s9
    s_lshl_b32 s10, s3, SEGX8
    s_or_b32 s66, s8, s10
    s_lshl_b32 s10, s3, SEGX10
    s_or_b32 s67, s9, s10
    s_mov_b32 s15, 0
    v_mov_b32 v10, 0
    v_mov_b32 v11, 0
    """)
    def dma_one(i, seg, aa, win=None, track=True):
        if win is not None: a.vwait_n(win - 1)
        a('s_xor_b32 m0, s67, 0x%x' % ((i % 2) * 65536 + aa * 4096 + seg * 1024))
        a('s_xor_b32 s10, s66, 0x%x' % (i * 131072 + (aa >> 1) * MIXU + (aa & 1) * 4096 + seg * 256))
        ins = 'buffer_load_dwordx4 v%d, s[40:43], s10 offen nt lds' % (3 if aa < 2 else 0)
        if track: a.v(ins, 'C%d' % i)
        else: a(ins)
    def chunk_ops(i, segs=(0, 1, 2, 3)): return [(i, seg, aa) for seg in segs for aa in range(4)]
    a.label('L_Apass')
    a.vm = []
    first = chunk_ops(0) + chunk_ops(1)
    if o.get('amaj', 1): first = [(i, seg, aa) for i in range(2) for aa in range(4) for seg in range(4)]
    for n in range(AW0): dma_one(*first[n])
    a("""
    v_mbcnt_lo_u32_b32 v1, -1, 0
    v_mbcnt_hi_u32_b32 v1, -1, v1
    v_lshrrev_b32 v12, 4, v1          ; g
    v_and_b32 v13, 15, v1             ; key
    s_lshl_b32 s10, s3, 10
    s_add_u32 s11, s10, 0x%x
    v_lshl_add_u32 v5, v1, 4, s11     ; p_rd (own tile) = PB + w*1024 + lane*16
    v_lshlrev_b32 v56, 4, v1
    v_add_u32 v56, 0x%x, v56
    v_lshlrev_b32 v15, 4, v12
    v_xor_b32 v56, v56, v15           ; q frag read (even ks)
    v_xor_b32 v57, 64, v56            ; (odd ks)
    v_lshrrev_b32 v14, 1, v12
    v_lshlrev_b32 v14, 9, v14
    v_lshl_add_u32 v14, v13, 4, v14
    v_and_b32 v15, 1, v12
    v_lshl_add_u32 v14, v15, 3, v14
    v_add_u32 v4, s11, v14            ; p_wr
    v_lshrrev_b32 v14, 5, v1          ; g2
    v_lshrrev_b32 v16, 2, v13         ; r (pv) / a (qk)
    v_bfe_u32 v17, v1, 1, 1
    v_lshl_add_u32 v17, v15, 1, v17
    v_lshlrev_b32 v18, 1, v14
    v_xor_b32 v17, v17, v18
    v_lshl_add_u32 v17, v16, 2, v17
    v_lshlrev_b32 v17, 4, v17
    v_lshl_add_u32 v17, v16, 8, v17
    v_lshl_add_u32 v17, v14, 13, v17
    v_and_b32 v18, 1, v1
    v_lshl_add_u32 v17, v18, 3, v17
    s_add_u32 s10, s10, s9
    v_add_u32 v2, s10, v17            ; pv_base (own tile)
    v_and_b32 v17, 3, v13
    v_and_b32 v18, 2, v16
    v_xor_b32 v18, v18, v12
    v_lshl_add_u32 v18, v17, 2, v18
    v_lshlrev_b32 v18, 4, v18
    v_lshl_add_u32 v18, v17, 8, v18
    v_lshl_add_u32 v18, v16, 12, v18
    v_add_u32 v1, s9, v18             ; qk_base
    v_mov_b32 v6, 0
    v_mov_b32 v7, 0
    v_mov_b32 v8, 0xff800000
    v_mov_b32 v9, 0xff800000
    """ % (PB, STG))
    S = 16
    def qk_addr(i):
        for k in range(4):
            a('v_xor_b32 v%d, 0x%x, v1' % (12 + k, (i % 2) * 65536 + (k << 6)))
    def s_init(hh):
        for r in range(4):
            a('v_mov_b32 v%d, v%d' % (S + 4 * hh + r, 10 + hh))
    qk_addr(0); s_init(0); s_init(1)
    NPRE = o.get('npre', 26); NSO = o.get('nsoft', 99); SW = o.get('swin', 2)
    for n in range(AW0, NPRE): dma_one(*first[n], AW0 if n < AN0 else (AW if n < NSO else SW))
    SETS = [[24, 28, 32, 36], [40, 44, 48, 52]]
    def rd(i, seg, ks=(0, 1, 2, 3)):
        st = SETS[(i + seg) % 2]
        if ('C%d' % i) in a.vm: a.vwait('C%d' % i)
        for k in ks:
            a.d('ds_read_b128 %s, v%d offset:%d' % (R(st[k], 4), 12 + k, seg * 1024), 'k%d_%d' % (seg, k))
    def mf(i, seg, k, hh):
        st = SETS[(i + seg) % 2]
        a.dwait('k%d_%d' % (seg, k))
        a('v_mfma_f32_16x16x32_bf16 %s, %s, %s, %s' % (R(S + 4 * hh, 4), R(st[k], 4), R(128 + (hh * 16 + seg * 4 + k) * 4, 4), R(S + 4 * hh, 4)))
    def mm(i, seg):
        for k in range(4):
            for hh in range(2): mf(i, seg, k, hh)
    def pretouch():
        a('''
        v_mbcnt_lo_u32_b32 v60, -1, 0
        v_mbcnt_hi_u32_b32 v60, -1, v60
        v_and_b32 v61, 15, v60
        v_lshlrev_b32 v61, 4, v61
        v_bfe_u32 v62, v60, 4, 1
        v_lshl_add_u32 v61, v62, 17, v61
        v_lshrrev_b32 v62, 5, v60
        v_lshl_add_u32 v61, v62, 19, v61
        s_lshl_b32 s10, s3, 15
        s_lshl_b32 s11, s59, 8
        s_add_u32 s10, s10, s11
        s_add_u32 s10, s10, 0x%x
        ''' % OP)
        for pr in range(8):
            hr = 8 * (pr // 2) + 2 * (pr % 2)
            a('s_add_u32 s11, s10, 0x%x' % (hr * 131072))
            a.v('buffer_store_dwordx4 v[64:67], v61, s[44:47], s11 offen sc1', 'PT')
    if o.get('pt', 0) == 1: pretouch()
    a.stamp(10)
    a('s_barrier')
    a.stamp(11)
    a('v_mov_b32 v59, 0')
    a.v('global_load_dword v58, v59, s[36:37] sc1', 'N')
    for n in range(NPRE, 32): dma_one(*first[n])
    rd(0, 0); rd(0, 1)
    a('''
    v_mbcnt_lo_u32_b32 v0, -1, 0
    v_and_b32 v0, 3, v0
    v_lshlrev_b32 v0, 2, v0
    v_add_u32 v0, 0x%x, v0            ; flag read addr
    s_lshl_b32 s10, s3, 2
    s_add_u32 s10, s10, 0x%x
    v_mov_b32 v3, s10                 ; own flag addr
    ''' % (FL, FL))
    a.dall()
    a.slow = []
    def hcheck(need):
        lab = a.newlabel('L_Ahc')
        a('s_cmp_ge_u32 s62, %d' % need)
        a('s_cbranch_scc0 %s' % lab)
        a.label(lab + 'b')
        a.slow.append('''
        %s:
        s_mov_b32 s11, 0
        %sl:
        ds_read_b32 v57, v3 offset:32
        s_add_u32 s11, s11, 1
        s_waitcnt lgkmcnt(0)
        v_readfirstlane_b32 s62, v57
        s_sub_u32 s62, s62, s57
        s_cmp_gt_u32 s62, 15
        s_cselect_b32 s62, 0, s62
        s_cmp_gt_u32 s11, LSPIN
        s_cbranch_scc1 %sb
        s_cmp_lt_u32 s62, %d
        s_cbranch_scc1 %sl
        s_branch %sb
        ''' % (lab, lab, lab, need, lab, lab))
    def pcheck(reg):
        lab = a.newlabel('L_Apc')
        a('v_subrev_u32 v%d, s63, v%d' % (reg, reg))
        a('v_cmp_lt_u32 vcc, 7, v%d' % reg)
        a('s_cbranch_vccnz %s' % lab)
        a.label(lab + 'b')
        a.slow.append('''
        %s:
        s_mov_b32 s11, 0
        %sl:
        ds_read_b32 v%d, v0
        s_add_u32 s11, s11, 1
        s_waitcnt lgkmcnt(0)
        v_subrev_u32 v%d, s63, v%d
        v_cmp_lt_u32 vcc, 7, v%d
        s_cmp_gt_u32 s11, LSPIN
        s_cbranch_scc1 %sb
        s_cbranch_vccnz %sl
        s_branch %sb
        ''' % (lab, lab, reg, reg, reg, reg, lab, lab, lab))
    DA = o.get('diaga', -1)
    def ds(i, k):
        if DA == i:
            sv = a.lg[:]
            a('s_memrealtime s[%d:%d]' % (70 + 2 * k, 71 + 2 * k))
            a('s_waitcnt lgkmcnt(0)'); a.lg = []
    a.stamp(1)
    a('s_barrier')
    if o.get('cprio', 0): a('s_setprio %d' % o['cprio'])
    a.stamp(2)
    if o.get('clk', 0): a('s_memtime s[90:91]\ns_waitcnt lgkmcnt(0)')
    if DA >= 0: a.stamps_mute = True
    for i in range(4):
        slot = (i % 2) * 65536
        A_, B_ = SETS[i % 2], SETS[(i + 1) % 2]
        ring = A_ + B_[:2]
        PF = [B_[2], B_[3], 56, 60]
        seq = [(t, ct) for t in range(4) for ct in range(4)]
        def rdv(n):
            t, ct = seq[n]
            b = ring[n % 6]
            a('v_xor_b32 v%d, 0x%x, v2' % (12 + n % 4, slot + (t << 14) + (ct << 6)))
            for rdi in range(2):
                a.d('ds_read_b64_tr_b16 %s, v%d offset:%d' % (R(b + 2 * rdi, 2), 12 + n % 4, rdi * 4096), 'v%d' % n)
        ds(i, 3)
        def step(seg, k, nxt):
            mf(i, seg, k, 0); mf(i, seg, k, 1)
            if nxt is not None: rd(i, nxt[0], (nxt[1],))
        order = [(sg, k) for sg in range(4) for k in range(4)]
        if i == 0:
            a('s_cmp_lg_u32 s15, 0')
            a('s_cbranch_scc1 L_Anoq')
            def rq(ks):
                for hh in range(2):
                    f = hh * 16 + ks
                    a.d('ds_read_b128 %s, v%d offset:%d' % (R(128 + 4 * f, 4), 56 + (ks & 1), f * 1024), 'q%d' % ks)
            QD = 4
            for ks in range(QD): rq(ks)
            for ks in range(12):
                a.dwait('q%d' % ks)
                step(ks // 4, ks % 4, order[ks + 7] if 1 <= ks <= 8 else None)
                if ks + QD < 16: rq(ks + QD)
            a.dall()
            a('s_branch L_Aq2')
            a.label('L_Anoq')
            a('s_waitcnt vmcnt(0)')
            a('s_add_u32 s10, s58, 24')
            a('v_mov_b32 v56, s10')
            a('ds_write_b32 v3, v56 offset:32')
            mm(0, 0); rd(0, 2); mm(0, 1); rd(0, 3); mm(0, 2)
            a.dall()
            a.label('L_Aq2')
            if 'N' in a.vm: a.vwait('N')
            a('''
            v_readfirstlane_b32 s58, v58
            s_lshl_b32 s10, s15, 4
            s_add_u32 s57, s58, s10
            ''')
        elif i == 1:
            for ks in range(12):
                step(ks // 4, ks % 4, order[ks + 4])
        elif i == 2:
            for ks in range(12):
                if ks % 4 == 0: hcheck(ks // 4 + 2)
                step(ks // 4, ks % 4, order[ks + 4])
        elif o.get('amaj', 1):
            for ks in range(4): step(0, ks, order[ks + 4])
            mm(i, 1)
            hcheck(8)
            a.stamp(3)
            rd(i, 2)
            for ks in range(8, 12): step(2, ks % 4, order[ks + 4])
        else:
            for ks in range(8):
                if ks % 4 == 0: hcheck(4 + ks // 4 + 2)
                step(ks // 4, ks % 4, order[ks + 4])
            mm(i, 2)
            hcheck(8)
            a.stamp(3)
            rd(i, 3)
        ds(i, 4)
        early = (i == 3 and not o.get('amaj', 1))
        if early:
            for n in range(4): rdv(n)
        for k in range(4):
            mf(i, 3, k, 0)
            if not early: rdv(k)
        for k in range(4): mf(i, 3, k, 1)
        if i == 3:
            a("""
            v_mbcnt_lo_u32_b32 v1, -1, 0
            v_mbcnt_hi_u32_b32 v1, -1, v1
            s_lshl_b32 s10, s3, 4
            s_add_u32 s10, s10, 0x%x
            """ % LB)
        a('s_add_u32 s63, s57, %d' % i)
        E = 56
        pb = (i % 2) * 4096
        for hh in range(2):
            for r in range(4):
                a('v_exp_f32 v%d, v%d' % (E + 4 * hh + r, S + 4 * hh + r))
            for r in range(2):
                a('v_cvt_pk_bf16_f32 v%d, v%d, v%d' % (12 + 2 * hh + r, E + 4 * hh + 2 * r, E + 4 * hh + 2 * r + 1))
            if hh == 0: ds(i, 5)
            if i == 0 and hh == 0: a('s_barrier')
            if hh == 0: ds(i, 6)
            a.d('ds_write_b64 v4, %s offset:%d' % (R(12 + 2 * hh, 2), pb + 256 * hh), 'w')
        a('v_mov_b32 v12, s63')
        a.d('ds_write_b32 v3, v12', 'w')
        a.d('ds_read_b128 %s, v5 offset:%d' % (R(PF[0], 4), pb), 'p0')
        for hh in range(2):
            a('v_add_f32 v%d, v%d, v%d' % (E + 4 * hh, E + 4 * hh, E + 4 * hh + 1))
            a('v_add_f32 v%d, v%d, v%d' % (E + 4 * hh + 2, E + 4 * hh + 2, E + 4 * hh + 3))
            a('v_max3_f32 v%d, v%d, v%d, v%d' % (8 + hh, 8 + hh, S + 4 * hh, S + 4 * hh + 1))
            a('v_add_f32 v%d, v%d, v%d' % (6 + hh, 6 + hh, E + 4 * hh))
            a('v_max3_f32 v%d, v%d, v%d, v%d' % (8 + hh, 8 + hh, S + 4 * hh + 2, S + 4 * hh + 3))
            a('v_add_f32 v%d, v%d, v%d' % (6 + hh, 6 + hh, E + 4 * hh + 2))
        a.d('ds_read_b32 v13, v0', 'pf')
        ds(i, 7)
        fill = {}
        if i < 3:
            fill = {1: lambda: s_init(0), 2: lambda: s_init(1)}
        if i == 3:
            def fw():
                a("""
                v_and_b32 v16, 15, v1
                v_lshrrev_b32 v17, 4, v1
                v_lshlrev_b32 v16, 6, v16
                v_lshl_add_u32 v16, v17, 2, v16
                v_add_u32 v16, s10, v16
                s_add_u32 s63, s57, 4
                v_mov_b32 v17, s63
                """)
                a.d('ds_write2st64_b32 v16, v6, v7 offset0:0 offset1:4', 'w')
                a.d('ds_write2st64_b32 v16, v8, v9 offset0:8 offset1:12', 'w')
                a.d('ds_write_b32 v3, v17', 'w')
            def f0():
                a("""
                v_bfe_u32 v4, v1, 4, 1
                v_bfe_u32 v6, v1, 3, 1
                v_lshl_add_u32 v4, v6, 1, v4
                v_lshrrev_b32 v6, 5, v1
                v_lshl_add_u32 v4, v6, 2, v4
                v_bfe_u32 v7, v1, 2, 1
                """)
            def f0b():
                a("""
                v_lshl_add_u32 v4, v7, 3, v4
                v_and_b32 v7, 1, v1
                v_lshl_add_u32 v4, v7, 4, v4
                v_and_b32 v7, 2, v1
                v_lshlrev_b32 v7, 4, v7
                v_lshl_add_u32 v7, v4, 6, v7
                """)
                a('v_add_u32 v7, 0x%x, v7' % LB)
                a.d('ds_read_b32 v16, v0', 'lf')
            def f0c():
                a.dwait('lf')
                pcheck(16)
                a.d('ds_read_b128 v[16:19], v7 offset:2048', 'm')
                a.d('ds_read_b128 v[20:23], v7 offset:2064', 'm')
            def f1():
                a.dwait('m')
                a("""
                v_max3_f32 v8, v16, v17, v18
                v_max3_f32 v9, v19, v20, v21
                v_max3_f32 v8, v8, v22, v23
                v_max_f32 v8, v8, v9
                """)
                a.d('ds_read_b128 v[16:19], v7', 'l')
                a.d('ds_read_b128 v[20:23], v7 offset:16', 'l')
            def f2():
                a("""
                v_max_f32_dpp v8, v8, v8 quad_perm:[2,3,0,1] row_mask:0xf bank_mask:0xf
                v_mov_b32 v9, 0x42000000
                v_cmp_gt_f32 vcc, abs(v8), v9
                """)
            def f3():
                a.dwait('l')
                a("""
                v_add_f32 v16, v16, v17
                v_add_f32 v18, v18, v19
                v_add_f32 v20, v20, v21
                v_add_f32 v22, v22, v23
                s_or_b32 s14, vcc_lo, vcc_hi
                s_cmp_lg_u32 s15, 0
                s_cselect_b32 s14, 0, s14
                """)
            def f4():
                a("""
                v_add_f32 v16, v16, v18
                v_add_f32 v20, v20, v22
                v_add_f32 v21, v16, v20
                v_mov_b32 v20, 0
                v_mov_b32 v23, s58
                v_add_f32_dpp v21, v21, v21 quad_perm:[2,3,0,1] row_mask:0xf bank_mask:0xf
                """)
            def f6():
                a("""
                v_mov_b32 v16, v1
                v_and_b32 v17, 15, v1
                v_lshlrev_b32 v17, 4, v17
                v_bfe_u32 v18, v1, 4, 1
                v_lshl_add_u32 v17, v18, 17, v17
                """)
            def f7():
                a("""
                v_lshl_add_u32 v17, v6, 19, v17
                v_lshlrev_b32 v18, 4, v4          ; MLC voffset = h*16
                s_lshl_b32 s10, s3, 15
                s_lshl_b32 s11, s59, 8
                s_add_u32 s10, s10, s11
                s_add_u32 s10, s10, 0x%x
                s_lshl_b32 s12, s59, 2
                s_add_u32 s12, s12, s3
                s_lshl_b32 s12, s12, 9
                s_add_u32 s12, s12, 0x%x
                s_mov_b32 s60, 0xaaaaaaaa
                s_mov_b32 s61, 0xaaaaaaaa
                s_mov_b32 s62, 0x33333333
                s_mov_b32 s63, 0x33333333
                """ % (OP, ML))
            fill = {1: fw, 2: f0, 3: f0b, 5: f0c, 7: f1, 8: f2, 9: f3, 10: f4, 11: f6, 12: f7}
            def hint():
                a("""
                s_lshl_b32 s12, s59, 2
                s_add_u32 s12, s12, s3
                s_lshl_b32 s12, s12, 9
                s_add_u32 s12, s12, 0x%x
                s_add_u32 s11, s58, 1
                v_mov_b32 v128, s11
                v_mov_b32 v129, s11
                v_lshlrev_b32 v130, 3, v1
                buffer_store_dwordx2 v[128:129], v130, s[44:47], s12 offen sc1
                """ % ML)
            HI = o.get('hint', -1)
            if HI >= 0:
                old = fill.get(HI)
                fill[HI] = (lambda: (old(), hint())) if old else hint
        def rdp(t):
            a('v_xor_b32 v%d, 0x%x, v5' % (PF[t], t << 10))
            a.d('ds_read_b128 %s, v%d offset:%d' % (R(PF[t], 4), PF[t], pb), 'p%d' % t)
        for n in range(16):
            t, ct = seq[n]
            a.dwait('v%d' % n); a.dwait('p%d' % t)
            cin = R(64 + 16 * ct, 16) if not (i == 0 and t == 0) else '0'
            a('v_mfma_f32_32x32x16_bf16 %s, %s, %s, %s' % (R(64 + 16 * ct, 16), R(PF[t], 4), R(ring[n % 6], 4), cin))
            if n == 0:
                a.dwait('pf')
                pcheck(13)
                ds(i, 8)
                rdp(1)
            if n + 4 < 16: rdv(n + 4)
            if n == 3: rdp(2)
            if n == 7: rdp(3)
            if n in fill: fill[n]()
            if i < 3 and n == 12:
                qk_addr(i + 1)
                if i >= 1: a.d('ds_read_b32 v57, v3 offset:32', 'hf')
            if i < 3 and n == 13:
                a.dall()
                ds(i, 9)
                if i < 2:
                    a('v_mov_b32 v56, s63')
                    a.d('ds_write_b32 v3, v56 offset:16', 'w')
                    a.stamp(8 + i)
                    a('s_cmp_lg_u32 s15, 0')
                    a('s_cbranch_scc1 L_Arf%d' % i)
                    a.label('L_Arb%d' % i)
                if i >= 1:
                    a('''
                    v_readfirstlane_b32 s62, v57
                    s_sub_u32 s62, s62, s57
                    s_cmp_gt_u32 s62, 15
                    s_cselect_b32 s62, 0, s62
                    ''')
            if i == 0 and n == 13: rd(i + 1, 0, (0, 1))
            if i == 0 and n == 14: rd(i + 1, 0, (2, 3))
            if i in (1, 2) and n == 14:
                hcheck(4 * (i - 1) + 1)
                rd(i + 1, 0)
        ds(i, 11)
    def voffs(x, y):
        a('''
        v_mbcnt_lo_u32_b32 v%d, -1, 0
        v_mbcnt_hi_u32_b32 v%d, -1, v%d
        v_lshrrev_b32 v%d, 4, v%d
        v_and_b32 v%d, 15, v%d
        v_lshlrev_b32 v%d, 4, v%d
        v_mul_u32_u24 v%d, 0x440, v%d
        v_xor_b32 v%d, v%d, v%d
        v_xor_b32 v%d, 32, v%d
        ''' % (x, x, x, y, x, x, x, x, x, y, y, x, x, y, y, x))
    a.voffs = voffs
    def refills():
        for i in range(2):
            a.label('L_Arf%d' % i)
            a('s_waitcnt lgkmcnt(0)')
            a('s_barrier')
            voffs(58, 59)
            for (c, seg, aa) in chunk_ops(i + 2):
                a('s_add_u32 m0, s9, 0x%x' % ((c % 2) * 65536 + aa * 4096 + seg * 1024))
                a('s_xor_b32 s10, s8, 0x%x' % (c * 131072 + (aa >> 1) * MIXU + (aa & 1) * 4096 + seg * 256))
                a('buffer_load_dwordx4 v%d, s[40:43], s10 offen nt lds' % (58 if aa < 2 else 59))
            a('s_waitcnt vmcnt(0)')
            a('s_branch L_Arb%d' % i)
        for t in a.slow: a(t)
    a.refills = refills
    a.stamp(4)
    if o.get('clk', 0): a('s_memtime s[92:93]\ns_waitcnt lgkmcnt(0)')
    a("""
    s_or_b32 s11, s14, s15
    s_cbranch_scc1 L_Aslow
    s_nop 8
    L_Aok:
    """)
    def pack(pr):
        r = 2 * pr
        b = 24 + pr * 4
        a('v_cvt_pk_bf16_f32 v%d, v%d, v%d' % (b, 64 + r, 80 + r))
        a('v_cvt_pk_bf16_f32 v%d, v%d, v%d' % (b + 2, 64 + r + 1, 80 + r + 1))
        a('v_cvt_pk_bf16_f32 v%d, v%d, v%d' % (b + 1, 96 + r, 112 + r))
        a('v_cvt_pk_bf16_f32 v%d, v%d, v%d' % (b + 3, 96 + r + 1, 112 + r + 1))
    def swp(pr):
        b = 24 + pr * 4
        a('v_permlane16_swap_b32 v%d, v%d' % (b, b + 2))
        a('v_permlane16_swap_b32 v%d, v%d' % (b + 1, b + 3))
    def st(pr):
        hr = 8 * (pr // 2) + 2 * (pr % 2)
        a('s_add_u32 s11, s10, 0x%x' % (hr * 131072))
        a('buffer_store_dwordx4 %s, v17, s[44:47], s11 offen %s' % (R(24 + pr * 4, 4), o.get('oppol', 'sc1')))
    def cs(pr):
        b = 24 + pr * 4
        a('v_add3_u32 v%d, v%d, v%d, v%d' % (56 + pr, b, b + 1, b + 2))
        a('v_add_u32 v%d, v%d, v%d' % (56 + pr, 56 + pr, b + 3))
    def stepA(i):
        a('v_add_u32_dpp v%d, v%d, v%d row_ror:8 row_mask:0xf bank_mask:0x3' % (12 + i, 56 + 2 * i, 56 + 2 * i))
        a('v_add_u32_dpp v%d, v%d, v%d row_ror:8 row_mask:0xf bank_mask:0xc' % (12 + i, 57 + 2 * i, 57 + 2 * i))
    NE = o.get('nearly', 2)
    pack(0)
    for pr in range(8):
        if pr < 7: pack(pr + 1)
        swp(pr)
        if pr < NE: st(pr)
        cs(pr)
        if pr >= 2 and pr % 2 == 0: stepA(pr // 2 - 1)
    a('v_add_u32_dpp v56, v12, v12 row_half_mirror row_mask:0xf bank_mask:0x5')
    a('v_add_u32_dpp v56, v13, v13 row_half_mirror row_mask:0xf bank_mask:0xa')
    stepA(3)
    a('v_add_u32_dpp v56, v56, v56 quad_perm:[1,0,3,2] row_mask:0xf bank_mask:0xf')
    a('v_add_u32_dpp v57, v14, v14 row_half_mirror row_mask:0xf bank_mask:0x5')
    a('v_add_u32_dpp v57, v15, v15 row_half_mirror row_mask:0xf bank_mask:0xa')
    a('v_add_u32_dpp v57, v57, v57 quad_perm:[1,0,3,2] row_mask:0xf bank_mask:0xf')
    a('v_cndmask_b32 v56, v56, v57, s[60:61]')
    a('v_add_u32_dpp v56, v56, v56 quad_perm:[2,3,0,1] row_mask:0xf bank_mask:0xf')
    a("""
    v_sub_u32 v22, v23, v56
    s_mov_b64 exec, s[62:63]
    buffer_store_dwordx4 v[20:23], v18, s[44:47], s12 offen sc1
    s_mov_b64 exec, -1
    """)
    a.stamp(10)
    for pr in range(NE, 8): st(pr)
    a('''
    s_cmp_lg_u32 s3, 0
    s_cbranch_scc1 L_end
    ''')
    a.stamp(5)
    if a.stamps:
        a('s_waitcnt vmcnt(0)')
        a.stamp(11)
    a.srd(48, WS, FP + 86 * 2048)
    a.srd(40, X, 1024)
    a('''
    v_mov_b32 v40, v16
    s_and_b32 s10, s2, 7
    s_lshl_b32 s10, s10, 6
    s_lshr_b32 s11, s2, 3
    s_lshl_b32 s11, s11, 2
    s_add_u32 s10, s10, s11            ; m0
    s_lshl_b32 s11, s10, 2
    s_lshl_b32 s12, s10, 1
    v_lshlrev_b32 v41, 11, v40
    v_and_b32 v42, 3, v40
    v_lshlrev_b32 v43, 1, v42
    buffer_load_ushort v60, v43, s[40:43], s12 offen
    v_and_b32 v44, 1, v40
    v_cmp_eq_u32 s[60:61], 1, v44
    v_and_b32 v44, 2, v40
    v_cmp_eq_u32 s[62:63], 2, v44
    ''')
    def gather4(base, srd, lab, dst):
        a('s_add_u32 s13, s11, 0x%x' % base)
        a('s_add_u32 s14, s11, 0x%x' % (base + 64 * 2048))
        a('s_mov_b32 s8, 0')
        a('s_mov_b64 s[64:65], -1')
        a('s_mov_b64 s[66:67], -1')
        a.label(lab)
        a('s_sleep FIN_SLEEP')
        a('s_mov_b64 exec, s[64:65]')
        a('s_cbranch_execz %s_a' % lab)
        a('buffer_load_dwordx4 v[48:51], v41, s[%d:%d], s13 offen sc1' % (srd, srd + 3))
        a.label(lab + '_a')
        a('s_mov_b64 exec, s[66:67]')
        a('s_cbranch_execz %s_b' % lab)
        a('buffer_load_dwordx4 v[52:55], v41, s[%d:%d], s14 offen sc1' % (srd, srd + 3))
        a.label(lab + '_b')
        a('''
        s_mov_b64 exec, -1
        s_add_u32 s8, s8, 1
        s_waitcnt vmcnt(0)
        v_max3_u32 v56, v48, v49, v50
        v_max3_u32 v57, v52, v53, v54
        v_max_u32 v56, v56, v51
        v_max_u32 v57, v57, v55
        v_cmp_eq_u32 s[64:65], -1, v56
        v_cmp_eq_u32 s[66:67], -1, v57
        s_cmp_gt_u32 s8, SPIN_N
        s_cbranch_scc1 %s_x
        s_or_b64 s[68:69], s[64:65], s[66:67]
        s_cbranch_scc1 %s
        %s_x:
        v_add_f32 v48, v48, v52
        v_add_f32 v49, v49, v53
        v_add_f32 v50, v50, v54
        v_add_f32 v51, v51, v55
        v_cndmask_b32 v52, v48, v49, s[60:61]
        v_cndmask_b32 v53, v49, v48, s[60:61]
        v_cndmask_b32 v54, v50, v51, s[60:61]
        v_cndmask_b32 v55, v51, v50, s[60:61]
        v_add_f32_dpp v52, v53, v52 quad_perm:[1,0,3,2] row_mask:0xf bank_mask:0xf
        v_add_f32_dpp v54, v55, v54 quad_perm:[1,0,3,2] row_mask:0xf bank_mask:0xf
        v_cndmask_b32 v%d, v52, v54, s[62:63]
        v_cndmask_b32 v53, v54, v52, s[62:63]
        v_add_f32_dpp v%d, v53, v%d quad_perm:[2,3,0,1] row_mask:0xf bank_mask:0xf
        v_add_f32_dpp v%d, v%d, v%d row_ror:4 row_mask:0xf bank_mask:0xf
        v_add_f32_dpp v%d, v%d, v%d row_ror:8 row_mask:0xf bank_mask:0xf
        ''' % ((lab, lab, lab) + (dst,) * 9))
        a.swap_red('v_add_f32', dst, 53, 16)
        a.swap_red('v_add_f32', dst, 53, 32)
    gather4(FP, 48, 'L_gf', 61)
    a.rnd_bf16(61)
    a.silu(61, 53)
    a.rnd_bf16(61)
    a('v_lshlrev_b32 v60, 16, v60')
    a.srd(40, OUT, 1024)
    a.stamp(6)
    gather4(SP, 44, 'L_gs', 62)
    a.rnd_bf16(62)
    a('v_mul_f32 v62, v62, v61')
    a.rnd_bf16(62)
    a('''
    v_add_f32 v62, v62, v60
    v_cvt_pk_bf16_f32 v62, v62, v62
    s_mov_b64 exec, 15
    buffer_store_short v62, v43, s[40:43], s12 offen
    ''')
    a.stamp(7)
    a.write_stamps()
    a('s_endpgm')

def role_As(a, o):
    a.stamps_mute = False
    a.label('L_As')
    ops = [(c, seg, aa) for c in range(2) for seg in range(4) for aa in range(4)]
    AM = o.get('amaj', 1)
    if AM: ops = [(0, seg, aa) for aa in range(4) for seg in range(4)] + [(1, sp * 2 + sg, aa) for sp in range(2) for aa in range(4) for sg in range(2)]
    def prog(n):
        if not AM: return n // 4 + 1 if n % 4 == 3 else None
        return {15: 4, 23: 6, 31: 8}.get(n)
    def loads(lo, hi):
        for n in range(lo, hi):
            c, seg, aa = ops[n]
            a('s_xor_b32 s10, s64, 0x%x' % (c * 131072 + (aa >> 1) * MIXU + (aa & 1) * 4096 + seg * 256))
            a.v('buffer_load_dwordx4 %s, v%d, s[40:43], s10 offen nt' % (R(128 + 4 * n, 4), 3 if aa < 2 else 0), 'L%d' % n)
    def writes(lo, hi):
        for n in range(lo, hi):
            c, seg, aa = ops[n]
            if ('L%d' % n) in a.vm: a.vwait('L%d' % n)
            a('ds_write_b128 v%d, %s offset:%d' % (100 + c, R(128 + 4 * n, 4), aa * 4096 + seg * 1024))
        a('s_waitcnt lgkmcnt(0)')
    c = [int(x, 16) for x in str(o.get('hsch', 'x48'))[1:]]
    a("""
    s_setprio 3
    s_sub_u32 s3, s3, 4
    s_lshl_b32 s9, s3, 14
    s_add_u32 s64, s8, s9
    s_add_u32 s64, s64, s9
    s_add_u32 s64, s64, 0x40000
    v_lshl_add_u32 v100, v1, 4, s9
    v_add_u32 v101, 0x10000, v100
    v_mov_b32 v2, 0
    s_mov_b32 s8, 0
    L_Agn:
    s_sleep 8
    global_load_dword v5, v2, s[36:37] sc1
    s_add_u32 s8, s8, 1
    s_waitcnt vmcnt(0)
    v_readfirstlane_b32 s4, v5
    s_cmp_gt_u32 s8, SPIN_N
    s_cbranch_scc1 L_Agn_x
    s_cmp_eq_u32 s4, 0
    s_cbranch_scc1 L_Agn
    L_Agn_x:
    v_lshlrev_b32 v2, QCSH, v1        ; tag voffset
    v_lshlrev_b32 v98, 4, v1          ; data voffset
    s_lshl_b32 s9, s3, 13             ; QA + u*8192
    s_add_u32 s65, s9, 4096
    s_lshl_b32 s11, s3, QCSH+5
    s_add_u32 s11, s11, 0x%x          ; QC + u*32 entries
    s_lshr_b32 s12, s3, 1
    s_lshl_b32 s12, s12, 14
    s_and_b32 s13, s3, 1
    s_lshl_b32 s13, s13, 7
    s_add_u32 s12, s12, s13
    s_add_u32 s12, s12, 0x%x
    v_and_b32 v6, 7, v1
    v_lshlrev_b32 v6, 4, v6
    v_lshl_add_u32 v6, v1, 8, v6
    v_add_u32 v6, s12, v6             ; LDS write base
    s_lshl_b32 s4, s4, 5              ; expected sum = 32 * nonce
    v_mov_b32 v72, 0
    v_mov_b32 v73, 0
    s_mov_b32 s12, REP_MASK
    s_mov_b32 s13, 0
    NODEP s_branch L_Agt_x
    L_Agt:
    s_sleep QT_SLEEP
    s_mov_b64 exec, s[12:13]
    buffer_load_dwordx2 v[72:73], v2, s[44:47], s11 offen sc1
    s_add_u32 s8, s8, 1
    s_waitcnt vmcnt(0)
    v_cmp_ne_u32 s[12:13], v73, v5
    s_cmp_gt_u32 s8, SPIN_N
    s_cbranch_scc1 L_Agt_x
    s_cmp_lg_u32 s12, 0
    s_cbranch_scc1 L_Agt
    L_Agt_x:
    s_mov_b32 exec_lo, -1
    buffer_load_dwordx2 v[72:73], v2, s[44:47], s11 offen sc1
    s_mov_b64 exec, -1
    """ % (QC, STG))
    def dload(i):
        a('buffer_load_dwordx4 %s, v98, s[44:47], s%d offen offset:%d sc1' % (R(8 + 4 * i, 4), 9 if i < 4 else 65, (i % 4) * 1024))
    def dproc(i):
        a('ds_write_b128 v%d, %s' % (40 + i, R(8 + 4 * i, 4)))
        a('v_add3_u32 v%d, v%d, v%d, v%d' % (80 + i, 8 + 4 * i, 9 + 4 * i, 10 + 4 * i))
        a('v_add_u32 v%d, v%d, v%d' % (80 + i, 80 + i, 11 + 4 * i))
    for i in range(8): dload(i)
    a.stamp(1)
    if a.stamps: a('s_mov_b32 s8, 1')
    if o.get('rlate', 1):
        a("""
        s_waitcnt vmcnt(8)
        L_Agr:
        v_cmp_ne_u32 s[12:13], v73, v5
        s_cmp_eq_u32 s12, 0
        s_cbranch_scc1 L_Agr_x
        s_add_u32 s8, s8, 1
        s_cmp_gt_u32 s8, SPIN_N
        s_cbranch_scc1 L_Agr_x
        s_mov_b32 s13, 0
        s_quadmask_b32 s67, s12
        s_mov_b64 exec, s[12:13]
        buffer_load_dwordx2 v[72:73], v2, s[44:47], s11 offen sc1
        s_mov_b64 exec, -1
        """)
        for i in range(8):
            a('s_bitcmp1_b32 s67, %d' % i)
            a('s_cbranch_scc0 L_Agk%d' % i)
            dload(i)
            a.label('L_Agk%d' % i)
        a("""
        s_waitcnt vmcnt(0)
        s_branch L_Agr
        L_Agr_x:
        """)
    a('s_barrier')
    a.vm = []
    loads(0, c[0]); p = c[0]
    for i in range(8): a('v_xor_b32 v%d, %d, v6' % (40 + i, i << 4))
    for i in range(8):
        a('s_waitcnt vmcnt(%d)' % (7 - i + c[0]))
        dproc(i)
    a("""
    NODEP s_branch L_Agp_x
    v_cmp_ne_u32 s[12:13], v73, v5
    s_cmp_eq_u32 s12, 0
    s_cbranch_scc1 L_Agc
    L_Agp:
    s_mov_b32 s13, 0
    s_quadmask_b32 s67, s12
    s_mov_b64 exec, s[12:13]
    buffer_load_dwordx2 v[72:73], v2, s[44:47], s11 offen sc1
    s_mov_b64 exec, -1
    """)
    for i in range(8):
        a('s_bitcmp1_b32 s67, %d' % i)
        a('s_cbranch_scc0 L_Agl%d' % i)
        dload(i)
        a.label('L_Agl%d' % i)
    a("""
    s_add_u32 s8, s8, 1
    s_waitcnt vmcnt(0)
    v_cmp_ne_u32 s[12:13], v73, v5
    """)
    for i in range(8):
        a('s_bitcmp1_b32 s67, %d' % i)
        a('s_cbranch_scc0 L_Agw%d' % i)
        dproc(i)
        a.label('L_Agw%d' % i)
    a("""
    s_cmp_gt_u32 s8, SPIN_N
    s_cbranch_scc1 L_Agp_x
    s_cmp_lg_u32 s12, 0
    s_cbranch_scc1 L_Agp
    L_Agc:
    v_add3_u32 v4, v72, v80, v81
    v_add3_u32 v74, v82, v83, v84
    v_add3_u32 v4, v4, v85, v86
    v_add3_u32 v4, v4, v74, v87
    """)
    a.wave_red('v_add_u32', 4, 74)
    a("""
    v_readfirstlane_b32 s10, v4
    s_mov_b32 s12, -1
    s_cmp_lg_u32 s10, s4
    s_cbranch_scc1 L_Agp
    L_Agp_x:
    s_waitcnt lgkmcnt(0)
    """)
    a.stamp(3)
    a('s_barrier')
    a('s_setprio 0')
    loads(p, p + c[1]); p += c[1]
    a('''
    v_and_b32 v102, 3, v1
    v_lshlrev_b32 v102, 2, v102
    v_add_u32 v102, 0x%x, v102        ; YF read addr
    s_lshl_b32 s10, s3, 2
    s_add_u32 s10, s10, 0x%x
    v_mov_b32 v103, s10               ; own HF addr
    s_barrier                         ; B1
    ''' % (FL + 16, FL + 32))
    K = o.get('hk', 20)
    loads(p, K); p = max(p, K)
    def yspin(i):
        a('''
        s_mov_b32 s11, 0
        L_Ay%d:
        ds_read_b32 v99, v102
        s_add_u32 s11, s11, 1
        s_waitcnt lgkmcnt(0)
        v_sub_u32 v99, v99, v5
        v_subrev_u32 v99, %d, v99
        v_cmp_lt_u32 vcc, 7, v99
        s_cmp_gt_u32 s11, LSPIN
        s_cbranch_scc1 L_Ay%dx
        s_cbranch_vccz L_Ay%dx
        s_sleep YSLEEP
        s_branch L_Ay%d
        L_Ay%dx:
        ''' % (i, i, i, i, i, i))
    for n in range(32):
        if n % 16 == 0:
            if n == 16: loads(p, 32); p = 32
            yspin(n // 16)
        cc, seg, aa = ops[n]
        if prog(n): a('v_add_u32 v99, %d, v5' % prog(n))
        if ('L%d' % n) in a.vm: a.vwait('L%d' % n)
        a('ds_write_b128 v%d, %s offset:%d' % (100 + cc, R(128 + 4 * n, 4), aa * 4096 + seg * 1024))
        if prog(n): a('ds_write_b32 v103, v99')
        if p < 32: loads(p, p + 1); p += 1
    if a.stamps:
        a('s_mul_i32 s78, s8, 100')
        a('s_add_u32 s78, s78, s70')
        a('s_addc_u32 s79, s71, 0')
        a('s_lshl_b32 s2, s2, 2')
        a('s_add_u32 s2, s2, s3')
        a('s_add_u32 s2, s2, 256')
        a('s_sleep 127')
        a.write_stamps(vb=104)
    a('s_endpgm')

SM = 0x20000
XN, QB, CB, NB, LW, QO, ROWS = SM, SM + 0x400, SM + 0x500, SM + 0x600, SM + 0x640, SM + 0x700, SM + 0x800
UKL, W1L, W2L, WOL = 0x8000, 0x8000, 0xC000, 0x10000

def layernorm(a):
    for i in range(4):
        a('v_lshlrev_b32 v%d, 16, v%d' % (72 + 2 * i, 68 + i))
        a('v_and_b32 v%d, 0xffff0000, v%d' % (73 + 2 * i, 68 + i))
    a('''
    v_add_f32 v80, v72, v73
    v_add_f32 v81, v74, v75
    v_add_f32 v82, v76, v77
    v_add_f32 v83, v78, v79
    v_add_f32 v80, v80, v81
    v_add_f32 v82, v82, v83
    v_add_f32 v80, v80, v82
    ''')
    a.wave_red('v_add_f32', 80, 81)
    a('v_mul_f32 v80, 0x%x, v80' % f2u(1 / 512))
    for i in range(8):
        a('v_sub_f32 v%d, v%d, v80' % (84 + i, 72 + i))
    a('v_mul_f32 v82, v84, v84')
    a('v_mul_f32 v83, v85, v85')
    for i in range(2, 8):
        a('v_fmac_f32 v%d, v%d, v%d' % (82 + i % 2, 84 + i, 84 + i))
    a('v_add_f32 v82, v82, v83')
    a.rnd_bf16(80)
    a.wave_red('v_add_f32', 82, 81)
    for i in range(8):
        a('v_sub_f32 v%d, v%d, v80' % (72 + i, 72 + i))
    a('v_mul_f32 v82, 0x%x, v82' % f2u(1 / 512))
    a.rnd_bf16(82)
    a('v_add_f32 v82, 0x%x, v82' % f2u(1e-5))
    a.rnd_bf16(82)
    a('v_sqrt_f32 v82, v82')
    for i in range(4):
        a('v_cvt_pk_bf16_f32 v%d, v%d, v%d' % (68 + i, 72 + 2 * i, 73 + 2 * i))
    a.rnd_bf16(82)
    a('v_rcp_f32 v82, v82')
    for i in range(4):
        a('v_lshlrev_b32 v%d, 16, v%d' % (72 + 2 * i, 68 + i))
        a('v_and_b32 v%d, 0xffff0000, v%d' % (73 + 2 * i, 68 + i))
    for i in range(8):
        a('v_mul_f32 v%d, v%d, v82' % (72 + i, 72 + i))
    for i in range(4):
        a('v_cvt_pk_bf16_f32 v%d, v%d, v%d' % (68 + i, 72 + 2 * i, 73 + 2 * i))

def role_W(a, o):
    WOPOL = o.get('wopol', 'nt'); W1POL = o.get('w1pol', 'nt')
    a.label('L_W')
    a.vm = []; a.lg = []
    a('''
    s_and_b32 s8, s2, 7               ; x
    s_lshr_b32 s9, s2, 3
    s_sub_u32 s9, s9, 16              ; k
    s_lshr_b32 s10, s9, 2
    s_lshl_b32 s11, s8, 2
    s_add_u32 s10, s10, s11           ; h
    s_and_b32 s11, s9, 3              ; j
    s_lshl_b32 s13, s10, 8            ; h*256
    v_lshlrev_b32 v9, 4, v1           ; lane*16
    v_lshrrev_b32 v6, 4, v1           ; g / r
    v_and_b32 v7, 15, v1              ; pc / i
    v_lshlrev_b32 v8, 1, v6
    v_xor_b32 v8, v8, v7
    v_lshlrev_b32 v8, 4, v8           ; (pc ^ (r<<1))*16
    v_lshl_add_u32 v2, v6, 13, v8
    v_xor_b32 v3, 0x80, v2            ; voffB
    s_lshl_b32 s14, s11, 3
    s_add_u32 s14, s14, s3            ; 8j + w
    s_lshl_b32 s15, s14, 17
    s_add_u32 s15, s15, s13           ; (128j + 16w)*8192 + h*256
    s_lshl_b32 s14, s3, 12            ; LDS w*4096
    v_lshlrev_b32 v10, 2, v6
    v_xor_b32 v10, v10, v7
    v_lshlrev_b32 v10, 4, v10
    v_lshl_add_u32 v10, v6, 13, v10
    v_xor_b32 v11, 32, v10
    s_mov_b32 s42, 0x400000
    s_mov_b32 s43, 0x20000
    s_mov_b32 s50, 0x400000
    s_mov_b32 s51, 0x20000
    s_mov_b32 m0, s14
    s_waitcnt lgkmcnt(0)
    s_mov_b32 s40, s20
    s_mov_b32 s41, s21
    s_cmp_lg_u32 s3, 0
    s_cbranch_scc1 L_Wx
    global_load_dwordx4 v[68:71], v9, s[16:17]
    L_Wx:
    ''')
    for i in range(4):
        if i:
            a('s_add_u32 m0, s14, %d' % (i * 1024))
            a('s_add_u32 s60, s15, %d' % (i * 32768))
        a.v('buffer_load_dwordx4 v%d, s[40:43], %s offen nt lds' % (2 if i < 2 else 3, 's60' if i else 's15'), 'WQ')
    a('s_mov_b32 s48, s22')
    a('s_mov_b32 s49, s23')
    if o.get('ukbar', 1): a('s_barrier')
    for i in range(4):
        a('s_add_u32 m0, s14, %d' % (UKL + i * 1024))
        a('s_add_u32 s60, s15, %d' % (i * 32768))
        a.v('buffer_load_dwordx4 v%d, s[48:51], s60 offen nt lds' % (10 if i < 2 else 11), 'UK')
    common2(a)
    if o.get('diag', 0) == 2: a.stamp(5)
    a('''
    s_lshl_b32 s12, s9, 3
    s_add_u32 s12, s12, s8            ; fb = 8k + x
    s_cmp_lt_u32 s9, 11
    s_cselect_b32 s12, s12, 1000
    v_mov_b32 v14, 0
    v_lshrrev_b32 v12, 2, v7          ; r' / a
    v_and_b32 v13, 1, v6
    v_lshl_add_u32 v13, v13, 2, v12
    v_lshlrev_b32 v13, 1, v13
    v_bfe_u32 v16, v1, 1, 1
    s_lshl_b32 s60, s3, 1
    v_add_u32 v16, s60, v16
    v_xor_b32 v16, v16, v13
    v_lshlrev_b32 v16, 4, v16
    v_lshl_add_u32 v13, v6, 3, v12
    v_lshl_add_u32 v16, v13, 8, v16
    v_and_b32 v13, 1, v1
    v_lshl_add_u32 v4, v13, 3, v16    ; tr-read base
    v_lshlrev_b32 v5, 4, v6
    v_add_u32 v5, 0x%x, v5            ; SM + g*16
    v_and_b32 v13, 3, v7
    v_and_b32 v16, 2, v12
    v_xor_b32 v16, v16, v6
    v_lshl_add_u32 v16, v13, 2, v16
    v_lshlrev_b32 v16, 4, v16
    v_lshl_add_u32 v16, v7, 8, v16
    s_add_u32 s60, s14, 0x%x
    v_add_u32 v64, s60, v16           ; uk frag read addrs
    v_xor_b32 v65, 64, v64
    v_xor_b32 v66, 0x80, v64
    v_xor_b32 v67, 0xc0, v64
    ''' % (SM, UKL))
    a('''
    s_lshl_b32 s68, s10, 2
    s_add_u32 s68, s68, s11           ; mi = 4h + j
    s_lshl_b32 s64, s68, 15
    s_lshl_b32 s61, s3, 12
    s_add_u32 s69, s64, s61
    s_add_u32 s69, s69, 0x%x          ; s69 = inbox base of this wave
    s_lshl_b32 s58, s68, 11
    s_lshl_b32 s61, s3, 8
    s_add_u32 s58, s58, s61
    s_add_u32 s58, s58, 0x%x          ; s58 = SP row of this wave
    s_lshl_b32 s66, s12, 11
    s_add_u32 s66, s66, s61
    s_add_u32 s66, s66, 0x%x          ; s66 = FP row of this wave
    s_cmp_lt_u32 s12, 86
    s_cselect_b32 s66, s66, s58
    s_lshl_b32 s67, s3, 6
    s_add_u32 s67, s67, s11
    s_lshl_b32 s67, s67, 9
    s_lshl_b32 s61, s10, 4
    s_add_u32 s67, s67, s61
    s_add_u32 s67, s67, 0x%x          ; s67 = MLC + (64w + j)*512 + h*16
    v_lshlrev_b32 v11, 2, v1
    v_mov_b32 v16, -1
    ''' % (OP, SP, FP, ML))
    a.v('buffer_store_dword v16, v11, s[44:47], s58 offen sc1', 'PT')
    a.v('buffer_store_dword v16, v11, s[44:47], s66 offen sc1', 'PT')
    a('''
    s_cmp_lg_u32 s3, 0
    s_cbranch_scc1 L_Wln
    s_waitcnt vmcnt(%d)
    s_load_dword s4, s[36:37], 0
    ''' % len(a.vm))
    if o.get('diag', 0) == 2: a.stamp(6)
    layernorm(a)
    if o.get('diag', 0) == 2: a.stamp(7)
    a('''
    v_add_u32 v72, 0x%x, v9
    ds_write_b128 v72, v[68:71]
    s_waitcnt lgkmcnt(0)
    s_mov_b32 s60, 0
    s_branch L_Wn_c
    L_Wn:
    global_load_dword v15, v14, s[36:37] sc1
    s_add_u32 s60, s60, 1
    s_waitcnt vmcnt(0)
    v_readfirstlane_b32 s4, v15
    s_cmp_gt_u32 s60, SPIN_N
    s_cbranch_scc1 L_Wn_x
    L_Wn_c:
    s_cmp_eq_u32 s4, 0
    s_cbranch_scc1 L_Wn
    L_Wn_x:
    v_mov_b32 v72, 0x%x
    v_mov_b32 v15, s4
    ds_write_b32 v72, v15
    s_waitcnt lgkmcnt(0)
    L_Wln:
    ''' % (XN, NB))
    if o.get('diag', 0) == 2: a.stamp(8)
    a.vwait('WQ')
    if o.get('diag', 0) == 2: a.stamp(9)
    a('s_barrier')
    a.stamp(1)
    a('s_lshl_b32 s60, s11, 8')
    a('v_add_u32 v13, s60, v5')
    for ks in range(4):
        a.d('ds_read_b128 %s, v13 offset:%d' % (R(52 + 4 * ks - 16 + 16, 4), ks * 64) if False else 'ds_read_b128 %s, v13 offset:%d' % (R(16 + 4 * ks, 4), ks * 64), 'a%d' % ks)
        for rdi in range(2):
            a.d('ds_read_b64_tr_b16 %s, v4 offset:%d' % (R(36 + 4 * ks + 2 * rdi, 2), ks * 8192 + rdi * 1024), 'a%d' % ks)
    a('v_mov_b32 v12, 0x%x' % NB)
    a.d('ds_read_b32 v53, v12', 'n')
    a('''
    s_lshl_b32 s60, s10, 12
    s_lshl_b32 s61, s3, 7
    s_add_u32 s60, s60, s61
    s_add_u32 s60, s60, 0x%x          ; QP + h*4096 + w*128
    s_lshl_b32 s61, s11, 10
    s_add_u32 s61, s61, s60           ; + j*1024
    v_lshlrev_b32 v12, 3, v7          ; d*8
    v_lshl_add_u32 v13, v6, 10, v12   ; jj*1024 + d*8
    v_cmp_ne_u32 s[64:65], s11, v6    ; lanes of the other three
    ''' % QP)
    for ks in range(4):
        a.dwait('a%d' % ks)
        a('v_mfma_f32_16x16x32_bf16 v[32:35], %s, %s, %s' % (R(16 + 4 * ks, 4), R(36 + 4 * ks, 4), 'v[32:35]' if ks else '0'))
    a.dall()
    a('''
    s_lshl_b32 s62, s3, 5
    s_add_u32 s62, s62, 0x%x
    v_lshl_add_u32 v15, v7, 1, s62    ; QB + (16w + d)*2
    v_mov_b32 v55, v53
    v_mov_b32 v52, v32
    v_mov_b32 v54, v32
    s_mov_b64 exec, 0xffff
    buffer_store_dwordx2 v[52:53], v12, s[44:47], s61 offen sc1
    ''' % QB)
    if o.get('qpack', 1): a('s_waitcnt vmcnt(0)')
    a.stamp(2)
    a('''
    s_mov_b32 s62, 0
    L_Wq:
    s_mov_b64 exec, s[64:65]
    buffer_load_dwordx2 v[54:55], v13, s[44:47], s60 offen sc1
    s_add_u32 s62, s62, 1
    s_waitcnt vmcnt(0)
    v_cmp_ne_u32 s[64:65], v55, v53
    s_cmp_gt_u32 s62, SPIN_N
    s_cbranch_scc1 L_Wq_x
    s_cmp_lg_u64 s[64:65], 0
    s_cbranch_scc1 L_Wq
    L_Wq_x:
    s_mov_b64 exec, -1
    ''')
    a.vm = []
    for ks in range(4):
        a.d('ds_read_b128 %s, v%d' % (R(16 + 4 * ks, 4), 64 + ks), 'uk')
    a.swap_red('v_add_f32', 54, 55, 16)
    a.swap_red('v_add_f32', 54, 55, 32)
    a('''
    v_cvt_pk_bf16_f32 v54, v54, v54
    ds_write_b16 v15, v54
    ''')
    a.dall()
    a('s_barrier')
    a.stamp(3)
    for ks in range(4):
        a.d('ds_read_b128 %s, v5 offset:%d' % (R(36 + 4 * ks, 4), QB - SM + ks * 64), 'a%d' % ks)
    a('''
    s_lshl_b32 s14, s3, 5
    s_add_u32 s14, s14, 0x%x
    v_lshl_add_u32 v13, v6, 3, s14    ; QO + w*32 + q*8
    v_lshlrev_b32 v12, 4, v7
    v_add_u32 v15, 0x%x, v12          ; QO + (l%%16)*16
    s_lshl_b32 s14, s68, 8
    s_lshl_b32 s15, s68, QCSH
    s_add_u32 s15, s15, 0x%x
    v_add_u32 v56, s14, v12
    v_add_u32 v57, s15, v12
    v_cndmask_b32 v56, v56, v57, s[52:53]
    ''' % (QO, QO, QC))
    for ks in range(4):
        a.dwait('a%d' % ks)
        a('v_mfma_f32_16x16x32_bf16 v[32:35], %s, %s, %s' % (R(16 + 4 * ks, 4), R(36 + 4 * ks, 4), 'v[32:35]' if ks else '0'))
    sc = f2u(128 ** -0.5 * math.log2(math.e))
    a('''
    v_mul_f32 v32, 0x%x, v32
    v_mul_f32 v33, 0x%x, v33
    v_mul_f32 v34, 0x%x, v34
    v_mul_f32 v35, 0x%x, v35
    v_cvt_pk_bf16_f32 v32, v32, v33
    v_cvt_pk_bf16_f32 v33, v34, v35
    ds_write_b64 v13, v[32:33]
    s_waitcnt lgkmcnt(0)
    s_barrier
    s_cmp_lg_u32 s3, 0
    s_cbranch_scc1 L_Wpub
    ds_read_b128 v[32:35], v15
    s_waitcnt lgkmcnt(0)
    v_add3_u32 v36, v32, v33, v34
    v_add_u32 v36, v36, v35
    ''' % (sc, sc, sc, sc))
    a.wave_red('v_add_u32', 36, 37, rows_only=True)
    a('''
    v_sub_u32 v36, v53, v36
    v_cndmask_b32 v32, v32, v36, s[52:53]
    v_cndmask_b32 v33, v33, v53, s[52:53]
    s_mov_b64 exec, QCEX
    buffer_store_dwordx4 v[32:35], v56, s[44:47], 0 offen sc1
    s_mov_b64 exec, -1
    L_Wpub:
    s_barrier
    ''')
    a.stamp(4)
    WW = o.get('wwin', 3); WW2 = o.get('wwin2', 0)
    a.srd(40, WUV, 0x400000)
    a("""
    v_readfirstlane_b32 s4, v53
    v_lshl_add_u32 v2, v6, 18, v8
    v_xor_b32 v3, 0x80, v2
    s_lshl_b32 s14, s11, 6
    s_add_u32 s14, s14, s3            ; 64j + w
    s_lshl_b32 s14, s14, 14           ; (128j + 2w)*8192
    s_add_u32 s14, s14, s13
    s_lshl_b32 s15, s3, 12
    """)
    a.vm = []
    for i in range(4):
        if WW2: a('s_waitcnt vmcnt(%d)' % (WW2 - 1))
        a('s_add_u32 m0, s15, %d' % (i * 1024))
        a('s_add_u32 s60, s14, %d' % ((16 * (i & 1) + (i >> 1)) * 8192))
        a('buffer_load_dwordx4 v%d, s[40:43], s60 offen nt lds' % (2 if i < 2 else 3))
    a("""
    v_lshrrev_b32 v12, 3, v1          ; r8
    v_and_b32 v13, 7, v1              ; c8
    v_lshlrev_b32 v70, 4, v13
    v_lshl_add_u32 v70, v12, 10, v70  ; r8*1024 + c8*16   (w2 voff)
    v_bfe_u32 v15, v1, 4, 1
    v_lshlrev_b32 v15, 5, v15
    v_xor_b32 v68, v70, v15           ; voffC
    v_xor_b32 v69, 64, v68            ; voffD
    s_cmp_ge_u32 s12, 88
    s_cbranch_scc1 L_Wnf1
    """)
    a.srd(40, W1, 512 * 2752)
    a.srd(48, W2, 1376 * 1024)
    wt = ('s_waitcnt vmcnt(%d)' % (WW2 - 1)) if WW2 else 's_nop 0'
    a("""
    v_mul_u32_u24 v14, 2752, v6
    s_and_b32 s60, s3, 1
    s_lshl_b32 s60, s60, 7
    v_xor_b32 v13, s60, v8
    v_add_u32 v14, v14, v13           ; r*2752 + swizzled chunk
    s_lshl_b32 s14, s8, 3
    s_add_u32 s14, s14, s3            ; 8x + w
    s_mul_i32 s14, s14, %d            ; row (64x + 8w)
    s_lshl_b32 s60, s9, 8
    s_add_u32 s14, s14, s60           ; + block*256
    s_lshl_b32 s15, s3, 11
    s_add_u32 m0, s15, 0x%x
    s_add_u32 s60, s14, %d
    %s
    buffer_load_dwordx4 v14, s[40:43], s14 offen %s lds
    s_add_u32 m0, s15, 0x%x
    %s
    buffer_load_dwordx4 v14, s[40:43], s60 offen %s lds
    s_lshl_b32 s14, s12, 14
    s_lshl_b32 s60, s3, 7
    s_add_u32 s14, s14, s60
    s_add_u32 m0, s15, 0x%x
    s_add_u32 s60, s14, 8192
    %s
    buffer_load_dwordx4 v70, s[48:51], s14 offen nt lds
    s_add_u32 m0, s15, 0x%x
    %s
    buffer_load_dwordx4 v70, s[48:51], s60 offen nt lds
    L_Wnf1:
    """ % (8 * 2752, W1L, 4 * 2752, wt, W1POL, W1L + 1024, wt, W1POL, W2L, wt, W2L + 1024, wt))
    a.srd(48, WO, 0x400000)
    a("""
    s_lshl_b32 s14, s10, 17
    s_lshl_b32 s15, s3, 7
    s_add_u32 s14, s14, s15
    s_lshl_b32 s15, s3, 13
    s_lshl_b32 s5, s11, 1             ; rotation 2j
    v_lshrrev_b32 v71, 2, v7
    v_lshl_add_u32 v71, v6, 3, v71
    v_lshlrev_b32 v71, 7, v71
    v_and_b32 v13, 3, v1
    v_lshl_add_u32 v71, v13, 3, v71
    v_bfe_u32 v13, v1, 3, 2
    v_lshl_add_u32 v71, v13, 5, v71
    v_add_u32 v71, s15, v71
    """)
    def wo_dma(rho, lo, hi, win):
        for n in range(lo, hi):
            if win: a('s_waitcnt vmcnt(%d)' % (win - 1))
            if o.get('rot', 0):
                a('s_add_u32 s61, s5, %d' % n)
                a('s_and_b32 s61, s61, 7')
                a('s_lshl_b32 s62, s61, 10')
                a('s_add_u32 s62, s62, s15')
                a('s_add_u32 m0, s62, %d' % ((1 - rho) * 65536))
                a('s_lshl_b32 s61, s61, 13')
                a('s_add_u32 s61, s61, s14')
                a('s_add_u32 s60, s61, %d' % (rho * 65536))
            else:
                a('s_add_u32 m0, s15, %d' % ((1 - rho) * 65536 + n * 1024))
                a('s_add_u32 s60, s14, %d' % ((64 * rho + 8 * n) * 1024))
            a('buffer_load_dwordx4 v%d, s[48:51], s60 offen %s lds' % (68 if n % 2 == 0 else 69, WOPOL))
    WOF = 72
    def wo_read(rho):
        for mt in range(4):
            a('v_xor_b32 v13, 0x%x, v71' % ((1 - rho) * 65536 + mt * 32))
            for ksl in range(2):
                for rdi in range(2):
                    a.d('ds_read_b64_tr_b16 %s, v13 offset:%d' % (R(WOF + (mt * 4 + 2 * rho + ksl) * 4 + 2 * rdi, 2), ksl * 4096 + rdi * 512), 'wo')
            if mt % 2: a.dall()
    NW0 = o.get('nwo0', 2)
    wo_dma(0, 0, NW0, 0)
    a('s_waitcnt vmcnt(%d)' % NW0)
    a('s_barrier')
    a.stamp(5)
    for ks in range(4):
        for rdi in range(2):
            a.d('ds_read_b64_tr_b16 %s, v4 offset:%d' % (R(16 + 4 * ks + 2 * rdi, 2), ks * 8192 + rdi * 1024), 'uv')
    a("""
    s_cmp_ge_u32 s12, 88
    s_cbranch_scc1 L_Wnf2
    s_lshl_b32 s60, s8, 7
    v_add_u32 v13, s60, v5            ; xn + 64x*2 + g*16
    """)
    for ks in range(2):
        a('ds_read_b128 %s, v13 offset:%d' % (R(52 + 4 * ks, 4), ks * 64))
        for rdi in range(2):
            a('ds_read_b64_tr_b16 %s, v4 offset:%d' % (R(36 + 4 * ks + 2 * rdi, 2), W1L + ks * 8192 + rdi * 1024))
    a("""
    v_lshrrev_b32 v12, 2, v1
    v_and_b32 v13, 3, v1
    v_lshlrev_b32 v13, 3, v13
    v_lshl_add_u32 v12, v12, 7, v13
    s_lshl_b32 s60, s3, 11
    s_add_u32 s60, s60, 0x%x
    v_add_u32 v12, s60, v12
    s_waitcnt lgkmcnt(0)
    v_mfma_f32_16x16x32_bf16 v[32:35], v[52:55], v[36:39], 0
    v_mfma_f32_16x16x32_bf16 v[32:35], v[56:59], v[40:43], v[32:35]
    """ % W2L)
    for mt in range(4):
        a('ds_read_b64_tr_b16 %s, v12 offset:%d' % (R(44 + 2 * mt, 2), mt * 32))
    a("""
    s_lshl_b32 s60, s12, 10
    s_lshl_b32 s61, s3, 7
    s_add_u32 s60, s60, s61
    s_add_u32 s60, s60, 0x%x          ; HP + (8k+x)*1024 + w*128
    v_lshlrev_b32 v12, 3, v7
    v_mov_b32 v33, s4
    s_mov_b64 exec, 0xffff
    buffer_store_dwordx2 v[32:33], v12, s[44:47], s60 offen sc1
    s_mov_b64 exec, -1
    L_Wnf2:
    s_waitcnt lgkmcnt(0)
    s_barrier
    """ % HP)
    a.lg = []
    wo_dma(0, NW0, 8, WW)
    a.stamp(10)
    wo_dma(1, 0, 8, WW)
    a('s_waitcnt vmcnt(8)')
    wo_read(0)
    a('''
    s_cmp_ge_u32 s12, 86
    s_cbranch_scc1 L_Wnf3
    s_lshl_b32 s60, s9, 13
    s_lshl_b32 s61, s8, 7
    s_add_u32 s60, s60, s61
    s_add_u32 s60, s60, 0x%x          ; HP + k*8192 + x*128
    v_and_b32 v12, 7, v1
    v_lshlrev_b32 v12, 10, v12
    v_lshl_add_u32 v12, v6, 5, v12    ; producer*1024 + g*32
    s_mov_b32 s61, 0
    L_Wh:
    buffer_load_dwordx4 v[52:55], v12, s[44:47], s60 offen sc1
    buffer_load_dwordx4 v[56:59], v12, s[44:47], s60 offen offset:16 sc1
    s_add_u32 s61, s61, 1
    s_waitcnt vmcnt(0)
    v_xor_b32 v13, v53, v55
    v_xor_b32 v14, v57, v59
    v_xor_b32 v15, s4, v53
    v_or3_b32 v13, v13, v14, v15
    v_xor_b32 v14, v53, v57
    v_or_b32 v13, v13, v14
    v_cmp_ne_u32 vcc, 0, v13
    s_cmp_gt_u32 s61, SPIN_N
    s_cbranch_scc1 L_Wh_x
    s_cbranch_vccnz L_Wh
    L_Wh_x:
    ''' % HP)
    for m in ('quad_perm:[1,0,3,2]', 'quad_perm:[2,3,0,1]', 'row_half_mirror'):
        for r in range(4):
            a('v_add_f32_dpp v%d, v%d, v%d %s row_mask:0xf bank_mask:0xf' % (52 + 2 * r, 52 + 2 * r, 52 + 2 * r, m))
    for r in range(4):
        a.rnd_bf16(52 + 2 * r)
        a.silu(52 + 2 * r, 53)
    a('v_cvt_pk_bf16_f32 v32, v52, v54')
    a('v_cvt_pk_bf16_f32 v33, v56, v58')
    for mt in range(4):
        a('v_mfma_f32_16x16x16_bf16 %s, v[32:33], %s, 0' % (R(52 + 4 * mt, 4), R(44 + 2 * mt, 2)))
    a('''
    v_cndmask_b32 v52, v52, v56, s[52:53]
    v_cndmask_b32 v52, v52, v60, s[54:55]
    v_cndmask_b32 v52, v52, v64, s[56:57]
    buffer_store_dword v52, v11, s[44:47], s66 offen sc1
    L_Wnf3:
    ''')
    for p in range(4):
        a('v_cmp_eq_u32 vcc, %d, v7' % (2 * p))
        a('v_mov_b32 v%d, 0' % (56 + p))
        a('v_mov_b32 v64, 0xffff')
        a('v_cndmask_b32 v%d, v%d, v64, vcc' % (56 + p, 56 + p))
        a('v_cmp_eq_u32 vcc, %d, v7' % (2 * p + 1))
        a('v_mov_b32 v64, 0xffff0000')
        a('v_cndmask_b32 v%d, v%d, v64, vcc' % (56 + p, 56 + p))
        a('v_and_b32 v%d, 0x3f803f80, v%d' % (60 + p, 56 + p))
    a("""
    v_lshrrev_b32 v64, 1, v6
    v_mul_u32_u24 v64, 0x%x, v64
    v_lshl_add_u32 v64, v7, 4, v64
    v_and_b32 v65, 1, v6
    v_lshl_add_u32 v64, v65, 3, v64
    s_mul_i32 s60, s3, 288
    s_add_u32 s60, s60, 0x%x
    v_add_u32 v64, s60, v64
    v_and_b32 v65, 7, v1
    v_mul_u32_u24 v65, 288, v65
    v_add_u32 v65, v65, v5
    s_lshl_b32 s60, s3, 5
    s_add_u32 s60, s60, 0x%x
    v_lshl_add_u32 v66, v7, 1, s60
    """ % (8 * 288, ROWS, CB))
    a('s_waitcnt vmcnt(0)')
    wo_read(1)
    a.stamp(6)
    a('''
    v_lshlrev_b32 v14, 11, v7
    s_lshl_b32 s60, s3, 3
    s_add_u32 s60, s60, 0x%x
    v_mov_b32 v70, s60                ; LW + w*8
    v_and_b32 v71, 7, v1
    v_lshlrev_b32 v71, 3, v71
    v_add_u32 v71, 0x%x, v71          ; LW + (l%%8)*8
    s_mov_b32 s60, 0
    s_mov_b64 s[62:63], -1
    L_Wg1:
    s_sleep ML_SLEEP
    s_mov_b64 exec, s[62:63]
    buffer_load_dwordx4 v[52:55], v14, s[44:47], s67 offen sc1
    s_add_u32 s60, s60, 1
    s_waitcnt vmcnt(0)
    v_subrev_u32 v12, s4, v55
    v_cmp_lt_u32 s[62:63], 1, v12
    s_cmp_gt_u32 s60, SPIN_N
    s_cbranch_scc1 L_Wg
    s_cmp_lg_u64 s[62:63], 0
    s_cbranch_scc1 L_Wg1
    ''' % (LW, LW))
    if a.stamps: a('s_mov_b32 s60, 0')
    a.stamp(10)
    a.label('L_Wg')
    a('s_mov_b64 exec, -1')
    for i in range(4):
        a('buffer_load_dwordx4 %s, v9, s[44:47], s69 offen offset:%d sc1' % (R(36 + 4 * i, 4), i * 1024))
    a('buffer_load_dwordx4 v[52:55], v14, s[44:47], s67 offen sc1')
    a('s_add_u32 s60, s60, 1')
    a('v_cmp_gt_u32 s[62:63], 16, v1')
    for i in range(4):
        a('s_waitcnt vmcnt(%d)' % (4 - i))
        a('v_mfma_f32_16x16x32_bf16 v[32:35], v[60:63], %s, %s' % (R(36 + 4 * i, 4), 'v[32:35]' if i else '0'))
        if i == 0:
            a('v_add3_u32 v15, v36, v37, v38')
            a('v_add_u32 v15, v15, v39')
        else:
            a('v_add3_u32 v15, v15, v%d, v%d' % (36 + 4 * i, 37 + 4 * i))
            a('v_add3_u32 v15, v15, v%d, v%d' % (38 + 4 * i, 39 + 4 * i))
    a("""
    s_waitcnt vmcnt(0)
    v_subrev_u32 v12, s4, v54
    v_cndmask_b32 v12, 0, v12, s[62:63]
    v_add_u32 v15, v15, v12
    v_xor_b32 v12, s4, v55
    """)
    a.wave_red('v_add_u32', 15, 13)
    a("""
    v_or_b32 v15, v15, v12
    v_cmp_ne_u32 vcc, 0, v15
    s_cmp_gt_u32 s60, SPIN_N
    s_cbranch_scc1 L_Wg_x
    s_cbranch_vccnz L_Wg
    L_Wg_x:
    """)
    a.stamp(7)
    if a.stamps:
        a('s_mul_i32 s92, s60, 100')
        a('s_add_u32 s92, s92, s70')
        a('s_addc_u32 s93, s71, 0')
    a("""
    v_cmp_neq_f32 vcc, 0, v52
    s_cbranch_vccnz L_Wgen
    """)
    a.label('L_Wj')
    a.wave_red('v_add_f32', 53, 12, rows_only=True)
    a('''
    ds_write_b64 v70, v[52:53]
    v_cvt_pk_bf16_f32 v32, v32, v33
    v_cvt_pk_bf16_f32 v33, v34, v35
    ds_write_b64 v64, v[32:33]
    s_waitcnt lgkmcnt(0)
    s_barrier
    ''')
    a.stamp(8)
    for ks in range(4):
        a.d('ds_read_b128 %s, v65 offset:%d' % (R(36 + 4 * ks, 4), ROWS - SM + ks * 64), 'a%d' % ks)
    a.d('ds_read_b64 v[52:53], v71', 'lw')
    for ks in range(4):
        a.dwait('a%d' % ks)
        a('v_mfma_f32_16x16x32_bf16 v[32:35], %s, %s, %s' % (R(36 + 4 * ks, 4), R(16 + 4 * ks, 4), 'v[32:35]' if ks else '0'))
    a.dall()
    a('''
    v_cmp_neq_f32 vcc, 0, v52
    s_cbranch_vccnz L_Wgen2
    L_Wj2:
    v_add_f32_dpp v53, v53, v53 quad_perm:[1,0,3,2] row_mask:0xf bank_mask:0xf
    s_nop 1
    v_add_f32_dpp v53, v53, v53 quad_perm:[2,3,0,1] row_mask:0xf bank_mask:0xf
    s_nop 1
    v_add_f32_dpp v53, v53, v53 row_half_mirror row_mask:0xf bank_mask:0xf
    v_add_f32 v32, v32, v33
    v_add_f32 v34, v34, v35
    v_rcp_f32 v67, v53
    v_add_f32 v32, v32, v34
    ''')
    a.swap_red('v_add_f32', 32, 33, 16)
    a('''
    v_mul_f32 v32, v32, v67
    v_cvt_pk_bf16_f32 v32, v32, v32
    ds_write_b16 v66, v32
    s_waitcnt lgkmcnt(0)
    s_barrier
    ''')
    for ks in range(4):
        a.d('ds_read_b128 %s, v5 offset:%d' % (R(36 + 4 * ks, 4), CB - SM + ks * 64), 'a%d' % ks)
    for ks in range(4):
        a.dwait('a%d' % ks)
        for mt in range(4):
            a('v_mfma_f32_16x16x32_bf16 %s, %s, %s, %s' % (R(16 + 4 * mt, 4), R(36 + 4 * ks, 4), R(WOF + (mt * 4 + ks) * 4, 4), R(16 + 4 * mt, 4) if ks else '0'))
    a('''
    v_cndmask_b32 v16, v16, v20, s[52:53]
    v_cndmask_b32 v16, v16, v24, s[54:55]
    v_cndmask_b32 v16, v16, v28, s[56:57]
    buffer_store_dword v16, v11, s[44:47], s58 offen sc1
    ''')
    a.stamp(9)
    if a.stamps:
        a('s_cmp_lg_u32 s3, %d' % o.get('stw', 0))
        a('s_cbranch_scc1 L_end')
        a.write_stamps()
    a('s_endpgm')

def role_Wslow(a, o):
    a.refills()
    RB = STG + 0x3100
    a.label('L_Aslow')
    a("""
    v_lshlrev_b32 v12, 2, v4
    v_add_u32 v12, 0x%x, v12
    s_cmp_lg_u32 s15, 0
    s_cbranch_scc1 L_Aslow2
    ; first pass was unsafe: rerun with the true (rounded up) per-head max
    v_ceil_f32 v8, v8
    ds_write_b32 v12, v8
    v_and_b32 v13, 15, v1
    v_lshlrev_b32 v13, 2, v13
    v_add_u32 v13, 0x%x, v13
    s_waitcnt lgkmcnt(0)
    ds_read_b32 v10, v13
    ds_read_b32 v11, v13 offset:64
    s_mov_b32 s15, 1
    s_waitcnt lgkmcnt(0)
    v_sub_f32 v10, 0, v10
    v_sub_f32 v11, 0, v11
    """ % (RB, RB))
    a.voffs(3, 0)
    a("""
    s_barrier
    s_branch L_Apass
    L_Aslow2:
    ds_read_b32 v20, v12
    s_waitcnt lgkmcnt(0)
    s_nop 7
    s_branch L_Aok
    """)
    a.label('L_Wgen')
    a('v_mov_b32 v12, v52')
    a.wave_red('v_max_f32', 12, 13, rows_only=True)
    a('''
    v_sub_f32 v54, v52, v12
    v_exp_f32 v54, v54
    v_mov_b32 v52, v12                ; Mw
    v_and_b32 v54, 0xffff0000, v54
    v_mul_f32 v53, v53, v54
    v_lshrrev_b32 v55, 16, v54
    v_or_b32 v54, v54, v55
    v_lshlrev_b32 v13, 2, v6
    ''')
    for i in range(4):
        a('ds_bpermute_b32 v12, v13, v54 offset:%d' % (16 * i))
        a('s_waitcnt lgkmcnt(0)')
        for p in range(4):
            a('v_and_b32 v%d, v12, v%d' % (60 + p, 56 + p))
        a('v_mfma_f32_16x16x32_bf16 v[32:35], v[60:63], %s, %s' % (R(36 + 4 * i, 4), 'v[32:35]' if i else '0'))
    a('s_nop 7')
    a('s_branch L_Wj')
    a.label('L_Wgen2')
    a('''
    v_mov_b32 v12, v52
    v_max_f32_dpp v12, v12, v12 quad_perm:[1,0,3,2] row_mask:0xf bank_mask:0xf
    v_max_f32_dpp v12, v12, v12 quad_perm:[2,3,0,1] row_mask:0xf bank_mask:0xf
    v_max_f32_dpp v12, v12, v12 row_half_mirror row_mask:0xf bank_mask:0xf
    v_sub_f32 v54, v52, v12
    v_exp_f32 v54, v54
    v_and_b32 v13, 1, v6
    v_lshlrev_b32 v13, 4, v13
    v_mul_f32 v53, v53, v54
    ''')
    for r in range(4):
        a('ds_bpermute_b32 v12, v13, v54 offset:%d' % (4 * r))
        a('s_waitcnt lgkmcnt(0)')
        a('v_mul_f32 v%d, v%d, v12' % (32 + r, 32 + r))
    a('s_nop 1')
    a('s_branch L_Wj2')

def gen(stamps=False, o=None):
    o = o or {}
    global MIXU
    MIXU = 16384 + (8192 if o.get('par', 2) == 2 else 0)
    a = G(stamps)
    if o.get('dbgst', 0): a.dbgmode = [(9, [1, 4, 5, 6, 8, 9]), (1, [0, 2, 8, 3, 4, 5, 6, 7]), None]
    prologue(a, o)
    role_W(a, o)
    role_A(a, o)
    role_As(a, o)
    role_Wslow(a, o)
    a.label('L_end')
    txt = a.text()
    for k, v in (('QT_SLEEP', o.get('qtsleep', 1)), ('QT_THR', o.get('qtthr', 2)), ('REP_MASK', o.get('repmask', '0x00010001')), ('LSPIN', 200000), ('SPIN_N', SPIN),
                 ('ML_SLEEP', o.get('mlsleep', 2)), ('FIN_SLEEP', o.get('finsleep', 1)), ('UKGATE', o.get('ukgate', 3))):
        txt = txt.replace(k, str(v))
    txt = txt.replace('W1A ', '; ' if o.get('now1', 0) else '')
    txt = txt.replace('PTA ', '' if o.get('pre', 0) else '; ').replace('ML_OFF', '0x%x' % ML)
    qs = o.get('qcsh', 7)
    txt = txt.replace('QCSH+5', str(qs + 5)).replace('QCSH', str(qs)).replace('QCEX', {5: '0x3ffff', 6: '0xfffff', 7: '0xffffff'}[qs]).replace('REP_N', str(o.get('repn', 1)))
    txt = txt.replace('NODEP ', '' if o.get('nodep', 0) else '; ')
    if o.get('nodep', 0): txt = txt.replace('s_or_b32 s14, vcc_lo, vcc_hi', 's_mov_b32 s14, 0')
    if o.get('now1', 0): txt = txt.replace('buffer_load_dwordx4 v14, s[40:43], s14 offen', '; ').replace('buffer_load_dwordx4 v14, s[40:43], s60 offen', '; ')
    txt = txt.replace('PARITY', str(o.get('par', 2))).replace('s3, SEGX8', 's3, 8' if o.get('segx', 1) else '0, 8').replace('s3, SEGX10', 's3, 10' if o.get('segx', 1) else '0, 10')
    txt = txt.replace('YSLEEP', str(o.get('ysleep', 1)))
    body = hz.fix(txt)
    return kernel_file([(KN + '_kernel', 256, 512, 163840)], [(KN + '_kernel', body, 256, 96, 256)])

if __name__ == '__main__':
    out = sys.argv[1]
    stamps = 'stamps' in sys.argv[2:]
    o = {}
    for kv in sys.argv[2:]:
        if '=' in kv:
            k, v = kv.split('=')
            o[k] = int(v) if v.lstrip('-').isdigit() else v.replace('_', ' ')
    open(out, 'w').write(gen(stamps, o))
```

```python
from gen14 import *

RLB = STG + 0x2000
RB = STG + 0x3100

def role_A(a, o):
    AW = o.get('awin', 8); AW0 = o.get('awin0', 1); AN0 = o.get('an0', 3); NPRE = o.get('npre', 26)
    a.label('L_A')
    a.stamps_hold = False
    a.vm = []; a.lg = []; a.slow = []
    common2(a)
    a.srd(40, CKV, 0x2000000)
    def voffs(x, y):
        a('''
        v_mbcnt_lo_u32_b32 v%d, -1, 0
        v_mbcnt_hi_u32_b32 v%d, -1, v%d
        v_lshrrev_b32 v%d, 4, v%d
        v_and_b32 v%d, 15, v%d
        v_lshlrev_b32 v%d, 4, v%d
        v_mul_u32_u24 v%d, 0x440, v%d
        v_xor_b32 v%d, v%d, v%d
        v_xor_b32 v%d, 32, v%d
        ''' % (x, x, x, y, x, x, x, x, x, y, y, x, x, y, y, x))
    voffs(3, 0)
    a("""
    s_and_b32 s59, s2, 7
    s_lshl_b32 s59, s59, 4
    s_lshr_b32 s8, s2, 3
    s_add_u32 s59, s59, s8            ; p
    s_lshl_b32 s8, s59, 18
    s_cmp_ge_u32 s3, 4
    s_cbranch_scc1 L_As
    s_lshl_b32 s9, s3, 14
    s_add_u32 s8, s8, s9
    s_lshl_b32 s10, s3, 8
    s_or_b32 s66, s8, s10
    s_lshl_b32 s10, s3, 10
    s_or_b32 s67, s9, s10
    s_mov_b32 s15, 0
    v_mov_b32 v10, 0
    v_mov_b32 v11, 0
    """)
    def dma_one(i, seg, aa, win=None):
        if win is not None: a.vwait_n(win - 1)
        a('s_xor_b32 m0, s67, 0x%x' % ((i % 2) * 65536 + aa * 4096 + seg * 1024))
        a('s_xor_b32 s10, s66, 0x%x' % (i * 65536 + aa * 4096 + seg * 256))
        a.v('buffer_load_dwordx4 v%d, s[40:43], s10 offen nt lds' % (3 if aa < 2 else 0), 'C%d' % i)
    a.label('L_Apass')
    a.vm = []
    first = [(i, seg, aa) for i in range(2) for aa in range(4) for seg in range(4)]
    for n in range(AW0): dma_one(*first[n])
    a("""
    v_mbcnt_lo_u32_b32 v1, -1, 0
    v_mbcnt_hi_u32_b32 v1, -1, v1
    v_lshrrev_b32 v16, 4, v1          ; g / q
    v_and_b32 v17, 15, v1             ; l%%16
    v_lshlrev_b32 v5, 4, v1
    v_add_u32 v5, 0x%x, v5            ; p_rd
    v_lshlrev_b32 v18, 4, v16
    v_xor_b32 v32, v5, v18            ; q frag read (even ks)
    v_xor_b32 v33, 64, v32            ; (odd ks)
    ; p_wr = PB + (w>>1)*2048 + (2(w&1) + (q>>1))*256 + h16*16 + (q&1)*8
    s_lshr_b32 s10, s3, 1
    s_lshl_b32 s10, s10, 11
    s_and_b32 s11, s3, 1
    s_lshl_b32 s11, s11, 9
    s_add_u32 s10, s10, s11
    s_add_u32 s10, s10, 0x%x
    v_lshrrev_b32 v18, 1, v16         ; q>>1
    v_lshlrev_b32 v19, 8, v18
    v_lshl_add_u32 v19, v17, 4, v19
    v_and_b32 v20, 1, v16             ; q&1
    v_lshl_add_u32 v19, v20, 3, v19
    v_add_u32 v4, s10, v19
    ; pv addr: (g>>1)*16384 + 2(g&1)*4096 + w*1024 + r*256 + ((c'/2) ^ ((r<<2) | 2(g&1)))*16 + (c'&1)*8
    v_lshrrev_b32 v21, 2, v17         ; r (pv) / a (qk)
    v_bfe_u32 v22, v1, 1, 1
    v_lshl_add_u32 v22, v20, 1, v22
    v_lshl_add_u32 v22, v21, 2, v22
    v_lshlrev_b32 v22, 4, v22
    v_lshl_add_u32 v22, v21, 8, v22
    v_lshl_add_u32 v22, v20, 13, v22
    v_lshl_add_u32 v22, v18, 14, v22
    v_and_b32 v23, 1, v1
    v_lshl_add_u32 v22, v23, 3, v22
    s_lshl_b32 s10, s3, 10
    v_add_u32 v2, s10, v22
    ; qk addr: w*16384 + a*4096 + r*256 + ((r<<2) | (g ^ (a&2)))*16
    v_and_b32 v22, 3, v17
    v_and_b32 v23, 2, v21
    v_xor_b32 v23, v23, v16
    v_lshl_add_u32 v23, v22, 2, v23
    v_lshlrev_b32 v23, 4, v23
    v_lshl_add_u32 v23, v22, 8, v23
    v_lshl_add_u32 v23, v21, 12, v23
    v_add_u32 v12, s9, v23
    v_xor_b32 v13, 64, v12
    v_xor_b32 v14, 0x80, v12
    v_xor_b32 v15, 0xc0, v12
    v_mov_b32 v6, 0
    v_mov_b32 v7, 0
    v_mov_b32 v8, 0xff800000
    v_mov_b32 v9, 0xff800000
    """ % (PB, PB))
    SS = [[16, 20], [24, 28]]; P = [32, 36, 40, 44]; XQ = [48, 52, 56, 60]
    def O(hh, ct): return 64 + (hh * 8 + ct) * 4
    def QF(hh, ks): return 128 + (hh * 16 + ks) * 4
    def s_init(i, hh):
        for r in range(4): a('v_mov_b32 v%d, v%d' % (SS[i % 2][hh] + r, 10 + hh))
    s_init(0, 0); s_init(0, 1)
    for n in range(AW0, NPRE): dma_one(*first[n], AW0 if n < AN0 else AW)
    if o.get('diaga', -1) < 0: a.stamp(10)
    a('s_barrier')
    if o.get('diaga', -1) < 0: a.stamp(11)
    a('v_mov_b32 v35, 0')
    a.v('global_load_dword v34, v35, s[36:37] sc1', 'N')
    for n in range(NPRE, 32): dma_one(*first[n])

    def hcheck(need):
        lab = a.newlabel('L_Ahc')
        a('s_cmp_ge_u32 s62, %d' % need)
        a('s_cbranch_scc0 %s' % lab)
        a.label(lab + 'b')
        a.slow.append('''
        %s:
        s_mov_b32 s11, 0
        %sl:
        ds_read_b32 v1, v3 offset:32
        s_add_u32 s11, s11, 1
        s_waitcnt lgkmcnt(0)
        v_readfirstlane_b32 s62, v1
        s_sub_u32 s62, s62, s57
        s_cmp_gt_u32 s62, 15
        s_cselect_b32 s62, 0, s62
        s_cmp_gt_u32 s11, LSPIN
        s_cbranch_scc1 %sb
        s_cmp_lt_u32 s62, %d
        s_cbranch_scc1 %sl
        s_branch %sb
        ''' % (lab, lab, lab, need, lab, lab))
    def pcheck(off=0, redo=''):
        lab = a.newlabel('L_Apc')
        a('v_subrev_u32 v1, s63, v1')
        a('v_cmp_lt_u32 vcc, 7, v1')
        a('s_cbranch_vccnz %s' % lab)
        a.label(lab + 'b')
        a.slow.append('''
        %s:
        s_mov_b32 s11, 0
        %sl:
        ds_read_b32 v1, v0 offset:%d
        s_add_u32 s11, s11, 1
        s_waitcnt lgkmcnt(0)
        v_subrev_u32 v1, s63, v1
        v_cmp_lt_u32 vcc, 7, v1
        s_cmp_gt_u32 s11, LSPIN
        s_cbranch_scc1 %sr
        s_cbranch_vccnz %sl
        %sr:
        %s
        s_branch %sb
        ''' % (lab, lab, off, lab, lab, lab, redo, lab))
    def kphase(g): return 2 * (g // 16)
    def kbuf(g): return XQ[(g + kphase(g)) % 4]
    def rk(g):
        i, seg, k = g // 16, (g % 16) // 4, g % 4
        if ('C%d' % i) in a.vm: a.vwait('C%d' % i)
        if i >= 2 and g % 8 == 0: hcheck((i - 2) * 4 + seg + 2)
        if i and seg == 0: a('v_xor_b32 v%d, 0x10000, v%d' % (12 + k, 12 + k))
        a.d('ds_read_b128 %s, v%d offset:%d' % (R(kbuf(g), 4), 12 + k, seg * 1024), 'k%d' % g)
    def step(g, nxt=True):
        i = g // 16
        a.dwait('k%d' % g)
        for hh in range(2):
            s = SS[0][hh]
            a('v_mfma_f32_16x16x32_bf16 %s, %s, %s, %s' % (R(s, 4), R(kbuf(g), 4), R(QF(hh, g % 16), 4), R(s, 4)))
        if nxt: rk(g + 3)
    for g in range(3): rk(g)
    a('''
    v_and_b32 v0, 3, v1
    v_lshlrev_b32 v0, 2, v0
    v_add_u32 v0, 0x%x, v0            ; flag read addr
    s_lshl_b32 s10, s3, 2
    s_add_u32 s10, s10, 0x%x
    v_mov_b32 v3, s10                 ; own flag addr
    s_mov_b32 s62, 0
    ''' % (FL, FL))
    a.dall()
    DA = o.get('diaga', -1)
    def ds(i, k):
        if DA == i:
            a('s_memtime s[%d:%d]' % (70 + 2 * k, 71 + 2 * k))
    a.stamp(1)
    a('s_barrier')
    a.stamp(2)
    if DA >= 0: a.stamps_mute = True
    ds(9, 3)
    a('s_cmp_lg_u32 s15, 0')
    a('s_cbranch_scc1 L_Anoq')
    def rq(ks):
        for hh in range(2):
            a.d('ds_read_b128 %s, v%d offset:%d' % (R(QF(hh, ks), 4), 32 + (ks & 1), (hh * 16 + ks) * 1024), 'q%d' % ks)
    QD = 4
    for ks in range(QD): rq(ks)
    vm0 = list(a.vm)
    for g in range(12):
        a.dwait('q%d' % g)
        step(g)
        rq(g + QD)
        if g in (0, 5): ds(9, 4 if g == 0 else 5)
    a.dall()
    a('s_branch L_Aq2')
    a.label('L_Anoq')
    vm1 = list(a.vm)
    a('s_waitcnt vmcnt(0)')
    a('s_add_u32 s10, s58, 24')
    a('v_mov_b32 v1, s10')
    a('ds_write_b32 v3, v1 offset:32')
    for g in range(12): step(g)
    a.dall()
    a.vm = vm1
    a.label('L_Aq2')
    ds(9, 6)
    if 'N' in a.vm: a.vwait('N')
    a('''
    v_readfirstlane_b32 s58, v34
    s_lshl_b32 s10, s15, 4
    s_add_u32 s57, s58, s10
    s_barrier                         ; B1
    ''')
    ds(9, 7)
    def half(g, hh):
        a.dwait('k%d' % g)
        a('v_mfma_f32_16x16x32_bf16 %s, %s, %s, %s' % (R(SS[0][hh], 4), R(kbuf(g), 4), R(QF(hh, g % 16), 4), R(SS[0][hh], 4)))
    def last4(g, fill=None):
        half(g, 0); rk(g + 3)
        for k in range(1, 4):
            half(g + k, 0)
            if fill: fill()
        for k in range(4):
            half(g + k, 1)
            if fill: fill()
    last4(12)
    ds(9, 8)
    E = 36
    pvstate = [0]
    def pv_addr(i, ct):
        want = (i % 2) * 65536 + (ct << 5)
        if want != pvstate[0]:
            a('v_xor_b32 v2, 0x%x, v2' % (want ^ pvstate[0]))
            pvstate[0] = want
    def rv(i, ct, ks2, dst):
        pv_addr(i, ct)
        for rdi in range(2):
            a.d('ds_read_b64_tr_b16 %s, v2 offset:%d' % (R(dst + 2 * rdi, 2), ks2 * 32768 + rdi * 4096), 'v%d_%d' % (ct, ks2))
    def sm_ops(i):
        S = SS[0]; pb = (i % 2) * 4096
        def ex(hh, rs): return [(lambda hh=hh, r=r: a('v_exp_f32 v%d, v%d' % (E + 4 * hh + r, S[hh] + r))) for r in rs]
        def cw(hh):
            def f():
                for r in range(2):
                    a('v_cvt_pk_bf16_f32 v%d, v%d, v%d' % (32 + 2 * hh + r, E + 4 * hh + 2 * r, E + 4 * hh + 2 * r + 1))
                a.d('ds_write_b64 v4, %s offset:%d' % (R(32 + 2 * hh, 2), pb + 1024 * hh), 'w')
            return f
        def flag():
            a('s_add_u32 s63, s57, %d' % i)
            a('v_mov_b32 v1, s63')
            a.d('ds_write_b32 v3, v1', 'w')
        def mxl(hh):
            def f():
                a('v_add_f32 v%d, v%d, v%d' % (E + 4 * hh, E + 4 * hh, E + 4 * hh + 1))
                a('v_add_f32 v%d, v%d, v%d' % (E + 4 * hh + 2, E + 4 * hh + 2, E + 4 * hh + 3))
                a('v_max3_f32 v%d, v%d, v%d, v%d' % (8 + hh, 8 + hh, S[hh], S[hh] + 1))
                a('v_add_f32 v%d, v%d, v%d' % (6 + hh, 6 + hh, E + 4 * hh))
                a('v_max3_f32 v%d, v%d, v%d, v%d' % (8 + hh, 8 + hh, S[hh] + 2, S[hh] + 3))
                a('v_add_f32 v%d, v%d, v%d' % (6 + hh, 6 + hh, E + 4 * hh + 2))
            return f
        def chk():
            for f in ((0, 1, 2, 3) if i < 3 else (0, 2, 1, 3)):
                a.d('ds_read_b128 %s, v5 offset:%d' % (R(P[f], 4), pb + f * 1024), 'p%d' % f)
        return ex, cw, flag, mxl, chk
    for i in range(3):
        ds(i, 3)
        ex, cw, flag, mxl, chk = sm_ops(i)
        g0 = 16 * (i + 1)
        ph = kphase(16 * i)
        pairs = [SS[1], [XQ[ph % 4], XQ[(ph + 1) % 4]], [XQ[(ph + 2) % 4], XQ[(ph + 3) % 4]]]
        def rvp(ct):
            for ks2 in range(2): rv(i, ct, ks2, pairs[ct % 3][ks2])
        for f in ex(0, range(4)): f()
        cw(0)()
        for f in ex(1, range(4)): f()
        cw(1)()
        flag()
        ds(i, 4)
        mxl(0)(); mxl(1)()
        a.d('ds_read_b32 v1, v0', 'pf')
        pv_addr(i, 0)
        n0 = len(a.lines)
        chk(); rvp(0); rvp(1)
        redo = ['v_xor_b32 v2, 32, v2'] + [l.strip() for l in a.lines[n0:] if 's_waitcnt' not in l] + ['s_waitcnt lgkmcnt(0)']
        s_init(0, 0); s_init(0, 1)
        a.dwait('pf')
        pcheck(0, '\n'.join(redo))
        ds(i, 5)
        for ct in range(8):
            for ks2 in range(2):
                a.dwait('v%d_%d' % (ct, ks2))
                for hh in range(2):
                    a.dwait('p%d' % (ks2 * 2 + hh))
                    cin = '0' if (i == 0 and ks2 == 0) else R(O(hh, ct), 4)
                    a('v_mfma_f32_16x16x32_bf16 %s, %s, %s, %s' % (R(O(hh, ct), 4), R(P[ks2 * 2 + hh], 4), R(pairs[ct % 3][ks2], 4), cin))
                    if ct + 2 < 8:
                        if hh == 0: pv_addr(i, ct + 2)
                        a.d('ds_read_b64_tr_b16 %s, v2 offset:%d' % (R(pairs[(ct + 2) % 3][ks2] + 2 * hh, 2), ks2 * 32768 + hh * 4096), 'v%d_%d' % (ct + 2, ks2))
                if ct == 0 and ks2 == 0: ds(i, 6)
                if ct == 4 and ks2 == 0: ds(i, 7)
                if ct == 5 and ks2 == 1 and i >= 1: a.d('ds_read_b32 v1, v3 offset:32', 'hf')
                if ct == 6 and ks2 == 1:
                    a.dall()
                    if i >= 1:
                        a('''
                    v_readfirstlane_b32 s62, v1
                    s_sub_u32 s62, s62, s57
                    s_cmp_gt_u32 s62, 15
                    s_cselect_b32 s62, 0, s62
                    ''')
                    if i < 2:
                        a('v_mov_b32 v1, s63')
                        a.d('ds_write_b32 v3, v1 offset:16', 'w')
                        a.stamp(8 + i)
                        a('s_cmp_lg_u32 s15, 0')
                        a('s_cbranch_scc1 L_Arf%d' % i)
                        a.label('L_Arb%d' % i)
                if ct == 7 and ks2 == 0: rk(g0); rk(g0 + 1)
        ds(i, 8)
        rk(g0 + 2)
        if i < 2:
            for s in range(12):
                step(g0 + s)
                if s == 0: ds(i, 9)
                if s == 8: ds(i, 10)
            last4(g0 + 12)
        else:
            for s in range(8): step(g0 + s, s < 5)
        ds(i, 11)
    a('''
    v_mbcnt_lo_u32_b32 v24, -1, 0
    v_mbcnt_hi_u32_b32 v24, -1, v24
    v_and_b32 v25, 15, v24
    v_lshrrev_b32 v27, 4, v24
    v_lshlrev_b32 v26, 6, v25
    v_lshl_add_u32 v26, v27, 2, v26
    s_lshl_b32 s10, s3, 4
    s_add_u32 s10, s10, 0x%x
    v_add_u32 v26, s10, v26           ; l write addr
    v_lshlrev_b32 v25, 4, v25
    v_lshl_add_u32 v25, v27, 19, v25  ; O store voffset
    v_bfe_u32 v28, v24, 3, 1
    v_lshl_add_u32 v27, v27, 2, v28
    v_bfe_u32 v28, v24, 2, 1
    v_lshl_add_u32 v27, v28, 1, v27
    v_and_b32 v28, 1, v24
    v_lshl_add_u32 v27, v28, 4, v27   ; h(lane)
    v_and_b32 v28, 2, v24
    v_lshlrev_b32 v28, 4, v28
    v_lshl_add_u32 v28, v27, 6, v28
    v_add_u32 v28, 0x%x, v28          ; l read addr
    v_lshlrev_b32 v29, 4, v27         ; MLC voffset
    s_lshl_b32 s10, s3, 15
    s_lshl_b32 s12, s59, 8
    s_add_u32 s10, s10, s12
    s_add_u32 s13, s10, 0x%x
    s_lshl_b32 s12, s59, 2
    s_add_u32 s12, s12, s3
    s_lshl_b32 s12, s12, 9
    s_add_u32 s12, s12, 0x%x
    s_mov_b32 s60, 0xaaaaaaaa
    s_mov_b32 s61, 0xaaaaaaaa
    s_mov_b32 s64, 0x33333333
    s_mov_b32 s65, 0x33333333
    s_add_u32 s63, s57, 8
    ''' % (RLB, RLB, OP, ML))
    rk(56)
    a.stamp(3)
    ds(3, 3)
    rk(57); rk(58)
    a.d('ds_read_b32 v1, v0 offset:32', 'ha')
    def VF(ct, ks2): return (128 if ct < 4 else 192) + ((ct % 4) * 2 + ks2) * 4
    vl = [(ct, ks2) for ct in range(8) for ks2 in range(2)]
    vi = 0
    def more(n=1):
        nonlocal vi
        for _ in range(n):
            if vi < 16:
                rv(3, vl[vi][0], vl[vi][1], VF(*vl[vi])); vi += 1
    for g in range(56, 60):
        step(g)
        if g == 56:
            a.dwait('ha')
            pcheck(32)
        else:
            more()
    last4(60, more)
    ex, cw, flag, mxl, chk = sm_ops(3)
    for f in ex(0, range(4)): f()
    cw(0)()
    for f in ex(1, range(4)): f()
    cw(1)()
    mxl(0)(); mxl(1)()
    a.d('ds_write2st64_b32 v26, v6, v7 offset0:0 offset1:4', 'w')
    more(3)
    a.dwait('w')
    a('s_barrier')
    chk()
    ds(3, 4)
    ds(4, 3)
    more(3)
    PK = [XQ, [16, 20, 160, 164]]
    CS = 168
    def pack(hh, r):
        for k in range(4):
            a('v_cvt_pk_bf16_f32 v%d, v%d, v%d' % (PK[hh][r] + k, O(hh, 2 * k) + r, O(hh, 2 * k + 1) + r))
    def st(hh, r):
        a('s_add_u32 s11, s13, 0x%x' % ((16 * hh + r) * 131072))
        a('buffer_store_dwordx4 %s, v25, s[44:47], s11 offen sc1' % R(PK[hh][r], 4))
    def cs(hh, r):
        b = PK[hh][r]; c = CS + 4 * hh + r
        a('v_add3_u32 v%d, v%d, v%d, v%d' % (c, b, b + 1, b + 2))
        a('v_add_u32 v%d, v%d, v%d' % (c, c, b + 3))
    T = 176
    def stepA(i):
        a('v_add_u32_dpp v%d, v%d, v%d row_ror:8 row_mask:0xf bank_mask:0x3' % (T + i, CS + 2 * i, CS + 2 * i))
        a('v_add_u32_dpp v%d, v%d, v%d row_ror:8 row_mask:0xf bank_mask:0xc' % (T + i, CS + 2 * i + 1, CS + 2 * i + 1))
    def stepB(hh):
        a('v_add_u32_dpp v%d, v%d, v%d row_half_mirror row_mask:0xf bank_mask:0x5' % (T + 4 + hh, T + 2 * hh, T + 2 * hh))
        a('v_add_u32_dpp v%d, v%d, v%d row_half_mirror row_mask:0xf bank_mask:0xa' % (T + 4 + hh, T + 2 * hh + 1, T + 2 * hh + 1))
        a('v_add_u32_dpp v%d, v%d, v%d quad_perm:[1,0,3,2] row_mask:0xf bank_mask:0xf' % (T + 4 + hh, T + 4 + hh, T + 4 + hh))
    def lchk():
        a.d('ds_read_b128 v[224:227], v28', 'rl')
        a.d('ds_read_b128 v[228:231], v28 offset:16', 'rl')
    def ls1():
        a.dwait('rl')
        a('''
        v_add_f32 v224, v224, v225
        v_add_f32 v226, v226, v227
        v_add_f32 v228, v228, v229
        v_add_f32 v230, v230, v231
        ''')
    def ls2():
        a('''
        v_add_f32 v224, v224, v226
        v_add_f32 v228, v228, v230
        v_add_f32 v185, v224, v228
        v_mov_b32 v187, s58
        ''')
    f0 = {1: lchk, 5: ls1, 6: ls2, 7: lambda: a('v_add_f32_dpp v185, v185, v185 quad_perm:[2,3,0,1] row_mask:0xf bank_mask:0xf')}
    f1 = {2: lambda: pack(0, 0), 3: lambda: (st(0, 0), pack(0, 1)), 4: lambda: (st(0, 1), pack(0, 2)), 5: lambda: (st(0, 2), pack(0, 3)),
          6: lambda: (st(0, 3), cs(0, 0), cs(0, 1)), 7: lambda: (cs(0, 2), cs(0, 3), stepA(0))}
    for hh in range(2):
        for ct in range(8):
            for ks2 in range(2):
                a.dwait('v%d_%d' % (ct, ks2)); a.dwait('p%d' % (ks2 * 2 + hh))
                a('v_mfma_f32_16x16x32_bf16 %s, %s, %s, %s' % (R(O(hh, ct), 4), R(P[ks2 * 2 + hh], 4), R(VF(ct, ks2), 4), R(O(hh, ct), 4)))
            f = (f0 if hh == 0 else f1).get(ct)
            if f: f()
            if hh == 0 and ct in (1, 2, 4, 7): ds(4, {1: 4, 2: 5, 4: 6, 7: 7}[ct])
            if hh == 1 and ct in (2, 7): ds(4, {2: 8, 7: 9}[ct])
    a.stamp(4)
    ds(3, 5)
    stepA(1)
    a("""
    v_subrev_u32 v186, 0x2f800000, v185
    v_cmp_le_u32 vcc, 0x24000000, v186
    """)
    NE = o.get('nearly', 2)
    pack(1, 0)
    stepB(0)
    for r in range(4):
        if r < 3: pack(1, r + 1)
        if r < NE: st(1, r)
        cs(1, r)
        if r == 2: stepA(2)
    a("""
    s_or_b32 s14, vcc_lo, vcc_hi
    s_or_b32 s11, s14, s15
    s_cbranch_scc1 L_Aslow
    v_mov_b32 v184, 0
    L_Aok:
    """)
    stepA(3)
    stepB(1)
    a('v_cndmask_b32 v%d, v%d, v%d, s[60:61]' % (T + 4, T + 4, T + 5))
    a('v_add_u32_dpp v%d, v%d, v%d quad_perm:[2,3,0,1] row_mask:0xf bank_mask:0xf' % (T + 4, T + 4, T + 4))
    a("""
    v_sub_u32 v186, v187, v%d
    s_mov_b64 exec, s[64:65]
    buffer_store_dwordx4 v[184:187], v29, s[44:47], s12 offen sc1
    s_mov_b64 exec, -1
    """ % (T + 4))
    for r in range(NE, 4): st(1, r)
    ds(3, 6)

    def slow():
        for i in range(2):
            a.label('L_Arf%d' % i)
            a('s_waitcnt lgkmcnt(0)')
            a('s_barrier')
            voffs(1, 0)
            for seg in range(4):
                for aa in range(4):
                    a('s_add_u32 m0, s9, 0x%x' % (i * 65536 + aa * 4096 + seg * 1024))
                    a('s_add_u32 s10, s8, 0x%x' % ((i + 2) * 65536 + aa * 4096 + seg * 256))
                    a('buffer_load_dwordx4 v%d, s[40:43], s10 offen nt lds' % (1 if aa < 2 else 0))
            a('''
            v_mbcnt_lo_u32_b32 v0, -1, 0
            v_and_b32 v0, 3, v0
            v_lshlrev_b32 v0, 2, v0
            v_add_u32 v0, 0x%x, v0
            s_waitcnt vmcnt(0)
            s_barrier
            s_branch L_Arb%d
            ''' % (FL, i))
        for t in a.slow: a(t)
        a.label('L_Aslow')
        a("""
        v_lshlrev_b32 v30, 2, v27
        v_add_u32 v30, 0x%x, v30
        s_cmp_lg_u32 s15, 0
        s_cbranch_scc1 L_Aslow2
        ; first pass was unsafe: rerun with the true (rounded up) per-head max
        ds_write2st64_b32 v26, v8, v9 offset0:8 offset1:12
        s_waitcnt lgkmcnt(0)
        s_barrier
        ds_read_b128 v[224:227], v28 offset:2048
        ds_read_b128 v[228:231], v28 offset:2064
        s_waitcnt lgkmcnt(0)
        v_max3_f32 v224, v224, v225, v226
        v_max3_f32 v227, v227, v228, v229
        v_max3_f32 v224, v224, v230, v231
        v_max_f32 v184, v224, v227
        v_max_f32_dpp v184, v184, v184 quad_perm:[2,3,0,1] row_mask:0xf bank_mask:0xf
        v_ceil_f32 v184, v184
        ds_write_b32 v30, v184
        v_and_b32 v31, 15, v24
        v_lshlrev_b32 v30, 2, v31
        v_add_u32 v30, 0x%x, v30
        v_lshrrev_b32 v232, 4, v24
        v_lshlrev_b32 v232, 4, v232
        v_lshl_add_u32 v31, v31, 10, v232
        s_mov_b32 s10, 0x4000
        s_waitcnt vmcnt(0) lgkmcnt(0)
        ds_read_b32 v10, v30
        ds_read_b32 v11, v30 offset:64
        """ % (RB, RB))
        for hh in range(2):
            for ks in range(16):
                a('buffer_load_dwordx4 %s, v31, s[44:47], %s offen offset:%d sc1' % (R(QF(hh, ks), 4), 's10' if hh else '0', ks * 64))
        a("""
        s_mov_b32 s15, 1
        s_waitcnt vmcnt(0) lgkmcnt(0)
        v_sub_f32 v10, 0, v10
        v_sub_f32 v11, 0, v11
        """)
        voffs(3, 0)
        a("""
        s_barrier
        s_branch L_Apass
        L_Aslow2:
        ds_read_b32 v184, v30
        s_waitcnt lgkmcnt(0)
        s_branch L_Aok
        """)
    a.aslow = slow
```

```python
from roleA22 import *

def role_final(a, o):
    a('''
    s_cmp_lg_u32 s3, 0
    s_cbranch_scc1 L_end
    ''')
    a.stamp(5)
    a.srd(48, WS, FP + 86 * 2048)
    a.srd(40, X, 1024)
    a('''
    v_mov_b32 v40, v24
    s_and_b32 s10, s2, 7
    s_lshl_b32 s10, s10, 6
    s_lshr_b32 s11, s2, 3
    s_lshl_b32 s11, s11, 2
    s_add_u32 s10, s10, s11            ; m0
    s_lshl_b32 s11, s10, 2
    s_lshl_b32 s12, s10, 1
    v_lshlrev_b32 v41, 11, v40
    v_and_b32 v42, 3, v40
    v_lshlrev_b32 v43, 1, v42
    buffer_load_ushort v60, v43, s[40:43], s12 offen
    v_and_b32 v44, 1, v40
    v_cmp_eq_u32 s[60:61], 1, v44
    v_and_b32 v44, 2, v40
    v_cmp_eq_u32 s[62:63], 2, v44
    ''')
    def gather4(base, srd, lab, dst):
        a('s_add_u32 s13, s11, 0x%x' % base)
        a('s_add_u32 s14, s11, 0x%x' % (base + 64 * 2048))
        a('s_mov_b32 s8, 0')
        a('s_mov_b64 s[64:65], -1')
        a('s_mov_b64 s[66:67], -1')
        a.label(lab)
        a('s_sleep FIN_SLEEP')
        a('s_mov_b64 exec, s[64:65]')
        a('s_cbranch_execz %s_a' % lab)
        a('buffer_load_dwordx4 v[48:51], v41, s[%d:%d], s13 offen sc1' % (srd, srd + 3))
        a.label(lab + '_a')
        a('s_mov_b64 exec, s[66:67]')
        a('s_cbranch_execz %s_b' % lab)
        a('buffer_load_dwordx4 v[52:55], v41, s[%d:%d], s14 offen sc1' % (srd, srd + 3))
        a.label(lab + '_b')
        a('''
        s_mov_b64 exec, -1
        s_add_u32 s8, s8, 1
        s_waitcnt vmcnt(0)
        v_max3_u32 v56, v48, v49, v50
        v_max3_u32 v57, v52, v53, v54
        v_max_u32 v56, v56, v51
        v_max_u32 v57, v57, v55
        v_cmp_eq_u32 s[64:65], -1, v56
        v_cmp_eq_u32 s[66:67], -1, v57
        s_cmp_gt_u32 s8, SPIN_N
        s_cbranch_scc1 %s_x
        s_or_b64 s[68:69], s[64:65], s[66:67]
        s_cbranch_scc1 %s
        %s_x:
        v_add_f32 v48, v48, v52
        v_add_f32 v49, v49, v53
        v_add_f32 v50, v50, v54
        v_add_f32 v51, v51, v55
        v_cndmask_b32 v52, v48, v49, s[60:61]
        v_cndmask_b32 v53, v49, v48, s[60:61]
        v_cndmask_b32 v54, v50, v51, s[60:61]
        v_cndmask_b32 v55, v51, v50, s[60:61]
        v_add_f32_dpp v52, v53, v52 quad_perm:[1,0,3,2] row_mask:0xf bank_mask:0xf
        v_add_f32_dpp v54, v55, v54 quad_perm:[1,0,3,2] row_mask:0xf bank_mask:0xf
        v_cndmask_b32 v%d, v52, v54, s[62:63]
        v_cndmask_b32 v53, v54, v52, s[62:63]
        v_add_f32_dpp v%d, v53, v%d quad_perm:[2,3,0,1] row_mask:0xf bank_mask:0xf
        v_add_f32_dpp v%d, v%d, v%d row_ror:4 row_mask:0xf bank_mask:0xf
        v_add_f32_dpp v%d, v%d, v%d row_ror:8 row_mask:0xf bank_mask:0xf
        ''' % ((lab, lab, lab) + (dst,) * 9))
        a.swap_red('v_add_f32', dst, 53, 16)
        a.swap_red('v_add_f32', dst, 53, 32)
    gather4(FP, 48, 'L_gf', 61)
    a.rnd_bf16(61)
    a.silu(61, 53)
    a.rnd_bf16(61)
    a('v_lshlrev_b32 v60, 16, v60')
    a.srd(40, OUT, 1024)
    a.stamp(6)
    gather4(SP, 44, 'L_gs', 62)
    a.rnd_bf16(62)
    a('v_mul_f32 v62, v62, v61')
    a.rnd_bf16(62)
    a('''
    v_add_f32 v62, v62, v60
    v_cvt_pk_bf16_f32 v62, v62, v62
    s_mov_b64 exec, 15
    buffer_store_short v62, v43, s[40:43], s12 offen
    ''')
    a.stamp(7)
    a.write_stamps()
    a('s_endpgm')

def role_As(a, o):
    a.stamps_mute = False
    a.label('L_As')
    ops = [(c, seg, aa) for c in range(2) for seg in range(4) for aa in range(4)]
    AM = o.get('amaj', 1)
    ops = [(c, sp * 2 + sg, aa) for c in range(2) for sp in range(2) for aa in range(4) for sg in range(2)]
    def prog(n):
        return {7: 2, 15: 4, 23: 6, 31: 8}.get(n)
    def loads(lo, hi):
        for n in range(lo, hi):
            c, seg, aa = ops[n]
            a('s_add_u32 s10, s64, 0x%x' % (c * 65536 + aa * 4096 + seg * 256))
            a.v('buffer_load_dwordx4 %s, v%d, s[40:43], s10 offen nt' % (R(128 + 4 * n, 4), 3 if aa < 2 else 0), 'L%d' % n)
    def writes(lo, hi):
        for n in range(lo, hi):
            c, seg, aa = ops[n]
            if ('L%d' % n) in a.vm: a.vwait('L%d' % n)
            a('ds_write_b128 v%d, %s offset:%d' % (100 + c, R(128 + 4 * n, 4), aa * 4096 + seg * 1024))
        a('s_waitcnt lgkmcnt(0)')
    c = [int(x, 16) for x in str(o.get('hsch', 'x44'))[1:]]
    a("""
    s_setprio 3
    s_sub_u32 s3, s3, 4
    s_lshl_b32 s9, s3, 14
    s_add_u32 s64, s8, s9
    s_add_u32 s64, s64, 0x20000
    v_lshl_add_u32 v100, v1, 4, s9
    v_add_u32 v101, 0x10000, v100
    v_mov_b32 v2, 0
    s_mov_b32 s8, 0
    L_Agn:
    s_sleep 8
    global_load_dword v5, v2, s[36:37] sc1
    s_add_u32 s8, s8, 1
    s_waitcnt vmcnt(0)
    v_readfirstlane_b32 s4, v5
    s_cmp_gt_u32 s8, SPIN_N
    s_cbranch_scc1 L_Agn_x
    s_cmp_eq_u32 s4, 0
    s_cbranch_scc1 L_Agn
    L_Agn_x:
    """)
    K0 = o.get('k0', 8)
    a.vm = []
    for n in range(K0):
        if n >= o.get('k0w', 3): a('s_waitcnt vmcnt(%d)' % (o.get('k0w', 3) - 1))
        loads(n, n + 1)
    a("""
    v_lshlrev_b32 v2, QCSH, v1        ; tag voffset
    v_lshlrev_b32 v98, 4, v1          ; data voffset
    s_lshl_b32 s9, s3, 13             ; QA + u*8192
    s_add_u32 s65, s9, 4096
    s_lshl_b32 s11, s3, QCSH+5
    s_add_u32 s11, s11, 0x%x          ; QC + u*32 entries
    s_lshr_b32 s12, s3, 1
    s_lshl_b32 s12, s12, 14
    s_and_b32 s13, s3, 1
    s_lshl_b32 s13, s13, 7
    s_add_u32 s12, s12, s13
    s_add_u32 s12, s12, 0x%x
    v_and_b32 v6, 7, v1
    v_lshlrev_b32 v6, 4, v6
    v_lshl_add_u32 v6, v1, 8, v6
    v_add_u32 v6, s12, v6             ; LDS write base
    s_lshl_b32 s4, s4, 5              ; expected sum = 32 * nonce
    v_mov_b32 v72, 0
    v_mov_b32 v73, 0
    s_mov_b32 s12, REP_MASK
    s_mov_b32 s13, 0
    NODEP s_branch L_Agt_x
    L_Agt:
    s_sleep QT_SLEEP
    s_mov_b64 exec, s[12:13]
    buffer_load_dwordx2 v[72:73], v2, s[44:47], s11 offen sc1
    s_add_u32 s8, s8, 1
    s_waitcnt vmcnt(0)
    v_cmp_ne_u32 s[12:13], v73, v5
    s_cmp_gt_u32 s8, SPIN_N
    s_cbranch_scc1 L_Agt_x
    s_cmp_lg_u32 s12, 0
    s_cbranch_scc1 L_Agt
    L_Agt_x:
    s_mov_b32 exec_lo, -1
    buffer_load_dwordx2 v[72:73], v2, s[44:47], s11 offen sc1
    s_mov_b64 exec, -1
    """ % (QC, STG))
    def dload(i):
        a('buffer_load_dwordx4 %s, v98, s[44:47], s%d offen offset:%d sc1' % (R(8 + 4 * i, 4), 9 if i < 4 else 65, (i % 4) * 1024))
    def dproc(i):
        a('ds_write_b128 v%d, %s' % (40 + i, R(8 + 4 * i, 4)))
        a('v_add3_u32 v%d, v%d, v%d, v%d' % (80 + i, 8 + 4 * i, 9 + 4 * i, 10 + 4 * i))
        a('v_add_u32 v%d, v%d, v%d' % (80 + i, 80 + i, 11 + 4 * i))
    for i in range(8): dload(i)
    a.stamp(1)
    if a.stamps: a('s_mov_b32 s8, 1')
    if o.get('rlate', 1):
        a("""
        s_waitcnt vmcnt(8)
        L_Agr:
        v_cmp_ne_u32 s[12:13], v73, v5
        s_cmp_eq_u32 s12, 0
        s_cbranch_scc1 L_Agr_x
        s_add_u32 s8, s8, 1
        s_cmp_gt_u32 s8, SPIN_N
        s_cbranch_scc1 L_Agr_x
        s_mov_b32 s13, 0
        s_quadmask_b32 s67, s12
        s_mov_b64 exec, s[12:13]
        buffer_load_dwordx2 v[72:73], v2, s[44:47], s11 offen sc1
        s_mov_b64 exec, -1
        """)
        for i in range(8):
            a('s_bitcmp1_b32 s67, %d' % i)
            a('s_cbranch_scc0 L_Agk%d' % i)
            dload(i)
            a.label('L_Agk%d' % i)
        a("""
        s_waitcnt vmcnt(0)
        s_branch L_Agr
        L_Agr_x:
        """)
    a('s_barrier')
    a.vm = []
    loads(K0, K0 + c[0]); p = K0 + c[0]
    for i in range(8): a('v_xor_b32 v%d, %d, v6' % (40 + i, i << 4))
    for i in range(8):
        a('s_waitcnt vmcnt(%d)' % (7 - i + c[0]))
        dproc(i)
    a("""
    NODEP s_branch L_Agp_x
    v_cmp_ne_u32 s[12:13], v73, v5
    s_cmp_eq_u32 s12, 0
    s_cbranch_scc1 L_Agc
    L_Agp:
    s_mov_b32 s13, 0
    s_quadmask_b32 s67, s12
    s_mov_b64 exec, s[12:13]
    buffer_load_dwordx2 v[72:73], v2, s[44:47], s11 offen sc1
    s_mov_b64 exec, -1
    """)
    for i in range(8):
        a('s_bitcmp1_b32 s67, %d' % i)
        a('s_cbranch_scc0 L_Agl%d' % i)
        dload(i)
        a.label('L_Agl%d' % i)
    a("""
    s_add_u32 s8, s8, 1
    s_waitcnt vmcnt(0)
    v_cmp_ne_u32 s[12:13], v73, v5
    """)
    for i in range(8):
        a('s_bitcmp1_b32 s67, %d' % i)
        a('s_cbranch_scc0 L_Agw%d' % i)
        dproc(i)
        a.label('L_Agw%d' % i)
    a("""
    s_cmp_gt_u32 s8, SPIN_N
    s_cbranch_scc1 L_Agp_x
    s_cmp_lg_u32 s12, 0
    s_cbranch_scc1 L_Agp
    L_Agc:
    v_add3_u32 v4, v72, v80, v81
    v_add3_u32 v74, v82, v83, v84
    v_add3_u32 v4, v4, v85, v86
    v_add3_u32 v4, v4, v74, v87
    """)
    a.wave_red('v_add_u32', 4, 74)
    a("""
    v_readfirstlane_b32 s10, v4
    s_mov_b32 s12, -1
    s_cmp_lg_u32 s10, s4
    s_cbranch_scc1 L_Agp
    L_Agp_x:
    s_waitcnt lgkmcnt(0)
    """)
    a.stamp(3)
    a('s_barrier')
    a('s_setprio 0')
    loads(p, p + c[1]); p += c[1]
    a('''
    v_and_b32 v102, 3, v1
    v_lshlrev_b32 v102, 2, v102
    v_add_u32 v102, 0x%x, v102        ; YF read addr
    s_lshl_b32 s10, s3, 2
    s_add_u32 s10, s10, 0x%x
    v_mov_b32 v103, s10               ; own HF addr
    s_barrier                         ; B1
    ''' % (FL + 16, FL + 32))
    K = o.get('hk', 18)
    loads(p, K); p = max(p, K)
    def yspin(i):
        a('''
        s_mov_b32 s11, 0
        L_Ay%d:
        ds_read_b32 v99, v102
        s_add_u32 s11, s11, 1
        s_waitcnt lgkmcnt(0)
        v_sub_u32 v99, v99, v5
        v_subrev_u32 v99, %d, v99
        v_cmp_lt_u32 vcc, 7, v99
        s_cmp_gt_u32 s11, LSPIN
        s_cbranch_scc1 L_Ay%dx
        s_cbranch_vccz L_Ay%dx
        s_sleep 1
        s_branch L_Ay%d
        L_Ay%dx:
        ''' % (i, i, i, i, i, i))
    for n in range(32):
        if n % 16 == 0:
            if n == 16: loads(p, 32); p = 32
            yspin(n // 16)
        cc, seg, aa = ops[n]
        if prog(n): a('v_add_u32 v99, %d, v5' % prog(n))
        if ('L%d' % n) in a.vm: a.vwait('L%d' % n)
        a('ds_write_b128 v%d, %s offset:%d' % (100 + cc, R(128 + 4 * n, 4), aa * 4096 + seg * 1024))
        if prog(n): a('ds_write_b32 v103, v99')
        if p < 32: loads(p, p + 1); p += 1
    if a.stamps:
        a('s_mul_i32 s78, s8, 100')
        a('s_add_u32 s78, s78, s70')
        a('s_addc_u32 s79, s71, 0')
        a('s_lshl_b32 s2, s2, 2')
        a('s_add_u32 s2, s2, s3')
        a('s_add_u32 s2, s2, 256')
        a('s_barrier')
        a('s_sleep 127')
        a.write_stamps(vb=104)
    a('s_endpgm')

def role_W(a, o):
    W1L, W2L = 0x10000, 0x14000
    WOPOL = o.get('wopol', 'nt'); W1POL = o.get('w1pol', 'nt')
    a.label('L_W')
    a.vm = []; a.lg = []
    a('''
    s_and_b32 s8, s2, 7               ; x
    s_lshr_b32 s9, s2, 3
    s_sub_u32 s9, s9, 16              ; k
    s_lshr_b32 s10, s9, 2
    s_lshl_b32 s11, s8, 2
    s_add_u32 s10, s10, s11           ; h
    s_and_b32 s11, s9, 3              ; j
    s_lshl_b32 s13, s10, 8            ; h*256
    v_lshlrev_b32 v9, 4, v1           ; lane*16
    v_lshrrev_b32 v6, 4, v1           ; g / r
    v_and_b32 v7, 15, v1              ; pc / i
    v_lshlrev_b32 v8, 1, v6
    v_xor_b32 v8, v8, v7
    v_lshlrev_b32 v8, 4, v8           ; (pc ^ (r<<1))*16
    v_lshl_add_u32 v2, v6, 13, v8
    v_xor_b32 v3, 0x80, v2            ; voffB
    s_lshl_b32 s14, s11, 3
    s_add_u32 s14, s14, s3            ; 8j + w
    s_lshl_b32 s15, s14, 17
    s_add_u32 s15, s15, s13           ; (128j + 16w)*8192 + h*256
    s_lshl_b32 s14, s3, 12            ; LDS w*4096
    v_lshlrev_b32 v10, 2, v6
    v_xor_b32 v10, v10, v7
    v_lshlrev_b32 v10, 4, v10
    v_lshl_add_u32 v10, v6, 13, v10
    v_xor_b32 v11, 32, v10
    s_mov_b32 s42, 0x400000
    s_mov_b32 s43, 0x20000
    s_mov_b32 s50, 0x400000
    s_mov_b32 s51, 0x20000
    s_mov_b32 m0, s14
    s_waitcnt lgkmcnt(0)
    s_mov_b32 s40, s20
    s_mov_b32 s41, s21
    s_cmp_lg_u32 s3, 0
    s_cbranch_scc1 L_Wx
    global_load_dwordx4 v[68:71], v9, s[16:17]
    L_Wx:
    ''')
    for i in range(4):
        if i:
            a('s_add_u32 m0, s14, %d' % (i * 1024))
            a('s_add_u32 s60, s15, %d' % (i * 32768))
        a.v('buffer_load_dwordx4 v%d, s[40:43], %s offen nt lds' % (2 if i < 2 else 3, 's60' if i else 's15'), 'WQ')
    a('s_mov_b32 s48, s22')
    a('s_mov_b32 s49, s23')
    if o.get('ukbar', 1): a('s_barrier')
    for i in range(4):
        a('s_add_u32 m0, s14, %d' % (UKL + i * 1024))
        a('s_add_u32 s60, s15, %d' % (i * 32768))
        a.v('buffer_load_dwordx4 v%d, s[48:51], s60 offen nt lds' % (10 if i < 2 else 11), 'UK')
    common2(a)
    if o.get('diag', 0) == 2: a.stamp(5)
    a('''
    s_lshl_b32 s12, s9, 3
    s_add_u32 s12, s12, s8            ; fb = 8k + x
    s_cmp_lt_u32 s9, 11
    s_cselect_b32 s12, s12, 1000
    v_mov_b32 v14, 0
    v_lshrrev_b32 v12, 2, v7          ; r' / a
    v_and_b32 v13, 1, v6
    v_lshl_add_u32 v13, v13, 2, v12
    v_lshlrev_b32 v13, 1, v13
    v_bfe_u32 v16, v1, 1, 1
    s_lshl_b32 s60, s3, 1
    v_add_u32 v16, s60, v16
    v_xor_b32 v16, v16, v13
    v_lshlrev_b32 v16, 4, v16
    v_lshl_add_u32 v13, v6, 3, v12
    v_lshl_add_u32 v16, v13, 8, v16
    v_and_b32 v13, 1, v1
    v_lshl_add_u32 v4, v13, 3, v16    ; tr-read base
    v_lshlrev_b32 v5, 4, v6
    v_add_u32 v5, 0x%x, v5            ; SM + g*16
    v_and_b32 v13, 3, v7
    v_and_b32 v16, 2, v12
    v_xor_b32 v16, v16, v6
    v_lshl_add_u32 v16, v13, 2, v16
    v_lshlrev_b32 v16, 4, v16
    v_lshl_add_u32 v16, v7, 8, v16
    s_add_u32 s60, s14, 0x%x
    v_add_u32 v64, s60, v16           ; uk frag read addrs
    v_xor_b32 v65, 64, v64
    v_xor_b32 v66, 0x80, v64
    v_xor_b32 v67, 0xc0, v64
    ''' % (SM, UKL))
    a('''
    s_lshl_b32 s68, s10, 2
    s_add_u32 s68, s68, s11           ; mi = 4h + j
    s_lshl_b32 s64, s68, 15
    s_lshl_b32 s61, s3, 12
    s_add_u32 s69, s64, s61
    s_add_u32 s69, s69, 0x%x          ; s69 = inbox base of this wave
    s_lshl_b32 s58, s68, 11
    s_lshl_b32 s61, s3, 8
    s_add_u32 s58, s58, s61
    s_add_u32 s58, s58, 0x%x          ; s58 = SP row of this wave
    s_lshl_b32 s66, s12, 11
    s_add_u32 s66, s66, s61
    s_add_u32 s66, s66, 0x%x          ; s66 = FP row of this wave
    s_cmp_lt_u32 s12, 86
    s_cselect_b32 s66, s66, s58
    s_lshl_b32 s67, s3, 6
    s_add_u32 s67, s67, s11
    s_lshl_b32 s67, s67, 9
    s_lshl_b32 s61, s10, 4
    s_add_u32 s67, s67, s61
    s_add_u32 s67, s67, 0x%x          ; s67 = MLC + (64w + j)*512 + h*16
    v_lshlrev_b32 v11, 2, v1
    v_mov_b32 v16, -1
    ''' % (OP, SP, FP, ML))
    a.v('buffer_store_dword v16, v11, s[44:47], s58 offen sc1', 'PT')
    a.v('buffer_store_dword v16, v11, s[44:47], s66 offen sc1', 'PT')
    a('''
    s_cmp_lg_u32 s3, 0
    s_cbranch_scc1 L_Wln
    s_waitcnt vmcnt(%d)
    s_load_dword s4, s[36:37], 0
    ''' % len(a.vm))
    if o.get('diag', 0) == 2: a.stamp(6)
    layernorm(a)
    if o.get('diag', 0) == 2: a.stamp(7)
    a('''
    v_add_u32 v72, 0x%x, v9
    ds_write_b128 v72, v[68:71]
    s_waitcnt lgkmcnt(0)
    s_mov_b32 s60, 0
    s_branch L_Wn_c
    L_Wn:
    global_load_dword v15, v14, s[36:37] sc1
    s_add_u32 s60, s60, 1
    s_waitcnt vmcnt(0)
    v_readfirstlane_b32 s4, v15
    s_cmp_gt_u32 s60, SPIN_N
    s_cbranch_scc1 L_Wn_x
    L_Wn_c:
    s_cmp_eq_u32 s4, 0
    s_cbranch_scc1 L_Wn
    L_Wn_x:
    v_mov_b32 v72, 0x%x
    v_mov_b32 v15, s4
    ds_write_b32 v72, v15
    s_waitcnt lgkmcnt(0)
    L_Wln:
    ''' % (XN, NB))
    if o.get('diag', 0) == 2: a.stamp(8)
    a.vwait('WQ')
    if o.get('diag', 0) == 2: a.stamp(9)
    a('s_barrier')
    a.stamp(1)
    a('s_lshl_b32 s60, s11, 8')
    a('v_add_u32 v13, s60, v5')
    for ks in range(4):
        a.d('ds_read_b128 %s, v13 offset:%d' % (R(52 + 4 * ks - 16 + 16, 4), ks * 64) if False else 'ds_read_b128 %s, v13 offset:%d' % (R(16 + 4 * ks, 4), ks * 64), 'a%d' % ks)
        for rdi in range(2):
            a.d('ds_read_b64_tr_b16 %s, v4 offset:%d' % (R(36 + 4 * ks + 2 * rdi, 2), ks * 8192 + rdi * 1024), 'a%d' % ks)
    a('v_mov_b32 v12, 0x%x' % NB)
    a.d('ds_read_b32 v53, v12', 'n')
    a('''
    s_lshl_b32 s60, s10, 12
    s_lshl_b32 s61, s3, 7
    s_add_u32 s60, s60, s61
    s_add_u32 s60, s60, 0x%x          ; QP + h*4096 + w*128
    s_lshl_b32 s61, s11, 10
    s_add_u32 s61, s61, s60           ; + j*1024
    v_lshlrev_b32 v12, 3, v7          ; d*8
    v_lshl_add_u32 v13, v6, 10, v12   ; jj*1024 + d*8
    v_cmp_ne_u32 s[64:65], s11, v6    ; lanes of the other three
    ''' % QP)
    for ks in range(4):
        a.dwait('a%d' % ks)
        a('v_mfma_f32_16x16x32_bf16 v[32:35], %s, %s, %s' % (R(16 + 4 * ks, 4), R(36 + 4 * ks, 4), 'v[32:35]' if ks else '0'))
    a.dall()
    a('''
    s_lshl_b32 s62, s3, 5
    s_add_u32 s62, s62, 0x%x
    v_lshl_add_u32 v15, v7, 1, s62    ; QB + (16w + d)*2
    v_mov_b32 v55, v53
    v_mov_b32 v52, v32
    v_mov_b32 v54, v32
    s_mov_b64 exec, 0xffff
    buffer_store_dwordx2 v[52:53], v12, s[44:47], s61 offen sc1
    ''' % QB)
    if o.get('qpack', 1): a('s_waitcnt vmcnt(0)')
    a.stamp(2)
    a('''
    s_mov_b32 s62, 0
    L_Wq:
    s_mov_b64 exec, s[64:65]
    buffer_load_dwordx2 v[54:55], v13, s[44:47], s60 offen sc1
    s_add_u32 s62, s62, 1
    s_waitcnt vmcnt(0)
    v_cmp_ne_u32 s[64:65], v55, v53
    s_cmp_gt_u32 s62, SPIN_N
    s_cbranch_scc1 L_Wq_x
    s_cmp_lg_u64 s[64:65], 0
    s_cbranch_scc1 L_Wq
    L_Wq_x:
    s_mov_b64 exec, -1
    ''')
    a.vm = []
    for ks in range(4):
        a.d('ds_read_b128 %s, v%d' % (R(16 + 4 * ks, 4), 64 + ks), 'uk')
    a.swap_red('v_add_f32', 54, 55, 16)
    a.swap_red('v_add_f32', 54, 55, 32)
    a('''
    v_cvt_pk_bf16_f32 v54, v54, v54
    ds_write_b16 v15, v54
    ''')
    a.dall()
    a('s_barrier')
    a.stamp(3)
    for ks in range(4):
        a.d('ds_read_b128 %s, v5 offset:%d' % (R(36 + 4 * ks, 4), QB - SM + ks * 64), 'a%d' % ks)
    a('''
    s_lshl_b32 s14, s3, 5
    s_add_u32 s14, s14, 0x%x
    v_lshl_add_u32 v13, v6, 3, s14    ; QO + w*32 + q*8
    v_lshlrev_b32 v12, 4, v7
    v_add_u32 v15, 0x%x, v12          ; QO + (l%%16)*16
    s_lshl_b32 s14, s68, 8
    s_lshl_b32 s15, s68, QCSH
    s_add_u32 s15, s15, 0x%x
    v_add_u32 v56, s14, v12
    v_add_u32 v57, s15, v12
    v_cndmask_b32 v56, v56, v57, s[52:53]
    ''' % (QO, QO, QC))
    for ks in range(4):
        a.dwait('a%d' % ks)
        a('v_mfma_f32_16x16x32_bf16 v[32:35], %s, %s, %s' % (R(16 + 4 * ks, 4), R(36 + 4 * ks, 4), 'v[32:35]' if ks else '0'))
    sc = f2u(128 ** -0.5 * math.log2(math.e))
    a('''
    v_mul_f32 v32, 0x%x, v32
    v_mul_f32 v33, 0x%x, v33
    v_mul_f32 v34, 0x%x, v34
    v_mul_f32 v35, 0x%x, v35
    v_cvt_pk_bf16_f32 v32, v32, v33
    v_cvt_pk_bf16_f32 v33, v34, v35
    ds_write_b64 v13, v[32:33]
    s_waitcnt lgkmcnt(0)
    s_barrier
    s_cmp_lg_u32 s3, 0
    s_cbranch_scc1 L_Wpub
    ds_read_b128 v[32:35], v15
    s_waitcnt lgkmcnt(0)
    v_add3_u32 v36, v32, v33, v34
    v_add_u32 v36, v36, v35
    ''' % (sc, sc, sc, sc))
    a.wave_red('v_add_u32', 36, 37, rows_only=True)
    a('''
    v_sub_u32 v36, v53, v36
    v_cndmask_b32 v32, v32, v36, s[52:53]
    v_cndmask_b32 v33, v33, v53, s[52:53]
    s_mov_b64 exec, QCEX
    buffer_store_dwordx4 v[32:35], v56, s[44:47], 0 offen sc1
    s_mov_b64 exec, -1
    L_Wpub:
    s_barrier
    ''')
    a.stamp(4)
    WW = o.get('wwin', 3); WW2 = o.get('wwin2', 0)
    a('v_readfirstlane_b32 s4, v53')
    a("""
    v_lshrrev_b32 v12, 3, v1          ; r8
    v_and_b32 v13, 7, v1              ; c8
    v_lshlrev_b32 v70, 4, v13
    v_lshl_add_u32 v70, v12, 10, v70  ; r8*1024 + c8*16   (w2 voff)
    v_bfe_u32 v15, v1, 4, 1
    v_lshlrev_b32 v15, 5, v15
    v_xor_b32 v68, v70, v15           ; voffC
    v_xor_b32 v69, 64, v68            ; voffD
    """)
    a("""
    s_cmp_ge_u32 s12, 88
    s_cbranch_scc1 L_Wnf1
    """)
    a.srd(40, W1, 512 * 2752)
    a.srd(48, W2, 1376 * 1024)
    wt = ('s_waitcnt vmcnt(%d)' % (WW2 - 1)) if WW2 else 's_nop 0'
    a("""
    v_mul_u32_u24 v14, 2752, v6
    s_and_b32 s60, s3, 1
    s_lshl_b32 s60, s60, 7
    v_xor_b32 v13, s60, v8
    v_add_u32 v14, v14, v13           ; r*2752 + swizzled chunk
    s_lshl_b32 s14, s8, 3
    s_add_u32 s14, s14, s3            ; 8x + w
    s_mul_i32 s14, s14, %d            ; row (64x + 8w)
    s_lshl_b32 s60, s9, 8
    s_add_u32 s14, s14, s60           ; + block*256
    s_lshl_b32 s15, s3, 11
    s_add_u32 m0, s15, 0x%x
    s_add_u32 s60, s14, %d
    %s
    buffer_load_dwordx4 v14, s[40:43], s14 offen %s lds
    s_add_u32 m0, s15, 0x%x
    %s
    buffer_load_dwordx4 v14, s[40:43], s60 offen %s lds
    s_lshl_b32 s14, s12, 14
    s_lshl_b32 s60, s3, 7
    s_add_u32 s14, s14, s60
    s_add_u32 m0, s15, 0x%x
    s_add_u32 s60, s14, 8192
    %s
    buffer_load_dwordx4 v70, s[48:51], s14 offen nt lds
    s_add_u32 m0, s15, 0x%x
    %s
    buffer_load_dwordx4 v70, s[48:51], s60 offen nt lds
    L_Wnf1:
    """ % (8 * 2752, W1L, 4 * 2752, wt, W1POL, W1L + 1024, wt, W1POL, W2L, wt, W2L + 1024, wt))
    a.srd(48, WO, 0x400000)
    a("""
    s_lshl_b32 s14, s10, 17
    s_lshl_b32 s15, s3, 7
    s_add_u32 s14, s14, s15
    s_lshl_b32 s15, s3, 13
    s_lshl_b32 s5, s11, 1             ; rotation 2j
    v_lshrrev_b32 v71, 2, v7
    v_lshl_add_u32 v71, v6, 3, v71
    v_lshlrev_b32 v71, 7, v71
    v_and_b32 v13, 3, v1
    v_lshl_add_u32 v71, v13, 3, v71
    v_bfe_u32 v13, v1, 3, 2
    v_lshl_add_u32 v71, v13, 5, v71
    v_add_u32 v71, s15, v71
    """)
    def wo_dma(rho, lo, hi, win):
        for n in range(lo, hi):
            if win: a('s_waitcnt vmcnt(%d)' % (win - 1))
            if o.get('rot', 0):
                a('s_add_u32 s61, s5, %d' % n)
                a('s_and_b32 s61, s61, 7')
                a('s_lshl_b32 s62, s61, 10')
                a('s_add_u32 s62, s62, s15')
                a('s_add_u32 m0, s62, %d' % (rho * 65536))
                a('s_lshl_b32 s61, s61, 13')
                a('s_add_u32 s61, s61, s14')
                a('s_add_u32 s60, s61, %d' % (rho * 65536))
            else:
                a('s_add_u32 m0, s15, %d' % (rho * 65536 + n * 1024))
                a('s_add_u32 s60, s14, %d' % ((64 * rho + 8 * n) * 1024))
            a('buffer_load_dwordx4 v%d, s[48:51], s60 offen %s lds' % (68 if n % 2 == 0 else 69, WOPOL))
    WOF = 72
    def wo_read(rho):
        for mt in range(4):
            a('v_xor_b32 v13, 0x%x, v71' % (rho * 65536 + mt * 32))
            for ksl in range(2):
                for rdi in range(2):
                    a.d('ds_read_b64_tr_b16 %s, v13 offset:%d' % (R(WOF + (mt * 4 + 2 * rho + ksl) * 4 + 2 * rdi, 2), ksl * 4096 + rdi * 512), 'wo')
            if mt % 2: a.dall()
    NW0 = o.get('nwo0', 3)
    wo_dma(0, 0, NW0, 0)
    a('s_waitcnt vmcnt(%d)' % NW0)
    a('s_barrier')
    a("""
    s_cmp_ge_u32 s12, 88
    s_cbranch_scc1 L_Wnf2
    s_lshl_b32 s60, s8, 7
    v_add_u32 v13, s60, v5            ; xn + 64x*2 + g*16
    v_add_u32 v15, 0x10000, v4
    """)
    for ks in range(2):
        a('ds_read_b128 %s, v13 offset:%d' % (R(52 + 4 * ks, 4), ks * 64))
        for rdi in range(2):
            a('ds_read_b64_tr_b16 %s, v15 offset:%d' % (R(36 + 4 * ks + 2 * rdi, 2), ks * 8192 + rdi * 1024))
    a("""
    v_lshrrev_b32 v12, 2, v1
    v_and_b32 v13, 3, v1
    v_lshlrev_b32 v13, 3, v13
    v_lshl_add_u32 v12, v12, 7, v13
    s_lshl_b32 s60, s3, 11
    s_add_u32 s60, s60, 0x%x
    v_add_u32 v12, s60, v12
    s_waitcnt lgkmcnt(0)
    v_mfma_f32_16x16x32_bf16 v[32:35], v[52:55], v[36:39], 0
    v_mfma_f32_16x16x32_bf16 v[32:35], v[56:59], v[40:43], v[32:35]
    """ % W2L)
    for mt in range(4):
        a('ds_read_b64_tr_b16 %s, v12 offset:%d' % (R(44 + 2 * mt, 2), mt * 32))
    a("""
    s_lshl_b32 s60, s12, 10
    s_lshl_b32 s61, s3, 7
    s_add_u32 s60, s60, s61
    s_add_u32 s60, s60, 0x%x          ; HP + (8k+x)*1024 + w*128
    v_lshlrev_b32 v12, 3, v7
    v_mov_b32 v33, s4
    s_mov_b64 exec, 0xffff
    buffer_store_dwordx2 v[32:33], v12, s[44:47], s60 offen sc1
    s_mov_b64 exec, -1
    L_Wnf2:
    s_waitcnt lgkmcnt(0)
    """ % HP)
    a.lg = []
    a('s_barrier')
    wo_dma(0, NW0, 8, WW)
    wo_dma(1, 0, 4, WW)
    a('''
    s_cmp_ge_u32 s12, 86
    s_cbranch_scc1 L_Wnf3
    s_lshl_b32 s60, s9, 13
    s_lshl_b32 s61, s8, 7
    s_add_u32 s60, s60, s61
    s_add_u32 s60, s60, 0x%x          ; HP + k*8192 + x*128
    v_and_b32 v12, 7, v1
    v_lshlrev_b32 v12, 10, v12
    v_lshl_add_u32 v12, v6, 5, v12    ; producer*1024 + g*32
    s_mov_b32 s61, 0
    L_Wh:
    buffer_load_dwordx4 v[52:55], v12, s[44:47], s60 offen sc1
    buffer_load_dwordx4 v[56:59], v12, s[44:47], s60 offen offset:16 sc1
    s_add_u32 s61, s61, 1
    s_waitcnt vmcnt(0)
    v_xor_b32 v13, v53, v55
    v_xor_b32 v14, v57, v59
    v_xor_b32 v15, s4, v53
    v_or3_b32 v13, v13, v14, v15
    v_xor_b32 v14, v53, v57
    v_or_b32 v13, v13, v14
    v_cmp_ne_u32 vcc, 0, v13
    s_cmp_gt_u32 s61, SPIN_N
    s_cbranch_scc1 L_Wh_x
    s_cbranch_vccnz L_Wh
    L_Wh_x:
    ''' % HP)
    for m in ('quad_perm:[1,0,3,2]', 'quad_perm:[2,3,0,1]', 'row_half_mirror'):
        for r in range(4):
            a('v_add_f32_dpp v%d, v%d, v%d %s row_mask:0xf bank_mask:0xf' % (52 + 2 * r, 52 + 2 * r, 52 + 2 * r, m))
    for r in range(4):
        a.rnd_bf16(52 + 2 * r)
        a.silu(52 + 2 * r, 53)
    a('v_cvt_pk_bf16_f32 v32, v52, v54')
    a('v_cvt_pk_bf16_f32 v33, v56, v58')
    for mt in range(4):
        a('v_mfma_f32_16x16x16_bf16 %s, v[32:33], %s, 0' % (R(52 + 4 * mt, 4), R(44 + 2 * mt, 2)))
    a('''
    v_cndmask_b32 v52, v52, v56, s[52:53]
    v_cndmask_b32 v52, v52, v60, s[54:55]
    v_cndmask_b32 v52, v52, v64, s[56:57]
    buffer_store_dword v52, v11, s[44:47], s66 offen sc1
    L_Wnf3:
    ''')
    wo_dma(1, 4, 8, WW)
    a('s_waitcnt vmcnt(4)')
    wo_read(0)
    a('s_barrier')
    a.stamp(10)
    a.srd(40, WUV, 0x400000)
    a("""
    v_lshl_add_u32 v2, v6, 17, v8     ; r4*16 rows
    v_xor_b32 v3, 0x80, v2
    s_lshl_b32 s14, s11, 6
    s_add_u32 s14, s14, s3            ; 64j + w
    s_lshl_b32 s14, s14, 14           ; (128j + 2w)*8192
    s_add_u32 s14, s14, s13
    s_lshl_b32 s15, s3, 12
    """)
    a.vm = []
    for i in range(4):
        if WW2: a('s_waitcnt vmcnt(%d)' % (WW2 - 1))
        a('s_add_u32 m0, s15, %d' % (i * 1024))
        a('s_add_u32 s60, s14, %d' % ((64 * (i & 1) + (i >> 1)) * 8192))
        a('buffer_load_dwordx4 v%d, s[40:43], s60 offen nt lds' % (2 if i < 2 else 3))
    a('s_waitcnt vmcnt(4)')
    wo_read(1)
    for p in range(4):
        a('v_cmp_eq_u32 vcc, %d, v7' % (2 * p))
        a('v_mov_b32 v%d, 0' % (56 + p))
        a('v_mov_b32 v64, 0xffff')
        a('v_cndmask_b32 v%d, v%d, v64, vcc' % (56 + p, 56 + p))
        a('v_cmp_eq_u32 vcc, %d, v7' % (2 * p + 1))
        a('v_mov_b32 v64, 0xffff0000')
        a('v_cndmask_b32 v%d, v%d, v64, vcc' % (56 + p, 56 + p))
        a('v_and_b32 v%d, 0x3f803f80, v%d' % (60 + p, 56 + p))
    a("""
    v_lshrrev_b32 v64, 1, v6
    v_mul_u32_u24 v64, 0x%x, v64
    v_lshl_add_u32 v64, v7, 4, v64
    v_and_b32 v65, 1, v6
    v_lshl_add_u32 v64, v65, 3, v64
    s_mul_i32 s60, s3, 288
    s_add_u32 s60, s60, 0x%x
    v_add_u32 v64, s60, v64
    v_and_b32 v65, 7, v1
    v_mul_u32_u24 v65, 288, v65
    v_add_u32 v65, v65, v5
    s_lshl_b32 s60, s3, 5
    s_add_u32 s60, s60, 0x%x
    v_lshl_add_u32 v66, v7, 1, s60
    """ % (8 * 288, ROWS, CB))
    a('s_waitcnt vmcnt(0)')
    a('s_barrier')
    a.stamp(5)
    for ks in range(4):
        for rdi in range(2):
            a.d('ds_read_b64_tr_b16 %s, v4 offset:%d' % (R(16 + 4 * ks + 2 * rdi, 2), ks * 8192 + rdi * 1024), 'uv')
    a.dall()
    a.stamp(6)
    a('''
    v_lshlrev_b32 v14, 11, v7
    s_lshl_b32 s60, s3, 3
    s_add_u32 s60, s60, 0x%x
    v_mov_b32 v70, s60                ; LW + w*8
    v_and_b32 v71, 7, v1
    v_lshlrev_b32 v71, 3, v71
    v_add_u32 v71, 0x%x, v71          ; LW + (l%%8)*8
    s_mov_b32 s60, 0
    s_mov_b64 s[62:63], -1
    L_Wg1:
    s_sleep ML_SLEEP
    s_mov_b64 exec, s[62:63]
    buffer_load_dwordx4 v[52:55], v14, s[44:47], s67 offen sc1
    s_add_u32 s60, s60, 1
    s_waitcnt vmcnt(0)
    v_subrev_u32 v12, s4, v55
    v_cmp_lt_u32 s[62:63], 1, v12
    s_cmp_gt_u32 s60, SPIN_N
    s_cbranch_scc1 L_Wg
    s_cmp_lg_u64 s[62:63], 0
    s_cbranch_scc1 L_Wg1
    ''' % (LW, LW))
    if a.stamps: a('s_mov_b32 s60, 0')
    a.label('L_Wg')
    a('s_mov_b64 exec, -1')
    for i in range(4):
        a('buffer_load_dwordx4 %s, v9, s[44:47], s69 offen offset:%d sc1' % (R(36 + 4 * i, 4), i * 1024))
    a('buffer_load_dwordx4 v[52:55], v14, s[44:47], s67 offen sc1')
    a('s_add_u32 s60, s60, 1')
    a('v_cmp_gt_u32 s[62:63], 16, v1')
    for i in range(4):
        a('s_waitcnt vmcnt(%d)' % (4 - i))
        a('v_mfma_f32_16x16x32_bf16 v[32:35], v[60:63], %s, %s' % (R(36 + 4 * i, 4), 'v[32:35]' if i else '0'))
        if i == 0:
            a('v_add3_u32 v15, v36, v37, v38')
            a('v_add_u32 v15, v15, v39')
        else:
            a('v_add3_u32 v15, v15, v%d, v%d' % (36 + 4 * i, 37 + 4 * i))
            a('v_add3_u32 v15, v15, v%d, v%d' % (38 + 4 * i, 39 + 4 * i))
    a("""
    s_waitcnt vmcnt(0)
    v_subrev_u32 v12, s4, v54
    v_cndmask_b32 v12, 0, v12, s[62:63]
    v_add_u32 v15, v15, v12
    v_xor_b32 v12, s4, v55
    """)
    a.wave_red('v_add_u32', 15, 13)
    a("""
    v_or_b32 v15, v15, v12
    v_cmp_ne_u32 vcc, 0, v15
    s_cmp_gt_u32 s60, SPIN_N
    s_cbranch_scc1 L_Wg_x
    s_cbranch_vccnz L_Wg
    L_Wg_x:
    """)
    a.stamp(7)
    if a.stamps:
        a('s_mul_i32 s92, s60, 100')
        a('s_add_u32 s92, s92, s70')
        a('s_addc_u32 s93, s71, 0')
    a("""
    v_cmp_neq_f32 vcc, 0, v52
    s_cbranch_vccnz L_Wgen
    """)
    a.label('L_Wj')
    a.wave_red('v_add_f32', 53, 12, rows_only=True)
    a('''
    ds_write_b64 v70, v[52:53]
    v_cvt_pk_bf16_f32 v32, v32, v33
    v_cvt_pk_bf16_f32 v33, v34, v35
    ds_write_b64 v64, v[32:33]
    s_waitcnt lgkmcnt(0)
    s_barrier
    ''')
    a.stamp(8)
    for ks in range(4):
        a.d('ds_read_b128 %s, v65 offset:%d' % (R(36 + 4 * ks, 4), ROWS - SM + ks * 64), 'a%d' % ks)
    a.d('ds_read_b64 v[52:53], v71', 'lw')
    for ks in range(4):
        a.dwait('a%d' % ks)
        a('v_mfma_f32_16x16x32_bf16 v[32:35], %s, %s, %s' % (R(36 + 4 * ks, 4), R(16 + 4 * ks, 4), 'v[32:35]' if ks else '0'))
    a.dall()
    a('''
    v_cmp_neq_f32 vcc, 0, v52
    s_cbranch_vccnz L_Wgen2
    L_Wj2:
    v_add_f32_dpp v53, v53, v53 quad_perm:[1,0,3,2] row_mask:0xf bank_mask:0xf
    s_nop 1
    v_add_f32_dpp v53, v53, v53 quad_perm:[2,3,0,1] row_mask:0xf bank_mask:0xf
    s_nop 1
    v_add_f32_dpp v53, v53, v53 row_half_mirror row_mask:0xf bank_mask:0xf
    v_add_f32 v32, v32, v33
    v_add_f32 v34, v34, v35
    v_rcp_f32 v67, v53
    v_add_f32 v32, v32, v34
    ''')
    a.swap_red('v_add_f32', 32, 33, 16)
    a('''
    v_mul_f32 v32, v32, v67
    v_cvt_pk_bf16_f32 v32, v32, v32
    ds_write_b16 v66, v32
    s_waitcnt lgkmcnt(0)
    s_barrier
    ''')
    for ks in range(4):
        a.d('ds_read_b128 %s, v5 offset:%d' % (R(36 + 4 * ks, 4), CB - SM + ks * 64), 'a%d' % ks)
    for ks in range(4):
        a.dwait('a%d' % ks)
        for mt in range(4):
            a('v_mfma_f32_16x16x32_bf16 %s, %s, %s, %s' % (R(16 + 4 * mt, 4), R(36 + 4 * ks, 4), R(WOF + (mt * 4 + ks) * 4, 4), R(16 + 4 * mt, 4) if ks else '0'))
    a('''
    v_cndmask_b32 v16, v16, v20, s[52:53]
    v_cndmask_b32 v16, v16, v24, s[54:55]
    v_cndmask_b32 v16, v16, v28, s[56:57]
    buffer_store_dword v16, v11, s[44:47], s58 offen sc1
    ''')
    a.stamp(9)
    if a.stamps:
        a('s_cmp_lg_u32 s3, %d' % o.get('stw', 0))
        a('s_cbranch_scc1 L_end')
        a.write_stamps()
    a('s_endpgm')

def role_Wslow(a, o):
    a.aslow()
    a.label('L_Wgen')
    a('v_mov_b32 v12, v52')
    a.wave_red('v_max_f32', 12, 13, rows_only=True)
    a('''
    v_sub_f32 v54, v52, v12
    v_exp_f32 v54, v54
    v_mov_b32 v52, v12                ; Mw
    v_and_b32 v54, 0xffff0000, v54
    v_mul_f32 v53, v53, v54
    v_lshrrev_b32 v55, 16, v54
    v_or_b32 v54, v54, v55
    v_lshlrev_b32 v13, 2, v6
    ''')
    for i in range(4):
        a('ds_bpermute_b32 v12, v13, v54 offset:%d' % (16 * i))
        a('s_waitcnt lgkmcnt(0)')
        for p in range(4):
            a('v_and_b32 v%d, v12, v%d' % (60 + p, 56 + p))
        a('v_mfma_f32_16x16x32_bf16 v[32:35], v[60:63], %s, %s' % (R(36 + 4 * i, 4), 'v[32:35]' if i else '0'))
    a('s_nop 7')
    a('s_branch L_Wj')
    a.label('L_Wgen2')
    a('''
    v_mov_b32 v12, v52
    v_max_f32_dpp v12, v12, v12 quad_perm:[1,0,3,2] row_mask:0xf bank_mask:0xf
    v_max_f32_dpp v12, v12, v12 quad_perm:[2,3,0,1] row_mask:0xf bank_mask:0xf
    v_max_f32_dpp v12, v12, v12 row_half_mirror row_mask:0xf bank_mask:0xf
    v_sub_f32 v54, v52, v12
    v_exp_f32 v54, v54
    v_and_b32 v13, 1, v6
    v_lshlrev_b32 v13, 4, v13
    v_mul_f32 v53, v53, v54
    ''')
    for r in range(4):
        a('ds_bpermute_b32 v12, v13, v54 offset:%d' % (4 * r))
        a('s_waitcnt lgkmcnt(0)')
        a('v_mul_f32 v%d, v%d, v12' % (32 + r, 32 + r))
    a('s_nop 1')
    a('s_branch L_Wj2')

def gen(stamps=False, o=None):
    o = o or {}
    a = G(stamps)
    prologue(a, o)
    role_W(a, o)
    role_A(a, o)
    role_final(a, o)
    role_As(a, o)
    role_Wslow(a, o)
    a.label('L_end')
    txt = a.text()
    for k, v in (('QT_SLEEP', o.get('qtsleep', 1)), ('QT_THR', o.get('qtthr', 2)), ('REP_MASK', o.get('repmask', '0x00010001')), ('LSPIN', 200000), ('SPIN_N', SPIN),
                 ('ML_SLEEP', o.get('mlsleep', 2)), ('FIN_SLEEP', o.get('finsleep', 1)), ('UKGATE', o.get('ukgate', 3))):
        txt = txt.replace(k, str(v))
    txt = txt.replace('W1A ', '; ' if o.get('now1', 0) else '')
    txt = txt.replace('PTA ', '' if o.get('pre', 0) else '; ').replace('ML_OFF', '0x%x' % ML)
    qs = o.get('qcsh', 7)
    txt = txt.replace('QCSH+5', str(qs + 5)).replace('QCSH', str(qs)).replace('QCEX', {5: '0x3ffff', 6: '0xfffff', 7: '0xffffff'}[qs]).replace('REP_N', str(o.get('repn', 1)))
    txt = txt.replace('NODEP ', '' if o.get('nodep', 0) else '; ')
    if o.get('nodep', 0): txt = txt.replace('s_or_b32 s14, vcc_lo, vcc_hi', 's_mov_b32 s14, 0')
    if o.get('now1', 0): txt = txt.replace('buffer_load_dwordx4 v14, s[40:43], s14 offen', '; ').replace('buffer_load_dwordx4 v14, s[40:43], s60 offen', '; ')
    body = hz.fix(txt)
    return kernel_file([(KN + '_kernel', 256, 512, 163840)], [(KN + '_kernel', body, 256, 96, 256)])

if __name__ == '__main__':
    out = sys.argv[1]
    stamps = 'stamps' in sys.argv[2:]
    o = {}
    for kv in sys.argv[2:]:
        if '=' in kv:
            k, v = kv.split('=')
            o[k] = int(v) if v.lstrip('-').isdigit() else v.replace('_', ' ')
    open(out, 'w').write(gen(stamps, o))
```

```python
from gen14 import *

RLB = STG + 0x2000
RB = STG + 0x3100

def role_A(a, o):
    AW = o.get('awin', 8); AW0 = o.get('awin0', 1); AN0 = o.get('an0', 3); NPRE = o.get('npre', 20)
    a.label('L_A')
    a.stamps_hold = False
    a.vm = []; a.lg = []; a.slow = []
    common2(a)
    a.srd(40, CKV, 0x2000000)
    def voffs(x, y):
        a('''
        v_mbcnt_lo_u32_b32 v%d, -1, 0
        v_mbcnt_hi_u32_b32 v%d, -1, v%d
        v_lshrrev_b32 v%d, 4, v%d
        v_and_b32 v%d, 15, v%d
        v_lshlrev_b32 v%d, 4, v%d
        v_mul_u32_u24 v%d, 0x440, v%d
        v_xor_b32 v%d, v%d, v%d
        v_xor_b32 v%d, 32, v%d
        ''' % (x, x, x, y, x, x, x, x, x, y, y, x, x, y, y, x))
    voffs(3, 0)
    a("""
    s_and_b32 s59, s2, 7
    s_lshl_b32 s59, s59, 4
    s_lshr_b32 s8, s2, 3
    s_add_u32 s59, s59, s8            ; p
    s_lshl_b32 s8, s59, 18
    s_cmp_ge_u32 s3, 4
    s_cbranch_scc1 L_As
    s_lshl_b32 s9, s3, 14
    s_add_u32 s8, s8, s9
    s_lshl_b32 s10, s3, 8
    s_or_b32 s66, s8, s10
    s_lshl_b32 s10, s3, 10
    s_or_b32 s67, s9, s10
    AMIX s_and_b32 s10, s3, 1
    AMIX s_lshl_b32 s10, s10, 13
    AMIX s_or_b32 s66, s66, s10
    AMIX s_or_b32 s67, s67, s10
    s_mov_b32 s15, 0
    v_mov_b32 v10, 0
    v_mov_b32 v11, 0
    """)
    def dma_one(i, seg, aa, win=None):
        if win is not None: a.vwait_n(win - 1)
        a('s_xor_b32 m0, s67, 0x%x' % ((i % 2) * 65536 + aa * 4096 + seg * 1024))
        a('s_xor_b32 s10, s66, 0x%x' % (i * 65536 + aa * 4096 + seg * 256))
        a.v('buffer_load_dwordx4 v%d, s[40:43], s10 offen nt lds' % (3 if aa < 2 else 0), 'C%d' % i)
    a.label('L_Apass')
    a('''
    AMIX s_and_b32 s10, s3, 1
    AMIX s_lshl_b32 s10, s10, 5
    AMIX v_xor_b32 v3, s10, v3
    AMIX v_xor_b32 v0, s10, v0
    ''')
    a.vm = []
    first = [(i, seg, aa) for i in range(2) for aa in range(4) for seg in range(4)]
    for n in range(AW0): dma_one(*first[n])
    a("""
    v_mbcnt_lo_u32_b32 v1, -1, 0
    v_mbcnt_hi_u32_b32 v1, -1, v1
    v_lshrrev_b32 v16, 4, v1          ; g / q
    v_and_b32 v17, 15, v1             ; l%%16
    v_lshlrev_b32 v5, 4, v1
    v_add_u32 v5, 0x%x, v5            ; p_rd
    v_lshlrev_b32 v18, 4, v16
    v_xor_b32 v32, v5, v18            ; q frag read (even ks)
    v_xor_b32 v33, 64, v32            ; (odd ks)
    ; p_wr = PB + (w>>1)*2048 + (2(w&1) + (q>>1))*256 + h16*16 + (q&1)*8
    s_lshr_b32 s10, s3, 1
    s_lshl_b32 s10, s10, 11
    s_and_b32 s11, s3, 1
    s_lshl_b32 s11, s11, 9
    s_add_u32 s10, s10, s11
    s_add_u32 s10, s10, 0x%x
    v_lshrrev_b32 v18, 1, v16         ; q>>1
    v_lshlrev_b32 v19, 8, v18
    v_lshl_add_u32 v19, v17, 4, v19
    v_and_b32 v20, 1, v16             ; q&1
    v_lshl_add_u32 v19, v20, 3, v19
    v_add_u32 v4, s10, v19
    ; pv addr: (g>>1)*16384 + 2(g&1)*4096 + w*1024 + r*256 + ((c'/2) ^ ((r<<2) | 2(g&1)))*16 + (c'&1)*8
    v_lshrrev_b32 v21, 2, v17         ; r (pv) / a (qk)
    v_bfe_u32 v22, v1, 1, 1
    v_lshl_add_u32 v22, v20, 1, v22
    v_lshl_add_u32 v22, v21, 2, v22
    v_lshlrev_b32 v22, 4, v22
    v_lshl_add_u32 v22, v21, 8, v22
    v_lshl_add_u32 v22, v20, 13, v22
    v_lshl_add_u32 v22, v18, 14, v22
    v_and_b32 v23, 1, v1
    v_lshl_add_u32 v22, v23, 3, v22
    s_lshl_b32 s10, s3, 10
    v_add_u32 v2, s10, v22
    ; qk addr: w*16384 + a*4096 + r*256 + ((r<<2) | (g ^ (a&2)))*16
    v_and_b32 v22, 3, v17
    v_and_b32 v23, 2, v21
    v_xor_b32 v23, v23, v16
    v_lshl_add_u32 v23, v22, 2, v23
    v_lshlrev_b32 v23, 4, v23
    v_lshl_add_u32 v23, v22, 8, v23
    v_lshl_add_u32 v23, v21, 12, v23
    v_add_u32 v12, s9, v23
    v_xor_b32 v13, 64, v12
    v_xor_b32 v14, 0x80, v12
    v_xor_b32 v15, 0xc0, v12
    v_mov_b32 v6, 0
    v_mov_b32 v7, 0
    v_mov_b32 v8, 0xff800000
    v_mov_b32 v9, 0xff800000
    """ % (PB, PB))
    SS = [[16, 20], [24, 28]]; P = [32, 36, 40, 44]; XQ = [48, 52, 56, 60]
    def O(hh, ct): return 64 + (hh * 8 + ct) * 4
    def QF(hh, ks): return 128 + (hh * 16 + ks) * 4
    def s_init(i, hh):
        for r in range(4): a('v_mov_b32 v%d, v%d' % (SS[i % 2][hh] + r, 10 + hh))
    s_init(0, 0); s_init(0, 1)
    for n in range(AW0, NPRE): dma_one(*first[n], AW0 if n < AN0 else AW)
    def hcheck(need):
        lab = a.newlabel('L_Ahc')
        a('s_cmp_ge_u32 s62, %d' % need)
        a('s_cbranch_scc0 %s' % lab)
        a.label(lab + 'b')
        a.slow.append('''
        %s:
        s_mov_b32 s11, 0
        %sl:
        ds_read_b32 v1, v3 offset:32
        s_add_u32 s11, s11, 1
        s_waitcnt lgkmcnt(0)
        v_readfirstlane_b32 s62, v1
        s_sub_u32 s62, s62, s57
        s_cmp_gt_u32 s62, 15
        s_cselect_b32 s62, 0, s62
        s_cmp_gt_u32 s11, LSPIN
        s_cbranch_scc1 %sb
        s_cmp_lt_u32 s62, %d
        s_cbranch_scc1 %sl
        s_branch %sb
        ''' % (lab, lab, lab, need, lab, lab))
    def pcheck(off=0, redo=''):
        lab = a.newlabel('L_Apc')
        a('v_subrev_u32 v1, s63, v1')
        a('v_cmp_lt_u32 vcc, 7, v1')
        a('s_cbranch_vccnz %s' % lab)
        a.label(lab + 'b')
        a.slow.append('''
        %s:
        s_mov_b32 s11, 0
        %sl:
        ds_read_b32 v1, v0 offset:%d
        s_add_u32 s11, s11, 1
        s_waitcnt lgkmcnt(0)
        v_subrev_u32 v1, s63, v1
        v_cmp_lt_u32 vcc, 7, v1
        s_cmp_gt_u32 s11, LSPIN
        s_cbranch_scc1 %sr
        s_cbranch_vccnz %sl
        %sr:
        %s
        s_branch %sb
        ''' % (lab, lab, off, lab, lab, lab, redo, lab))
    pairs = [SS[1], XQ[0:2], XQ[2:4]]
    KB = pairs[2] + pairs[0] + pairs[1] + P + pairs[2] + P
    def kbuf(g): return 64 + 4 * g if g < 16 else KB[g % 16]
    def rk(g):
        i, seg, k = g // 16, (g % 16) // 4, g % 4
        if ('C%d' % i) in a.vm: a.vwait('C%d' % i)
        if i >= 2 and g % 8 == 0: hcheck((i - 2) * 4 + seg + 2)
        if i and seg == 0: a('v_xor_b32 v%d, 0x10000, v%d' % (12 + k, 12 + k))
        a.d('ds_read_b128 %s, v%d offset:%d' % (R(kbuf(g), 4), 12 + k, seg * 1024), 'k%d' % g)
    def step(g, nxt=True):
        i = g // 16
        a.dwait('k%d' % g)
        for hh in range(2):
            s = SS[0][hh]
            a('v_mfma_f32_16x16x32_bf16 %s, %s, %s, %s' % (R(s, 4), R(kbuf(g), 4), R(QF(hh, g % 16), 4), R(s, 4)))
        if nxt: rk(g + 5)
    pvstate = [0]
    def pv_addr(i, ct):
        want = (i % 2) * 65536 + (ct << 5)
        if want != pvstate[0]:
            a('v_xor_b32 v2, 0x%x, v2' % (want ^ pvstate[0]))
            pvstate[0] = want
    def rv(i, ct, ks2, dst):
        pv_addr(i, ct)
        for rdi in range(2):
            a.d('ds_read_b64_tr_b16 %s, v2 offset:%d' % (R(dst + 2 * rdi, 2), ks2 * 32768 + rdi * 4096), 'v%d_%d' % (ct, ks2))
    for g in range(16): rk(g)
    if 'C0' in a.vm: a.vwait('C0')
    if o.get('diaga', -1) < 0: a.stamp(10)
    a('s_barrier')
    if o.get('diaga', -1) < 0: a.stamp(11)
    a('v_mov_b32 v35, 0')
    a.v('global_load_dword v34, v35, s[36:37] sc1', 'N')
    a('s_cmp_eq_u32 s15, 0')
    a('s_cbranch_scc1 L_Anr')
    sv = list(a.vm)
    for n in range(NPRE, 32): dma_one(*first[n])
    a('s_waitcnt vmcnt(0)')
    a.vm = sv
    a.label('L_Anr')

    for ct in range(3):
        for ks2 in range(2): rv(0, ct, ks2, pairs[ct][ks2])
    a('''
    v_and_b32 v0, 3, v1
    v_lshlrev_b32 v0, 2, v0
    v_add_u32 v0, 0x%x, v0            ; flag read addr
    s_lshl_b32 s10, s3, 2
    s_add_u32 s10, s10, 0x%x
    v_mov_b32 v3, s10                 ; own flag addr
    s_mov_b32 s62, 0
    ''' % (FL, FL))
    a.dall()
    DA = o.get('diaga', -1)
    def ds(i, k):
        if DA == i:
            a('s_memtime s[%d:%d]' % (70 + 2 * k, 71 + 2 * k))
    a.stamp(1)
    a('s_barrier')
    a.stamp(2)
    if DA >= 0: a.stamps_mute = True
    ds(9, 3)
    a('s_cmp_lg_u32 s15, 0')
    a('s_cbranch_scc1 L_Anoq')
    def rq(ks):
        for hh in range(2):
            a.d('ds_read_b128 %s, v%d offset:%d' % (R(QF(hh, ks), 4), 32 + (ks & 1), (hh * 16 + ks) * 1024), 'q%d' % ks)
    QD = 6
    for ks in range(QD): rq(ks)
    vm0 = list(a.vm)
    for g in range(12):
        a.dwait('q%d' % g)
        step(g, False)
        if g + QD < 16: rq(g + QD)
        if g in (0, 5): ds(9, 4 if g == 0 else 5)
    a.dall()
    a('s_branch L_Aq2')
    a.label('L_Anoq')
    vm1 = list(a.vm)
    a('s_waitcnt vmcnt(0)')
    a('s_add_u32 s10, s58, 24')
    a('v_mov_b32 v1, s10')
    a('ds_write_b32 v3, v1 offset:32')
    for g in range(12): step(g, False)
    a.dall()
    a.vm = vm1
    a.label('L_Aq2')
    ds(9, 6)
    if 'N' in a.vm: a.vwait('N')
    a('''
    v_readfirstlane_b32 s58, v34
    s_lshl_b32 s10, s15, 4
    s_add_u32 s57, s58, s10
    s_barrier                         ; B1
    ''')
    ds(9, 7)
    def half(g, hh):
        a.dwait('k%d' % g)
        a('v_mfma_f32_16x16x32_bf16 %s, %s, %s, %s' % (R(SS[0][hh], 4), R(kbuf(g), 4), R(QF(hh, g % 16), 4), R(SS[0][hh], 4)))
    def last4(g, fill=None):
        for k in range(0, 4):
            half(g + k, 0)
            if fill: fill()
        for k in range(4):
            half(g + k, 1)
            if fill: fill()
    last4(12)
    ds(9, 8)
    E = 36
    def sm_ops(i):
        S = SS[0]; pb = (i % 2) * 4096
        def ex(hh, rs): return [(lambda hh=hh, r=r: a('v_exp_f32 v%d, v%d' % (E + 4 * hh + r, S[hh] + r))) for r in rs]
        def cw(hh):
            def f():
                for r in range(2):
                    a('v_cvt_pk_bf16_f32 v%d, v%d, v%d' % (32 + 2 * hh + r, E + 4 * hh + 2 * r, E + 4 * hh + 2 * r + 1))
                a.d('ds_write_b64 v4, %s offset:%d' % (R(32 + 2 * hh, 2), pb + 1024 * hh), 'w')
            return f
        def flag():
            a('s_add_u32 s63, s57, %d' % i)
            a('v_mov_b32 v1, s63')
            a.d('ds_write_b32 v3, v1', 'w')
        def mxl(hh):
            def f():
                a('v_add_f32 v%d, v%d, v%d' % (E + 4 * hh, E + 4 * hh, E + 4 * hh + 1))
                a('v_add_f32 v%d, v%d, v%d' % (E + 4 * hh + 2, E + 4 * hh + 2, E + 4 * hh + 3))
                a('v_max3_f32 v%d, v%d, v%d, v%d' % (8 + hh, 8 + hh, S[hh], S[hh] + 1))
                a('v_add_f32 v%d, v%d, v%d' % (6 + hh, 6 + hh, E + 4 * hh))
                a('v_max3_f32 v%d, v%d, v%d, v%d' % (8 + hh, 8 + hh, S[hh] + 2, S[hh] + 3))
                a('v_add_f32 v%d, v%d, v%d' % (6 + hh, 6 + hh, E + 4 * hh + 2))
            return f
        def chk():
            for f in ((0, 1, 2, 3) if i < 3 else (0, 2, 1, 3)):
                a.d('ds_read_b128 %s, v5 offset:%d' % (R(P[f], 4), pb + f * 1024), 'p%d' % f)
        return ex, cw, flag, mxl, chk
    VCK = o.get('vck', 7)
    for i in range(3):
        ds(i, 3)
        ex, cw, flag, mxl, chk = sm_ops(i)
        g0 = 16 * (i + 1)
        for f in ex(0, range(4)): f()
        cw(0)()
        for f in ex(1, range(4)): f()
        cw(1)()
        flag()
        ds(i, 4)
        mxl(0)(); mxl(1)()
        a.d('ds_read_b32 v1, v0', 'pf')
        n0 = len(a.lines)
        chk()
        redo = [l.strip() for l in a.lines[n0:] if 's_waitcnt' not in l] + ['s_waitcnt lgkmcnt(0)']
        s_init(0, 0); s_init(0, 1)
        a.dwait('pf')
        pcheck(0, '\n'.join(redo))
        ds(i, 5)
        for ct in range(8):
            for ks2 in range(2):
                a.dwait('v%d_%d' % (ct, ks2))
                for hh in range(2):
                    a.dwait('p%d' % (ks2 * 2 + hh))
                    cin = '0' if (i == 0 and ks2 == 0) else R(O(hh, ct), 4)
                    a('v_mfma_f32_16x16x32_bf16 %s, %s, %s, %s' % (R(O(hh, ct), 4), R(P[ks2 * 2 + hh], 4), R(pairs[ct % 3][ks2], 4), cin))
                    if 3 <= ct + 2 < 8:
                        if hh == 0: pv_addr(i, ct + 2)
                        a.d('ds_read_b64_tr_b16 %s, v2 offset:%d' % (R(pairs[(ct + 2) % 3][ks2] + 2 * hh, 2), ks2 * 32768 + hh * 4096), 'v%d_%d' % (ct + 2, ks2))
                if ct == 0 and ks2 == 0: ds(i, 6)
                if ct == 4 and ks2 == 0: ds(i, 7)
                if ct == 5 and ks2 == 1: a.d('ds_read_b32 v1, v3 offset:32', 'hf')
                if ct == 6 and ks2 == 1:
                    a.dall()
                    if i >= 0:
                        a('''
                    v_readfirstlane_b32 s62, v1
                    s_sub_u32 s62, s62, s57
                    s_cmp_gt_u32 s62, 15
                    s_cselect_b32 s62, 0, s62
                    ''')
                    if i == 0:
                        a.vall()
                        hcheck(1)
                    if i < 2:
                        a('v_mov_b32 v1, s63')
                        a.d('ds_write_b32 v3, v1 offset:16', 'w')
                        a.stamp(8 + i)
                        a('s_cmp_lg_u32 s15, 0')
                        a('s_cbranch_scc1 L_Arf%d' % i)
                        a.label('L_Arb%d' % i)
                    rk(g0); rk(g0 + 1)
                if ct == 7 and ks2 == 0: rk(g0 + 2); rk(g0 + 3)
        ds(i, 8)
        rk(g0 + 4)
        if i < 2:
            vq = [(ct, ks2) for ct in range(3) for ks2 in range(2)]
            def vfill():
                if vq:
                    ct, ks2 = vq.pop(0)
                    rv(i + 1, ct, ks2, pairs[ct][ks2])
            for s in range(12):
                step(g0 + s, s < 11)
                if s == 0: ds(i, 9)
                if s == 8: ds(i, 10)
                if s == VCK - 3:
                    if i == 1: a('s_add_u32 s63, s57, 4')
                    a.d('ds_read_b32 v1, v0 offset:%d' % (16 + 16 * i), 'ha')
                if s == VCK:
                    a.dwait('ha')
                    pcheck(16 + 16 * i)
                if s > VCK and len(vq) > 2: vfill()
            last4(g0 + 12, vfill)
        else:
            for s in range(8): step(g0 + s, s < 3)
        ds(i, 11)
    a('''
    v_mbcnt_lo_u32_b32 v24, -1, 0
    v_mbcnt_hi_u32_b32 v24, -1, v24
    v_and_b32 v25, 15, v24
    v_lshrrev_b32 v27, 4, v24
    v_lshlrev_b32 v26, 6, v25
    v_lshl_add_u32 v26, v27, 2, v26
    s_lshl_b32 s10, s3, 4
    s_add_u32 s10, s10, 0x%x
    v_add_u32 v26, s10, v26           ; l write addr
    v_lshlrev_b32 v25, 4, v25
    v_lshl_add_u32 v25, v27, 19, v25  ; O store voffset
    v_bfe_u32 v28, v24, 3, 1
    v_lshl_add_u32 v27, v27, 2, v28
    v_bfe_u32 v28, v24, 2, 1
    v_lshl_add_u32 v27, v28, 1, v27
    v_and_b32 v28, 1, v24
    v_lshl_add_u32 v27, v28, 4, v27   ; h(lane)
    v_and_b32 v28, 2, v24
    v_lshlrev_b32 v28, 4, v28
    v_lshl_add_u32 v28, v27, 6, v28
    v_add_u32 v28, 0x%x, v28          ; l read addr
    v_lshlrev_b32 v29, 4, v27         ; MLC voffset
    s_lshl_b32 s10, s3, 15
    s_lshl_b32 s12, s59, 8
    s_add_u32 s10, s10, s12
    s_add_u32 s13, s10, 0x%x
    s_lshl_b32 s12, s59, 2
    s_add_u32 s12, s12, s3
    s_lshl_b32 s12, s12, 9
    s_add_u32 s12, s12, 0x%x
    s_mov_b32 s60, 0xaaaaaaaa
    s_mov_b32 s61, 0xaaaaaaaa
    s_mov_b32 s64, 0x33333333
    s_mov_b32 s65, 0x33333333
    s_add_u32 s63, s57, 8
    ''' % (RLB, RLB, OP, ML))
    rk(56)
    a.stamp(3)
    ds(3, 3)
    rk(57); rk(58); rk(59); rk(60)
    a.d('ds_read_b32 v1, v0 offset:32', 'ha')
    def VF(ct, ks2): return (128 if ct < 4 else 192) + ((ct % 4) * 2 + ks2) * 4
    vl = [(ct, ks2) for ct in range(8) for ks2 in range(2)]
    vi = 0
    def more(n=1):
        nonlocal vi
        for _ in range(n):
            if vi < 16:
                rv(3, vl[vi][0], vl[vi][1], VF(*vl[vi])); vi += 1
    for g in range(56, 60):
        step(g, g < 59)
        if g == 56:
            a.dwait('ha')
            pcheck(32)
        else:
            more()
    last4(60, more)
    ex, cw, flag, mxl, chk = sm_ops(3)
    for f in ex(0, range(4)): f()
    cw(0)()
    for f in ex(1, range(4)): f()
    cw(1)()
    mxl(0)(); mxl(1)()
    a.d('ds_write2st64_b32 v26, v6, v7 offset0:0 offset1:4', 'w')
    more(2)
    a.dwait('w')
    a('s_barrier')
    chk()
    ds(3, 4)
    ds(4, 3)
    more(3)
    PK = [XQ, [16, 20, 160, 164]]
    CS = 168
    def pack(hh, r):
        for k in range(4):
            a('v_cvt_pk_bf16_f32 v%d, v%d, v%d' % (PK[hh][r] + k, O(hh, 2 * k) + r, O(hh, 2 * k + 1) + r))
    def st(hh, r):
        a('s_add_u32 s11, s13, 0x%x' % ((16 * hh + r) * 131072))
        a('buffer_store_dwordx4 %s, v25, s[44:47], s11 offen sc1' % R(PK[hh][r], 4))
    def cs(hh, r):
        b = PK[hh][r]; c = CS + 4 * hh + r
        a('v_add3_u32 v%d, v%d, v%d, v%d' % (c, b, b + 1, b + 2))
        a('v_add_u32 v%d, v%d, v%d' % (c, c, b + 3))
    T = 176
    def stepA(i):
        a('v_add_u32_dpp v%d, v%d, v%d row_ror:8 row_mask:0xf bank_mask:0x3' % (T + i, CS + 2 * i, CS + 2 * i))
        a('v_add_u32_dpp v%d, v%d, v%d row_ror:8 row_mask:0xf bank_mask:0xc' % (T + i, CS + 2 * i + 1, CS + 2 * i + 1))
    def stepB(hh):
        a('v_add_u32_dpp v%d, v%d, v%d row_half_mirror row_mask:0xf bank_mask:0x5' % (T + 4 + hh, T + 2 * hh, T + 2 * hh))
        a('v_add_u32_dpp v%d, v%d, v%d row_half_mirror row_mask:0xf bank_mask:0xa' % (T + 4 + hh, T + 2 * hh + 1, T + 2 * hh + 1))
        a('v_add_u32_dpp v%d, v%d, v%d quad_perm:[1,0,3,2] row_mask:0xf bank_mask:0xf' % (T + 4 + hh, T + 4 + hh, T + 4 + hh))
    def lchk():
        a.d('ds_read_b128 v[224:227], v28', 'rl')
        a.d('ds_read_b128 v[228:231], v28 offset:16', 'rl')
    def ls1():
        a.dwait('rl')
        a('''
        v_add_f32 v224, v224, v225
        v_add_f32 v226, v226, v227
        v_add_f32 v228, v228, v229
        v_add_f32 v230, v230, v231
        ''')
    def ls2():
        a('''
        v_add_f32 v224, v224, v226
        v_add_f32 v228, v228, v230
        v_add_f32 v185, v224, v228
        v_mov_b32 v187, s58
        ''')
    f0 = {1: lchk, 5: ls1, 6: ls2, 7: lambda: a('v_add_f32_dpp v185, v185, v185 quad_perm:[2,3,0,1] row_mask:0xf bank_mask:0xf')}
    f1 = {2: lambda: pack(0, 0), 3: lambda: (st(0, 0), pack(0, 1)), 4: lambda: (st(0, 1), pack(0, 2)), 5: lambda: (st(0, 2), pack(0, 3)),
          6: lambda: (st(0, 3), cs(0, 0), cs(0, 1)), 7: lambda: (cs(0, 2), cs(0, 3), stepA(0))}
    for hh in range(2):
        for ct in range(8):
            for ks2 in range(2):
                a.dwait('v%d_%d' % (ct, ks2)); a.dwait('p%d' % (ks2 * 2 + hh))
                a('v_mfma_f32_16x16x32_bf16 %s, %s, %s, %s' % (R(O(hh, ct), 4), R(P[ks2 * 2 + hh], 4), R(VF(ct, ks2), 4), R(O(hh, ct), 4)))
            f = (f0 if hh == 0 else f1).get(ct)
            if f: f()
            if hh == 0 and ct in (1, 2, 4, 7): ds(4, {1: 4, 2: 5, 4: 6, 7: 7}[ct])
            if hh == 1 and ct in (2, 7): ds(4, {2: 8, 7: 9}[ct])
    a.stamp(4)
    ds(3, 5)
    stepA(1)
    a("""
    v_subrev_u32 v186, 0x2f800000, v185
    v_cmp_le_u32 vcc, 0x24000000, v186
    """)
    NE = o.get('nearly', 0)
    pack(1, 0)
    stepB(0)
    for r in range(4):
        if r < 3: pack(1, r + 1)
        if r < NE: st(1, r)
        cs(1, r)
        if r == 2: stepA(2)
    a("""
    s_or_b32 s14, vcc_lo, vcc_hi
    s_or_b32 s11, s14, s15
    s_cbranch_scc1 L_Aslow
    v_mov_b32 v184, 0
    L_Aok:
    """)
    stepA(3)
    stepB(1)
    a('v_cndmask_b32 v%d, v%d, v%d, s[60:61]' % (T + 4, T + 4, T + 5))
    a('v_add_u32_dpp v%d, v%d, v%d quad_perm:[2,3,0,1] row_mask:0xf bank_mask:0xf' % (T + 4, T + 4, T + 4))
    a("""
    v_sub_u32 v186, v187, v%d
    s_mov_b64 exec, s[64:65]
    buffer_store_dwordx4 v[184:187], v29, s[44:47], s12 offen sc1
    s_mov_b64 exec, -1
    """ % (T + 4))
    for r in range(NE, 4): st(1, r)
    ds(3, 6)

    def slow():
        for i in range(2):
            a.label('L_Arf%d' % i)
            a('s_waitcnt lgkmcnt(0)')
            a('s_barrier')
            voffs(1, 0)
            for seg in range(4):
                for aa in range(4):
                    a('s_add_u32 m0, s9, 0x%x' % (i * 65536 + aa * 4096 + seg * 1024))
                    a('s_add_u32 s10, s8, 0x%x' % ((i + 2) * 65536 + aa * 4096 + seg * 256))
                    a('buffer_load_dwordx4 v%d, s[40:43], s10 offen nt lds' % (1 if aa < 2 else 0))
            a('''
            v_mbcnt_lo_u32_b32 v0, -1, 0
            v_and_b32 v0, 3, v0
            v_lshlrev_b32 v0, 2, v0
            v_add_u32 v0, 0x%x, v0
            s_waitcnt vmcnt(0)
            s_barrier
            s_branch L_Arb%d
            ''' % (FL, i))
        for t in a.slow: a(t)
        a.label('L_Aslow')
        a("""
        v_lshlrev_b32 v30, 2, v27
        v_add_u32 v30, 0x%x, v30
        s_cmp_lg_u32 s15, 0
        s_cbranch_scc1 L_Aslow2
        ; first pass was unsafe: rerun with the true (rounded up) per-head max
        ds_write2st64_b32 v26, v8, v9 offset0:8 offset1:12
        s_waitcnt lgkmcnt(0)
        s_barrier
        ds_read_b128 v[224:227], v28 offset:2048
        ds_read_b128 v[228:231], v28 offset:2064
        s_waitcnt lgkmcnt(0)
        v_max3_f32 v224, v224, v225, v226
        v_max3_f32 v227, v227, v228, v229
        v_max3_f32 v224, v224, v230, v231
        v_max_f32 v184, v224, v227
        v_max_f32_dpp v184, v184, v184 quad_perm:[2,3,0,1] row_mask:0xf bank_mask:0xf
        v_ceil_f32 v184, v184
        ds_write_b32 v30, v184
        v_and_b32 v31, 15, v24
        v_lshlrev_b32 v30, 2, v31
        v_add_u32 v30, 0x%x, v30
        v_lshrrev_b32 v232, 4, v24
        v_lshlrev_b32 v232, 4, v232
        v_lshl_add_u32 v31, v31, 10, v232
        s_mov_b32 s10, 0x4000
        s_waitcnt vmcnt(0) lgkmcnt(0)
        ds_read_b32 v10, v30
        ds_read_b32 v11, v30 offset:64
        """ % (RB, RB))
        for hh in range(2):
            for ks in range(16):
                a('buffer_load_dwordx4 %s, v31, s[44:47], %s offen offset:%d sc1' % (R(QF(hh, ks), 4), 's10' if hh else '0', ks * 64))
        a("""
        s_mov_b32 s15, 1
        s_waitcnt vmcnt(0) lgkmcnt(0)
        v_sub_f32 v10, 0, v10
        v_sub_f32 v11, 0, v11
        """)
        voffs(3, 0)
        a("""
        s_barrier
        s_branch L_Apass
        L_Aslow2:
        ds_read_b32 v184, v30
        s_waitcnt lgkmcnt(0)
        s_branch L_Aok
        """)
    a.aslow = slow
```

```python
from roleA27 import *

def role_final(a, o):
    a('''
    s_cmp_lg_u32 s3, 0
    s_cbranch_scc1 L_end
    ''')
    a.stamp(5)
    a.srd(48, WS, FP + 86 * 2048)
    a.srd(40, X, 1024)
    a('''
    v_mov_b32 v40, v24
    s_and_b32 s10, s2, 7
    s_lshl_b32 s10, s10, 6
    s_lshr_b32 s11, s2, 3
    s_lshl_b32 s11, s11, 2
    s_add_u32 s10, s10, s11            ; m0
    s_lshl_b32 s11, s10, 2
    s_lshl_b32 s12, s10, 1
    v_lshlrev_b32 v41, 11, v40
    v_and_b32 v42, 3, v40
    v_lshlrev_b32 v43, 1, v42
    buffer_load_ushort v60, v43, s[40:43], s12 offen
    v_and_b32 v44, 1, v40
    v_cmp_eq_u32 s[60:61], 1, v44
    v_and_b32 v44, 2, v40
    v_cmp_eq_u32 s[62:63], 2, v44
    ''')
    def gather4(base, srd, lab, dst):
        a('s_add_u32 s13, s11, 0x%x' % base)
        a('s_add_u32 s14, s11, 0x%x' % (base + 64 * 2048))
        a('s_mov_b32 s8, 0')
        a('s_mov_b64 s[64:65], -1')
        a('s_mov_b64 s[66:67], -1')
        a.label(lab)
        a('s_sleep FIN_SLEEP')
        a('s_mov_b64 exec, s[64:65]')
        a('s_cbranch_execz %s_a' % lab)
        a('buffer_load_dwordx4 v[48:51], v41, s[%d:%d], s13 offen sc1' % (srd, srd + 3))
        a.label(lab + '_a')
        a('s_mov_b64 exec, s[66:67]')
        a('s_cbranch_execz %s_b' % lab)
        a('buffer_load_dwordx4 v[52:55], v41, s[%d:%d], s14 offen sc1' % (srd, srd + 3))
        a.label(lab + '_b')
        a('''
        s_mov_b64 exec, -1
        s_add_u32 s8, s8, 1
        s_waitcnt vmcnt(0)
        v_max3_u32 v56, v48, v49, v50
        v_max3_u32 v57, v52, v53, v54
        v_max_u32 v56, v56, v51
        v_max_u32 v57, v57, v55
        v_cmp_eq_u32 s[64:65], -1, v56
        v_cmp_eq_u32 s[66:67], -1, v57
        s_cmp_gt_u32 s8, SPIN_N
        s_cbranch_scc1 %s_x
        s_or_b64 s[68:69], s[64:65], s[66:67]
        s_cbranch_scc1 %s
        %s_x:
        v_add_f32 v48, v48, v52
        v_add_f32 v49, v49, v53
        v_add_f32 v50, v50, v54
        v_add_f32 v51, v51, v55
        v_cndmask_b32 v52, v48, v49, s[60:61]
        v_cndmask_b32 v53, v49, v48, s[60:61]
        v_cndmask_b32 v54, v50, v51, s[60:61]
        v_cndmask_b32 v55, v51, v50, s[60:61]
        v_add_f32_dpp v52, v53, v52 quad_perm:[1,0,3,2] row_mask:0xf bank_mask:0xf
        v_add_f32_dpp v54, v55, v54 quad_perm:[1,0,3,2] row_mask:0xf bank_mask:0xf
        v_cndmask_b32 v%d, v52, v54, s[62:63]
        v_cndmask_b32 v53, v54, v52, s[62:63]
        v_add_f32_dpp v%d, v53, v%d quad_perm:[2,3,0,1] row_mask:0xf bank_mask:0xf
        v_add_f32_dpp v%d, v%d, v%d row_ror:4 row_mask:0xf bank_mask:0xf
        v_add_f32_dpp v%d, v%d, v%d row_ror:8 row_mask:0xf bank_mask:0xf
        ''' % ((lab, lab, lab) + (dst,) * 9))
        a.swap_red('v_add_f32', dst, 53, 16)
        a.swap_red('v_add_f32', dst, 53, 32)
    gather4(FP, 48, 'L_gf', 61)
    a.rnd_bf16(61)
    a.silu(61, 53)
    a.rnd_bf16(61)
    a('v_lshlrev_b32 v60, 16, v60')
    a.srd(40, OUT, 1024)
    a.stamp(6)
    gather4(SP, 44, 'L_gs', 62)
    a.rnd_bf16(62)
    a('v_mul_f32 v62, v62, v61')
    a.rnd_bf16(62)
    a('''
    v_add_f32 v62, v62, v60
    v_cvt_pk_bf16_f32 v62, v62, v62
    s_mov_b64 exec, 15
    buffer_store_short v62, v43, s[40:43], s12 offen
    ''')
    a.stamp(7)
    a.write_stamps()
    a('s_endpgm')

def role_As(a, o):
    a.stamps_mute = False
    a.label('L_As')
    ops = [(c, seg, aa) for c in range(2) for seg in range(4) for aa in range(4)]
    AM = o.get('amaj', 1)
    ops = [(c, sp * 2 + sg, aa) for c in range(2) for sp in range(2) for aa in range(4) for sg in range(2)]
    if o.get('hmix', 0): ops = [(c, sp * 2 + sg, aa) for c in range(2) for sp in range(2) for aa in (0, 2, 1, 3) for sg in range(2)]
    def prog(n):
        return {7: 2, 15: 4, 23: 6, 31: 8}.get(n)
    NPRE = o.get('npre', 20); NR = 32 - NPRE
    first = [(i, seg, aa) for i in range(2) for aa in range(4) for seg in range(4)]
    def loads(lo, hi):
        for n in range(lo, hi):
            if n < 0:
                i, seg, aa = first[32 + n]
                a('s_xor_b32 m0, s69, 0x%x' % (65536 + aa * 4096 + seg * 1024))
                a('s_xor_b32 s10, s66, 0x%x' % (65536 + aa * 4096 + seg * 256))
                a.v('buffer_load_dwordx4 v%d, s[40:43], s10 offen nt lds' % (3 if aa < 2 else 0), 'D')
                continue
            c, seg, aa = ops[n]
            a('s_add_u32 s10, s64, 0x%x' % (c * 65536 + aa * 4096 + seg * 256))
            a.v('buffer_load_dwordx4 %s, v%d, s[40:43], s10 offen nt' % (R(128 + 4 * n, 4), 3 if aa < 2 else 0), 'L%d' % n)
    def writes(lo, hi):
        for n in range(lo, hi):
            c, seg, aa = ops[n]
            if ('L%d' % n) in a.vm: a.vwait('L%d' % n)
            a('ds_write_b128 v%d, %s offset:%d' % (100 + c, R(128 + 4 * n, 4), aa * 4096 + seg * 1024))
        a('s_waitcnt lgkmcnt(0)')
    c = [int(x, 16) for x in str(o.get('hsch', 'x64'))[1:]]
    a("""
    s_setprio 3
    s_sub_u32 s3, s3, 4
    s_lshl_b32 s9, s3, 14
    s_add_u32 s64, s8, s9
    s_lshl_b32 s10, s3, 8
    s_or_b32 s66, s64, s10
    s_lshl_b32 s10, s3, 10
    s_or_b32 s69, s9, s10
    s_add_u32 s64, s64, 0x20000
    v_lshl_add_u32 v100, v1, 4, s9
    v_add_u32 v101, 0x10000, v100
    v_mov_b32 v2, 0
    s_mov_b32 s8, 0
    L_Agn:
    s_sleep 8
    global_load_dword v5, v2, s[36:37] sc1
    s_add_u32 s8, s8, 1
    s_waitcnt vmcnt(0)
    v_readfirstlane_b32 s4, v5
    s_cmp_gt_u32 s8, SPIN_N
    s_cbranch_scc1 L_Agn_x
    s_cmp_eq_u32 s4, 0
    s_cbranch_scc1 L_Agn
    L_Agn_x:
    OUTPT global_load_dword v254, v2, s[34:35]
    """)
    K0 = o.get('k0', 12)
    a.vm = []
    for n in range(K0):
        if n >= o.get('k0w', 4): a('s_waitcnt vmcnt(%d)' % (o.get('k0w', 4) - 1))
        loads(n - NR, n - NR + 1)
    a("""
    v_lshlrev_b32 v2, QCSH, v1        ; tag voffset
    v_lshlrev_b32 v98, 4, v1          ; data voffset
    v_lshlrev_b32 v97, 7, v1          ; flag voffset
    s_lshl_b32 s9, s3, 13             ; QA + u*8192
    s_add_u32 s65, s9, 4096
    s_lshl_b32 s11, s3, QCSH+5
    s_add_u32 s11, s11, 0x%x          ; QC + u*32 entries
    s_lshr_b32 s12, s3, 1
    s_lshl_b32 s12, s12, 14
    s_and_b32 s13, s3, 1
    s_lshl_b32 s13, s13, 7
    s_add_u32 s12, s12, s13
    s_add_u32 s12, s12, 0x%x
    v_and_b32 v6, 7, v1
    v_lshlrev_b32 v6, 4, v6
    v_lshl_add_u32 v6, v1, 8, v6
    v_add_u32 v6, s12, v6             ; LDS write base
    s_lshl_b32 s4, s4, 5              ; expected sum = 32 * nonce
    v_mov_b32 v72, 0
    v_mov_b32 v73, 0
    s_lshl_b32 s68, s3, 10
    s_add_u32 s68, s68, 0x10000
    s_mov_b32 s12, REP_MASK
    s_mov_b32 s13, 0
    NODEP s_branch L_Agt_x
    L_Agt:
    s_sleep QT_SLEEP
    s_mov_b64 exec, s[12:13]
    buffer_load_dwordx2 v[72:73], v97, s[44:47], REPBASE offen sc1
    s_add_u32 s8, s8, 1
    s_waitcnt vmcnt(0)
    v_cmp_ne_u32 s[12:13], v73, v5
    s_cmp_gt_u32 s8, SPIN_N
    s_cbranch_scc1 L_Agt_x
    s_cmp_lg_u32 s12, 0
    s_cbranch_scc1 L_Agt
    L_Agt_x:
    s_mov_b32 exec_lo, -1
    buffer_load_dwordx2 v[72:73], v2, s[44:47], s11 offen sc1
    s_mov_b64 exec, -1
    """ % (QC, STG))
    def dload(i):
        a('buffer_load_dwordx4 %s, v98, s[44:47], s%d offen offset:%d sc1' % (R(8 + 4 * i, 4), 9 if i < 4 else 65, (i % 4) * 1024))
    def dproc(i):
        a('ds_write_b128 v%d, %s' % (40 + i, R(8 + 4 * i, 4)))
        a('v_add3_u32 v%d, v%d, v%d, v%d' % (80 + i, 8 + 4 * i, 9 + 4 * i, 10 + 4 * i))
        a('v_add_u32 v%d, v%d, v%d' % (80 + i, 80 + i, 11 + 4 * i))
    for i in range(8): dload(i)
    a.stamp(1)
    if a.stamps: a('s_mov_b32 s8, 1')
    if o.get('rlate', 0):
        a("""
        s_waitcnt vmcnt(8)
        L_Agr:
        v_cmp_ne_u32 s[12:13], v73, v5
        s_cmp_eq_u32 s12, 0
        s_cbranch_scc1 L_Agr_x
        s_add_u32 s8, s8, 1
        s_cmp_gt_u32 s8, SPIN_N
        s_cbranch_scc1 L_Agr_x
        s_mov_b32 s13, 0
        s_quadmask_b32 s67, s12
        s_mov_b64 exec, s[12:13]
        buffer_load_dwordx2 v[72:73], v2, s[44:47], s11 offen sc1
        s_mov_b64 exec, -1
        """)
        for i in range(8):
            a('s_bitcmp1_b32 s67, %d' % i)
            a('s_cbranch_scc0 L_Agk%d' % i)
            dload(i)
            a.label('L_Agk%d' % i)
        a("""
        s_waitcnt vmcnt(0)
        s_branch L_Agr
        L_Agr_x:
        """)
    a('s_barrier')
    a.vm = []
    loads(K0 - NR, K0 - NR + c[0]); p = K0 - NR + c[0]
    for i in range(8): a('v_xor_b32 v%d, %d, v6' % (40 + i, i << 4))
    for i in range(8):
        a('s_waitcnt vmcnt(%d)' % (7 - i + c[0]))
        dproc(i)
    a("""
    NODEP s_branch L_Agp_x
    v_cmp_ne_u32 s[12:13], v73, v5
    s_cmp_eq_u32 s12, 0
    s_cbranch_scc1 L_Agc
    L_Agp:
    s_mov_b32 s13, 0
    s_quadmask_b32 s67, s12
    s_mov_b64 exec, s[12:13]
    buffer_load_dwordx2 v[72:73], v2, s[44:47], s11 offen sc1
    s_mov_b64 exec, -1
    """)
    for i in range(8):
        a('s_bitcmp1_b32 s67, %d' % i)
        a('s_cbranch_scc0 L_Agl%d' % i)
        dload(i)
        a.label('L_Agl%d' % i)
    a("""
    s_add_u32 s8, s8, 1
    s_waitcnt vmcnt(0)
    v_cmp_ne_u32 s[12:13], v73, v5
    """)
    for i in range(8):
        a('s_bitcmp1_b32 s67, %d' % i)
        a('s_cbranch_scc0 L_Agw%d' % i)
        dproc(i)
        a.label('L_Agw%d' % i)
    a("""
    s_cmp_gt_u32 s8, SPIN_N
    s_cbranch_scc1 L_Agp_x
    s_cmp_lg_u32 s12, 0
    s_cbranch_scc1 L_Agp
    L_Agc:
    v_add3_u32 v4, v72, v80, v81
    v_add3_u32 v74, v82, v83, v84
    v_add3_u32 v4, v4, v85, v86
    v_add3_u32 v4, v4, v74, v87
    """)
    a.wave_red('v_add_u32', 4, 74)
    a("""
    v_readfirstlane_b32 s10, v4
    s_mov_b32 s12, -1
    s_cmp_lg_u32 s10, s4
    s_cbranch_scc1 L_Agp
    L_Agp_x:
    s_waitcnt lgkmcnt(0)
    """)
    a.stamp(3)
    a('s_barrier')
    a('s_setprio 0')
    loads(p, p + c[1]); p += c[1]
    a('''
    v_and_b32 v102, 3, v1
    v_lshlrev_b32 v102, 2, v102
    v_add_u32 v102, 0x%x, v102        ; YF read addr
    s_lshl_b32 s10, s3, 2
    s_add_u32 s10, s10, 0x%x
    v_mov_b32 v103, s10               ; own HF addr
    s_barrier                         ; B1
    ''' % (FL + 16, FL + 32))
    if p < 0: loads(p, 0); p = 0
    a('v_add_u32 v99, 1, v5')
    if 'D' in a.vm: a.vwait('D')
    a('ds_write_b32 v103, v99')
    K = o.get('hk', 18)
    loads(p, K); p = max(p, K)
    def yspin(i):
        a('''
        s_mov_b32 s11, 0
        L_Ay%d:
        ds_read_b32 v99, v102
        s_add_u32 s11, s11, 1
        s_waitcnt lgkmcnt(0)
        v_sub_u32 v99, v99, v5
        v_subrev_u32 v99, %d, v99
        v_cmp_lt_u32 vcc, 7, v99
        s_cmp_gt_u32 s11, LSPIN
        s_cbranch_scc1 L_Ay%dx
        s_cbranch_vccz L_Ay%dx
        s_sleep 1
        s_branch L_Ay%d
        L_Ay%dx:
        ''' % (i, i, i, i, i, i))
    for n in range(32):
        if n % 16 == 0:
            if n == 16: loads(p, 32); p = 32
            yspin(n // 16)
        cc, seg, aa = ops[n]
        if prog(n): a('v_add_u32 v99, %d, v5' % prog(n))
        if ('L%d' % n) in a.vm: a.vwait('L%d' % n)
        a('ds_write_b128 v%d, %s offset:%d' % (100 + cc, R(128 + 4 * n, 4), aa * 4096 + seg * 1024))
        if prog(n): a('ds_write_b32 v103, v99')
        if p < 32: loads(p, p + 1); p += 1
    if a.stamps:
        a('s_mul_i32 s78, s8, 100')
        a('s_add_u32 s78, s78, s70')
        a('s_addc_u32 s79, s71, 0')
        a('s_lshl_b32 s2, s2, 2')
        a('s_add_u32 s2, s2, s3')
        a('s_add_u32 s2, s2, 256')
        a('s_barrier')
        a('s_sleep 127')
        a.write_stamps(vb=104)
    a('s_endpgm')

def role_W(a, o):
    WOPOL = o.get('wopol', 'nt'); W1POL = o.get('w1pol', 'nt')
    a.label('L_W')
    a.vm = []; a.lg = []
    a('''
    s_and_b32 s8, s2, 7               ; x
    s_lshr_b32 s9, s2, 3
    s_sub_u32 s9, s9, 16              ; k
    s_lshr_b32 s10, s9, 2
    s_lshl_b32 s11, s8, 2
    s_add_u32 s10, s10, s11           ; h
    s_and_b32 s11, s9, 3              ; j
    s_lshl_b32 s13, s10, 8            ; h*256
    v_lshlrev_b32 v9, 4, v1           ; lane*16
    v_lshrrev_b32 v6, 4, v1           ; g / r
    v_and_b32 v7, 15, v1              ; pc / i
    v_lshlrev_b32 v8, 1, v6
    v_xor_b32 v8, v8, v7
    v_lshlrev_b32 v8, 4, v8           ; (pc ^ (r<<1))*16
    v_lshl_add_u32 v2, v6, 13, v8
    v_xor_b32 v3, 0x80, v2            ; voffB
    s_lshl_b32 s14, s11, 3
    s_add_u32 s14, s14, s3            ; 8j + w
    s_lshl_b32 s15, s14, 17
    s_add_u32 s15, s15, s13           ; (128j + 16w)*8192 + h*256
    s_lshl_b32 s14, s3, 12            ; LDS w*4096
    v_lshlrev_b32 v10, 2, v6
    v_xor_b32 v10, v10, v7
    v_lshlrev_b32 v10, 4, v10
    v_lshl_add_u32 v10, v6, 13, v10
    v_xor_b32 v11, 32, v10
    s_mov_b32 s42, 0x400000
    s_mov_b32 s43, 0x20000
    s_mov_b32 s50, 0x400000
    s_mov_b32 s51, 0x20000
    s_mov_b32 m0, s14
    s_waitcnt lgkmcnt(0)
    s_mov_b32 s40, s20
    s_mov_b32 s41, s21
    s_cmp_lg_u32 s3, 0
    s_cbranch_scc1 L_Wx
    global_load_dwordx4 v[68:71], v9, s[16:17]
    L_Wx:
    ''')
    for i in range(4):
        if i:
            a('s_add_u32 m0, s14, %d' % (i * 1024))
            a('s_add_u32 s60, s15, %d' % (i * 32768))
        a.v('buffer_load_dwordx4 v%d, s[40:43], %s offen nt lds' % (2 if i < 2 else 3, 's60' if i else 's15'), 'WQ')
    a('s_mov_b32 s48, s22')
    a('s_mov_b32 s49, s23')
    if o.get('ukbar', 1): a('s_barrier')
    for i in range(4):
        a('s_add_u32 m0, s14, %d' % (UKL + i * 1024))
        a('s_add_u32 s60, s15, %d' % (i * 32768))
        a.v('buffer_load_dwordx4 v%d, s[48:51], s60 offen nt lds' % (10 if i < 2 else 11), 'UK')
    common2(a)
    if o.get('diag', 0) == 2: a.stamp(5)
    a('''
    s_lshl_b32 s12, s9, 3
    s_add_u32 s12, s12, s8            ; fb = 8k + x
    s_cmp_lt_u32 s9, 11
    s_cselect_b32 s12, s12, 1000
    v_mov_b32 v14, 0
    v_lshrrev_b32 v12, 2, v7          ; r' / a
    v_and_b32 v13, 1, v6
    v_lshl_add_u32 v13, v13, 2, v12
    v_lshlrev_b32 v13, 1, v13
    v_bfe_u32 v16, v1, 1, 1
    s_lshl_b32 s60, s3, 1
    v_add_u32 v16, s60, v16
    v_xor_b32 v16, v16, v13
    v_lshlrev_b32 v16, 4, v16
    v_lshl_add_u32 v13, v6, 3, v12
    v_lshl_add_u32 v16, v13, 8, v16
    v_and_b32 v13, 1, v1
    v_lshl_add_u32 v4, v13, 3, v16    ; tr-read base
    v_lshlrev_b32 v5, 4, v6
    v_add_u32 v5, 0x%x, v5            ; SM + g*16
    v_and_b32 v13, 3, v7
    v_and_b32 v16, 2, v12
    v_xor_b32 v16, v16, v6
    v_lshl_add_u32 v16, v13, 2, v16
    v_lshlrev_b32 v16, 4, v16
    v_lshl_add_u32 v16, v7, 8, v16
    s_add_u32 s60, s14, 0x%x
    v_add_u32 v64, s60, v16           ; uk frag read addrs
    v_xor_b32 v65, 64, v64
    v_xor_b32 v66, 0x80, v64
    v_xor_b32 v67, 0xc0, v64
    ''' % (SM, UKL))
    a('''
    s_lshl_b32 s68, s10, 2
    s_add_u32 s68, s68, s11           ; mi = 4h + j
    s_lshl_b32 s64, s68, 15
    s_lshl_b32 s61, s3, 12
    s_add_u32 s69, s64, s61
    s_add_u32 s69, s69, 0x%x          ; s69 = inbox base of this wave
    s_lshl_b32 s58, s68, 11
    s_lshl_b32 s61, s3, 8
    s_add_u32 s58, s58, s61
    s_add_u32 s58, s58, 0x%x          ; s58 = SP row of this wave
    s_lshl_b32 s66, s12, 11
    s_add_u32 s66, s66, s61
    s_add_u32 s66, s66, 0x%x          ; s66 = FP row of this wave
    s_cmp_lt_u32 s12, 86
    s_cselect_b32 s66, s66, s58
    s_lshl_b32 s67, s3, 6
    s_add_u32 s67, s67, s11
    s_lshl_b32 s67, s67, 9
    s_lshl_b32 s61, s10, 4
    s_add_u32 s67, s67, s61
    s_add_u32 s67, s67, 0x%x          ; s67 = MLC + (64w + j)*512 + h*16
    v_lshlrev_b32 v11, 2, v1
    v_mov_b32 v16, -1
    ''' % (OP, SP, FP, ML))
    a.v('buffer_store_dword v16, v11, s[44:47], s58 offen sc1', 'PT')
    a.v('buffer_store_dword v16, v11, s[44:47], s66 offen sc1', 'PT')
    if o.get('qpw', 0):
        a('''
        s_lshl_b32 s60, s10, 12
        s_lshl_b32 s61, s3, 7
        s_add_u32 s60, s60, s61
        s_add_u32 s60, s60, 0x%x
        v_lshlrev_b32 v17, 10, v6
        ''' % QP)
        a.v('buffer_load_dword v254, v17, s[44:47], s60 offen sc1', 'PT')
    a('''
    s_cmp_lg_u32 s3, 0
    s_cbranch_scc1 L_Wln
    s_waitcnt vmcnt(%d)
    s_load_dword s4, s[36:37], 0
    ''' % len(a.vm))
    if o.get('diag', 0) == 2: a.stamp(6)
    layernorm(a)
    if o.get('diag', 0) == 2: a.stamp(7)
    a('''
    v_add_u32 v72, 0x%x, v9
    ds_write_b128 v72, v[68:71]
    s_waitcnt lgkmcnt(0)
    s_mov_b32 s60, 0
    s_branch L_Wn_c
    L_Wn:
    global_load_dword v15, v14, s[36:37] sc1
    s_add_u32 s60, s60, 1
    s_waitcnt vmcnt(0)
    v_readfirstlane_b32 s4, v15
    s_cmp_gt_u32 s60, SPIN_N
    s_cbranch_scc1 L_Wn_x
    L_Wn_c:
    s_cmp_eq_u32 s4, 0
    s_cbranch_scc1 L_Wn
    L_Wn_x:
    v_mov_b32 v72, 0x%x
    v_mov_b32 v15, s4
    ds_write_b32 v72, v15
    s_waitcnt lgkmcnt(0)
    L_Wln:
    ''' % (XN, NB))
    if o.get('diag', 0) == 2: a.stamp(8)
    a.vwait('WQ')
    if o.get('diag', 0) == 2: a.stamp(9)
    a('s_barrier')
    a.stamp(1)
    a('s_lshl_b32 s60, s11, 8')
    a('v_add_u32 v13, s60, v5')
    for ks in range(4):
        a.d('ds_read_b128 %s, v13 offset:%d' % (R(52 + 4 * ks - 16 + 16, 4), ks * 64) if False else 'ds_read_b128 %s, v13 offset:%d' % (R(16 + 4 * ks, 4), ks * 64), 'a%d' % ks)
        for rdi in range(2):
            a.d('ds_read_b64_tr_b16 %s, v4 offset:%d' % (R(36 + 4 * ks + 2 * rdi, 2), ks * 8192 + rdi * 1024), 'a%d' % ks)
    a('v_mov_b32 v12, 0x%x' % NB)
    a.d('ds_read_b32 v53, v12', 'n')
    a('''
    s_lshl_b32 s60, s10, 12
    s_lshl_b32 s61, s3, 7
    s_add_u32 s60, s60, s61
    s_add_u32 s60, s60, 0x%x          ; QP + h*4096 + w*128
    s_lshl_b32 s61, s11, 10
    s_add_u32 s61, s61, s60           ; + j*1024
    v_lshlrev_b32 v12, 3, v7          ; d*8
    v_lshl_add_u32 v13, v6, 10, v12   ; jj*1024 + d*8
    v_cmp_ne_u32 s[64:65], s11, v6    ; lanes of the other three
    ''' % QP)
    for ks in range(4):
        a.dwait('a%d' % ks)
        a('v_mfma_f32_16x16x32_bf16 v[32:35], %s, %s, %s' % (R(16 + 4 * ks, 4), R(36 + 4 * ks, 4), 'v[32:35]' if ks else '0'))
    a.dall()
    a('''
    s_lshl_b32 s62, s3, 5
    s_add_u32 s62, s62, 0x%x
    v_lshl_add_u32 v15, v7, 1, s62    ; QB + (16w + d)*2
    v_mov_b32 v55, v53
    v_mov_b32 v52, v32
    v_mov_b32 v54, v32
    s_mov_b64 exec, 0xffff
    buffer_store_dwordx2 v[52:53], v12, s[44:47], s61 offen sc1
    ''' % QB)
    def eflag():
        a('''
        s_or_b32 s5, s3, s11
        s_cmp_lg_u32 s5, 0
        s_cbranch_scc1 L_Wef
        s_lshl_b32 s5, s10, 7
        s_add_u32 s5, s5, 0x10000
        s_mov_b64 exec, 0xffff
        v_mov_b32 v52, v53
        buffer_store_dwordx2 v[52:53], v12, s[44:47], s5 offen sc1
        L_Wef:
        ''')
    EF = o.get('ef', 1)
    if EF == 0: eflag()
    if o.get('qpack', 1): a('s_waitcnt vmcnt(0)')
    if EF == 3: eflag()
    a.stamp(2)
    a('''
    s_mov_b32 s62, 0
    L_Wq:
    s_mov_b64 exec, s[64:65]
    buffer_load_dwordx2 v[54:55], v13, s[44:47], s60 offen sc1
    s_add_u32 s62, s62, 1
    s_waitcnt vmcnt(0)
    v_cmp_ne_u32 s[64:65], v55, v53
    s_cmp_gt_u32 s62, SPIN_N
    s_cbranch_scc1 L_Wq_x
    s_cmp_lg_u64 s[64:65], 0
    s_cbranch_scc1 L_Wq
    L_Wq_x:
    ''')
    if EF == 1: eflag()
    a('s_mov_b64 exec, -1')
    a.vm = []
    for ks in range(4):
        a.d('ds_read_b128 %s, v%d' % (R(16 + 4 * ks, 4), 64 + ks), 'uk')
    a.swap_red('v_add_f32', 54, 55, 16)
    a.swap_red('v_add_f32', 54, 55, 32)
    a('''
    v_cvt_pk_bf16_f32 v54, v54, v54
    ds_write_b16 v15, v54
    ''')
    a.dall()
    a('s_barrier')
    a.stamp(3)
    for ks in range(4):
        a.d('ds_read_b128 %s, v5 offset:%d' % (R(36 + 4 * ks, 4), QB - SM + ks * 64), 'a%d' % ks)
    a('''
    s_lshl_b32 s14, s3, 5
    s_add_u32 s14, s14, 0x%x
    v_lshl_add_u32 v13, v6, 3, s14    ; QO + w*32 + q*8
    v_lshlrev_b32 v12, 4, v7
    v_add_u32 v15, 0x%x, v12          ; QO + (l%%16)*16
    s_lshl_b32 s14, s68, 8
    s_lshl_b32 s15, s68, QCSH
    s_add_u32 s15, s15, 0x%x
    v_add_u32 v56, s14, v12
    v_add_u32 v57, s15, v12
    v_cndmask_b32 v56, v56, v57, s[52:53]
    ''' % (QO, QO, QC))
    for ks in range(4):
        a.dwait('a%d' % ks)
        a('v_mfma_f32_16x16x32_bf16 v[32:35], %s, %s, %s' % (R(16 + 4 * ks, 4), R(36 + 4 * ks, 4), 'v[32:35]' if ks else '0'))
    sc = f2u(128 ** -0.5 * math.log2(math.e))
    a('''
    v_mul_f32 v32, 0x%x, v32
    v_mul_f32 v33, 0x%x, v33
    v_mul_f32 v34, 0x%x, v34
    v_mul_f32 v35, 0x%x, v35
    v_cvt_pk_bf16_f32 v32, v32, v33
    v_cvt_pk_bf16_f32 v33, v34, v35
    ds_write_b64 v13, v[32:33]
    s_waitcnt lgkmcnt(0)
    s_barrier
    s_cmp_lg_u32 s3, 0
    s_cbranch_scc1 L_Wpub
    ds_read_b128 v[32:35], v15
    s_waitcnt lgkmcnt(0)
    v_add3_u32 v36, v32, v33, v34
    v_add_u32 v36, v36, v35
    ''' % (sc, sc, sc, sc))
    a.wave_red('v_add_u32', 36, 37, rows_only=True)
    a('''
    v_sub_u32 v36, v53, v36
    v_cndmask_b32 v32, v32, v36, s[52:53]
    v_cndmask_b32 v33, v33, v53, s[52:53]
    s_mov_b64 exec, QCEX
    buffer_store_dwordx4 v[32:35], v56, s[44:47], 0 offen sc1
    s_mov_b64 exec, -1
    L_Wpub:
    s_barrier
    ''')
    a.stamp(4)
    WW = o.get('wwin', 3)
    W1L, W2L, WOL = 0x8000, 0xC000, 0x10000
    a.srd(40, WUV, 0x400000)
    a.srd(48, WO, 0x400000)
    a("""
    s_mov_b32 s16, s30
    s_mov_b32 s17, s31
    s_mov_b32 s18, %d
    s_mov_b32 s19, 0x20000
    s_mov_b32 s20, s32
    s_mov_b32 s21, s33
    s_mov_b32 s22, %d
    s_mov_b32 s23, 0x20000
    v_readfirstlane_b32 s4, v53
    v_lshrrev_b32 v12, 3, v1          ; r8
    v_and_b32 v13, 7, v1              ; c8
    v_lshlrev_b32 v70, 4, v13
    v_lshl_add_u32 v70, v12, 10, v70  ; r8*1024 + c8*16   (w2 voff)
    v_bfe_u32 v15, v1, 4, 1
    v_lshlrev_b32 v15, 5, v15
    v_xor_b32 v68, v70, v15           ; voffC
    v_xor_b32 v69, 64, v68            ; voffD
    v_mul_u32_u24 v10, 2752, v6
    s_and_b32 s60, s3, 1
    s_lshl_b32 s60, s60, 7
    v_xor_b32 v13, s60, v8
    v_add_u32 v10, v10, v13           ; w1 voff
    s_lshl_b32 s24, s8, 3
    s_add_u32 s24, s24, s3
    s_mul_i32 s24, s24, %d
    s_lshl_b32 s60, s9, 8
    s_add_u32 s24, s24, s60           ; w1 source
    s_lshl_b32 s25, s12, 14
    s_lshl_b32 s60, s3, 7
    s_add_u32 s25, s25, s60           ; w2 source (out of range when not an FFN workgroup)
    s_cmp_lt_u32 s12, 88
    s_cselect_b32 s24, s24, 0x1000000
    s_lshl_b32 s26, s3, 11            ; LDS w*2048
    v_lshl_add_u32 v2, v6, 17, v8
    v_xor_b32 v3, 0x80, v2
    s_lshl_b32 s27, s11, 6
    s_add_u32 s27, s27, s3
    s_lshl_b32 s27, s27, 14
    s_add_u32 s27, s27, s13           ; uv source
    s_lshl_b32 s28, s3, 12            ; LDS w*4096
    s_lshl_b32 s14, s10, 17
    s_lshl_b32 s15, s3, 7
    s_add_u32 s14, s14, s15           ; wo source
    s_lshl_b32 s15, s3, 13
    s_add_u32 s15, s15, 0x%x          ; wo LDS
    v_lshrrev_b32 v71, 2, v7
    v_lshl_add_u32 v71, v6, 3, v71
    v_lshlrev_b32 v71, 7, v71
    v_and_b32 v13, 3, v1
    v_lshl_add_u32 v71, v13, 3, v71
    v_bfe_u32 v13, v1, 3, 2
    v_lshl_add_u32 v71, v13, 5, v71
    v_add_u32 v71, s15, v71
    """ % (512 * 2752, 1376 * 1024, 8 * 2752, WOL))
    a.vm = []
    WOF = 72
    cnt = [0]
    def op(kind, n):
        a.vwait_n((WW if cnt[0] < o.get('wsw', 99) else o.get('wwinb', 4)) - 1)
        cnt[0] += 1
        if kind == 'w1':
            a('s_add_u32 m0, s26, 0x%x' % (W1L + n * 1024)); a('s_add_u32 s60, s24, %d' % (n * 4 * 2752))
            a.v('buffer_load_dwordx4 v10, s[16:19], s60 offen nt lds', 'F')
        elif kind == 'w2':
            a('s_add_u32 m0, s26, 0x%x' % (W2L + n * 1024)); a('s_add_u32 s60, s25, %d' % (n * 8192))
            a.v('buffer_load_dwordx4 v70, s[20:23], s60 offen nt lds', 'F')
        elif kind == 'uv':
            a('s_add_u32 m0, s28, %d' % (n * 1024)); a('s_add_u32 s60, s27, %d' % ((64 * (n & 1) + (n >> 1)) * 8192))
            a.v('buffer_load_dwordx4 v%d, s[40:43], s60 offen nt lds' % (2 if n < 2 else 3), 'U')
        else:
            a('s_add_u32 m0, s15, %d' % ((n % 8) * 1024)); a('s_add_u32 s60, s14, %d' % (n * 8192))
            a.v('buffer_load_dwordx4 v%d, s[48:51], s60 offen %s lds' % (68 if n % 2 == 0 else 69, WOPOL), 'O%d' % (n // 4))
    def wo_read(ks):
        if ('O%d' % ks) in a.vm: a.vwait('O%d' % ks)
        for mt in range(4):
            a('v_xor_b32 v13, 0x%x, v71' % (mt * 32))
            for rdi in range(2):
                a.d('ds_read_b64_tr_b16 %s, v13 offset:%d' % (R(WOF + (mt * 4 + ks) * 4 + 2 * rdi, 2), (ks % 2) * 4096 + rdi * 512), 'wo')
        a.dall()
    def ffn1():
        if 'F' in a.vm: a.vwait('F')
        a('s_barrier')
        a.stamp(10)
        a("""
        s_cmp_ge_u32 s12, 88
        s_cbranch_scc1 L_Wnf2
        s_lshl_b32 s60, s8, 7
        v_add_u32 v13, s60, v5            ; xn + 64x*2 + g*16
        v_add_u32 v15, 0x8000, v4
        """)
        for ks in range(2):
            a('ds_read_b128 %s, v13 offset:%d' % (R(52 + 4 * ks, 4), ks * 64))
            for rdi in range(2):
                a('ds_read_b64_tr_b16 %s, v15 offset:%d' % (R(36 + 4 * ks + 2 * rdi, 2), ks * 8192 + rdi * 1024))
        a("""
        v_lshrrev_b32 v12, 2, v1
        v_and_b32 v13, 3, v1
        v_lshlrev_b32 v13, 3, v13
        v_lshl_add_u32 v12, v12, 7, v13
        s_lshl_b32 s60, s3, 11
        s_add_u32 s60, s60, 0x%x
        v_add_u32 v12, s60, v12
        s_waitcnt lgkmcnt(0)
        v_mfma_f32_16x16x32_bf16 v[32:35], v[52:55], v[36:39], 0
        v_mfma_f32_16x16x32_bf16 v[32:35], v[56:59], v[40:43], v[32:35]
        """ % W2L)
        for mt in range(4):
            a('ds_read_b64_tr_b16 %s, v12 offset:%d' % (R(44 + 2 * mt, 2), mt * 32))
        a("""
        s_lshl_b32 s60, s12, 10
        s_lshl_b32 s61, s3, 7
        s_add_u32 s60, s60, s61
        s_add_u32 s60, s60, 0x%x          ; HP + (8k+x)*1024 + w*128
        v_lshlrev_b32 v12, 3, v7
        v_mov_b32 v33, s4
        s_mov_b64 exec, 0xffff
        buffer_store_dwordx2 v[32:33], v12, s[44:47], s60 offen sc1
        s_mov_b64 exec, -1
        L_Wnf2:
        s_waitcnt lgkmcnt(0)
        """ % HP)
        a.lg = []
    def ffn2():
        a('''
        s_cmp_ge_u32 s12, 86
        s_cbranch_scc1 L_Wnf3
        s_lshl_b32 s60, s9, 13
        s_lshl_b32 s61, s8, 7
        s_add_u32 s60, s60, s61
        s_add_u32 s60, s60, 0x%x          ; HP + k*8192 + x*128
        v_and_b32 v12, 7, v1
        v_lshlrev_b32 v12, 10, v12
        v_lshl_add_u32 v12, v6, 5, v12    ; producer*1024 + g*32
        s_mov_b32 s61, 0
        L_Wh:
        buffer_load_dwordx4 v[52:55], v12, s[44:47], s60 offen sc1
        buffer_load_dwordx4 v[56:59], v12, s[44:47], s60 offen offset:16 sc1
        s_add_u32 s61, s61, 1
        s_waitcnt vmcnt(0)
        v_xor_b32 v13, v53, v55
        v_xor_b32 v14, v57, v59
        v_xor_b32 v15, s4, v53
        v_or3_b32 v13, v13, v14, v15
        v_xor_b32 v14, v53, v57
        v_or_b32 v13, v13, v14
        v_cmp_ne_u32 vcc, 0, v13
        s_cmp_gt_u32 s61, SPIN_N
        s_cbranch_scc1 L_Wh_x
        s_cbranch_vccnz L_Wh
        L_Wh_x:
        ''' % HP)
        for m in ('quad_perm:[1,0,3,2]', 'quad_perm:[2,3,0,1]', 'row_half_mirror'):
            for r in range(4):
                a('v_add_f32_dpp v%d, v%d, v%d %s row_mask:0xf bank_mask:0xf' % (52 + 2 * r, 52 + 2 * r, 52 + 2 * r, m))
        for r in range(4):
            a.rnd_bf16(52 + 2 * r)
            a.silu(52 + 2 * r, 53)
        a('v_cvt_pk_bf16_f32 v32, v52, v54')
        a('v_cvt_pk_bf16_f32 v33, v56, v58')
        for mt in range(4):
            a('v_mfma_f32_16x16x16_bf16 %s, v[32:33], %s, 0' % (R(52 + 4 * mt, 4), R(44 + 2 * mt, 2)))
        a('''
        v_cndmask_b32 v52, v52, v56, s[52:53]
        v_cndmask_b32 v52, v52, v60, s[54:55]
        v_cndmask_b32 v52, v52, v64, s[56:57]
        buffer_store_dword v52, v11, s[44:47], s66 offen sc1
        L_Wnf3:
        ''')
        a('s_waitcnt vmcnt(0)')
        a.vm = []
    seqs = {
        0: 'a0 o0 a1 o1 b0 o2 b1 o3 o4 o5 u0 F o6 o7 R0 o8 o9 u1 o10 o11 R1 o12 o13 u2 o14 o15 u3 R2 G R3',
        1: 'a0 a1 b0 b1 o0 o1 o2 o3 F o4 o5 o6 o7 R0 o8 o9 u0 o10 o11 u1 R1 o12 o13 u2 o14 o15 u3 R2 G R3',
        3: 'o0 o1 o2 o3 a0 o4 a1 o5 b0 o6 b1 o7 R0 o8 o9 u0 F o10 o11 u1 R1 o12 o13 u2 o14 o15 u3 R2 R3',
        2: 'o0 o1 o2 o3 a0 o4 a1 o5 b0 o6 b1 o7 R0 o8 o9 u0 F o10 o11 u1 R1 o12 o13 u2 o14 o15 u3 R2 G R3',
    }
    for t in seqs[o.get('wseq', 2)].split():
        if t == 'F': ffn1()
        elif t == 'G': ffn2()
        elif t[0] == 'R': wo_read(int(t[1:]))
        else: op({'a': 'w1', 'b': 'w2', 'u': 'uv', 'o': 'wo'}[t[0]], int(t[1:]))
    for p in range(4):
        a('v_cmp_eq_u32 vcc, %d, v7' % (2 * p))
        a('v_mov_b32 v%d, 0' % (56 + p))
        a('v_mov_b32 v64, 0xffff')
        a('v_cndmask_b32 v%d, v%d, v64, vcc' % (56 + p, 56 + p))
        a('v_cmp_eq_u32 vcc, %d, v7' % (2 * p + 1))
        a('v_mov_b32 v64, 0xffff0000')
        a('v_cndmask_b32 v%d, v%d, v64, vcc' % (56 + p, 56 + p))
        a('v_and_b32 v%d, 0x3f803f80, v%d' % (60 + p, 56 + p))
    a("""
    v_lshrrev_b32 v64, 1, v6
    v_mul_u32_u24 v64, 0x%x, v64
    v_lshl_add_u32 v64, v7, 4, v64
    v_and_b32 v65, 1, v6
    v_lshl_add_u32 v64, v65, 3, v64
    s_mul_i32 s60, s3, 288
    s_add_u32 s60, s60, 0x%x
    v_add_u32 v64, s60, v64
    v_and_b32 v65, 7, v1
    v_mul_u32_u24 v65, 288, v65
    v_add_u32 v65, v65, v5
    s_lshl_b32 s60, s3, 5
    s_add_u32 s60, s60, 0x%x
    v_lshl_add_u32 v66, v7, 1, s60
    """ % (8 * 288, ROWS, CB))
    a('s_waitcnt vmcnt(0)')
    a('s_barrier')
    a.stamp(5)
    for ks in range(4):
        for rdi in range(2):
            a.d('ds_read_b64_tr_b16 %s, v4 offset:%d' % (R(16 + 4 * ks + 2 * rdi, 2), ks * 8192 + rdi * 1024), 'uv')
    a.dall()
    a.stamp(6)
    a('''
    v_lshlrev_b32 v14, 11, v7
    s_lshl_b32 s60, s3, 3
    s_add_u32 s60, s60, 0x%x
    v_mov_b32 v70, s60                ; LW + w*8
    v_and_b32 v71, 7, v1
    v_lshlrev_b32 v71, 3, v71
    v_add_u32 v71, 0x%x, v71          ; LW + (l%%8)*8
    s_mov_b32 s60, 0
    s_mov_b64 s[62:63], -1
    L_Wg1:
    s_sleep ML_SLEEP
    s_mov_b64 exec, s[62:63]
    buffer_load_dwordx4 v[52:55], v14, s[44:47], s67 offen sc1
    s_add_u32 s60, s60, 1
    s_waitcnt vmcnt(0)
    v_subrev_u32 v12, s4, v55
    v_cmp_lt_u32 s[62:63], 1, v12
    s_cmp_gt_u32 s60, SPIN_N
    s_cbranch_scc1 L_Wg
    s_cmp_lg_u64 s[62:63], 0
    s_cbranch_scc1 L_Wg1
    ''' % (LW, LW))
    if a.stamps: a('s_mov_b32 s60, 0')
    a.label('L_Wg')
    a('s_mov_b64 exec, -1')
    for i in range(4):
        a('buffer_load_dwordx4 %s, v9, s[44:47], s69 offen offset:%d sc1' % (R(36 + 4 * i, 4), i * 1024))
    a('buffer_load_dwordx4 v[52:55], v14, s[44:47], s67 offen sc1')
    a('s_add_u32 s60, s60, 1')
    a('v_cmp_gt_u32 s[62:63], 16, v1')
    for i in range(4):
        a('s_waitcnt vmcnt(%d)' % (4 - i))
        a('v_mfma_f32_16x16x32_bf16 v[32:35], v[60:63], %s, %s' % (R(36 + 4 * i, 4), 'v[32:35]' if i else '0'))
        if i == 0:
            a('v_add3_u32 v15, v36, v37, v38')
            a('v_add_u32 v15, v15, v39')
        else:
            a('v_add3_u32 v15, v15, v%d, v%d' % (36 + 4 * i, 37 + 4 * i))
            a('v_add3_u32 v15, v15, v%d, v%d' % (38 + 4 * i, 39 + 4 * i))
    a("""
    s_waitcnt vmcnt(0)
    v_subrev_u32 v12, s4, v54
    v_cndmask_b32 v12, 0, v12, s[62:63]
    v_add_u32 v15, v15, v12
    v_xor_b32 v12, s4, v55
    """)
    a.wave_red('v_add_u32', 15, 13)
    a("""
    v_or_b32 v15, v15, v12
    v_cmp_ne_u32 vcc, 0, v15
    s_cmp_gt_u32 s60, SPIN_N
    s_cbranch_scc1 L_Wg_x
    s_cbranch_vccnz L_Wg
    L_Wg_x:
    """)
    a.stamp(7)
    if a.stamps:
        a('s_mul_i32 s92, s60, 100')
        a('s_add_u32 s92, s92, s70')
        a('s_addc_u32 s93, s71, 0')
    a("""
    v_cmp_neq_f32 vcc, 0, v52
    s_cbranch_vccnz L_Wgen
    """)
    a.label('L_Wj')
    a.wave_red('v_add_f32', 53, 12, rows_only=True)
    a('''
    ds_write_b64 v70, v[52:53]
    v_cvt_pk_bf16_f32 v32, v32, v33
    v_cvt_pk_bf16_f32 v33, v34, v35
    ds_write_b64 v64, v[32:33]
    s_waitcnt lgkmcnt(0)
    s_barrier
    ''')
    a.stamp(8)
    for ks in range(4):
        a.d('ds_read_b128 %s, v65 offset:%d' % (R(36 + 4 * ks, 4), ROWS - SM + ks * 64), 'a%d' % ks)
    a.d('ds_read_b64 v[52:53], v71', 'lw')
    for ks in range(4):
        a.dwait('a%d' % ks)
        a('v_mfma_f32_16x16x32_bf16 v[32:35], %s, %s, %s' % (R(36 + 4 * ks, 4), R(16 + 4 * ks, 4), 'v[32:35]' if ks else '0'))
    a.dall()
    a('''
    v_cmp_neq_f32 vcc, 0, v52
    s_cbranch_vccnz L_Wgen2
    L_Wj2:
    v_add_f32_dpp v53, v53, v53 quad_perm:[1,0,3,2] row_mask:0xf bank_mask:0xf
    s_nop 1
    v_add_f32_dpp v53, v53, v53 quad_perm:[2,3,0,1] row_mask:0xf bank_mask:0xf
    s_nop 1
    v_add_f32_dpp v53, v53, v53 row_half_mirror row_mask:0xf bank_mask:0xf
    v_add_f32 v32, v32, v33
    v_add_f32 v34, v34, v35
    v_rcp_f32 v67, v53
    v_add_f32 v32, v32, v34
    ''')
    a.swap_red('v_add_f32', 32, 33, 16)
    a('''
    v_mul_f32 v32, v32, v67
    v_cvt_pk_bf16_f32 v32, v32, v32
    ds_write_b16 v66, v32
    s_waitcnt lgkmcnt(0)
    s_barrier
    ''')
    for ks in range(4):
        a.d('ds_read_b128 %s, v5 offset:%d' % (R(36 + 4 * ks, 4), CB - SM + ks * 64), 'a%d' % ks)
    for ks in range(4):
        a.dwait('a%d' % ks)
        for mt in range(4):
            a('v_mfma_f32_16x16x32_bf16 %s, %s, %s, %s' % (R(16 + 4 * mt, 4), R(36 + 4 * ks, 4), R(WOF + (mt * 4 + ks) * 4, 4), R(16 + 4 * mt, 4) if ks else '0'))
    a('''
    v_cndmask_b32 v16, v16, v20, s[52:53]
    v_cndmask_b32 v16, v16, v24, s[54:55]
    v_cndmask_b32 v16, v16, v28, s[56:57]
    buffer_store_dword v16, v11, s[44:47], s58 offen sc1
    ''')
    a.stamp(9)
    if a.stamps:
        a('s_cmp_lg_u32 s3, %d' % o.get('stw', 0))
        a('s_cbranch_scc1 L_end')
        a.write_stamps()
    a('s_endpgm')

def role_Wslow(a, o):
    a.aslow()
    a.label('L_Wgen')
    a('v_mov_b32 v12, v52')
    a.wave_red('v_max_f32', 12, 13, rows_only=True)
    a('''
    v_sub_f32 v54, v52, v12
    v_exp_f32 v54, v54
    v_mov_b32 v52, v12                ; Mw
    v_and_b32 v54, 0xffff0000, v54
    v_mul_f32 v53, v53, v54
    v_lshrrev_b32 v55, 16, v54
    v_or_b32 v54, v54, v55
    v_lshlrev_b32 v13, 2, v6
    ''')
    for i in range(4):
        a('ds_bpermute_b32 v12, v13, v54 offset:%d' % (16 * i))
        a('s_waitcnt lgkmcnt(0)')
        for p in range(4):
            a('v_and_b32 v%d, v12, v%d' % (60 + p, 56 + p))
        a('v_mfma_f32_16x16x32_bf16 v[32:35], v[60:63], %s, %s' % (R(36 + 4 * i, 4), 'v[32:35]' if i else '0'))
    a('s_nop 7')
    a('s_branch L_Wj')
    a.label('L_Wgen2')
    a('''
    v_mov_b32 v12, v52
    v_max_f32_dpp v12, v12, v12 quad_perm:[1,0,3,2] row_mask:0xf bank_mask:0xf
    v_max_f32_dpp v12, v12, v12 quad_perm:[2,3,0,1] row_mask:0xf bank_mask:0xf
    v_max_f32_dpp v12, v12, v12 row_half_mirror row_mask:0xf bank_mask:0xf
    v_sub_f32 v54, v52, v12
    v_exp_f32 v54, v54
    v_and_b32 v13, 1, v6
    v_lshlrev_b32 v13, 4, v13
    v_mul_f32 v53, v53, v54
    ''')
    for r in range(4):
        a('ds_bpermute_b32 v12, v13, v54 offset:%d' % (4 * r))
        a('s_waitcnt lgkmcnt(0)')
        a('v_mul_f32 v%d, v%d, v12' % (32 + r, 32 + r))
    a('s_nop 1')
    a('s_branch L_Wj2')

def gen(stamps=False, o=None):
    o = o or {}
    a = G(stamps)
    prologue(a, o)
    role_W(a, o)
    role_A(a, o)
    role_final(a, o)
    role_As(a, o)
    role_Wslow(a, o)
    a.label('L_end')
    txt = a.text()
    for k, v in (('QT_SLEEP', o.get('qtsleep', 1)), ('QT_THR', o.get('qtthr', 2)), ('REP_MASK', o.get('repmask', '0x00010001' if o.get('ef', 1) == 2 else '0xff')), ('LSPIN', 200000), ('SPIN_N', SPIN),
                 ('ML_SLEEP', o.get('mlsleep', 1)), ('FIN_SLEEP', o.get('finsleep', 0)), ('UKGATE', o.get('ukgate', 3))):
        txt = txt.replace(k, str(v))
    txt = txt.replace('W1A ', '; ' if o.get('now1', 0) else '')
    txt = txt.replace('PTA ', '' if o.get('pre', 0) else '; ').replace('ML_OFF', '0x%x' % ML)
    qs = o.get('qcsh', 5)
    txt = txt.replace('QCSH+5', str(qs + 5)).replace('QCSH', str(qs)).replace('QCEX', {4: '0x1ffff', 5: '0x3ffff', 6: '0xfffff', 7: '0xffffff'}[qs]).replace('REP_N', str(o.get('repn', 1)))
    txt = txt.replace('NODEP ', '' if o.get('nodep', 0) else '; ')
    if o.get('nodep', 0): txt = txt.replace('s_or_b32 s14, vcc_lo, vcc_hi', 's_mov_b32 s14, 0')
    if o.get('now1', 0): txt = txt.replace('buffer_load_dwordx4 v14, s[40:43], s14 offen', '; ').replace('buffer_load_dwordx4 v14, s[40:43], s60 offen', '; ')
    txt = txt.replace('OUTPT ', '' if o.get('outpt', 1) else '; ')
    txt = txt.replace('REPBASE', 's11' if o.get('ef', 1) == 2 else 's68')
    txt = txt.replace('AMIX ', '' if o.get('amix', 0) else '; ')
    rm = o.get('remap', 0)
    if rm:
        sh = rm + 2
        code = '''    s_cbranch_scc1 L_end
    s_bfe_u32 s8, s2, 0x%x
    s_lshl_b32 s8, s8, 7
    s_and_b32 s9, s2, 0x%x
    s_lshr_b32 s2, s2, %d
    s_lshl_b32 s2, s2, %d
    s_or_b32 s2, s2, s9
    s_or_b32 s2, s2, s8
''' % ((1 << 16) | sh, (1 << sh) - 1, sh + 1, sh)
        txt = txt.replace('    s_cbranch_scc1 L_end\n', code, 1)
    body = hz.fix(txt)
    return kernel_file([(KN + '_kernel', 256, 512, 163840)], [(KN + '_kernel', body, 256, 96, 256)])

if __name__ == '__main__':
    out = sys.argv[1]
    stamps = 'stamps' in sys.argv[2:]
    o = {}
    for kv in sys.argv[2:]:
        if '=' in kv:
            k, v = kv.split('=')
            o[k] = int(v) if v.lstrip('-').isdigit() else v.replace('_', ' ')
    open(out, 'w').write(gen(stamps, o))
```

```python
from gen14 import *

RLB = STG + 0x2000
RB = STG + 0x3100

def role_A(a, o):
    AW = o.get('awin', 8); AW0 = o.get('awin0', 1); AN0 = o.get('an0', 3); NPRE = o.get('npre', 20)
    a.label('L_A')
    a.stamps_hold = False
    a.vm = []; a.lg = []; a.slow = []
    common2(a)
    a.srd(40, CKV, 0x2000000)
    def voffs(x, y):
        a('''
        v_mbcnt_lo_u32_b32 v%d, -1, 0
        v_mbcnt_hi_u32_b32 v%d, -1, v%d
        v_lshrrev_b32 v%d, 4, v%d
        v_and_b32 v%d, 15, v%d
        v_lshlrev_b32 v%d, 4, v%d
        v_mul_u32_u24 v%d, 0x440, v%d
        v_xor_b32 v%d, v%d, v%d
        v_xor_b32 v%d, 32, v%d
        ''' % (x, x, x, y, x, x, x, x, x, y, y, x, x, y, y, x))
    voffs(3, 0)
    a("""
    s_and_b32 s59, s2, 7
    s_lshl_b32 s59, s59, 4
    s_lshr_b32 s8, s2, 3
    s_add_u32 s59, s59, s8            ; p
    s_lshl_b32 s8, s59, 18
    s_cmp_ge_u32 s3, 4
    s_cbranch_scc1 L_As
    s_lshl_b32 s9, s3, 14
    s_add_u32 s8, s8, s9
    s_lshl_b32 s10, s3, 8
    s_or_b32 s66, s8, s10
    s_lshl_b32 s10, s3, 10
    s_or_b32 s67, s9, s10
    AMIX s_and_b32 s10, s3, 1
    AMIX s_lshl_b32 s10, s10, 13
    AMIX s_or_b32 s66, s66, s10
    AMIX s_or_b32 s67, s67, s10
    s_mov_b32 s15, 0
    v_mov_b32 v10, 0
    v_mov_b32 v11, 0
    """)
    def dma_one(i, seg, aa, win=None):
        if win is not None: a.vwait_n(win - 1)
        a('s_xor_b32 m0, s67, 0x%x' % ((i % 2) * 65536 + aa * 4096 + seg * 1024))
        a('s_xor_b32 s10, s66, 0x%x' % (i * 65536 + aa * 4096 + seg * 256))
        a.v('buffer_load_dwordx4 v%d, s[40:43], s10 offen nt lds' % (3 if aa < 2 else 0), 'C%d' % i)
    a.label('L_Apass')
    a('''
    AMIX s_and_b32 s10, s3, 1
    AMIX s_lshl_b32 s10, s10, 5
    AMIX v_xor_b32 v3, s10, v3
    AMIX v_xor_b32 v0, s10, v0
    ''')
    a.vm = []
    first = [(i, seg, aa) for i in range(2) for aa in range(4) for seg in range(4)]
    for n in range(AW0): dma_one(*first[n])
    a("""
    v_mbcnt_lo_u32_b32 v1, -1, 0
    v_mbcnt_hi_u32_b32 v1, -1, v1
    v_lshrrev_b32 v16, 4, v1          ; g / q
    v_and_b32 v17, 15, v1             ; l%%16
    v_lshlrev_b32 v5, 4, v1
    v_add_u32 v5, 0x%x, v5            ; p_rd
    v_lshlrev_b32 v18, 4, v16
    v_xor_b32 v32, v5, v18            ; q frag read (even ks)
    v_xor_b32 v33, 64, v32            ; (odd ks)
    ; p_wr = PB + (w>>1)*2048 + (2(w&1) + (q>>1))*256 + h16*16 + (q&1)*8
    s_lshr_b32 s10, s3, 1
    s_lshl_b32 s10, s10, 11
    s_and_b32 s11, s3, 1
    s_lshl_b32 s11, s11, 9
    s_add_u32 s10, s10, s11
    s_add_u32 s10, s10, 0x%x
    v_lshrrev_b32 v18, 1, v16         ; q>>1
    v_lshlrev_b32 v19, 8, v18
    v_lshl_add_u32 v19, v17, 4, v19
    v_and_b32 v20, 1, v16             ; q&1
    v_lshl_add_u32 v19, v20, 3, v19
    v_add_u32 v4, s10, v19
    ; pv addr: (g>>1)*16384 + 2(g&1)*4096 + w*1024 + r*256 + ((c'/2) ^ ((r<<2) | 2(g&1)))*16 + (c'&1)*8
    v_lshrrev_b32 v21, 2, v17         ; r (pv) / a (qk)
    v_bfe_u32 v22, v1, 1, 1
    v_lshl_add_u32 v22, v20, 1, v22
    v_lshl_add_u32 v22, v21, 2, v22
    v_lshlrev_b32 v22, 4, v22
    v_lshl_add_u32 v22, v21, 8, v22
    v_lshl_add_u32 v22, v20, 13, v22
    v_lshl_add_u32 v22, v18, 14, v22
    v_and_b32 v23, 1, v1
    v_lshl_add_u32 v22, v23, 3, v22
    s_lshl_b32 s10, s3, 10
    v_add_u32 v2, s10, v22
    ; qk addr: w*16384 + a*4096 + r*256 + ((r<<2) | (g ^ (a&2)))*16
    v_and_b32 v22, 3, v17
    v_and_b32 v23, 2, v21
    v_xor_b32 v23, v23, v16
    v_lshl_add_u32 v23, v22, 2, v23
    v_lshlrev_b32 v23, 4, v23
    v_lshl_add_u32 v23, v22, 8, v23
    v_lshl_add_u32 v23, v21, 12, v23
    v_add_u32 v12, s9, v23
    v_xor_b32 v13, 64, v12
    v_xor_b32 v14, 0x80, v12
    v_xor_b32 v15, 0xc0, v12
    v_mov_b32 v6, 0
    v_mov_b32 v7, 0
    v_mov_b32 v8, 0xff800000
    v_mov_b32 v9, 0xff800000
    """ % (PB, PB))
    SS = [[16, 20], [24, 28]]; P = [32, 36, 40, 44]; XQ = [48, 52, 56, 60]
    def O(hh, ct): return 64 + (hh * 8 + ct) * 4
    def QF(hh, ks): return 128 + (hh * 16 + ks) * 4
    def s_init(i, hh):
        for r in range(4): a('v_mov_b32 v%d, v%d' % (SS[i % 2][hh] + r, 10 + hh))
    s_init(0, 0); s_init(0, 1)
    for n in range(AW0, NPRE): dma_one(*first[n], AW0 if n < AN0 else AW)
    def hcheck(need):
        lab = a.newlabel('L_Ahc')
        a('s_cmp_ge_u32 s62, %d' % need)
        a('s_cbranch_scc0 %s' % lab)
        a.label(lab + 'b')
        a.slow.append('''
        %s:
        s_mov_b32 s11, 0
        %sl:
        ds_read_b32 v1, v3 offset:32
        s_add_u32 s11, s11, 1
        s_waitcnt lgkmcnt(0)
        v_readfirstlane_b32 s62, v1
        s_sub_u32 s62, s62, s57
        s_cmp_gt_u32 s62, 15
        s_cselect_b32 s62, 0, s62
        s_cmp_gt_u32 s11, LSPIN
        s_cbranch_scc1 %sb
        s_cmp_lt_u32 s62, %d
        s_cbranch_scc1 %sl
        s_branch %sb
        ''' % (lab, lab, lab, need, lab, lab))
    def pcheck(off=0, redo=''):
        lab = a.newlabel('L_Apc')
        a('v_subrev_u32 v1, s63, v1')
        a('v_cmp_lt_u32 vcc, 7, v1')
        a('s_cbranch_vccnz %s' % lab)
        a.label(lab + 'b')
        a.slow.append('''
        %s:
        s_mov_b32 s11, 0
        %sl:
        ds_read_b32 v1, v0 offset:%d
        s_add_u32 s11, s11, 1
        s_waitcnt lgkmcnt(0)
        v_subrev_u32 v1, s63, v1
        v_cmp_lt_u32 vcc, 7, v1
        s_cmp_gt_u32 s11, LSPIN
        s_cbranch_scc1 %sr
        s_cbranch_vccnz %sl
        %sr:
        %s
        s_branch %sb
        ''' % (lab, lab, off, lab, lab, lab, redo, lab))
    pairs = [SS[1], XQ[0:2], XQ[2:4]]
    KB = pairs[2] + pairs[0] + pairs[1] + P + pairs[2] + P
    def kbuf(g): return 64 + 4 * g if g < 16 else KB[g % 16]
    def rk(g):
        i, seg, k = g // 16, (g % 16) // 4, g % 4
        if ('C%d' % i) in a.vm: a.vwait('C%d' % i)
        if i >= 2 and g % 8 == 0: hcheck((i - 2) * 4 + seg + 2)
        if i and seg == 0: a('v_xor_b32 v%d, 0x10000, v%d' % (12 + k, 12 + k))
        a.d('ds_read_b128 %s, v%d offset:%d' % (R(kbuf(g), 4), 12 + k, seg * 1024), 'k%d' % g)
    def step(g, nxt=True):
        i = g // 16
        a.dwait('k%d' % g)
        for hh in range(2):
            s = SS[0][hh]
            a('v_mfma_f32_16x16x32_bf16 %s, %s, %s, %s' % (R(s, 4), R(kbuf(g), 4), R(QF(hh, g % 16), 4), R(s, 4)))
        if nxt: rk(g + 5)
    pvstate = [0]
    def pv_addr(i, ct):
        want = (i % 2) * 65536 + (ct << 5)
        if want != pvstate[0]:
            a('v_xor_b32 v2, 0x%x, v2' % (want ^ pvstate[0]))
            pvstate[0] = want
    def rv(i, ct, ks2, dst):
        pv_addr(i, ct)
        for rdi in range(2):
            a.d('ds_read_b64_tr_b16 %s, v2 offset:%d' % (R(dst + 2 * rdi, 2), ks2 * 32768 + rdi * 4096), 'v%d_%d' % (ct, ks2))
    for g in range(16): rk(g)
    if 'C0' in a.vm: a.vwait('C0')
    if o.get('diaga', -1) < 0: a.stamp(10)
    a('s_barrier')
    if o.get('diaga', -1) < 0: a.stamp(11)
    a('v_mov_b32 v35, 0')
    a.v('global_load_dword v34, v35, s[36:37] sc1', 'N')
    a('s_cmp_eq_u32 s15, 0')
    a('s_cbranch_scc1 L_Anr')
    sv = list(a.vm)
    for n in range(NPRE, 32): dma_one(*first[n])
    a('s_waitcnt vmcnt(0)')
    a.vm = sv
    a.label('L_Anr')

    for ct in range(3):
        for ks2 in range(2): rv(0, ct, ks2, pairs[ct][ks2])
    a('''
    v_and_b32 v0, 3, v1
    v_lshlrev_b32 v0, 2, v0
    v_add_u32 v0, 0x%x, v0            ; flag read addr
    s_lshl_b32 s10, s3, 2
    s_add_u32 s10, s10, 0x%x
    v_mov_b32 v3, s10                 ; own flag addr
    s_mov_b32 s62, 0
    ''' % (FL, FL))
    a.dall()
    DA = o.get('diaga', -1)
    def ds(i, k):
        if DA == i:
            a('s_memtime s[%d:%d]' % (70 + 2 * k, 71 + 2 * k))
    a.stamp(1)
    a('s_barrier')
    a.stamp(2)
    if DA >= 0: a.stamps_mute = True
    ds(9, 3)
    a('s_cmp_lg_u32 s15, 0')
    a('s_cbranch_scc1 L_Anoq')
    def rq(ks):
        for hh in range(2):
            a.d('ds_read_b128 %s, v%d offset:%d' % (R(QF(hh, ks), 4), 32 + (ks & 1), (hh * 16 + ks) * 1024), 'q%d' % ks)
    QD = 6
    for ks in range(QD): rq(ks)
    vm0 = list(a.vm)
    for g in range(12):
        a.dwait('q%d' % g)
        step(g, False)
        if g + QD < 16: rq(g + QD)
        if g in (0, 5): ds(9, 4 if g == 0 else 5)
    a.dall()
    a('s_branch L_Aq2')
    a.label('L_Anoq')
    vm1 = list(a.vm)
    a('s_waitcnt vmcnt(0)')
    a('s_add_u32 s10, s58, 24')
    a('v_mov_b32 v1, s10')
    a('ds_write_b32 v3, v1 offset:32')
    for g in range(12): step(g, False)
    a.dall()
    a.vm = vm1
    a.label('L_Aq2')
    ds(9, 6)
    if 'N' in a.vm: a.vwait('N')
    a('''
    v_readfirstlane_b32 s58, v34
    s_lshl_b32 s10, s15, 4
    s_add_u32 s57, s58, s10
    s_barrier                         ; B1
    ''')
    ds(9, 7)
    def half(g, hh):
        a.dwait('k%d' % g)
        a('v_mfma_f32_16x16x32_bf16 %s, %s, %s, %s' % (R(SS[0][hh], 4), R(kbuf(g), 4), R(QF(hh, g % 16), 4), R(SS[0][hh], 4)))
    def last4(g, fill=None):
        for k in range(0, 4):
            half(g + k, 0)
            if fill: fill()
        for k in range(4):
            half(g + k, 1)
            if fill: fill()
    last4(12)
    ds(9, 8)
    E = 36
    def sm_ops(i):
        S = SS[0]; pb = (i % 2) * 4096
        def ex(hh, rs): return [(lambda hh=hh, r=r: a('v_exp_f32 v%d, v%d' % (E + 4 * hh + r, S[hh] + r))) for r in rs]
        def cw(hh):
            def f():
                for r in range(2):
                    a('v_cvt_pk_bf16_f32 v%d, v%d, v%d' % (32 + 2 * hh + r, E + 4 * hh + 2 * r, E + 4 * hh + 2 * r + 1))
                a.d('ds_write_b64 v4, %s offset:%d' % (R(32 + 2 * hh, 2), pb + 1024 * hh), 'w')
            return f
        def flag():
            a('s_add_u32 s63, s57, %d' % i)
            a('v_mov_b32 v1, s63')
            a.d('ds_write_b32 v3, v1', 'w')
        def mxl(hh):
            def f():
                a('v_add_f32 v%d, v%d, v%d' % (E + 4 * hh, E + 4 * hh, E + 4 * hh + 1))
                a('v_add_f32 v%d, v%d, v%d' % (E + 4 * hh + 2, E + 4 * hh + 2, E + 4 * hh + 3))
                a('v_max3_f32 v%d, v%d, v%d, v%d' % (8 + hh, 8 + hh, S[hh], S[hh] + 1))
                a('v_add_f32 v%d, v%d, v%d' % (6 + hh, 6 + hh, E + 4 * hh))
                a('v_max3_f32 v%d, v%d, v%d, v%d' % (8 + hh, 8 + hh, S[hh] + 2, S[hh] + 3))
                a('v_add_f32 v%d, v%d, v%d' % (6 + hh, 6 + hh, E + 4 * hh + 2))
            return f
        def chk():
            for f in ((0, 1, 2, 3) if i < 3 else (0, 2, 1, 3)):
                a.d('ds_read_b128 %s, v5 offset:%d' % (R(P[f], 4), pb + f * 1024), 'p%d' % f)
        return ex, cw, flag, mxl, chk
    VCK = o.get('vck', 7)
    for i in range(3):
        ds(i, 3)
        ex, cw, flag, mxl, chk = sm_ops(i)
        g0 = 16 * (i + 1)
        for f in ex(0, range(4)): f()
        cw(0)()
        for f in ex(1, range(4)): f()
        cw(1)()
        flag()
        ds(i, 4)
        mxl(0)(); mxl(1)()
        a.d('ds_read_b32 v1, v0', 'pf')
        n0 = len(a.lines)
        chk()
        redo = [l.strip() for l in a.lines[n0:] if 's_waitcnt' not in l] + ['s_waitcnt lgkmcnt(0)']
        s_init(0, 0); s_init(0, 1)
        a.dwait('pf')
        pcheck(0, '\n'.join(redo))
        ds(i, 5)
        for ct in range(8):
            for ks2 in range(2):
                a.dwait('v%d_%d' % (ct, ks2))
                for hh in range(2):
                    a.dwait('p%d' % (ks2 * 2 + hh))
                    cin = '0' if (i == 0 and ks2 == 0) else R(O(hh, ct), 4)
                    a('v_mfma_f32_16x16x32_bf16 %s, %s, %s, %s' % (R(O(hh, ct), 4), R(P[ks2 * 2 + hh], 4), R(pairs[ct % 3][ks2], 4), cin))
                    if 3 <= ct + 2 < 8:
                        if hh == 0: pv_addr(i, ct + 2)
                        a.d('ds_read_b64_tr_b16 %s, v2 offset:%d' % (R(pairs[(ct + 2) % 3][ks2] + 2 * hh, 2), ks2 * 32768 + hh * 4096), 'v%d_%d' % (ct + 2, ks2))
                if ct == 0 and ks2 == 0: ds(i, 6)
                if ct == 4 and ks2 == 0: ds(i, 7)
                if ct == 5 and ks2 == 1: a.d('ds_read_b32 v1, v3 offset:32', 'hf')
                if ct == 6 and ks2 == 1:
                    a.dall()
                    if i >= 0:
                        a('''
                    v_readfirstlane_b32 s62, v1
                    s_sub_u32 s62, s62, s57
                    s_cmp_gt_u32 s62, 15
                    s_cselect_b32 s62, 0, s62
                    ''')
                    if i == 0:
                        a.vall()
                        hcheck(1)
                    if i < 2:
                        a('v_mov_b32 v1, s63')
                        a.d('ds_write_b32 v3, v1 offset:16', 'w')
                        a.stamp(8 + i)
                        a('s_cmp_lg_u32 s15, 0')
                        a('s_cbranch_scc1 L_Arf%d' % i)
                        a.label('L_Arb%d' % i)
                    rk(g0); rk(g0 + 1)
                if ct == 7 and ks2 == 0: rk(g0 + 2); rk(g0 + 3)
        ds(i, 8)
        rk(g0 + 4)
        if i < 2:
            vq = [(ct, ks2) for ct in range(3) for ks2 in range(2)]
            def vfill():
                if vq:
                    ct, ks2 = vq.pop(0)
                    rv(i + 1, ct, ks2, pairs[ct][ks2])
            for s in range(12):
                step(g0 + s, s < 11)
                if s == 0: ds(i, 9)
                if s == 8: ds(i, 10)
                if s == VCK - 3:
                    if i == 1: a('s_add_u32 s63, s57, 4')
                    a.d('ds_read_b32 v1, v0 offset:%d' % (16 + 16 * i), 'ha')
                if s == VCK:
                    a.dwait('ha')
                    pcheck(16 + 16 * i)
                if s > VCK and len(vq) > 2: vfill()
            last4(g0 + 12, vfill)
        else:
            for s in range(8): step(g0 + s, s < 3)
        ds(i, 11)
    a('''
    v_mbcnt_lo_u32_b32 v24, -1, 0
    v_mbcnt_hi_u32_b32 v24, -1, v24
    v_and_b32 v25, 15, v24
    v_lshrrev_b32 v27, 4, v24
    v_lshlrev_b32 v26, 6, v25
    v_lshl_add_u32 v26, v27, 2, v26
    s_lshl_b32 s10, s3, 4
    s_add_u32 s10, s10, 0x%x
    v_add_u32 v26, s10, v26           ; l write addr
    v_lshlrev_b32 v25, 4, v25
    v_lshl_add_u32 v25, v27, 19, v25  ; O store voffset
    v_bfe_u32 v28, v24, 3, 1
    v_lshl_add_u32 v27, v27, 2, v28
    v_bfe_u32 v28, v24, 2, 1
    v_lshl_add_u32 v27, v28, 1, v27
    v_and_b32 v28, 1, v24
    v_lshl_add_u32 v27, v28, 4, v27   ; h(lane)
    v_and_b32 v28, 2, v24
    v_lshlrev_b32 v28, 4, v28
    v_lshl_add_u32 v28, v27, 6, v28
    v_add_u32 v28, 0x%x, v28          ; l read addr
    v_lshlrev_b32 v29, 4, v27         ; MLC voffset
    s_lshl_b32 s10, s3, 15
    s_lshl_b32 s12, s59, 8
    s_add_u32 s10, s10, s12
    s_add_u32 s13, s10, 0x%x
    s_lshl_b32 s12, s59, 2
    s_add_u32 s12, s12, s3
    s_lshl_b32 s12, s12, 9
    s_add_u32 s12, s12, 0x%x
    s_mov_b32 s60, 0xaaaaaaaa
    s_mov_b32 s61, 0xaaaaaaaa
    s_mov_b32 s64, 0x33333333
    s_mov_b32 s65, 0x33333333
    s_add_u32 s63, s57, 8
    ''' % (RLB, RLB, OP, ML))
    rk(56)
    a.stamp(3)
    ds(3, 3)
    rk(57); rk(58); rk(59); rk(60)
    a.d('ds_read_b32 v1, v0 offset:32', 'ha')
    def VF(ct, ks2): return (128 if ct < 4 else 192) + ((ct % 4) * 2 + ks2) * 4
    vl = [(ct, ks2) for ct in range(8) for ks2 in range(2)]
    vi = 0
    def more(n=1):
        nonlocal vi
        for _ in range(n):
            if vi < 16:
                rv(3, vl[vi][0], vl[vi][1], VF(*vl[vi])); vi += 1
    for g in range(56, 60):
        step(g, g < 59)
        if g == 56:
            a.dwait('ha')
            pcheck(32)
        else:
            more()
    last4(60, more)
    ex, cw, flag, mxl, chk = sm_ops(3)
    for f in ex(0, range(4)): f()
    cw(0)()
    for f in ex(1, range(4)): f()
    cw(1)()
    mxl(0)(); mxl(1)()
    a.d('ds_write2st64_b32 v26, v6, v7 offset0:0 offset1:4', 'w')
    more(2)
    a.dwait('w')
    a('s_barrier')
    chk()
    ds(3, 4)
    ds(4, 3)
    more(3)
    PK = [XQ, [16, 20, 160, 164]]
    CS = 168
    def pack(hh, r):
        for k in range(4):
            a('v_cvt_pk_bf16_f32 v%d, v%d, v%d' % (PK[hh][r] + k, O(hh, 2 * k) + r, O(hh, 2 * k + 1) + r))
    def st(hh, r):
        a('s_add_u32 s11, s13, 0x%x' % ((16 * hh + r) * 131072))
        a('buffer_store_dwordx4 %s, v25, s[44:47], s11 offen sc1' % R(PK[hh][r], 4))
    def cs(hh, r):
        b = PK[hh][r]; c = CS + 4 * hh + r
        a('v_add3_u32 v%d, v%d, v%d, v%d' % (c, b, b + 1, b + 2))
        a('v_add_u32 v%d, v%d, v%d' % (c, c, b + 3))
    T = 176
    def stepA(i):
        a('v_add_u32_dpp v%d, v%d, v%d row_ror:8 row_mask:0xf bank_mask:0x3' % (T + i, CS + 2 * i, CS + 2 * i))
        a('v_add_u32_dpp v%d, v%d, v%d row_ror:8 row_mask:0xf bank_mask:0xc' % (T + i, CS + 2 * i + 1, CS + 2 * i + 1))
    def stepB(hh):
        a('v_add_u32_dpp v%d, v%d, v%d row_half_mirror row_mask:0xf bank_mask:0x5' % (T + 4 + hh, T + 2 * hh, T + 2 * hh))
        a('v_add_u32_dpp v%d, v%d, v%d row_half_mirror row_mask:0xf bank_mask:0xa' % (T + 4 + hh, T + 2 * hh + 1, T + 2 * hh + 1))
        a('v_add_u32_dpp v%d, v%d, v%d quad_perm:[1,0,3,2] row_mask:0xf bank_mask:0xf' % (T + 4 + hh, T + 4 + hh, T + 4 + hh))
    def lchk():
        a.d('ds_read_b128 v[224:227], v28', 'rl')
        a.d('ds_read_b128 v[228:231], v28 offset:16', 'rl')
    def ls1():
        a.dwait('rl')
        a('''
        v_add_f32 v224, v224, v225
        v_add_f32 v226, v226, v227
        v_add_f32 v228, v228, v229
        v_add_f32 v230, v230, v231
        ''')
    def ls2():
        a('''
        v_add_f32 v224, v224, v226
        v_add_f32 v228, v228, v230
        v_add_f32 v185, v224, v228
        v_mov_b32 v187, s58
        ''')
    f0 = {1: lchk, 5: ls1, 6: ls2, 7: lambda: a('v_add_f32_dpp v185, v185, v185 quad_perm:[2,3,0,1] row_mask:0xf bank_mask:0xf')}
    f1 = {2: lambda: pack(0, 0), 3: lambda: (st(0, 0), pack(0, 1)), 4: lambda: (st(0, 1), pack(0, 2)), 5: lambda: (st(0, 2), pack(0, 3)),
          6: lambda: (st(0, 3), cs(0, 0), cs(0, 1)), 7: lambda: (cs(0, 2), cs(0, 3), stepA(0))}
    for hh in range(2):
        for ct in range(8):
            for ks2 in range(2):
                a.dwait('v%d_%d' % (ct, ks2)); a.dwait('p%d' % (ks2 * 2 + hh))
                a('v_mfma_f32_16x16x32_bf16 %s, %s, %s, %s' % (R(O(hh, ct), 4), R(P[ks2 * 2 + hh], 4), R(VF(ct, ks2), 4), R(O(hh, ct), 4)))
            f = (f0 if hh == 0 else f1).get(ct)
            if f: f()
            if hh == 0 and ct in (1, 2, 4, 7): ds(4, {1: 4, 2: 5, 4: 6, 7: 7}[ct])
            if hh == 1 and ct in (2, 7): ds(4, {2: 8, 7: 9}[ct])
    a.stamp(4)
    ds(3, 5)
    stepA(1)
    a("""
    v_subrev_u32 v186, 0x2f800000, v185
    v_cmp_le_u32 vcc, 0x24000000, v186
    """)
    NE = o.get('nearly', 0)
    pack(1, 0)
    stepB(0)
    for r in range(4):
        if r < 3: pack(1, r + 1)
        if r < NE: st(1, r)
        cs(1, r)
        if r == 2: stepA(2)
    a("""
    s_or_b32 s14, vcc_lo, vcc_hi
    s_or_b32 s11, s14, s15
    s_cbranch_scc1 L_Aslow
    v_mov_b32 v184, 0
    L_Aok:
    """)
    stepA(3)
    a('v_sub_u32 v186, v187, v184')
    stepB(1)
    a('v_sub_u32 v186, v186, v185')
    a('v_cndmask_b32 v%d, v%d, v%d, s[60:61]' % (T + 4, T + 4, T + 5))
    a('v_add_u32_dpp v%d, v%d, v%d quad_perm:[2,3,0,1] row_mask:0xf bank_mask:0xf' % (T + 4, T + 4, T + 4))
    a("""
    v_sub_u32 v186, v186, v%d
    s_mov_b64 exec, s[64:65]
    buffer_store_dwordx4 v[184:187], v29, s[44:47], s12 offen sc1
    s_mov_b64 exec, -1
    """ % (T + 4))
    for r in range(NE, 4): st(1, r)
    ds(3, 6)

    def slow():
        for i in range(2):
            a.label('L_Arf%d' % i)
            a('s_waitcnt lgkmcnt(0)')
            a('s_barrier')
            voffs(1, 0)
            for seg in range(4):
                for aa in range(4):
                    a('s_add_u32 m0, s9, 0x%x' % (i * 65536 + aa * 4096 + seg * 1024))
                    a('s_add_u32 s10, s8, 0x%x' % ((i + 2) * 65536 + aa * 4096 + seg * 256))
                    a('buffer_load_dwordx4 v%d, s[40:43], s10 offen nt lds' % (1 if aa < 2 else 0))
            a('''
            v_mbcnt_lo_u32_b32 v0, -1, 0
            v_and_b32 v0, 3, v0
            v_lshlrev_b32 v0, 2, v0
            v_add_u32 v0, 0x%x, v0
            s_waitcnt vmcnt(0)
            s_barrier
            s_branch L_Arb%d
            ''' % (FL, i))
        for t in a.slow: a(t)
        a.label('L_Aslow')
        a("""
        v_lshlrev_b32 v30, 2, v27
        v_add_u32 v30, 0x%x, v30
        s_cmp_lg_u32 s15, 0
        s_cbranch_scc1 L_Aslow2
        ; first pass was unsafe: rerun with the true (rounded up) per-head max
        ds_write2st64_b32 v26, v8, v9 offset0:8 offset1:12
        s_waitcnt lgkmcnt(0)
        s_barrier
        ds_read_b128 v[224:227], v28 offset:2048
        ds_read_b128 v[228:231], v28 offset:2064
        s_waitcnt lgkmcnt(0)
        v_max3_f32 v224, v224, v225, v226
        v_max3_f32 v227, v227, v228, v229
        v_max3_f32 v224, v224, v230, v231
        v_max_f32 v184, v224, v227
        v_max_f32_dpp v184, v184, v184 quad_perm:[2,3,0,1] row_mask:0xf bank_mask:0xf
        v_ceil_f32 v184, v184
        ds_write_b32 v30, v184
        v_and_b32 v31, 15, v24
        v_lshlrev_b32 v30, 2, v31
        v_add_u32 v30, 0x%x, v30
        v_lshrrev_b32 v232, 4, v24
        v_lshlrev_b32 v232, 4, v232
        v_lshl_add_u32 v31, v31, 10, v232
        s_mov_b32 s10, 0x4000
        s_waitcnt vmcnt(0) lgkmcnt(0)
        ds_read_b32 v10, v30
        ds_read_b32 v11, v30 offset:64
        """ % (RB, RB))
        for hh in range(2):
            for ks in range(16):
                a('buffer_load_dwordx4 %s, v31, s[44:47], %s offen offset:%d sc1' % (R(QF(hh, ks), 4), 's10' if hh else '0', ks * 64))
        a("""
        s_mov_b32 s15, 1
        s_waitcnt vmcnt(0) lgkmcnt(0)
        v_sub_f32 v10, 0, v10
        v_sub_f32 v11, 0, v11
        """)
        voffs(3, 0)
        a("""
        s_barrier
        s_branch L_Apass
        L_Aslow2:
        ds_read_b32 v184, v30
        s_waitcnt lgkmcnt(0)
        s_branch L_Aok
        """)
    a.aslow = slow
```

```python
from roleA27 import *

def role_final(a, o):
    a('''
    s_cmp_lg_u32 s3, 0
    s_cbranch_scc1 L_end
    ''')
    a.stamp(5)
    a.srd(48, WS, FP + 86 * 2048)
    a.srd(40, X, 1024)
    a('''
    v_mov_b32 v40, v24
    s_and_b32 s10, s2, 7
    s_lshl_b32 s10, s10, 6
    s_lshr_b32 s11, s2, 3
    s_lshl_b32 s11, s11, 2
    s_add_u32 s10, s10, s11            ; m0
    s_lshl_b32 s11, s10, 2
    s_lshl_b32 s12, s10, 1
    v_lshlrev_b32 v41, 11, v40
    v_and_b32 v42, 3, v40
    v_lshlrev_b32 v43, 1, v42
    buffer_load_ushort v60, v43, s[40:43], s12 offen
    v_and_b32 v44, 1, v40
    v_cmp_eq_u32 s[60:61], 1, v44
    v_and_b32 v44, 2, v40
    v_cmp_eq_u32 s[62:63], 2, v44
    ''')
    def gather4(base, srd, lab, dst):
        a('s_add_u32 s13, s11, 0x%x' % base)
        a('s_add_u32 s14, s11, 0x%x' % (base + 64 * 2048))
        a('s_mov_b32 s8, 0')
        a('s_mov_b64 s[64:65], -1')
        a('s_mov_b64 s[66:67], -1')
        a.label(lab)
        a('s_sleep FIN_SLEEP')
        a('s_mov_b64 exec, s[64:65]')
        a('s_cbranch_execz %s_a' % lab)
        a('buffer_load_dwordx4 v[48:51], v41, s[%d:%d], s13 offen sc1' % (srd, srd + 3))
        a.label(lab + '_a')
        a('s_mov_b64 exec, s[66:67]')
        a('s_cbranch_execz %s_b' % lab)
        a('buffer_load_dwordx4 v[52:55], v41, s[%d:%d], s14 offen sc1' % (srd, srd + 3))
        a.label(lab + '_b')
        a('''
        s_mov_b64 exec, -1
        s_add_u32 s8, s8, 1
        s_waitcnt vmcnt(0)
        v_max3_u32 v56, v48, v49, v50
        v_max3_u32 v57, v52, v53, v54
        v_max_u32 v56, v56, v51
        v_max_u32 v57, v57, v55
        v_cmp_eq_u32 s[64:65], -1, v56
        v_cmp_eq_u32 s[66:67], -1, v57
        s_cmp_gt_u32 s8, SPIN_N
        s_cbranch_scc1 %s_x
        s_or_b64 s[68:69], s[64:65], s[66:67]
        s_cbranch_scc1 %s
        %s_x:
        v_add_f32 v48, v48, v52
        v_add_f32 v49, v49, v53
        v_add_f32 v50, v50, v54
        v_add_f32 v51, v51, v55
        v_cndmask_b32 v52, v48, v49, s[60:61]
        v_cndmask_b32 v53, v49, v48, s[60:61]
        v_cndmask_b32 v54, v50, v51, s[60:61]
        v_cndmask_b32 v55, v51, v50, s[60:61]
        v_add_f32_dpp v52, v53, v52 quad_perm:[1,0,3,2] row_mask:0xf bank_mask:0xf
        v_add_f32_dpp v54, v55, v54 quad_perm:[1,0,3,2] row_mask:0xf bank_mask:0xf
        v_cndmask_b32 v%d, v52, v54, s[62:63]
        v_cndmask_b32 v53, v54, v52, s[62:63]
        v_add_f32_dpp v%d, v53, v%d quad_perm:[2,3,0,1] row_mask:0xf bank_mask:0xf
        v_add_f32_dpp v%d, v%d, v%d row_ror:4 row_mask:0xf bank_mask:0xf
        v_add_f32_dpp v%d, v%d, v%d row_ror:8 row_mask:0xf bank_mask:0xf
        ''' % ((lab, lab, lab) + (dst,) * 9))
        a.swap_red('v_add_f32', dst, 53, 16)
        a.swap_red('v_add_f32', dst, 53, 32)
    gather4(FP, 48, 'L_gf', 61)
    a.rnd_bf16(61)
    a.silu(61, 53)
    a.rnd_bf16(61)
    a('v_lshlrev_b32 v60, 16, v60')
    a.srd(40, OUT, 1024)
    a.stamp(6)
    gather4(SP, 44, 'L_gs', 62)
    a.rnd_bf16(62)
    a('v_mul_f32 v62, v62, v61')
    a.rnd_bf16(62)
    a('''
    v_add_f32 v62, v62, v60
    v_cvt_pk_bf16_f32 v62, v62, v62
    s_mov_b64 exec, 15
    buffer_store_short v62, v43, s[40:43], s12 offen
    ''')
    a.stamp(7)
    a.write_stamps()
    a('s_endpgm')

def role_As(a, o):
    a.stamps_mute = False
    a.label('L_As')
    ops = [(c, seg, aa) for c in range(2) for seg in range(4) for aa in range(4)]
    AM = o.get('amaj', 1)
    ops = [(c, sp * 2 + sg, aa) for c in range(2) for sp in range(2) for aa in range(4) for sg in range(2)]
    if o.get('hmix', 0): ops = [(c, sp * 2 + sg, aa) for c in range(2) for sp in range(2) for aa in (0, 2, 1, 3) for sg in range(2)]
    def prog(n):
        return {7: 2, 15: 4, 23: 6, 31: 8}.get(n)
    NPRE = o.get('npre', 20); NR = 32 - NPRE
    first = [(i, seg, aa) for i in range(2) for aa in range(4) for seg in range(4)]
    def loads(lo, hi):
        for n in range(lo, hi):
            if n < 0:
                i, seg, aa = first[32 + n]
                a('s_xor_b32 m0, s69, 0x%x' % (65536 + aa * 4096 + seg * 1024))
                a('s_xor_b32 s10, s66, 0x%x' % (65536 + aa * 4096 + seg * 256))
                a.v('buffer_load_dwordx4 v%d, s[40:43], s10 offen nt lds' % (3 if aa < 2 else 0), 'D')
                continue
            c, seg, aa = ops[n]
            a('s_add_u32 s10, s64, 0x%x' % (c * 65536 + aa * 4096 + seg * 256))
            a.v('buffer_load_dwordx4 %s, v%d, s[40:43], s10 offen nt' % (R(128 + 4 * n, 4), 3 if aa < 2 else 0), 'L%d' % n)
    def writes(lo, hi):
        for n in range(lo, hi):
            c, seg, aa = ops[n]
            if ('L%d' % n) in a.vm: a.vwait('L%d' % n)
            a('ds_write_b128 v%d, %s offset:%d' % (100 + c, R(128 + 4 * n, 4), aa * 4096 + seg * 1024))
        a('s_waitcnt lgkmcnt(0)')
    c = [int(x, 16) for x in str(o.get('hsch', 'x64'))[1:]]
    a("""
    s_setprio 3
    s_sub_u32 s3, s3, 4
    s_lshl_b32 s9, s3, 14
    s_add_u32 s64, s8, s9
    s_lshl_b32 s10, s3, 8
    s_or_b32 s66, s64, s10
    s_lshl_b32 s10, s3, 10
    s_or_b32 s69, s9, s10
    s_add_u32 s64, s64, 0x20000
    v_lshl_add_u32 v100, v1, 4, s9
    v_add_u32 v101, 0x10000, v100
    v_mov_b32 v2, 0
    s_mov_b32 s8, 0
    L_Agn:
    s_sleep 8
    global_load_dword v5, v2, s[36:37] sc1
    s_add_u32 s8, s8, 1
    s_waitcnt vmcnt(0)
    v_readfirstlane_b32 s4, v5
    s_cmp_gt_u32 s8, SPIN_N
    s_cbranch_scc1 L_Agn_x
    s_cmp_eq_u32 s4, 0
    s_cbranch_scc1 L_Agn
    L_Agn_x:
    OUTPT global_load_dword v254, v2, s[34:35]
    """)
    K0 = o.get('k0', 12)
    a.vm = []
    for n in range(K0):
        if n >= o.get('k0w', 4): a('s_waitcnt vmcnt(%d)' % (o.get('k0w', 4) - 1))
        loads(n - NR, n - NR + 1)
    a("""
    v_lshlrev_b32 v2, QCSH, v1        ; tag voffset
    v_lshlrev_b32 v98, 4, v1          ; data voffset
    v_lshlrev_b32 v97, 7, v1          ; flag voffset
    s_lshl_b32 s9, s3, 13             ; QA + u*8192
    s_add_u32 s65, s9, 4096
    s_lshl_b32 s11, s3, QCSH+5
    s_add_u32 s11, s11, 0x%x          ; QC + u*32 entries
    s_lshr_b32 s12, s3, 1
    s_lshl_b32 s12, s12, 14
    s_and_b32 s13, s3, 1
    s_lshl_b32 s13, s13, 7
    s_add_u32 s12, s12, s13
    s_add_u32 s12, s12, 0x%x
    v_and_b32 v6, 7, v1
    v_lshlrev_b32 v6, 4, v6
    v_lshl_add_u32 v6, v1, 8, v6
    v_add_u32 v6, s12, v6             ; LDS write base
    s_lshl_b32 s4, s4, 5              ; expected sum = 32 * nonce
    v_mov_b32 v72, 0
    v_mov_b32 v73, 0
    s_lshl_b32 s68, s3, 10
    s_add_u32 s68, s68, 0x10000
    s_mov_b32 s12, REP_MASK
    s_mov_b32 s13, 0
    NODEP s_branch L_Agt_x
    L_Agt:
    s_sleep QT_SLEEP
    s_mov_b64 exec, s[12:13]
    buffer_load_dwordx2 v[72:73], v97, s[44:47], REPBASE offen sc1
    s_add_u32 s8, s8, 1
    s_waitcnt vmcnt(0)
    v_cmp_ne_u32 s[12:13], v73, v5
    s_cmp_gt_u32 s8, SPIN_N
    s_cbranch_scc1 L_Agt_x
    s_cmp_lg_u32 s12, 0
    s_cbranch_scc1 L_Agt
    L_Agt_x:
    s_mov_b32 exec_lo, -1
    buffer_load_dwordx2 v[72:73], v2, s[44:47], s11 offen sc1
    s_mov_b64 exec, -1
    """ % (QC, STG))
    def dload(i):
        a('buffer_load_dwordx4 %s, v98, s[44:47], s%d offen offset:%d sc1' % (R(8 + 4 * i, 4), 9 if i < 4 else 65, (i % 4) * 1024))
    def dproc(i):
        a('ds_write_b128 v%d, %s' % (40 + i, R(8 + 4 * i, 4)))
        a('v_add3_u32 v%d, v%d, v%d, v%d' % (80 + i, 8 + 4 * i, 9 + 4 * i, 10 + 4 * i))
        a('v_add_u32 v%d, v%d, v%d' % (80 + i, 80 + i, 11 + 4 * i))
    for i in range(8): dload(i)
    a.stamp(1)
    if a.stamps: a('s_mov_b32 s8, 1')
    if o.get('rlate', 0):
        a("""
        s_waitcnt vmcnt(8)
        L_Agr:
        v_cmp_ne_u32 s[12:13], v73, v5
        s_cmp_eq_u32 s12, 0
        s_cbranch_scc1 L_Agr_x
        s_add_u32 s8, s8, 1
        s_cmp_gt_u32 s8, SPIN_N
        s_cbranch_scc1 L_Agr_x
        s_mov_b32 s13, 0
        s_quadmask_b32 s67, s12
        s_mov_b64 exec, s[12:13]
        buffer_load_dwordx2 v[72:73], v2, s[44:47], s11 offen sc1
        s_mov_b64 exec, -1
        """)
        for i in range(8):
            a('s_bitcmp1_b32 s67, %d' % i)
            a('s_cbranch_scc0 L_Agk%d' % i)
            dload(i)
            a.label('L_Agk%d' % i)
        a("""
        s_waitcnt vmcnt(0)
        s_branch L_Agr
        L_Agr_x:
        """)
    a('s_barrier')
    a.vm = []
    loads(K0 - NR, K0 - NR + c[0]); p = K0 - NR + c[0]
    for i in range(8): a('v_xor_b32 v%d, %d, v6' % (40 + i, i << 4))
    for i in range(8):
        a('s_waitcnt vmcnt(%d)' % (7 - i + c[0]))
        dproc(i)
    a("""
    NODEP s_branch L_Agp_x
    v_cmp_ne_u32 s[12:13], v73, v5
    s_cmp_eq_u32 s12, 0
    s_cbranch_scc1 L_Agc
    L_Agp:
    s_mov_b32 s13, 0
    s_quadmask_b32 s67, s12
    s_mov_b64 exec, s[12:13]
    buffer_load_dwordx2 v[72:73], v2, s[44:47], s11 offen sc1
    s_mov_b64 exec, -1
    """)
    for i in range(8):
        a('s_bitcmp1_b32 s67, %d' % i)
        a('s_cbranch_scc0 L_Agl%d' % i)
        dload(i)
        a.label('L_Agl%d' % i)
    a("""
    s_add_u32 s8, s8, 1
    s_waitcnt vmcnt(0)
    v_cmp_ne_u32 s[12:13], v73, v5
    """)
    for i in range(8):
        a('s_bitcmp1_b32 s67, %d' % i)
        a('s_cbranch_scc0 L_Agw%d' % i)
        dproc(i)
        a.label('L_Agw%d' % i)
    a("""
    s_cmp_gt_u32 s8, SPIN_N
    s_cbranch_scc1 L_Agp_x
    s_cmp_lg_u32 s12, 0
    s_cbranch_scc1 L_Agp
    L_Agc:
    v_add3_u32 v4, v72, v80, v81
    v_add3_u32 v74, v82, v83, v84
    v_add3_u32 v4, v4, v85, v86
    v_add3_u32 v4, v4, v74, v87
    """)
    a.wave_red('v_add_u32', 4, 74)
    a("""
    v_readfirstlane_b32 s10, v4
    s_mov_b32 s12, -1
    s_cmp_lg_u32 s10, s4
    s_cbranch_scc1 L_Agp
    L_Agp_x:
    s_waitcnt lgkmcnt(0)
    """)
    a.stamp(3)
    a('s_barrier')
    a('s_setprio 0')
    loads(p, p + c[1]); p += c[1]
    a('''
    v_and_b32 v102, 3, v1
    v_lshlrev_b32 v102, 2, v102
    v_add_u32 v102, 0x%x, v102        ; YF read addr
    s_lshl_b32 s10, s3, 2
    s_add_u32 s10, s10, 0x%x
    v_mov_b32 v103, s10               ; own HF addr
    s_barrier                         ; B1
    ''' % (FL + 16, FL + 32))
    if p < 0: loads(p, 0); p = 0
    a('v_add_u32 v99, 1, v5')
    if 'D' in a.vm: a.vwait('D')
    a('ds_write_b32 v103, v99')
    K = o.get('hk', 18)
    loads(p, K); p = max(p, K)
    def yspin(i):
        a('''
        s_mov_b32 s11, 0
        L_Ay%d:
        ds_read_b32 v99, v102
        s_add_u32 s11, s11, 1
        s_waitcnt lgkmcnt(0)
        v_sub_u32 v99, v99, v5
        v_subrev_u32 v99, %d, v99
        v_cmp_lt_u32 vcc, 7, v99
        s_cmp_gt_u32 s11, LSPIN
        s_cbranch_scc1 L_Ay%dx
        s_cbranch_vccz L_Ay%dx
        s_sleep 1
        s_branch L_Ay%d
        L_Ay%dx:
        ''' % (i, i, i, i, i, i))
    for n in range(32):
        if n % 16 == 0:
            if n == 16: loads(p, 32); p = 32
            yspin(n // 16)
        cc, seg, aa = ops[n]
        if prog(n): a('v_add_u32 v99, %d, v5' % prog(n))
        if ('L%d' % n) in a.vm: a.vwait('L%d' % n)
        a('ds_write_b128 v%d, %s offset:%d' % (100 + cc, R(128 + 4 * n, 4), aa * 4096 + seg * 1024))
        if prog(n): a('ds_write_b32 v103, v99')
        if p < 32: loads(p, p + 1); p += 1
    if a.stamps:
        a('s_mul_i32 s78, s8, 100')
        a('s_add_u32 s78, s78, s70')
        a('s_addc_u32 s79, s71, 0')
        a('s_lshl_b32 s2, s2, 2')
        a('s_add_u32 s2, s2, s3')
        a('s_add_u32 s2, s2, 256')
        a('s_barrier')
        a('s_sleep 127')
        a.write_stamps(vb=104)
    a('s_endpgm')

def layernorm(a):
    for i in range(4):
        a('v_lshlrev_b32 v%d, 16, v%d' % (72 + 2 * i, 68 + i))
        a('v_and_b32 v%d, 0xffff0000, v%d' % (73 + 2 * i, 68 + i))
    a('v_readfirstlane_b32 s60, v72')
    for i in range(8): a('v_subrev_f32 v%d, s60, v%d' % (84 + i, 72 + i))
    a("""
    v_add_f32 v80, v84, v85
    v_mul_f32 v82, v84, v84
    v_add_f32 v81, v86, v87
    v_mul_f32 v83, v85, v85
    v_add_f32 v92, v88, v89
    v_fmac_f32 v82, v86, v86
    v_add_f32 v93, v90, v91
    v_fmac_f32 v83, v87, v87
    v_add_f32 v80, v80, v81
    v_fmac_f32 v82, v88, v88
    v_add_f32 v92, v92, v93
    v_fmac_f32 v83, v89, v89
    v_add_f32 v80, v80, v92
    v_fmac_f32 v82, v90, v90
    v_fmac_f32 v83, v91, v91
    v_add_f32 v82, v82, v83
    """)
    for m in ('quad_perm:[1,0,3,2]', 'quad_perm:[2,3,0,1]', 'row_half_mirror', 'row_mirror'):
        a('v_add_f32_dpp v80, v80, v80 %s row_mask:0xf bank_mask:0xf' % m)
        a('v_add_f32_dpp v82, v82, v82 %s row_mask:0xf bank_mask:0xf' % m)
    for w in (16, 32):
        a('v_mov_b32 v81, v80')
        a('v_mov_b32 v83, v82')
        a('v_permlane%d_swap_b32 v80, v81' % w)
        a('v_permlane%d_swap_b32 v82, v83' % w)
        a('v_add_f32 v80, v80, v81')
        a('v_add_f32 v82, v82, v83')
    a('v_mul_f32 v80, 0x%x, v80' % f2u(1 / 512))
    a('v_mul_f32 v82, 0x%x, v82' % f2u(1 / 512))
    a('v_fma_f32 v82, -v80, v80, v82')
    a('v_add_f32 v80, s60, v80')
    a('v_max_f32 v82, 0, v82')
    a('v_cvt_pk_bf16_f32 v80, v80, v82')
    a('v_and_b32 v82, 0xffff0000, v80')
    a('v_lshlrev_b32 v80, 16, v80')
    a('v_add_f32 v82, 0x%x, v82' % f2u(1e-5))
    for i in range(4):
        a('v_sub_f32 v%d, v%d, v80' % (72 + i, 72 + i))
    a.rnd_bf16(82)
    a('v_sqrt_f32 v82, v82')
    for i in range(4, 8):
        a('v_sub_f32 v%d, v%d, v80' % (72 + i, 72 + i))
    a.rnd_bf16(82)
    a('v_rcp_f32 v82, v82')
    for i in range(4):
        a('v_cvt_pk_bf16_f32 v%d, v%d, v%d' % (68 + i, 72 + 2 * i, 73 + 2 * i))
    for i in range(4):
        a('v_lshlrev_b32 v%d, 16, v%d' % (72 + 2 * i, 68 + i))
        a('v_and_b32 v%d, 0xffff0000, v%d' % (73 + 2 * i, 68 + i))
    for i in range(8):
        a('v_mul_f32 v%d, v%d, v82' % (72 + i, 72 + i))
    for i in range(4):
        a('v_cvt_pk_bf16_f32 v%d, v%d, v%d' % (68 + i, 72 + 2 * i, 73 + 2 * i))

def role_W(a, o):
    WOPOL = o.get('wopol', 'nt'); W1POL = o.get('w1pol', 'nt')
    a.label('L_W')
    a.vm = []; a.lg = []
    a('''
    s_and_b32 s8, s2, 7               ; x
    s_lshr_b32 s9, s2, 3
    s_sub_u32 s9, s9, 16              ; k
    s_lshr_b32 s10, s9, 2
    s_lshl_b32 s11, s8, 2
    s_add_u32 s10, s10, s11           ; h
    s_and_b32 s11, s9, 3              ; j
    s_lshl_b32 s13, s10, 8            ; h*256
    v_lshlrev_b32 v9, 4, v1           ; lane*16
    v_lshrrev_b32 v6, 4, v1           ; g / r
    v_and_b32 v7, 15, v1              ; pc / i
    v_lshlrev_b32 v8, 1, v6
    v_xor_b32 v8, v8, v7
    v_lshlrev_b32 v8, 4, v8           ; (pc ^ (r<<1))*16
    v_lshl_add_u32 v2, v6, 13, v8
    v_xor_b32 v3, 0x80, v2            ; voffB
    s_lshl_b32 s14, s11, 3
    s_add_u32 s14, s14, s3            ; 8j + w
    s_lshl_b32 s15, s14, 17
    s_add_u32 s15, s15, s13           ; (128j + 16w)*8192 + h*256
    s_lshl_b32 s14, s3, 12            ; LDS w*4096
    v_lshlrev_b32 v10, 2, v6
    v_xor_b32 v10, v10, v7
    v_lshlrev_b32 v10, 4, v10
    v_lshl_add_u32 v10, v6, 13, v10
    v_xor_b32 v11, 32, v10
    s_mov_b32 s42, 0x400000
    s_mov_b32 s43, 0x20000
    s_mov_b32 s50, 0x400000
    s_mov_b32 s51, 0x20000
    s_mov_b32 m0, s14
    s_waitcnt lgkmcnt(0)
    s_mov_b32 s40, s20
    s_mov_b32 s41, s21
    s_cmp_lg_u32 s3, 0
    s_cbranch_scc1 L_Wx
    global_load_dwordx4 v[68:71], v9, s[16:17]
    L_Wx:
    ''')
    for i in range(4):
        if i:
            a('s_add_u32 m0, s14, %d' % (i * 1024))
            a('s_add_u32 s60, s15, %d' % (i * 32768))
        a.v('buffer_load_dwordx4 v%d, s[40:43], %s offen nt lds' % (2 if i < 2 else 3, 's60' if i else 's15'), 'WQ')
    a('s_mov_b32 s48, s22')
    a('s_mov_b32 s49, s23')
    if o.get('ukbar', 1): a('s_barrier')
    for i in range(4):
        a('s_add_u32 m0, s14, %d' % (UKL + i * 1024))
        a('s_add_u32 s60, s15, %d' % (i * 32768))
        a.v('buffer_load_dwordx4 v%d, s[48:51], s60 offen nt lds' % (10 if i < 2 else 11), 'UK')
    common2(a)
    if o.get('diag', 0) == 2: a.stamp(5)
    a('v_mov_b32 v14, 0')
    if not o.get('lnfirst', 1):
        a('''
        s_lshl_b32 s12, s9, 3
        s_add_u32 s12, s12, s8            ; fb = 8k + x
        s_cmp_lt_u32 s9, 11
        s_cselect_b32 s12, s12, 1000
        v_mov_b32 v14, 0
        v_lshrrev_b32 v12, 2, v7          ; r' / a
        v_and_b32 v13, 1, v6
        v_lshl_add_u32 v13, v13, 2, v12
        v_lshlrev_b32 v13, 1, v13
        v_bfe_u32 v16, v1, 1, 1
        s_lshl_b32 s60, s3, 1
        v_add_u32 v16, s60, v16
        v_xor_b32 v16, v16, v13
        v_lshlrev_b32 v16, 4, v16
        v_lshl_add_u32 v13, v6, 3, v12
        v_lshl_add_u32 v16, v13, 8, v16
        v_and_b32 v13, 1, v1
        v_lshl_add_u32 v4, v13, 3, v16    ; tr-read base
        v_lshlrev_b32 v5, 4, v6
        v_add_u32 v5, 0x%x, v5            ; SM + g*16
        v_and_b32 v13, 3, v7
        v_and_b32 v16, 2, v12
        v_xor_b32 v16, v16, v6
        v_lshl_add_u32 v16, v13, 2, v16
        v_lshlrev_b32 v16, 4, v16
        v_lshl_add_u32 v16, v7, 8, v16
        s_add_u32 s60, s14, 0x%x
        v_add_u32 v64, s60, v16           ; uk frag read addrs
        v_xor_b32 v65, 64, v64
        v_xor_b32 v66, 0x80, v64
        v_xor_b32 v67, 0xc0, v64
        ''' % (SM, UKL))
    if o.get('qpw', 0):
        a('''
        s_lshl_b32 s60, s10, 12
        s_lshl_b32 s61, s3, 7
        s_add_u32 s60, s60, s61
        s_add_u32 s60, s60, 0x%x
        v_lshlrev_b32 v17, 10, v6
        ''' % QP)
        a.v('buffer_load_dword v254, v17, s[44:47], s60 offen sc1', 'PT')
    a('''
    s_cmp_lg_u32 s3, 0
    s_cbranch_scc1 L_Wln
    s_waitcnt vmcnt(%d)
    s_load_dword s4, s[36:37], 0
    ''' % len(a.vm))
    if o.get('diag', 0) == 2: a.stamp(6)
    layernorm(a)
    if o.get('diag', 0) == 2: a.stamp(7)
    a('''
    v_add_u32 v72, 0x%x, v9
    ds_write_b128 v72, v[68:71]
    s_waitcnt lgkmcnt(0)
    s_mov_b32 s60, 0
    s_branch L_Wn_c
    L_Wn:
    global_load_dword v15, v14, s[36:37] sc1
    s_add_u32 s60, s60, 1
    s_waitcnt vmcnt(0)
    v_readfirstlane_b32 s4, v15
    s_cmp_gt_u32 s60, SPIN_N
    s_cbranch_scc1 L_Wn_x
    L_Wn_c:
    s_cmp_eq_u32 s4, 0
    s_cbranch_scc1 L_Wn
    L_Wn_x:
    v_mov_b32 v72, 0x%x
    v_mov_b32 v15, s4
    ds_write_b32 v72, v15
    s_waitcnt lgkmcnt(0)
    L_Wln:
    ''' % (XN, NB))
    if o.get('lnfirst', 1):
        a('''
        s_lshl_b32 s12, s9, 3
        s_add_u32 s12, s12, s8            ; fb = 8k + x
        s_cmp_lt_u32 s9, 11
        s_cselect_b32 s12, s12, 1000
        v_mov_b32 v14, 0
        v_lshrrev_b32 v12, 2, v7          ; r' / a
        v_and_b32 v13, 1, v6
        v_lshl_add_u32 v13, v13, 2, v12
        v_lshlrev_b32 v13, 1, v13
        v_bfe_u32 v16, v1, 1, 1
        s_lshl_b32 s60, s3, 1
        v_add_u32 v16, s60, v16
        v_xor_b32 v16, v16, v13
        v_lshlrev_b32 v16, 4, v16
        v_lshl_add_u32 v13, v6, 3, v12
        v_lshl_add_u32 v16, v13, 8, v16
        v_and_b32 v13, 1, v1
        v_lshl_add_u32 v4, v13, 3, v16    ; tr-read base
        v_lshlrev_b32 v5, 4, v6
        v_add_u32 v5, 0x%x, v5            ; SM + g*16
        v_and_b32 v13, 3, v7
        v_and_b32 v16, 2, v12
        v_xor_b32 v16, v16, v6
        v_lshl_add_u32 v16, v13, 2, v16
        v_lshlrev_b32 v16, 4, v16
        v_lshl_add_u32 v16, v7, 8, v16
        s_add_u32 s60, s14, 0x%x
        v_add_u32 v64, s60, v16           ; uk frag read addrs
        v_xor_b32 v65, 64, v64
        v_xor_b32 v66, 0x80, v64
        v_xor_b32 v67, 0xc0, v64
        ''' % (SM, UKL))
    if o.get('diag', 0) == 2: a.stamp(8)
    a.vwait('WQ')
    if o.get('diag', 0) == 2: a.stamp(9)
    a('s_barrier')
    a.stamp(1)
    if o.get('diag', 0) == 2: a.stamps_hold = True
    a('s_lshl_b32 s60, s11, 8')
    a('v_add_u32 v13, s60, v5')
    for ks in range(4):
        a.d('ds_read_b128 %s, v13 offset:%d' % (R(52 + 4 * ks - 16 + 16, 4), ks * 64) if False else 'ds_read_b128 %s, v13 offset:%d' % (R(16 + 4 * ks, 4), ks * 64), 'a%d' % ks)
        for rdi in range(2):
            a.d('ds_read_b64_tr_b16 %s, v4 offset:%d' % (R(36 + 4 * ks + 2 * rdi, 2), ks * 8192 + rdi * 1024), 'a%d' % ks)
    a('v_mov_b32 v12, 0x%x' % NB)
    a.d('ds_read_b32 v53, v12', 'n')
    a('''
    s_lshl_b32 s60, s10, 12
    s_lshl_b32 s61, s3, 7
    s_add_u32 s60, s60, s61
    s_add_u32 s60, s60, 0x%x          ; QP + h*4096 + w*128
    s_lshl_b32 s61, s11, 10
    s_add_u32 s61, s61, s60           ; + j*1024
    v_lshlrev_b32 v12, 3, v7          ; d*8
    v_lshl_add_u32 v13, v6, 10, v12   ; jj*1024 + d*8
    v_cmp_ne_u32 s[64:65], s11, v6    ; lanes of the other three
    ''' % QP)
    for ks in range(4):
        a.dwait('a%d' % ks)
        a('v_mfma_f32_16x16x32_bf16 v[32:35], %s, %s, %s' % (R(16 + 4 * ks, 4), R(36 + 4 * ks, 4), 'v[32:35]' if ks else '0'))
    a.dall()
    a('''
    s_lshl_b32 s62, s3, 5
    s_add_u32 s62, s62, 0x%x
    v_lshl_add_u32 v15, v7, 1, s62    ; QB + (16w + d)*2
    v_mov_b32 v55, v53
    v_mov_b32 v52, v32
    v_mov_b32 v54, v32
    s_mov_b64 exec, 0xffff
    buffer_store_dwordx2 v[52:53], v12, s[44:47], s61 offen sc1
    ''' % QB)
    def eflag():
        a('''
        s_or_b32 s5, s3, s11
        s_cmp_lg_u32 s5, 0
        s_cbranch_scc1 L_Wef
        s_lshl_b32 s5, s10, 7
        s_add_u32 s5, s5, 0x10000
        s_mov_b64 exec, 0xffff
        v_mov_b32 v52, v53
        buffer_store_dwordx2 v[52:53], v12, s[44:47], s5 offen sc1
        L_Wef:
        ''')
    a('''
    s_mov_b64 exec, -1
    s_lshl_b32 s68, s10, 2
    s_add_u32 s68, s68, s11           ; mi = 4h + j
    s_lshl_b32 s69, s68, 15
    s_lshl_b32 s61, s3, 12
    s_add_u32 s69, s69, s61
    s_add_u32 s69, s69, 0x%x          ; s69 = inbox base of this wave
    s_lshl_b32 s58, s68, 11
    s_lshl_b32 s61, s3, 8
    s_add_u32 s58, s58, s61
    s_add_u32 s58, s58, 0x%x          ; s58 = SP row of this wave
    s_lshl_b32 s66, s12, 11
    s_add_u32 s66, s66, s61
    s_add_u32 s66, s66, 0x%x          ; s66 = FP row of this wave
    s_cmp_lt_u32 s12, 86
    s_cselect_b32 s66, s66, s58
    s_lshl_b32 s67, s3, 6
    s_add_u32 s67, s67, s11
    s_lshl_b32 s67, s67, 9
    s_lshl_b32 s61, s10, 4
    s_add_u32 s67, s67, s61
    s_add_u32 s67, s67, 0x%x          ; s67 = MLC + (64w + j)*512 + h*16
    v_lshlrev_b32 v11, 2, v1
    v_mov_b32 v56, -1
    ''' % (OP, SP, FP, ML))
    a.v('buffer_store_dword v56, v11, s[44:47], s58 offen sc1', 'PT')
    a.v('buffer_store_dword v56, v11, s[44:47], s66 offen sc1', 'PT')
    EF = o.get('ef', 1)
    if EF == 0: eflag()
    if o.get('qpack', 1): a('s_waitcnt vmcnt(0)')
    if EF == 3: eflag()
    a.stamp(2)
    a('''
    s_mov_b32 s62, 0
    L_Wq:
    s_mov_b64 exec, s[64:65]
    buffer_load_dwordx2 v[54:55], v13, s[44:47], s60 offen sc1
    s_add_u32 s62, s62, 1
    s_waitcnt vmcnt(0)
    v_cmp_ne_u32 s[64:65], v55, v53
    s_cmp_gt_u32 s62, SPIN_N
    s_cbranch_scc1 L_Wq_x
    s_cmp_lg_u64 s[64:65], 0
    s_cbranch_scc1 L_Wq
    L_Wq_x:
    ''')
    if EF == 1: eflag()
    a('s_mov_b64 exec, -1')
    a.vm = []
    for ks in range(4):
        a.d('ds_read_b128 %s, v%d' % (R(16 + 4 * ks, 4), 64 + ks), 'uk')
    a.swap_red('v_add_f32', 54, 55, 16)
    a.swap_red('v_add_f32', 54, 55, 32)
    a('''
    v_cvt_pk_bf16_f32 v54, v54, v54
    ds_write_b16 v15, v54
    ''')
    a.dall()
    a('s_barrier')
    a.stamp(3)
    for ks in range(4):
        a.d('ds_read_b128 %s, v5 offset:%d' % (R(36 + 4 * ks, 4), QB - SM + ks * 64), 'a%d' % ks)
    a('''
    s_lshl_b32 s14, s3, 5
    s_add_u32 s14, s14, 0x%x
    v_lshl_add_u32 v13, v6, 3, s14    ; QO + w*32 + q*8
    v_lshlrev_b32 v12, 4, v7
    v_add_u32 v15, 0x%x, v12          ; QO + (l%%16)*16
    s_lshl_b32 s14, s68, 8
    s_lshl_b32 s15, s68, QCSH
    s_add_u32 s15, s15, 0x%x
    v_add_u32 v56, s14, v12
    v_add_u32 v57, s15, v12
    v_cndmask_b32 v56, v56, v57, s[52:53]
    ''' % (QO, QO, QC))
    for ks in range(4):
        a.dwait('a%d' % ks)
        a('v_mfma_f32_16x16x32_bf16 v[32:35], %s, %s, %s' % (R(16 + 4 * ks, 4), R(36 + 4 * ks, 4), 'v[32:35]' if ks else '0'))
    sc = f2u(128 ** -0.5 * math.log2(math.e))
    a('''
    v_mul_f32 v32, 0x%x, v32
    v_mul_f32 v33, 0x%x, v33
    v_mul_f32 v34, 0x%x, v34
    v_mul_f32 v35, 0x%x, v35
    v_cvt_pk_bf16_f32 v32, v32, v33
    v_cvt_pk_bf16_f32 v33, v34, v35
    ds_write_b64 v13, v[32:33]
    s_waitcnt lgkmcnt(0)
    s_barrier
    s_cmp_lg_u32 s3, 0
    s_cbranch_scc1 L_Wpub
    ds_read_b128 v[32:35], v15
    s_waitcnt lgkmcnt(0)
    v_add3_u32 v36, v32, v33, v34
    v_add_u32 v36, v36, v35
    ''' % (sc, sc, sc, sc))
    a.wave_red('v_add_u32', 36, 37, rows_only=True)
    a('''
    v_sub_u32 v36, v53, v36
    v_cndmask_b32 v32, v32, v36, s[52:53]
    v_cndmask_b32 v33, v33, v53, s[52:53]
    s_mov_b64 exec, QCEX
    buffer_store_dwordx4 v[32:35], v56, s[44:47], 0 offen sc1
    s_mov_b64 exec, -1
    L_Wpub:
    s_barrier
    ''')
    a.stamp(4)
    WW = o.get('wwin', 3)
    W1L, W2L, WOL = 0x8000, 0xC000, 0x10000
    a.srd(40, WUV, 0x400000)
    a.srd(48, WO, 0x400000)
    a("""
    s_mov_b32 s16, s30
    s_mov_b32 s17, s31
    s_mov_b32 s18, %d
    s_mov_b32 s19, 0x20000
    s_mov_b32 s20, s32
    s_mov_b32 s21, s33
    s_mov_b32 s22, %d
    s_mov_b32 s23, 0x20000
    v_readfirstlane_b32 s4, v53
    v_lshrrev_b32 v12, 3, v1          ; r8
    v_and_b32 v13, 7, v1              ; c8
    v_lshlrev_b32 v70, 4, v13
    v_lshl_add_u32 v70, v12, 10, v70  ; r8*1024 + c8*16   (w2 voff)
    v_bfe_u32 v15, v1, 4, 1
    v_lshlrev_b32 v15, 5, v15
    v_xor_b32 v68, v70, v15           ; voffC
    v_xor_b32 v69, 64, v68            ; voffD
    v_mul_u32_u24 v10, 2752, v6
    s_and_b32 s60, s3, 1
    s_lshl_b32 s60, s60, 7
    v_xor_b32 v13, s60, v8
    v_add_u32 v10, v10, v13           ; w1 voff
    s_lshl_b32 s24, s8, 3
    s_add_u32 s24, s24, s3
    s_mul_i32 s24, s24, %d
    s_lshl_b32 s60, s9, 8
    s_add_u32 s24, s24, s60           ; w1 source
    s_lshl_b32 s25, s12, 14
    s_lshl_b32 s60, s3, 7
    s_add_u32 s25, s25, s60           ; w2 source (out of range when not an FFN workgroup)
    s_cmp_lt_u32 s12, 88
    s_cselect_b32 s24, s24, 0x1000000
    s_lshl_b32 s26, s3, 11            ; LDS w*2048
    v_lshl_add_u32 v2, v6, 17, v8
    v_xor_b32 v3, 0x80, v2
    s_lshl_b32 s27, s11, 6
    s_add_u32 s27, s27, s3
    s_lshl_b32 s27, s27, 14
    s_add_u32 s27, s27, s13           ; uv source
    s_lshl_b32 s28, s3, 12            ; LDS w*4096
    s_lshl_b32 s14, s10, 17
    s_lshl_b32 s15, s3, 7
    s_add_u32 s14, s14, s15           ; wo source
    s_lshl_b32 s15, s3, 13
    s_add_u32 s15, s15, 0x%x          ; wo LDS
    v_lshrrev_b32 v71, 2, v7
    v_lshl_add_u32 v71, v6, 3, v71
    v_lshlrev_b32 v71, 7, v71
    v_and_b32 v13, 3, v1
    v_lshl_add_u32 v71, v13, 3, v71
    v_bfe_u32 v13, v1, 3, 2
    v_lshl_add_u32 v71, v13, 5, v71
    v_add_u32 v71, s15, v71
    """ % (512 * 2752, 1376 * 1024, 8 * 2752, WOL))
    a.vm = []
    WOF = 72
    cnt = [0]
    def op(kind, n):
        a.vwait_n((WW if cnt[0] < o.get('wsw', 99) else o.get('wwinb', 4)) - 1)
        cnt[0] += 1
        if kind == 'w1':
            a('s_add_u32 m0, s26, 0x%x' % (W1L + n * 1024)); a('s_add_u32 s60, s24, %d' % (n * 4 * 2752))
            a.v('buffer_load_dwordx4 v10, s[16:19], s60 offen nt lds', 'F')
        elif kind == 'w2':
            a('s_add_u32 m0, s26, 0x%x' % (W2L + n * 1024)); a('s_add_u32 s60, s25, %d' % (n * 8192))
            a.v('buffer_load_dwordx4 v70, s[20:23], s60 offen nt lds', 'F')
        elif kind == 'uv':
            a('s_add_u32 m0, s28, %d' % (n * 1024)); a('s_add_u32 s60, s27, %d' % ((64 * (n & 1) + (n >> 1)) * 8192))
            a.v('buffer_load_dwordx4 v%d, s[40:43], s60 offen nt lds' % (2 if n < 2 else 3), 'U')
        else:
            a('s_add_u32 m0, s15, %d' % ((n % 8) * 1024)); a('s_add_u32 s60, s14, %d' % (n * 8192))
            a.v('buffer_load_dwordx4 v%d, s[48:51], s60 offen %s lds' % (68 if n % 2 == 0 else 69, WOPOL), 'O%d' % (n // 4))
    def wo_read(ks):
        if ('O%d' % ks) in a.vm: a.vwait('O%d' % ks)
        for mt in range(4):
            a('v_xor_b32 v13, 0x%x, v71' % (mt * 32))
            for rdi in range(2):
                a.d('ds_read_b64_tr_b16 %s, v13 offset:%d' % (R(WOF + (mt * 4 + ks) * 4 + 2 * rdi, 2), (ks % 2) * 4096 + rdi * 512), 'wo')
        a.dall()
    def ffn1():
        if 'F' in a.vm: a.vwait('F')
        a('s_barrier')
        a.stamp(10)
        a("""
        s_cmp_ge_u32 s12, 88
        s_cbranch_scc1 L_Wnf2
        s_lshl_b32 s60, s8, 7
        v_add_u32 v13, s60, v5            ; xn + 64x*2 + g*16
        v_add_u32 v15, 0x8000, v4
        """)
        for ks in range(2):
            a('ds_read_b128 %s, v13 offset:%d' % (R(52 + 4 * ks, 4), ks * 64))
            for rdi in range(2):
                a('ds_read_b64_tr_b16 %s, v15 offset:%d' % (R(36 + 4 * ks + 2 * rdi, 2), ks * 8192 + rdi * 1024))
        a("""
        v_lshrrev_b32 v12, 2, v1
        v_and_b32 v13, 3, v1
        v_lshlrev_b32 v13, 3, v13
        v_lshl_add_u32 v12, v12, 7, v13
        s_lshl_b32 s60, s3, 11
        s_add_u32 s60, s60, 0x%x
        v_add_u32 v12, s60, v12
        s_waitcnt lgkmcnt(0)
        v_mfma_f32_16x16x32_bf16 v[32:35], v[52:55], v[36:39], 0
        v_mfma_f32_16x16x32_bf16 v[32:35], v[56:59], v[40:43], v[32:35]
        """ % W2L)
        for mt in range(4):
            a('ds_read_b64_tr_b16 %s, v12 offset:%d' % (R(44 + 2 * mt, 2), mt * 32))
        a("""
        s_lshl_b32 s60, s12, 10
        s_lshl_b32 s61, s3, 7
        s_add_u32 s60, s60, s61
        s_add_u32 s60, s60, 0x%x          ; HP + (8k+x)*1024 + w*128
        v_lshlrev_b32 v12, 3, v7
        v_mov_b32 v33, s4
        s_mov_b64 exec, 0xffff
        buffer_store_dwordx2 v[32:33], v12, s[44:47], s60 offen sc1
        s_mov_b64 exec, -1
        L_Wnf2:
        s_waitcnt lgkmcnt(0)
        """ % HP)
        a.lg = []
    def ffn2():
        a('''
        s_cmp_ge_u32 s12, 86
        s_cbranch_scc1 L_Wnf3
        s_lshl_b32 s60, s9, 13
        s_lshl_b32 s61, s8, 7
        s_add_u32 s60, s60, s61
        s_add_u32 s60, s60, 0x%x          ; HP + k*8192 + x*128
        v_and_b32 v12, 7, v1
        v_lshlrev_b32 v12, 10, v12
        v_lshl_add_u32 v12, v6, 5, v12    ; producer*1024 + g*32
        s_mov_b32 s61, 0
        L_Wh:
        buffer_load_dwordx4 v[52:55], v12, s[44:47], s60 offen sc1
        buffer_load_dwordx4 v[56:59], v12, s[44:47], s60 offen offset:16 sc1
        s_add_u32 s61, s61, 1
        s_waitcnt vmcnt(0)
        v_xor_b32 v13, v53, v55
        v_xor_b32 v14, v57, v59
        v_xor_b32 v15, s4, v53
        v_or3_b32 v13, v13, v14, v15
        v_xor_b32 v14, v53, v57
        v_or_b32 v13, v13, v14
        v_cmp_ne_u32 vcc, 0, v13
        s_cmp_gt_u32 s61, SPIN_N
        s_cbranch_scc1 L_Wh_x
        s_cbranch_vccnz L_Wh
        L_Wh_x:
        ''' % HP)
        for m in ('quad_perm:[1,0,3,2]', 'quad_perm:[2,3,0,1]', 'row_half_mirror'):
            for r in range(4):
                a('v_add_f32_dpp v%d, v%d, v%d %s row_mask:0xf bank_mask:0xf' % (52 + 2 * r, 52 + 2 * r, 52 + 2 * r, m))
        for r in range(4):
            a.rnd_bf16(52 + 2 * r)
            a.silu(52 + 2 * r, 53)
        a('v_cvt_pk_bf16_f32 v32, v52, v54')
        a('v_cvt_pk_bf16_f32 v33, v56, v58')
        for mt in range(4):
            a('v_mfma_f32_16x16x16_bf16 %s, v[32:33], %s, 0' % (R(52 + 4 * mt, 4), R(44 + 2 * mt, 2)))
        a('''
        v_cndmask_b32 v52, v52, v56, s[52:53]
        v_cndmask_b32 v52, v52, v60, s[54:55]
        v_cndmask_b32 v52, v52, v64, s[56:57]
        buffer_store_dword v52, v11, s[44:47], s66 offen sc1
        L_Wnf3:
        ''')
        a('s_waitcnt vmcnt(0)')
        a.vm = []
    seqs = {
        0: 'a0 o0 a1 o1 b0 o2 b1 o3 o4 o5 u0 F o6 o7 R0 o8 o9 u1 o10 o11 R1 o12 o13 u2 o14 o15 u3 R2 G R3',
        1: 'a0 a1 b0 b1 o0 o1 o2 o3 F o4 o5 o6 o7 R0 o8 o9 u0 o10 o11 u1 R1 o12 o13 u2 o14 o15 u3 R2 G R3',
        3: 'o0 o1 o2 o3 a0 o4 a1 o5 b0 o6 b1 o7 R0 o8 o9 u0 F o10 o11 u1 R1 o12 o13 u2 o14 o15 u3 R2 R3',
        2: 'o0 o1 o2 o3 a0 o4 a1 o5 b0 o6 b1 o7 R0 o8 o9 u0 F o10 o11 u1 R1 o12 o13 u2 o14 o15 u3 R2 G R3',
    }
    for t in seqs[o.get('wseq', 2)].split():
        if t == 'F': ffn1()
        elif t == 'G': ffn2()
        elif t[0] == 'R': wo_read(int(t[1:]))
        else: op({'a': 'w1', 'b': 'w2', 'u': 'uv', 'o': 'wo'}[t[0]], int(t[1:]))
    for p in range(4):
        a('v_cmp_eq_u32 vcc, %d, v7' % (2 * p))
        a('v_mov_b32 v%d, 0' % (56 + p))
        a('v_mov_b32 v64, 0xffff')
        a('v_cndmask_b32 v%d, v%d, v64, vcc' % (56 + p, 56 + p))
        a('v_cmp_eq_u32 vcc, %d, v7' % (2 * p + 1))
        a('v_mov_b32 v64, 0xffff0000')
        a('v_cndmask_b32 v%d, v%d, v64, vcc' % (56 + p, 56 + p))
        for i in range(4): a('v_and_b32 v%d, 0x3f803f80, v%d' % (136 + 4 * i + p, 56 + p))
    a("""
    v_lshrrev_b32 v64, 1, v6
    v_mul_u32_u24 v64, 0x%x, v64
    v_lshl_add_u32 v64, v7, 4, v64
    v_and_b32 v65, 1, v6
    v_lshl_add_u32 v64, v65, 3, v64
    s_mul_i32 s60, s3, 288
    s_add_u32 s60, s60, 0x%x
    v_add_u32 v64, s60, v64
    v_and_b32 v65, 7, v1
    v_mul_u32_u24 v65, 288, v65
    v_add_u32 v65, v65, v5
    s_lshl_b32 s60, s3, 5
    s_add_u32 s60, s60, 0x%x
    v_lshl_add_u32 v66, v7, 1, s60
    """ % (8 * 288, ROWS, CB))
    a('s_waitcnt vmcnt(0)')
    a('s_barrier')
    a.stamp(5)
    for ks in range(4):
        for rdi in range(2):
            a.d('ds_read_b64_tr_b16 %s, v4 offset:%d' % (R(16 + 4 * ks + 2 * rdi, 2), ks * 8192 + rdi * 1024), 'uv')
    a.dall()
    a.stamp(6)
    a('''
    v_lshlrev_b32 v14, 11, v7
    s_lshl_b32 s60, s3, 3
    s_add_u32 s60, s60, 0x%x
    v_mov_b32 v70, s60                ; LW + w*8
    v_and_b32 v71, 7, v1
    v_lshlrev_b32 v71, 3, v71
    v_add_u32 v71, 0x%x, v71          ; LW + (l%%8)*8
    v_and_b32 v12, 3, v1
    v_cmp_eq_u32 s[64:65], v12, v6
    s_mov_b32 s60, 0
    s_mov_b64 s[62:63], -1
    L_Wg1:
    s_sleep ML_SLEEP
    s_mov_b64 exec, s[62:63]
    buffer_load_dwordx4 v[52:55], v14, s[44:47], s67 offen sc1
    s_add_u32 s60, s60, 1
    s_waitcnt vmcnt(0)
    v_cmp_ne_u32 s[62:63], s4, v55
    s_cmp_gt_u32 s60, SPIN_N
    s_cbranch_scc1 L_Wg
    s_cmp_lg_u64 s[62:63], 0
    s_cbranch_scc1 L_Wg1
    ''' % (LW, LW))
    a.label('L_Wg')
    a('s_mov_b64 exec, -1')
    for i in range(4):
        a('buffer_load_dwordx4 %s, v9, s[44:47], s69 offen offset:%d sc1' % (R(36 + 4 * i, 4), i * 1024))
    a("""
    s_add_u32 s60, s60, 1
    v_subrev_u32 v15, s4, v54
    v_add3_u32 v15, v15, v52, v53
    v_cndmask_b32 v15, 0, v15, s[64:65]
    v_cmp_neq_f32 vcc, 0, v52
    s_cbranch_vccnz L_Wgen
    """)
    a.label('L_Wj')
    a.wave_red('v_add_f32', 53, 12, rows_only=True)
    a('ds_write_b64 v70, v[52:53]')
    for i in range(4):
        a('s_waitcnt vmcnt(%d)' % (3 - i))
        a('v_mfma_f32_16x16x32_bf16 v[32:35], %s, %s, %s' % (R(136 + 4 * i, 4), R(36 + 4 * i, 4), 'v[32:35]' if i else '0'))
        a('v_add3_u32 v15, v15, v%d, v%d' % (36 + 4 * i, 37 + 4 * i))
        a('v_add3_u32 v15, v15, v%d, v%d' % (38 + 4 * i, 39 + 4 * i))
    a("""
    v_add_u32_dpp v15, v15, v15 quad_perm:[1,0,3,2] row_mask:0xf bank_mask:0xf
    v_add_u32_dpp v15, v15, v15 quad_perm:[2,3,0,1] row_mask:0xf bank_mask:0xf
    v_cvt_pk_bf16_f32 v32, v32, v33
    v_cvt_pk_bf16_f32 v33, v34, v35
    v_add_u32_dpp v15, v15, v15 row_half_mirror row_mask:0xf bank_mask:0xf
    ds_write_b64 v64, v[32:33]
    v_add_u32_dpp v15, v15, v15 row_mirror row_mask:0xf bank_mask:0xf
    v_cmp_ne_u32 vcc, 0, v15
    s_cbranch_vccnz L_Wretry
    L_Wg_x:
    """)
    a.stamp(7)
    if a.stamps:
        a('s_mul_i32 s92, s60, 100')
        a('s_add_u32 s92, s92, s70')
        a('s_addc_u32 s93, s71, 0')
    a("""
    s_waitcnt lgkmcnt(0)
    s_barrier
    """)
    a.stamp(8)
    for ks in range(4):
        a.d('ds_read_b128 %s, v65 offset:%d' % (R(36 + 4 * ks, 4), ROWS - SM + ks * 64), 'a%d' % ks)
    a.d('ds_read_b64 v[52:53], v71', 'lw')
    for ks in range(4):
        a.dwait('a%d' % ks)
        a('v_mfma_f32_16x16x32_bf16 v[32:35], %s, %s, %s' % (R(36 + 4 * ks, 4), R(16 + 4 * ks, 4), 'v[32:35]' if ks else '0'))
    a.dall()
    a('''
    v_cmp_neq_f32 vcc, 0, v52
    s_cbranch_vccnz L_Wgen2
    L_Wj2:
    v_add_f32_dpp v53, v53, v53 quad_perm:[1,0,3,2] row_mask:0xf bank_mask:0xf
    s_nop 1
    v_add_f32_dpp v53, v53, v53 quad_perm:[2,3,0,1] row_mask:0xf bank_mask:0xf
    s_nop 1
    v_add_f32_dpp v53, v53, v53 row_half_mirror row_mask:0xf bank_mask:0xf
    v_add_f32 v32, v32, v33
    v_add_f32 v34, v34, v35
    v_rcp_f32 v67, v53
    v_add_f32 v32, v32, v34
    ''')
    a.swap_red('v_add_f32', 32, 33, 16)
    a('''
    v_mul_f32 v32, v32, v67
    v_cvt_pk_bf16_f32 v32, v32, v32
    ds_write_b16 v66, v32
    s_waitcnt lgkmcnt(0)
    s_barrier
    ''')
    for ks in range(4):
        a.d('ds_read_b128 %s, v5 offset:%d' % (R(36 + 4 * ks, 4), CB - SM + ks * 64), 'a%d' % ks)
    for ks in range(4):
        a.dwait('a%d' % ks)
        for mt in range(4):
            a('v_mfma_f32_16x16x32_bf16 %s, %s, %s, %s' % (R(16 + 4 * mt, 4), R(36 + 4 * ks, 4), R(WOF + (mt * 4 + ks) * 4, 4), R(16 + 4 * mt, 4) if ks else '0'))
    a('''
    v_cndmask_b32 v16, v16, v20, s[52:53]
    v_cndmask_b32 v16, v16, v24, s[54:55]
    v_cndmask_b32 v16, v16, v28, s[56:57]
    buffer_store_dword v16, v11, s[44:47], s58 offen sc1
    ''')
    a.stamp(9)
    if a.stamps:
        a('s_cmp_lg_u32 s3, %d' % o.get('stw', 0))
        a('s_cbranch_scc1 L_end')
        a.write_stamps()
    a('s_endpgm')

def role_Wslow(a, o):
    a.aslow()
    a.label('L_Wgen')
    a('v_mov_b32 v12, v52')
    a.wave_red('v_max_f32', 12, 13, rows_only=True)
    a('''
    v_sub_f32 v54, v52, v12
    v_exp_f32 v54, v54
    v_mov_b32 v52, v12                ; Mw
    v_and_b32 v54, 0xffff0000, v54
    v_mul_f32 v53, v53, v54
    v_lshrrev_b32 v55, 16, v54
    v_or_b32 v54, v54, v55
    v_lshlrev_b32 v13, 2, v6
    ''')
    for i in range(4):
        a('ds_bpermute_b32 v12, v13, v54 offset:%d' % (16 * i))
        a('s_waitcnt lgkmcnt(0)')
        for p in range(4):
            a('v_and_b32 v%d, v12, v%d' % (136 + 4 * i + p, 56 + p))
    a('s_nop 1')
    a('s_branch L_Wj')
    a('''
    L_Wretry:
    s_cmp_gt_u32 s60, SPIN_N
    s_cbranch_scc1 L_Wg_x
    s_mov_b64 s[62:63], -1
    ''')
    for p in range(4):
        for i in range(4): a('v_and_b32 v%d, 0x3f803f80, v%d' % (136 + 4 * i + p, 56 + p))
    a('s_branch L_Wg1')
    a.label('L_Wgen2')
    a('''
    v_mov_b32 v12, v52
    v_max_f32_dpp v12, v12, v12 quad_perm:[1,0,3,2] row_mask:0xf bank_mask:0xf
    v_max_f32_dpp v12, v12, v12 quad_perm:[2,3,0,1] row_mask:0xf bank_mask:0xf
    v_max_f32_dpp v12, v12, v12 row_half_mirror row_mask:0xf bank_mask:0xf
    v_sub_f32 v54, v52, v12
    v_exp_f32 v54, v54
    v_and_b32 v13, 1, v6
    v_lshlrev_b32 v13, 4, v13
    v_mul_f32 v53, v53, v54
    ''')
    for r in range(4):
        a('ds_bpermute_b32 v12, v13, v54 offset:%d' % (4 * r))
        a('s_waitcnt lgkmcnt(0)')
        a('v_mul_f32 v%d, v%d, v12' % (32 + r, 32 + r))
    a('s_nop 1')
    a('s_branch L_Wj2')

def gen(stamps=False, o=None):
    o = o or {}
    a = G(stamps)
    prologue(a, o)
    role_W(a, o)
    role_A(a, o)
    role_final(a, o)
    role_As(a, o)
    role_Wslow(a, o)
    a.label('L_end')
    txt = a.text()
    for k, v in (('QT_SLEEP', o.get('qtsleep', 1)), ('QT_THR', o.get('qtthr', 2)), ('REP_MASK', o.get('repmask', '0x00010001' if o.get('ef', 1) == 2 else '0xff')), ('LSPIN', 200000), ('SPIN_N', SPIN),
                 ('ML_SLEEP', o.get('mlsleep', 1)), ('FIN_SLEEP', o.get('finsleep', 0)), ('UKGATE', o.get('ukgate', 3))):
        txt = txt.replace(k, str(v))
    txt = txt.replace('W1A ', '; ' if o.get('now1', 0) else '')
    txt = txt.replace('PTA ', '' if o.get('pre', 0) else '; ').replace('ML_OFF', '0x%x' % ML)
    qs = o.get('qcsh', 5)
    txt = txt.replace('QCSH+5', str(qs + 5)).replace('QCSH', str(qs)).replace('QCEX', {4: '0x1ffff', 5: '0x3ffff', 6: '0xfffff', 7: '0xffffff'}[qs]).replace('REP_N', str(o.get('repn', 1)))
    txt = txt.replace('NODEP ', '' if o.get('nodep', 0) else '; ')
    if o.get('nodep', 0): txt = txt.replace('s_or_b32 s14, vcc_lo, vcc_hi', 's_mov_b32 s14, 0')
    if o.get('now1', 0): txt = txt.replace('buffer_load_dwordx4 v14, s[40:43], s14 offen', '; ').replace('buffer_load_dwordx4 v14, s[40:43], s60 offen', '; ')
    txt = txt.replace('OUTPT ', '' if o.get('outpt', 1) else '; ')
    txt = txt.replace('REPBASE', 's11' if o.get('ef', 1) == 2 else 's68')
    txt = txt.replace('AMIX ', '' if o.get('amix', 0) else '; ')
    rm = o.get('remap', 0)
    if rm:
        sh = rm + 2
        code = '''    s_cbranch_scc1 L_end
    s_bfe_u32 s8, s2, 0x%x
    s_lshl_b32 s8, s8, 7
    s_and_b32 s9, s2, 0x%x
    s_lshr_b32 s2, s2, %d
    s_lshl_b32 s2, s2, %d
    s_or_b32 s2, s2, s9
    s_or_b32 s2, s2, s8
''' % ((1 << 16) | sh, (1 << sh) - 1, sh + 1, sh)
        txt = txt.replace('    s_cbranch_scc1 L_end\n', code, 1)
    body = hz.fix(txt)
    return kernel_file([(KN + '_kernel', 256, 512, 163840)], [(KN + '_kernel', body, 256, 96, 256)])

if __name__ == '__main__':
    out = sys.argv[1]
    stamps = 'stamps' in sys.argv[2:]
    o = {}
    for kv in sys.argv[2:]:
        if '=' in kv:
            k, v = kv.split('=')
            o[k] = int(v) if v.lstrip('-').isdigit() else v.replace('_', ' ')
    open(out, 'w').write(gen(stamps, o))
```

```python
from gen14 import *

RLB = STG + 0x2000
RB = STG + 0x3100
HP = 0x504000

def role_A(a, o):
    AW = o.get('awin', 6); AW0 = o.get('awin0', 1); AN0 = o.get('an0', 3); NPRE = o.get('npre', 20)
    a.label('L_A')
    a.stamps_hold = False
    a.vm = []; a.lg = []; a.slow = []
    common2(a)
    a.srd(40, CKV, 0x2000000)
    def voffs(x, y):
        a('''
        v_mbcnt_lo_u32_b32 v%d, -1, 0
        v_mbcnt_hi_u32_b32 v%d, -1, v%d
        v_lshrrev_b32 v%d, 4, v%d
        v_and_b32 v%d, 15, v%d
        v_lshlrev_b32 v%d, 4, v%d
        v_mul_u32_u24 v%d, 0x440, v%d
        v_xor_b32 v%d, v%d, v%d
        v_xor_b32 v%d, 32, v%d
        ''' % (x, x, x, y, x, x, x, x, x, y, y, x, x, y, y, x))
    voffs(3, 0)
    a("""
    s_and_b32 s59, s2, 7
    s_lshl_b32 s59, s59, 4
    s_lshr_b32 s8, s2, 3
    s_add_u32 s59, s59, s8            ; p
    s_lshl_b32 s8, s59, 18
    s_cmp_ge_u32 s3, 4
    s_cbranch_scc1 L_As
    s_lshl_b32 s9, s3, 14
    s_add_u32 s8, s8, s9
    s_lshl_b32 s10, s3, 8
    s_or_b32 s66, s8, s10
    s_lshl_b32 s10, s3, 10
    s_or_b32 s67, s9, s10
    AMIX s_and_b32 s10, s3, 1
    AMIX s_lshl_b32 s10, s10, 13
    AMIX s_or_b32 s66, s66, s10
    AMIX s_or_b32 s67, s67, s10
    s_mov_b32 s15, 0
    v_mov_b32 v10, 0
    v_mov_b32 v11, 0
    """)
    def dma_one(i, seg, aa, win=None):
        if win is not None: a.vwait_n(win - 1)
        a('s_xor_b32 m0, s67, 0x%x' % ((i % 2) * 65536 + aa * 4096 + seg * 1024))
        a('s_xor_b32 s10, s66, 0x%x' % (i * 65536 + aa * 4096 + seg * 256))
        a.v('buffer_load_dwordx4 v%d, s[40:43], s10 offen nt lds' % (3 if aa < 2 else 0), 'C%d' % i)
    a.label('L_Apass')
    a('''
    AMIX s_and_b32 s10, s3, 1
    AMIX s_lshl_b32 s10, s10, 5
    AMIX v_xor_b32 v3, s10, v3
    AMIX v_xor_b32 v0, s10, v0
    ''')
    a.vm = []
    first = [(i, seg, aa) for i in range(2) for aa in range(4) for seg in range(4)]
    for n in range(AW0): dma_one(*first[n])
    a("""
    v_mbcnt_lo_u32_b32 v1, -1, 0
    v_mbcnt_hi_u32_b32 v1, -1, v1
    v_lshrrev_b32 v16, 4, v1          ; g / q
    v_and_b32 v17, 15, v1             ; l%%16
    v_lshlrev_b32 v5, 4, v1
    v_add_u32 v5, 0x%x, v5            ; p_rd
    v_lshlrev_b32 v18, 4, v16
    v_xor_b32 v32, v5, v18            ; q frag read (even ks)
    v_xor_b32 v33, 64, v32            ; (odd ks)
    ; p_wr = PB + (w>>1)*2048 + (2(w&1) + (q>>1))*256 + h16*16 + (q&1)*8
    s_lshr_b32 s10, s3, 1
    s_lshl_b32 s10, s10, 11
    s_and_b32 s11, s3, 1
    s_lshl_b32 s11, s11, 9
    s_add_u32 s10, s10, s11
    s_add_u32 s10, s10, 0x%x
    v_lshrrev_b32 v18, 1, v16         ; q>>1
    v_lshlrev_b32 v19, 8, v18
    v_lshl_add_u32 v19, v17, 4, v19
    v_and_b32 v20, 1, v16             ; q&1
    v_lshl_add_u32 v19, v20, 3, v19
    v_add_u32 v4, s10, v19
    ; pv addr: (g>>1)*16384 + 2(g&1)*4096 + w*1024 + r*256 + ((c'/2) ^ ((r<<2) | 2(g&1)))*16 + (c'&1)*8
    v_lshrrev_b32 v21, 2, v17         ; r (pv) / a (qk)
    v_bfe_u32 v22, v1, 1, 1
    v_lshl_add_u32 v22, v20, 1, v22
    v_lshl_add_u32 v22, v21, 2, v22
    v_lshlrev_b32 v22, 4, v22
    v_lshl_add_u32 v22, v21, 8, v22
    v_lshl_add_u32 v22, v20, 13, v22
    v_lshl_add_u32 v22, v18, 14, v22
    v_and_b32 v23, 1, v1
    v_lshl_add_u32 v22, v23, 3, v22
    s_lshl_b32 s10, s3, 10
    v_add_u32 v2, s10, v22
    ; qk addr: w*16384 + a*4096 + r*256 + ((r<<2) | (g ^ (a&2)))*16
    v_and_b32 v22, 3, v17
    v_and_b32 v23, 2, v21
    v_xor_b32 v23, v23, v16
    v_lshl_add_u32 v23, v22, 2, v23
    v_lshlrev_b32 v23, 4, v23
    v_lshl_add_u32 v23, v22, 8, v23
    v_lshl_add_u32 v23, v21, 12, v23
    v_add_u32 v12, s9, v23
    v_xor_b32 v13, 64, v12
    v_xor_b32 v14, 0x80, v12
    v_xor_b32 v15, 0xc0, v12
    v_mov_b32 v6, 0
    v_mov_b32 v7, 0
    v_mov_b32 v8, 0xff800000
    v_mov_b32 v9, 0xff800000
    """ % (PB, PB))
    SS = [[16, 20], [24, 28]]; P = [32, 36, 40, 44]; XQ = [48, 52, 56, 60]
    def O(hh, ct): return 64 + (hh * 8 + ct) * 4
    def QF(hh, ks): return 128 + (hh * 16 + ks) * 4
    def s_init(i, hh):
        for r in range(4): a('v_mov_b32 v%d, v%d' % (SS[i % 2][hh] + r, 10 + hh))
    s_init(0, 0); s_init(0, 1)
    for n in range(AW0, NPRE): dma_one(*first[n], AW0 if n < AN0 else AW)
    def hcheck(need):
        lab = a.newlabel('L_Ahc')
        a('s_cmp_ge_u32 s62, %d' % need)
        a('s_cbranch_scc0 %s' % lab)
        a.label(lab + 'b')
        a.slow.append('''
        %s:
        s_mov_b32 s11, 0
        %sl:
        ds_read_b32 v1, v3 offset:32
        s_add_u32 s11, s11, 1
        s_waitcnt lgkmcnt(0)
        v_readfirstlane_b32 s62, v1
        s_sub_u32 s62, s62, s57
        s_cmp_gt_u32 s62, 15
        s_cselect_b32 s62, 0, s62
        s_cmp_gt_u32 s11, LSPIN
        s_cbranch_scc1 %sb
        s_cmp_lt_u32 s62, %d
        s_cbranch_scc1 %sl
        s_branch %sb
        ''' % (lab, lab, lab, need, lab, lab))
    def pcheck(off=0, redo=''):
        lab = a.newlabel('L_Apc')
        a('v_subrev_u32 v1, s63, v1')
        a('v_cmp_lt_u32 vcc, 7, v1')
        a('s_cbranch_vccnz %s' % lab)
        a.label(lab + 'b')
        a.slow.append('''
        %s:
        s_mov_b32 s11, 0
        %sl:
        ds_read_b32 v1, v0 offset:%d
        s_add_u32 s11, s11, 1
        s_waitcnt lgkmcnt(0)
        v_subrev_u32 v1, s63, v1
        v_cmp_lt_u32 vcc, 7, v1
        s_cmp_gt_u32 s11, LSPIN
        s_cbranch_scc1 %sr
        s_cbranch_vccnz %sl
        %sr:
        %s
        s_branch %sb
        ''' % (lab, lab, off, lab, lab, lab, redo, lab))
    pairs = [SS[1], XQ[0:2], XQ[2:4]]
    KB = pairs[2] + pairs[0] + pairs[1] + P + pairs[2] + P
    def kbuf(g): return 64 + 4 * g if g < 16 else KB[g % 16]
    def rk(g):
        i, seg, k = g // 16, (g % 16) // 4, g % 4
        if ('C%d' % i) in a.vm: a.vwait('C%d' % i)
        if i >= 2 and g % 8 == 0: hcheck((i - 2) * 4 + seg + 2)
        if i and seg == 0: a('v_xor_b32 v%d, 0x10000, v%d' % (12 + k, 12 + k))
        a.d('ds_read_b128 %s, v%d offset:%d' % (R(kbuf(g), 4), 12 + k, seg * 1024), 'k%d' % g)
    def step(g, nxt=True):
        i = g // 16
        a.dwait('k%d' % g)
        for hh in range(2):
            s = SS[0][hh]
            a('v_mfma_f32_16x16x32_bf16 %s, %s, %s, %s' % (R(s, 4), R(kbuf(g), 4), R(QF(hh, g % 16), 4), R(s, 4)))
        if nxt: rk(g + 5)
    pvstate = [0]
    def pv_addr(i, ct):
        want = (i % 2) * 65536 + (ct << 5)
        if want != pvstate[0]:
            a('v_xor_b32 v2, 0x%x, v2' % (want ^ pvstate[0]))
            pvstate[0] = want
    def rv(i, ct, ks2, dst):
        pv_addr(i, ct)
        for rdi in range(2):
            a.d('ds_read_b64_tr_b16 %s, v2 offset:%d' % (R(dst + 2 * rdi, 2), ks2 * 32768 + rdi * 4096), 'v%d_%d' % (ct, ks2))
    for g in range(16): rk(g)
    if 'C0' in a.vm: a.vwait('C0')
    if o.get('diaga', -1) < 0: a.stamp(10)
    a('s_barrier')
    if o.get('diaga', -1) < 0: a.stamp(11)
    a('v_mov_b32 v35, 0')
    a.v('global_load_dword v34, v35, s[36:37] sc1', 'N')
    a('s_cmp_eq_u32 s15, 0')
    a('s_cbranch_scc1 L_Anr')
    sv = list(a.vm)
    for n in range(NPRE, 32): dma_one(*first[n])
    a('s_waitcnt vmcnt(0)')
    a.vm = sv
    a.label('L_Anr')

    for ct in range(3):
        for ks2 in range(2): rv(0, ct, ks2, pairs[ct][ks2])
    a('''
    v_and_b32 v0, 3, v1
    v_lshlrev_b32 v0, 2, v0
    v_add_u32 v0, 0x%x, v0            ; flag read addr
    s_lshl_b32 s10, s3, 2
    s_add_u32 s10, s10, 0x%x
    v_mov_b32 v3, s10                 ; own flag addr
    s_mov_b32 s62, 0
    ''' % (FL, FL))
    a.dall()
    DA = o.get('diaga', -1)
    def ds(i, k):
        if DA == i:
            a('s_memtime s[%d:%d]' % (70 + 2 * k, 71 + 2 * k))
    a.stamp(1)
    a('s_barrier')
    if o.get('cprio', 0): a('s_setprio %d' % o['cprio'])
    a.stamp(2)
    if DA >= 0: a.stamps_mute = True
    ds(9, 3)
    a('s_cmp_lg_u32 s15, 0')
    a('s_cbranch_scc1 L_Anoq')
    def rq(ks):
        for hh in range(2):
            a.d('ds_read_b128 %s, v%d offset:%d' % (R(QF(hh, ks), 4), 32 + (ks & 1), (hh * 16 + ks) * 1024), 'q%d' % ks)
    QD = 6
    for ks in range(QD): rq(ks)
    vm0 = list(a.vm)
    for g in range(12):
        a.dwait('q%d' % g)
        step(g, False)
        if g + QD < 16: rq(g + QD)
        if g in (0, 5): ds(9, 4 if g == 0 else 5)
    a.dall()
    a('s_branch L_Aq2')
    a.label('L_Anoq')
    vm1 = list(a.vm)
    a('s_waitcnt vmcnt(0)')
    a('s_add_u32 s10, s58, 24')
    a('v_mov_b32 v1, s10')
    a('ds_write_b32 v3, v1 offset:32')
    for g in range(12): step(g, False)
    a.dall()
    a.vm = vm1
    a.label('L_Aq2')
    ds(9, 6)
    if 'N' in a.vm: a.vwait('N')
    a('''
    v_readfirstlane_b32 s58, v34
    s_lshl_b32 s10, s15, 4
    s_add_u32 s57, s58, s10
    s_barrier                         ; B1
    ''')
    ds(9, 7)
    def half(g, hh):
        a.dwait('k%d' % g)
        a('v_mfma_f32_16x16x32_bf16 %s, %s, %s, %s' % (R(SS[0][hh], 4), R(kbuf(g), 4), R(QF(hh, g % 16), 4), R(SS[0][hh], 4)))
    def last4(g, fill=None):
        for k in range(0, 4):
            half(g + k, 0)
            if fill: fill()
        for k in range(4):
            half(g + k, 1)
            if fill: fill()
    last4(12)
    ds(9, 8)
    E = 36
    def sm_ops(i):
        S = SS[0]; pb = (i % 2) * 4096
        def ex(hh, rs): return [(lambda hh=hh, r=r: a('v_exp_f32 v%d, v%d' % (E + 4 * hh + r, S[hh] + r))) for r in rs]
        def cw(hh):
            def f():
                for r in range(2):
                    a('v_cvt_pk_bf16_f32 v%d, v%d, v%d' % (32 + 2 * hh + r, E + 4 * hh + 2 * r, E + 4 * hh + 2 * r + 1))
                a.d('ds_write_b64 v4, %s offset:%d' % (R(32 + 2 * hh, 2), pb + 1024 * hh), 'w')
            return f
        def flag():
            a('s_add_u32 s63, s57, %d' % i)
            a('v_mov_b32 v1, s63')
            a.d('ds_write_b32 v3, v1', 'w')
        def mxl(hh):
            def f():
                a('v_add_f32 v%d, v%d, v%d' % (E + 4 * hh, E + 4 * hh, E + 4 * hh + 1))
                a('v_add_f32 v%d, v%d, v%d' % (E + 4 * hh + 2, E + 4 * hh + 2, E + 4 * hh + 3))
                a('v_max3_f32 v%d, v%d, v%d, v%d' % (8 + hh, 8 + hh, S[hh], S[hh] + 1))
                a('v_add_f32 v%d, v%d, v%d' % (6 + hh, 6 + hh, E + 4 * hh))
                a('v_max3_f32 v%d, v%d, v%d, v%d' % (8 + hh, 8 + hh, S[hh] + 2, S[hh] + 3))
                a('v_add_f32 v%d, v%d, v%d' % (6 + hh, 6 + hh, E + 4 * hh + 2))
            return f
        def chk():
            for f in ((0, 1, 2, 3) if i < 3 else (0, 2, 1, 3)):
                a.d('ds_read_b128 %s, v5 offset:%d' % (R(P[f], 4), pb + f * 1024), 'p%d' % f)
        return ex, cw, flag, mxl, chk
    VCK = o.get('vck', 7)
    for i in range(3):
        ds(i, 3)
        ex, cw, flag, mxl, chk = sm_ops(i)
        g0 = 16 * (i + 1)
        for f in ex(0, range(4)): f()
        cw(0)()
        for f in ex(1, range(4)): f()
        cw(1)()
        flag()
        ds(i, 4)
        mxl(0)(); mxl(1)()
        a.d('ds_read_b32 v1, v0', 'pf')
        n0 = len(a.lines)
        chk()
        redo = [l.strip() for l in a.lines[n0:] if 's_waitcnt' not in l] + ['s_waitcnt lgkmcnt(0)']
        s_init(0, 0); s_init(0, 1)
        a.dwait('pf')
        pcheck(0, '\n'.join(redo))
        ds(i, 5)
        for ct in range(8):
            for ks2 in range(2):
                a.dwait('v%d_%d' % (ct, ks2))
                for hh in range(2):
                    a.dwait('p%d' % (ks2 * 2 + hh))
                    cin = '0' if (i == 0 and ks2 == 0) else R(O(hh, ct), 4)
                    a('v_mfma_f32_16x16x32_bf16 %s, %s, %s, %s' % (R(O(hh, ct), 4), R(P[ks2 * 2 + hh], 4), R(pairs[ct % 3][ks2], 4), cin))
                    if 3 <= ct + 2 < 8:
                        if hh == 0: pv_addr(i, ct + 2)
                        a.d('ds_read_b64_tr_b16 %s, v2 offset:%d' % (R(pairs[(ct + 2) % 3][ks2] + 2 * hh, 2), ks2 * 32768 + hh * 4096), 'v%d_%d' % (ct + 2, ks2))
                if ct == 0 and ks2 == 0: ds(i, 6)
                if ct == 4 and ks2 == 0: ds(i, 7)
                if ct == 5 and ks2 == 1: a.d('ds_read_b32 v1, v3 offset:32', 'hf')
                if ct == 6 and ks2 == 1:
                    a.dall()
                    if i >= 0:
                        a('''
                    v_readfirstlane_b32 s62, v1
                    s_sub_u32 s62, s62, s57
                    s_cmp_gt_u32 s62, 15
                    s_cselect_b32 s62, 0, s62
                    ''')
                    if i == 0:
                        a.vall()
                        hcheck(1)
                    if i < 2:
                        a('v_mov_b32 v1, s63')
                        a.d('ds_write_b32 v3, v1 offset:16', 'w')
                        a.stamp(8 + i)
                        a('s_cmp_lg_u32 s15, 0')
                        a('s_cbranch_scc1 L_Arf%d' % i)
                        a.label('L_Arb%d' % i)
                    rk(g0); rk(g0 + 1)
                if ct == 7 and ks2 == 0: rk(g0 + 2); rk(g0 + 3)
        ds(i, 8)
        rk(g0 + 4)
        if i < 2:
            vq = [(ct, ks2) for ct in range(3) for ks2 in range(2)]
            def vfill():
                if vq:
                    ct, ks2 = vq.pop(0)
                    rv(i + 1, ct, ks2, pairs[ct][ks2])
            for s in range(12):
                step(g0 + s, s < 11)
                if s == 0: ds(i, 9)
                if s == 8: ds(i, 10)
                if s == VCK - 3:
                    if i == 1: a('s_add_u32 s63, s57, 4')
                    a.d('ds_read_b32 v1, v0 offset:%d' % (16 + 16 * i), 'ha')
                if s == VCK:
                    a.dwait('ha')
                    pcheck(16 + 16 * i)
                if s > VCK and len(vq) > 2: vfill()
            last4(g0 + 12, vfill)
        else:
            for s in range(8): step(g0 + s, s < 3)
        ds(i, 11)
    a('''
    v_mbcnt_lo_u32_b32 v24, -1, 0
    v_mbcnt_hi_u32_b32 v24, -1, v24
    v_and_b32 v25, 15, v24
    v_lshrrev_b32 v27, 4, v24
    v_lshlrev_b32 v26, 6, v25
    v_lshl_add_u32 v26, v27, 2, v26
    s_lshl_b32 s10, s3, 4
    s_add_u32 s10, s10, 0x%x
    v_add_u32 v26, s10, v26           ; l write addr
    v_lshlrev_b32 v25, 4, v25
    v_lshl_add_u32 v25, v27, 19, v25  ; O store voffset
    v_bfe_u32 v28, v24, 3, 1
    v_lshl_add_u32 v27, v27, 2, v28
    v_bfe_u32 v28, v24, 2, 1
    v_lshl_add_u32 v27, v28, 1, v27
    v_and_b32 v28, 1, v24
    v_lshl_add_u32 v27, v28, 4, v27   ; h(lane)
    v_and_b32 v28, 2, v24
    v_lshlrev_b32 v28, 4, v28
    v_lshl_add_u32 v28, v27, 6, v28
    v_add_u32 v28, 0x%x, v28          ; l read addr
    v_lshlrev_b32 v29, 4, v27         ; MLC voffset
    s_lshl_b32 s10, s3, 15
    s_lshl_b32 s12, s59, 8
    s_add_u32 s10, s10, s12
    s_add_u32 s13, s10, 0x%x
    s_lshl_b32 s12, s59, 2
    s_add_u32 s12, s12, s3
    s_lshl_b32 s12, s12, 9
    s_add_u32 s12, s12, 0x%x
    s_mov_b32 s60, 0xaaaaaaaa
    s_mov_b32 s61, 0xaaaaaaaa
    s_mov_b32 s64, 0x33333333
    s_mov_b32 s65, 0x33333333
    s_add_u32 s63, s57, 8
    ''' % (RLB, RLB, OP, ML))
    rk(56)
    a.stamp(3)
    ds(3, 3)
    rk(57); rk(58); rk(59); rk(60)
    a.d('ds_read_b32 v1, v0 offset:32', 'ha')
    def VF(ct, ks2): return (128 if ct < 4 else 192) + ((ct % 4) * 2 + ks2) * 4
    vl = [(ct, ks2) for ct in range(8) for ks2 in range(2)]
    vi = 0
    def more(n=1):
        nonlocal vi
        for _ in range(n):
            if vi < 16:
                rv(3, vl[vi][0], vl[vi][1], VF(*vl[vi])); vi += 1
    for g in range(56, 60):
        step(g, g < 59)
        if g == 56:
            a.dwait('ha')
            pcheck(32)
        else:
            more()
    last4(60, more)
    ex, cw, flag, mxl, chk = sm_ops(3)
    for f in ex(0, range(4)): f()
    cw(0)()
    for f in ex(1, range(4)): f()
    cw(1)()
    mxl(0)(); mxl(1)()
    a.d('ds_write2st64_b32 v26, v6, v7 offset0:0 offset1:4', 'w')
    more(2)
    a.dwait('w')
    a('s_barrier')
    chk()
    ds(3, 4)
    ds(4, 3)
    more(3)
    PK = [XQ, [16, 20, 160, 164]]
    CS = 168
    def pack(hh, r):
        for k in range(4):
            a('v_cvt_pk_bf16_f32 v%d, v%d, v%d' % (PK[hh][r] + k, O(hh, 2 * k) + r, O(hh, 2 * k + 1) + r))
    def st(hh, r):
        a('s_add_u32 s11, s13, 0x%x' % ((16 * hh + r) * 131072 + hh * 4096))
        a('buffer_store_dwordx4 %s, v25, s[44:47], s11 offen sc1' % R(PK[hh][r], 4))
    def cs(hh, r):
        b = PK[hh][r]; c = CS + 4 * hh + r
        a('v_add3_u32 v%d, v%d, v%d, v%d' % (c, b, b + 1, b + 2))
        a('v_add_u32 v%d, v%d, v%d' % (c, c, b + 3))
    T = 176
    def stepA(i):
        a('v_add_u32_dpp v%d, v%d, v%d row_ror:8 row_mask:0xf bank_mask:0x3' % (T + i, CS + 2 * i, CS + 2 * i))
        a('v_add_u32_dpp v%d, v%d, v%d row_ror:8 row_mask:0xf bank_mask:0xc' % (T + i, CS + 2 * i + 1, CS + 2 * i + 1))
    def stepB(hh):
        a('v_add_u32_dpp v%d, v%d, v%d row_half_mirror row_mask:0xf bank_mask:0x5' % (T + 4 + hh, T + 2 * hh, T + 2 * hh))
        a('v_add_u32_dpp v%d, v%d, v%d row_half_mirror row_mask:0xf bank_mask:0xa' % (T + 4 + hh, T + 2 * hh + 1, T + 2 * hh + 1))
        a('v_add_u32_dpp v%d, v%d, v%d quad_perm:[1,0,3,2] row_mask:0xf bank_mask:0xf' % (T + 4 + hh, T + 4 + hh, T + 4 + hh))
    def lchk():
        a.d('ds_read_b128 v[224:227], v28', 'rl')
        a.d('ds_read_b128 v[228:231], v28 offset:16', 'rl')
    def ls1():
        a.dwait('rl')
        a('''
        v_add_f32 v224, v224, v225
        v_add_f32 v226, v226, v227
        v_add_f32 v228, v228, v229
        v_add_f32 v230, v230, v231
        ''')
    def ls2():
        a('''
        v_add_f32 v224, v224, v226
        v_add_f32 v228, v228, v230
        v_add_f32 v185, v224, v228
        v_mov_b32 v187, s58
        ''')
    f0 = {1: lchk, 5: ls1, 6: ls2, 7: lambda: a('v_add_f32_dpp v185, v185, v185 quad_perm:[2,3,0,1] row_mask:0xf bank_mask:0xf')}
    f1 = {2: lambda: pack(0, 0), 3: lambda: (st(0, 0), pack(0, 1)), 4: lambda: (st(0, 1), pack(0, 2)), 5: lambda: (st(0, 2), pack(0, 3)),
          6: lambda: (st(0, 3), cs(0, 0), cs(0, 1)), 7: lambda: (cs(0, 2), cs(0, 3), stepA(0))}
    for hh in range(2):
        for ct in range(8):
            for ks2 in range(2):
                a.dwait('v%d_%d' % (ct, ks2)); a.dwait('p%d' % (ks2 * 2 + hh))
                a('v_mfma_f32_16x16x32_bf16 %s, %s, %s, %s' % (R(O(hh, ct), 4), R(P[ks2 * 2 + hh], 4), R(VF(ct, ks2), 4), R(O(hh, ct), 4)))
            f = (f0 if hh == 0 else f1).get(ct)
            if f: f()
            if hh == 0 and ct in (1, 2, 4, 7): ds(4, {1: 4, 2: 5, 4: 6, 7: 7}[ct])
            if hh == 1 and ct in (2, 7): ds(4, {2: 8, 7: 9}[ct])
    a.stamp(4)
    ds(3, 5)
    stepA(1)
    a("""
    v_subrev_u32 v186, 0x2f800000, v185
    v_cmp_le_u32 vcc, 0x24000000, v186
    """)
    NE = o.get('nearly', 0)
    pack(1, 0)
    stepB(0)
    for r in range(4):
        if r < 3: pack(1, r + 1)
        if r < NE: st(1, r)
        cs(1, r)
        if r == 2: stepA(2)
    a("""
    s_or_b32 s14, vcc_lo, vcc_hi
    s_or_b32 s11, s14, s15
    s_cbranch_scc1 L_Aslow
    v_mov_b32 v184, 0
    L_Aok:
    """)
    stepA(3)
    a('v_sub_u32 v186, v187, v184')
    stepB(1)
    a('v_sub_u32 v186, v186, v185')
    a('v_cndmask_b32 v%d, v%d, v%d, s[60:61]' % (T + 4, T + 4, T + 5))
    a('v_add_u32_dpp v%d, v%d, v%d quad_perm:[2,3,0,1] row_mask:0xf bank_mask:0xf' % (T + 4, T + 4, T + 4))
    a("""
    v_sub_u32 v186, v186, v%d
    s_mov_b64 exec, s[64:65]
    buffer_store_dwordx4 v[184:187], v29, s[44:47], s12 offen sc1
    s_mov_b64 exec, -1
    """ % (T + 4))
    for r in range(NE, 4): st(1, r)
    ds(3, 6)

    def slow():
        for i in range(2):
            a.label('L_Arf%d' % i)
            a('s_waitcnt lgkmcnt(0)')
            a('s_barrier')
            voffs(1, 0)
            for seg in range(4):
                for aa in range(4):
                    a('s_add_u32 m0, s9, 0x%x' % (i * 65536 + aa * 4096 + seg * 1024))
                    a('s_add_u32 s10, s8, 0x%x' % ((i + 2) * 65536 + aa * 4096 + seg * 256))
                    a('buffer_load_dwordx4 v%d, s[40:43], s10 offen nt lds' % (1 if aa < 2 else 0))
            a('''
            v_mbcnt_lo_u32_b32 v0, -1, 0
            v_and_b32 v0, 3, v0
            v_lshlrev_b32 v0, 2, v0
            v_add_u32 v0, 0x%x, v0
            s_waitcnt vmcnt(0)
            s_barrier
            s_branch L_Arb%d
            ''' % (FL, i))
        for t in a.slow: a(t)
        a.label('L_Aslow')
        a("""
        v_lshlrev_b32 v30, 2, v27
        v_add_u32 v30, 0x%x, v30
        s_cmp_lg_u32 s15, 0
        s_cbranch_scc1 L_Aslow2
        ; first pass was unsafe: rerun with the true (rounded up) per-head max
        ds_write2st64_b32 v26, v8, v9 offset0:8 offset1:12
        s_waitcnt lgkmcnt(0)
        s_barrier
        ds_read_b128 v[224:227], v28 offset:2048
        ds_read_b128 v[228:231], v28 offset:2064
        s_waitcnt lgkmcnt(0)
        v_max3_f32 v224, v224, v225, v226
        v_max3_f32 v227, v227, v228, v229
        v_max3_f32 v224, v224, v230, v231
        v_max_f32 v184, v224, v227
        v_max_f32_dpp v184, v184, v184 quad_perm:[2,3,0,1] row_mask:0xf bank_mask:0xf
        v_ceil_f32 v184, v184
        ds_write_b32 v30, v184
        v_and_b32 v31, 15, v24
        v_lshlrev_b32 v30, 2, v31
        v_add_u32 v30, 0x%x, v30
        v_lshrrev_b32 v232, 4, v24
        v_lshlrev_b32 v232, 4, v232
        v_lshl_add_u32 v31, v31, 10, v232
        s_mov_b32 s10, 0x4000
        s_waitcnt vmcnt(0) lgkmcnt(0)
        ds_read_b32 v10, v30
        ds_read_b32 v11, v30 offset:64
        """ % (RB, RB))
        for hh in range(2):
            for ks in range(16):
                a('buffer_load_dwordx4 %s, v31, s[44:47], %s offen offset:%d sc1' % (R(QF(hh, ks), 4), 's10' if hh else '0', ks * 64))
        a("""
        s_mov_b32 s15, 1
        s_waitcnt vmcnt(0) lgkmcnt(0)
        v_sub_f32 v10, 0, v10
        v_sub_f32 v11, 0, v11
        """)
        voffs(3, 0)
        a("""
        s_barrier
        s_branch L_Apass
        L_Aslow2:
        ds_read_b32 v184, v30
        s_waitcnt lgkmcnt(0)
        s_branch L_Aok
        """)
    a.aslow = slow
```

```python
from roleA34 import *

def role_final(a, o):
    a('''
    s_cmp_lg_u32 s3, 0
    s_cbranch_scc1 L_end
    ''')
    a.stamp(5)
    a.srd(48, WS, FP + 86 * 2048)
    a.srd(40, X, 1024)
    a('''
    v_mov_b32 v40, v24
    s_and_b32 s10, s2, 7
    s_lshl_b32 s10, s10, 6
    s_lshr_b32 s11, s2, 3
    s_lshl_b32 s11, s11, 2
    s_add_u32 s10, s10, s11            ; m0
    s_lshl_b32 s11, s10, 2
    s_lshl_b32 s12, s10, 1
    v_lshlrev_b32 v41, 11, v40
    v_and_b32 v42, 3, v40
    v_lshlrev_b32 v43, 1, v42
    buffer_load_ushort v60, v43, s[40:43], s12 offen
    v_and_b32 v44, 1, v40
    v_cmp_eq_u32 s[60:61], 1, v44
    v_and_b32 v44, 2, v40
    v_cmp_eq_u32 s[62:63], 2, v44
    ''')
    def gather4(base, srd, lab, dst):
        a('s_add_u32 s13, s11, 0x%x' % base)
        a('s_add_u32 s14, s11, 0x%x' % (base + 64 * 2048))
        a('s_mov_b32 s8, 0')
        a('s_mov_b64 s[64:65], -1')
        a('s_mov_b64 s[66:67], -1')
        a.label(lab)
        a('s_sleep FIN_SLEEP')
        a('s_mov_b64 exec, s[64:65]')
        a('s_cbranch_execz %s_a' % lab)
        a('buffer_load_dwordx4 v[48:51], v41, s[%d:%d], s13 offen sc1' % (srd, srd + 3))
        a.label(lab + '_a')
        a('s_mov_b64 exec, s[66:67]')
        a('s_cbranch_execz %s_b' % lab)
        a('buffer_load_dwordx4 v[52:55], v41, s[%d:%d], s14 offen sc1' % (srd, srd + 3))
        a.label(lab + '_b')
        a('''
        s_mov_b64 exec, -1
        s_add_u32 s8, s8, 1
        s_waitcnt vmcnt(0)
        v_max3_u32 v56, v48, v49, v50
        v_max3_u32 v57, v52, v53, v54
        v_max_u32 v56, v56, v51
        v_max_u32 v57, v57, v55
        v_cmp_eq_u32 s[64:65], -1, v56
        v_cmp_eq_u32 s[66:67], -1, v57
        s_cmp_gt_u32 s8, SPIN_N
        s_cbranch_scc1 %s_x
        s_or_b64 s[68:69], s[64:65], s[66:67]
        s_cbranch_scc1 %s
        %s_x:
        v_add_f32 v48, v48, v52
        v_add_f32 v49, v49, v53
        v_add_f32 v50, v50, v54
        v_add_f32 v51, v51, v55
        v_cndmask_b32 v52, v48, v49, s[60:61]
        v_cndmask_b32 v53, v49, v48, s[60:61]
        v_cndmask_b32 v54, v50, v51, s[60:61]
        v_cndmask_b32 v55, v51, v50, s[60:61]
        v_add_f32_dpp v52, v53, v52 quad_perm:[1,0,3,2] row_mask:0xf bank_mask:0xf
        v_add_f32_dpp v54, v55, v54 quad_perm:[1,0,3,2] row_mask:0xf bank_mask:0xf
        v_cndmask_b32 v%d, v52, v54, s[62:63]
        v_cndmask_b32 v53, v54, v52, s[62:63]
        v_add_f32_dpp v%d, v53, v%d quad_perm:[2,3,0,1] row_mask:0xf bank_mask:0xf
        v_add_f32_dpp v%d, v%d, v%d row_ror:4 row_mask:0xf bank_mask:0xf
        v_add_f32_dpp v%d, v%d, v%d row_ror:8 row_mask:0xf bank_mask:0xf
        ''' % ((lab, lab, lab) + (dst,) * 9))
        a.swap_red('v_add_f32', dst, 53, 16)
        a.swap_red('v_add_f32', dst, 53, 32)
    gather4(FP, 48, 'L_gf', 61)
    a.rnd_bf16(61)
    a.silu(61, 53)
    a.rnd_bf16(61)
    a('v_lshlrev_b32 v60, 16, v60')
    a.srd(40, OUT, 1024)
    a.stamp(6)
    gather4(SP, 44, 'L_gs', 62)
    a.rnd_bf16(62)
    a('v_mul_f32 v62, v62, v61')
    a.rnd_bf16(62)
    a('''
    v_add_f32 v62, v62, v60
    v_cvt_pk_bf16_f32 v62, v62, v62
    s_mov_b64 exec, 15
    buffer_store_short v62, v43, s[40:43], s12 offen
    ''')
    a.stamp(7)
    a.write_stamps()
    a('s_endpgm')

def role_As(a, o):
    a.stamps_mute = False
    a.label('L_As')
    ops = [(c, seg, aa) for c in range(2) for seg in range(4) for aa in range(4)]
    AM = o.get('amaj', 1)
    ops = [(c, sp * 2 + sg, aa) for c in range(2) for sp in range(2) for aa in range(4) for sg in range(2)]
    if o.get('hmix', 0): ops = [(c, sp * 2 + sg, aa) for c in range(2) for sp in range(2) for aa in (0, 2, 1, 3) for sg in range(2)]
    def prog(n):
        return {7: 2, 15: 4, 23: 6, 31: 8}.get(n)
    NPRE = o.get('npre', 20); NR = 32 - NPRE
    first = [(i, seg, aa) for i in range(2) for aa in range(4) for seg in range(4)]
    def loads(lo, hi):
        for n in range(lo, hi):
            if n < 0:
                i, seg, aa = first[32 + n]
                a('s_xor_b32 m0, s69, 0x%x' % (65536 + aa * 4096 + seg * 1024))
                a('s_xor_b32 s10, s66, 0x%x' % (65536 + aa * 4096 + seg * 256))
                a.v('buffer_load_dwordx4 v%d, s[40:43], s10 offen nt lds' % (3 if aa < 2 else 0), 'D')
                continue
            c, seg, aa = ops[n]
            a('s_add_u32 s10, s64, 0x%x' % (c * 65536 + aa * 4096 + seg * 256))
            a.v('buffer_load_dwordx4 %s, v%d, s[40:43], s10 offen nt' % (R(128 + 4 * n, 4), 3 if aa < 2 else 0), 'L%d' % n)
    def writes(lo, hi):
        for n in range(lo, hi):
            c, seg, aa = ops[n]
            if ('L%d' % n) in a.vm: a.vwait('L%d' % n)
            a('ds_write_b128 v%d, %s offset:%d' % (100 + c, R(128 + 4 * n, 4), aa * 4096 + seg * 1024))
        a('s_waitcnt lgkmcnt(0)')
    c = [int(x, 16) for x in str(o.get('hsch', 'x64'))[1:]]
    a("""
    s_setprio 3
    s_sub_u32 s3, s3, 4
    s_cmp_lg_u32 s3, 1
    s_cbranch_scc1 L_Apt
    TLBPT s_load_dword s60, s[38:39], 0x1f000
    TLBPT s_load_dword s60, s[26:27], 0x0
    TLBPT s_load_dword s60, s[30:31], 0x0
    TLBPT s_load_dword s60, s[32:33], 0x0
    TLBPT s_load_dword s60, s[24:25], 0x0
    TLBPT s_load_dword s60, s[34:35], 0x0
    TLBPT s_mov_b32 s61, 0x300000
    TLBPT s_load_dword s60, s[38:39], s61
    TLBPT s_load_dword s60, s[26:27], s61
    TLBPT s_load_dword s60, s[24:25], s61
    TLBPT s_mov_b32 s62, 0x502000
    TLBPT s_load_dword s60, s[38:39], s62
    L_Apt:
    s_lshl_b32 s9, s3, 14
    s_add_u32 s64, s8, s9
    s_lshl_b32 s10, s3, 8
    s_or_b32 s66, s64, s10
    s_lshl_b32 s10, s3, 10
    s_or_b32 s69, s9, s10
    s_add_u32 s64, s64, 0x20000
    v_lshl_add_u32 v100, v1, 4, s9
    v_add_u32 v101, 0x10000, v100
    v_mov_b32 v2, 0
    s_mov_b32 s8, 0
    L_Agn:
    s_sleep 8
    global_load_dword v5, v2, s[36:37] sc1
    s_add_u32 s8, s8, 1
    s_waitcnt vmcnt(0)
    v_readfirstlane_b32 s4, v5
    s_cmp_gt_u32 s8, SPIN_N
    s_cbranch_scc1 L_Agn_x
    s_cmp_eq_u32 s4, 0
    s_cbranch_scc1 L_Agn
    L_Agn_x:
    OUTPT global_load_dword v254, v2, s[34:35]
    """)
    K0 = o.get('k0', 12)
    a.vm = []
    for n in range(K0):
        if n >= o.get('k0w', 4): a('s_waitcnt vmcnt(%d)' % (o.get('k0w', 4) - 1))
        loads(n - NR, n - NR + 1)
    a("""
    v_lshlrev_b32 v2, QCSH, v1        ; tag voffset
    v_lshlrev_b32 v98, 4, v1          ; data voffset
    v_lshlrev_b32 v97, 7, v1          ; flag voffset
    s_lshl_b32 s9, s3, 13             ; QA + u*8192
    s_add_u32 s65, s9, 4096
    s_lshl_b32 s11, s3, QCSH+5
    s_add_u32 s11, s11, 0x%x          ; QC + u*32 entries
    s_lshr_b32 s12, s3, 1
    s_lshl_b32 s12, s12, 14
    s_and_b32 s13, s3, 1
    s_lshl_b32 s13, s13, 7
    s_add_u32 s12, s12, s13
    s_add_u32 s12, s12, 0x%x
    v_and_b32 v6, 7, v1
    v_lshlrev_b32 v6, 4, v6
    v_lshl_add_u32 v6, v1, 8, v6
    v_add_u32 v6, s12, v6             ; LDS write base
    s_lshl_b32 s4, s4, 5              ; expected sum = 32 * nonce
    v_mov_b32 v72, 0
    v_mov_b32 v73, 0
    s_lshl_b32 s68, s3, 10
    s_add_u32 s68, s68, 0x10000
    s_mov_b32 s12, REP_MASK
    s_mov_b32 s13, 0
    NODEP s_branch L_Agt_x
    L_Agt:
    s_sleep QT_SLEEP
    s_mov_b64 exec, s[12:13]
    buffer_load_dwordx2 v[72:73], v97, s[44:47], REPBASE offen sc1
    s_add_u32 s8, s8, 1
    s_waitcnt vmcnt(0)
    v_cmp_ne_u32 s[12:13], v73, v5
    s_cmp_gt_u32 s8, SPIN_N
    s_cbranch_scc1 L_Agt_x
    s_cmp_lg_u32 s12, 0
    s_cbranch_scc1 L_Agt
    L_Agt_x:
    s_mov_b32 exec_lo, -1
    buffer_load_dwordx2 v[72:73], v2, s[44:47], s11 offen sc1
    s_mov_b64 exec, -1
    """ % (QC, STG))
    def dload(i):
        a('buffer_load_dwordx4 %s, v98, s[44:47], s%d offen offset:%d sc1' % (R(8 + 4 * i, 4), 9 if i < 4 else 65, (i % 4) * 1024))
    def dproc(i):
        a('ds_write_b128 v%d, %s' % (40 + i, R(8 + 4 * i, 4)))
        a('v_add3_u32 v%d, v%d, v%d, v%d' % (80 + i, 8 + 4 * i, 9 + 4 * i, 10 + 4 * i))
        a('v_add_u32 v%d, v%d, v%d' % (80 + i, 80 + i, 11 + 4 * i))
    for i in range(8): dload(i)
    a.stamp(1)
    if a.stamps: a('s_mov_b32 s8, 1')
    if o.get('rlate', 0):
        a("""
        s_waitcnt vmcnt(8)
        L_Agr:
        v_cmp_ne_u32 s[12:13], v73, v5
        s_cmp_eq_u32 s12, 0
        s_cbranch_scc1 L_Agr_x
        s_add_u32 s8, s8, 1
        s_cmp_gt_u32 s8, SPIN_N
        s_cbranch_scc1 L_Agr_x
        s_mov_b32 s13, 0
        s_quadmask_b32 s67, s12
        s_mov_b64 exec, s[12:13]
        buffer_load_dwordx2 v[72:73], v2, s[44:47], s11 offen sc1
        s_mov_b64 exec, -1
        """)
        for i in range(8):
            a('s_bitcmp1_b32 s67, %d' % i)
            a('s_cbranch_scc0 L_Agk%d' % i)
            dload(i)
            a.label('L_Agk%d' % i)
        a("""
        s_waitcnt vmcnt(0)
        s_branch L_Agr
        L_Agr_x:
        """)
    a('s_barrier')
    a.vm = []
    loads(K0 - NR, K0 - NR + c[0]); p = K0 - NR + c[0]
    for i in range(8): a('v_xor_b32 v%d, %d, v6' % (40 + i, i << 4))
    for i in range(8):
        a('s_waitcnt vmcnt(%d)' % (7 - i + c[0]))
        dproc(i)
    a("""
    NODEP s_branch L_Agp_x
    v_cmp_ne_u32 s[12:13], v73, v5
    s_cmp_eq_u32 s12, 0
    s_cbranch_scc1 L_Agc
    L_Agp:
    s_mov_b32 s13, 0
    s_quadmask_b32 s67, s12
    s_mov_b64 exec, s[12:13]
    buffer_load_dwordx2 v[72:73], v2, s[44:47], s11 offen sc1
    s_mov_b64 exec, -1
    """)
    for i in range(8):
        a('s_bitcmp1_b32 s67, %d' % i)
        a('s_cbranch_scc0 L_Agl%d' % i)
        dload(i)
        a.label('L_Agl%d' % i)
    a("""
    s_add_u32 s8, s8, 1
    s_waitcnt vmcnt(0)
    v_cmp_ne_u32 s[12:13], v73, v5
    """)
    for i in range(8):
        a('s_bitcmp1_b32 s67, %d' % i)
        a('s_cbranch_scc0 L_Agw%d' % i)
        dproc(i)
        a.label('L_Agw%d' % i)
    a("""
    s_cmp_gt_u32 s8, SPIN_N
    s_cbranch_scc1 L_Agp_x
    s_cmp_lg_u32 s12, 0
    s_cbranch_scc1 L_Agp
    L_Agc:
    v_add3_u32 v4, v72, v80, v81
    v_add3_u32 v74, v82, v83, v84
    v_add3_u32 v4, v4, v85, v86
    v_add3_u32 v4, v4, v74, v87
    """)
    a.wave_red('v_add_u32', 4, 74)
    a("""
    v_readfirstlane_b32 s10, v4
    s_mov_b32 s12, -1
    s_cmp_lg_u32 s10, s4
    s_cbranch_scc1 L_Agp
    L_Agp_x:
    s_waitcnt lgkmcnt(0)
    """)
    a.stamp(3)
    a('s_barrier')
    a('s_setprio 0')
    loads(p, p + c[1]); p += c[1]
    a('''
    v_and_b32 v102, 3, v1
    v_lshlrev_b32 v102, 2, v102
    v_add_u32 v102, 0x%x, v102        ; YF read addr
    s_lshl_b32 s10, s3, 2
    s_add_u32 s10, s10, 0x%x
    v_mov_b32 v103, s10               ; own HF addr
    s_barrier                         ; B1
    ''' % (FL + 16, FL + 32))
    if p < 0: loads(p, 0); p = 0
    a('v_add_u32 v99, 1, v5')
    if 'D' in a.vm: a.vwait('D')
    a('ds_write_b32 v103, v99')
    K = o.get('hk', 18)
    loads(p, K); p = max(p, K)
    def yspin(i):
        a('''
        s_mov_b32 s11, 0
        L_Ay%d:
        ds_read_b32 v99, v102
        s_add_u32 s11, s11, 1
        s_waitcnt lgkmcnt(0)
        v_sub_u32 v99, v99, v5
        v_subrev_u32 v99, %d, v99
        v_cmp_lt_u32 vcc, 7, v99
        s_cmp_gt_u32 s11, LSPIN
        s_cbranch_scc1 L_Ay%dx
        s_cbranch_vccz L_Ay%dx
        s_sleep 1
        s_branch L_Ay%d
        L_Ay%dx:
        ''' % (i, i, i, i, i, i))
    for n in range(32):
        if n % 16 == 0:
            if n == 16: loads(p, 32); p = 32
            yspin(n // 16)
        cc, seg, aa = ops[n]
        if prog(n): a('v_add_u32 v99, %d, v5' % prog(n))
        if ('L%d' % n) in a.vm: a.vwait('L%d' % n)
        a('ds_write_b128 v%d, %s offset:%d' % (100 + cc, R(128 + 4 * n, 4), aa * 4096 + seg * 1024))
        if prog(n): a('ds_write_b32 v103, v99')
        if p < 32: loads(p, p + 1); p += 1
    if a.stamps:
        a('s_mul_i32 s78, s8, 100')
        a('s_add_u32 s78, s78, s70')
        a('s_addc_u32 s79, s71, 0')
        a('s_lshl_b32 s2, s2, 2')
        a('s_add_u32 s2, s2, s3')
        a('s_add_u32 s2, s2, 256')
        a('s_barrier')
        a('s_sleep 127')
        a.write_stamps(vb=104)
    a('s_endpgm')

def layernorm(a):
    for i in range(4):
        a('v_lshlrev_b32 v%d, 16, v%d' % (72 + 2 * i, 68 + i))
        a('v_and_b32 v%d, 0xffff0000, v%d' % (73 + 2 * i, 68 + i))
    a('v_readfirstlane_b32 s60, v72')
    for i in range(8): a('v_subrev_f32 v%d, s60, v%d' % (84 + i, 72 + i))
    a("""
    v_add_f32 v80, v84, v85
    v_mul_f32 v82, v84, v84
    v_add_f32 v81, v86, v87
    v_mul_f32 v83, v85, v85
    v_add_f32 v92, v88, v89
    v_fmac_f32 v82, v86, v86
    v_add_f32 v93, v90, v91
    v_fmac_f32 v83, v87, v87
    v_add_f32 v80, v80, v81
    v_fmac_f32 v82, v88, v88
    v_add_f32 v92, v92, v93
    v_fmac_f32 v83, v89, v89
    v_add_f32 v80, v80, v92
    v_fmac_f32 v82, v90, v90
    v_fmac_f32 v83, v91, v91
    v_add_f32 v82, v82, v83
    """)
    for m in ('quad_perm:[1,0,3,2]', 'quad_perm:[2,3,0,1]', 'row_half_mirror', 'row_mirror'):
        a('v_add_f32_dpp v80, v80, v80 %s row_mask:0xf bank_mask:0xf' % m)
        a('v_add_f32_dpp v82, v82, v82 %s row_mask:0xf bank_mask:0xf' % m)
    for w in (16, 32):
        a('v_mov_b32 v81, v80')
        a('v_mov_b32 v83, v82')
        a('v_permlane%d_swap_b32 v80, v81' % w)
        a('v_permlane%d_swap_b32 v82, v83' % w)
        a('v_add_f32 v80, v80, v81')
        a('v_add_f32 v82, v82, v83')
    a('v_mul_f32 v80, 0x%x, v80' % f2u(1 / 512))
    a('v_mul_f32 v82, 0x%x, v82' % f2u(1 / 512))
    a('v_fma_f32 v82, -v80, v80, v82')
    a('v_add_f32 v80, s60, v80')
    a('v_max_f32 v82, 0, v82')
    a('v_cvt_pk_bf16_f32 v80, v80, v82')
    a('v_and_b32 v82, 0xffff0000, v80')
    a('v_lshlrev_b32 v80, 16, v80')
    a('v_add_f32 v82, 0x%x, v82' % f2u(1e-5))
    for i in range(4):
        a('v_sub_f32 v%d, v%d, v80' % (72 + i, 72 + i))
    a.rnd_bf16(82)
    a('v_sqrt_f32 v82, v82')
    for i in range(4, 8):
        a('v_sub_f32 v%d, v%d, v80' % (72 + i, 72 + i))
    a.rnd_bf16(82)
    a('v_rcp_f32 v82, v82')
    for i in range(4):
        a('v_cvt_pk_bf16_f32 v%d, v%d, v%d' % (68 + i, 72 + 2 * i, 73 + 2 * i))
    for i in range(4):
        a('v_lshlrev_b32 v%d, 16, v%d' % (72 + 2 * i, 68 + i))
        a('v_and_b32 v%d, 0xffff0000, v%d' % (73 + 2 * i, 68 + i))
    for i in range(8):
        a('v_mul_f32 v%d, v%d, v82' % (72 + i, 72 + i))
    for i in range(4):
        a('v_cvt_pk_bf16_f32 v%d, v%d, v%d' % (68 + i, 72 + 2 * i, 73 + 2 * i))

def role_W(a, o):
    WOPOL = o.get('wopol', 'nt'); W1POL = o.get('w1pol', 'nt')
    a.label('L_W')
    a.vm = []; a.lg = []
    a('''
    s_and_b32 s8, s2, 7               ; x
    s_lshr_b32 s9, s2, 3
    s_sub_u32 s9, s9, 16              ; k
    s_lshr_b32 s10, s9, 2
    s_lshl_b32 s11, s8, 2
    s_add_u32 s10, s10, s11           ; h
    s_and_b32 s11, s9, 3              ; j
    s_lshl_b32 s13, s10, 8            ; h*256
    v_lshlrev_b32 v9, 4, v1           ; lane*16
    v_lshrrev_b32 v6, 4, v1           ; g / r
    v_and_b32 v7, 15, v1              ; pc / i
    v_lshlrev_b32 v8, 1, v6
    v_xor_b32 v8, v8, v7
    v_lshlrev_b32 v8, 4, v8           ; (pc ^ (r<<1))*16
    v_lshl_add_u32 v2, v6, 13, v8
    v_xor_b32 v3, 0x80, v2            ; voffB
    s_lshl_b32 s14, s11, 3
    s_add_u32 s14, s14, s3            ; 8j + w
    s_lshl_b32 s15, s14, 17
    s_add_u32 s15, s15, s13           ; (128j + 16w)*8192 + h*256
    s_lshl_b32 s14, s3, 12            ; LDS w*4096
    v_lshlrev_b32 v10, 2, v6
    v_xor_b32 v10, v10, v7
    v_lshlrev_b32 v10, 4, v10
    v_lshl_add_u32 v10, v6, 13, v10
    v_xor_b32 v11, 32, v10
    s_mov_b32 s42, 0x400000
    s_mov_b32 s43, 0x20000
    s_mov_b32 s50, 0x400000
    s_mov_b32 s51, 0x20000
    s_mov_b32 m0, s14
    s_waitcnt lgkmcnt(0)
    s_mov_b32 s40, s20
    s_mov_b32 s41, s21
    s_cmp_lg_u32 s3, 0
    s_cbranch_scc1 L_Wx
    global_load_dwordx4 v[68:71], v9, s[16:17]
    L_Wx:
    ''')
    for i in range(4):
        if i:
            a('s_add_u32 m0, s14, %d' % (i * 1024))
            a('s_add_u32 s60, s15, %d' % (i * 32768))
        a.v('buffer_load_dwordx4 v%d, s[40:43], %s offen nt lds' % (2 if i < 2 else 3, 's60' if i else 's15'), 'WQ')
    a('s_mov_b32 s48, s22')
    a('s_mov_b32 s49, s23')
    if o.get('ukbar', 1): a('s_barrier')
    for i in range(4):
        a('s_add_u32 m0, s14, %d' % (UKL + i * 1024))
        a('s_add_u32 s60, s15, %d' % (i * 32768))
        a.v('buffer_load_dwordx4 v%d, s[48:51], s60 offen nt lds' % (10 if i < 2 else 11), 'UK')
    common2(a)
    if o.get('diag', 0) == 2: a.stamp(5)
    a('v_mov_b32 v14, 0')
    if not o.get('lnfirst', 1):
        a('''
        s_lshl_b32 s12, s9, 3
        s_add_u32 s12, s12, s8            ; fb = 8k + x
        s_cmp_lt_u32 s9, 11
        s_cselect_b32 s12, s12, 1000
        v_mov_b32 v14, 0
        v_lshrrev_b32 v12, 2, v7          ; r' / a
        v_and_b32 v13, 1, v6
        v_lshl_add_u32 v13, v13, 2, v12
        v_lshlrev_b32 v13, 1, v13
        v_bfe_u32 v16, v1, 1, 1
        s_lshl_b32 s60, s3, 1
        v_add_u32 v16, s60, v16
        v_xor_b32 v16, v16, v13
        v_lshlrev_b32 v16, 4, v16
        v_lshl_add_u32 v13, v6, 3, v12
        v_lshl_add_u32 v16, v13, 8, v16
        v_and_b32 v13, 1, v1
        v_lshl_add_u32 v4, v13, 3, v16    ; tr-read base
        v_lshlrev_b32 v5, 4, v6
        v_add_u32 v5, 0x%x, v5            ; SM + g*16
        v_and_b32 v13, 3, v7
        v_and_b32 v16, 2, v12
        v_xor_b32 v16, v16, v6
        v_lshl_add_u32 v16, v13, 2, v16
        v_lshlrev_b32 v16, 4, v16
        v_lshl_add_u32 v16, v7, 8, v16
        s_add_u32 s60, s14, 0x%x
        v_add_u32 v64, s60, v16           ; uk frag read addrs
        v_xor_b32 v65, 64, v64
        v_xor_b32 v66, 0x80, v64
        v_xor_b32 v67, 0xc0, v64
        ''' % (SM, UKL))
    if o.get('qpw', 0):
        a('''
        s_lshl_b32 s60, s10, 12
        s_lshl_b32 s61, s3, 7
        s_add_u32 s60, s60, s61
        s_add_u32 s60, s60, 0x%x
        v_lshlrev_b32 v17, 10, v6
        ''' % QP)
        a.v('buffer_load_dword v254, v17, s[44:47], s60 offen sc1', 'PT')
    a('''
    s_cmp_lg_u32 s3, 0
    s_cbranch_scc1 L_Wln
    s_waitcnt vmcnt(%d)
    s_load_dword s4, s[36:37], 0
    ''' % len(a.vm))
    if o.get('diag', 0) == 2: a.stamp(6)
    layernorm(a)
    if o.get('diag', 0) == 2: a.stamp(7)
    a('''
    v_add_u32 v72, 0x%x, v9
    ds_write_b128 v72, v[68:71]
    s_waitcnt lgkmcnt(0)
    s_mov_b32 s60, 0
    s_branch L_Wn_c
    L_Wn:
    global_load_dword v15, v14, s[36:37] sc1
    s_add_u32 s60, s60, 1
    s_waitcnt vmcnt(0)
    v_readfirstlane_b32 s4, v15
    s_cmp_gt_u32 s60, SPIN_N
    s_cbranch_scc1 L_Wn_x
    L_Wn_c:
    s_cmp_eq_u32 s4, 0
    s_cbranch_scc1 L_Wn
    L_Wn_x:
    v_mov_b32 v72, 0x%x
    v_mov_b32 v15, s4
    ds_write_b32 v72, v15
    s_waitcnt lgkmcnt(0)
    L_Wln:
    ''' % (XN, NB))
    if o.get('lnfirst', 1):
        a('''
        s_lshl_b32 s12, s9, 3
        s_add_u32 s12, s12, s8            ; fb = 8k + x
        s_cmp_lt_u32 s9, 11
        s_cselect_b32 s12, s12, 1000
        v_mov_b32 v14, 0
        v_lshrrev_b32 v12, 2, v7          ; r' / a
        v_and_b32 v13, 1, v6
        v_lshl_add_u32 v13, v13, 2, v12
        v_lshlrev_b32 v13, 1, v13
        v_bfe_u32 v16, v1, 1, 1
        s_lshl_b32 s60, s3, 1
        v_add_u32 v16, s60, v16
        v_xor_b32 v16, v16, v13
        v_lshlrev_b32 v16, 4, v16
        v_lshl_add_u32 v13, v6, 3, v12
        v_lshl_add_u32 v16, v13, 8, v16
        v_and_b32 v13, 1, v1
        v_lshl_add_u32 v4, v13, 3, v16    ; tr-read base
        v_lshlrev_b32 v5, 4, v6
        v_add_u32 v5, 0x%x, v5            ; SM + g*16
        v_and_b32 v13, 3, v7
        v_and_b32 v16, 2, v12
        v_xor_b32 v16, v16, v6
        v_lshl_add_u32 v16, v13, 2, v16
        v_lshlrev_b32 v16, 4, v16
        v_lshl_add_u32 v16, v7, 8, v16
        s_add_u32 s60, s14, 0x%x
        v_add_u32 v64, s60, v16           ; uk frag read addrs
        v_xor_b32 v65, 64, v64
        v_xor_b32 v66, 0x80, v64
        v_xor_b32 v67, 0xc0, v64
        ''' % (SM, UKL))
    if o.get('diag', 0) == 2: a.stamp(8)
    a.vwait('WQ')
    if o.get('diag', 0) == 2: a.stamp(9)
    a('s_barrier')
    a.stamp(1)
    if o.get('diag', 0) == 2: a.stamps_hold = True
    a('s_lshl_b32 s60, s11, 8')
    a('v_add_u32 v13, s60, v5')
    for ks in range(4):
        a.d('ds_read_b128 %s, v13 offset:%d' % (R(52 + 4 * ks - 16 + 16, 4), ks * 64) if False else 'ds_read_b128 %s, v13 offset:%d' % (R(16 + 4 * ks, 4), ks * 64), 'a%d' % ks)
        for rdi in range(2):
            a.d('ds_read_b64_tr_b16 %s, v4 offset:%d' % (R(36 + 4 * ks + 2 * rdi, 2), ks * 8192 + rdi * 1024), 'a%d' % ks)
    a('v_mov_b32 v12, 0x%x' % NB)
    a.d('ds_read_b32 v53, v12', 'n')
    a('''
    s_lshl_b32 s60, s10, 12
    s_lshl_b32 s61, s3, 7
    s_add_u32 s60, s60, s61
    s_add_u32 s60, s60, 0x%x          ; QP + h*4096 + w*128
    s_lshl_b32 s61, s11, 10
    s_add_u32 s61, s61, s60           ; + j*1024
    v_lshlrev_b32 v12, 3, v7          ; d*8
    v_lshl_add_u32 v13, v6, 10, v12   ; jj*1024 + d*8
    v_cmp_ne_u32 s[64:65], s11, v6    ; lanes of the other three
    ''' % QP)
    for ks in range(4):
        a.dwait('a%d' % ks)
        a('v_mfma_f32_16x16x32_bf16 v[32:35], %s, %s, %s' % (R(16 + 4 * ks, 4), R(36 + 4 * ks, 4), 'v[32:35]' if ks else '0'))
    a.dall()
    a('''
    s_lshl_b32 s62, s3, 5
    s_add_u32 s62, s62, 0x%x
    v_lshl_add_u32 v15, v7, 1, s62    ; QB + (16w + d)*2
    v_mov_b32 v55, v53
    v_mov_b32 v52, v32
    v_mov_b32 v54, v32
    s_mov_b64 exec, 0xffff
    buffer_store_dwordx2 v[52:53], v12, s[44:47], s61 offen sc1
    ''' % QB)
    def eflag():
        a('''
        s_or_b32 s5, s3, s11
        s_cmp_lg_u32 s5, 0
        s_cbranch_scc1 L_Wef
        s_lshl_b32 s5, s10, 7
        s_add_u32 s5, s5, 0x10000
        s_mov_b64 exec, 0xffff
        v_mov_b32 v52, v53
        buffer_store_dwordx2 v[52:53], v12, s[44:47], s5 offen sc1
        L_Wef:
        ''')
    a('''
    s_mov_b64 exec, -1
    s_lshl_b32 s68, s10, 2
    s_add_u32 s68, s68, s11           ; mi = 4h + j
    s_lshl_b32 s69, s68, 15
    s_lshl_b32 s61, s3, 12
    s_add_u32 s69, s69, s61
    s_lshr_b32 s61, s10, 4
    s_lshl_b32 s61, s61, 12
    s_add_u32 s69, s69, s61
    s_add_u32 s69, s69, 0x%x          ; s69 = inbox base of this wave
    s_lshl_b32 s58, s68, 11
    s_lshl_b32 s61, s3, 8
    s_add_u32 s58, s58, s61
    s_add_u32 s58, s58, 0x%x          ; s58 = SP row of this wave
    s_lshl_b32 s66, s12, 11
    s_add_u32 s66, s66, s61
    s_add_u32 s66, s66, 0x%x          ; s66 = FP row of this wave
    s_cmp_lt_u32 s12, 86
    s_cselect_b32 s66, s66, s58
    s_lshl_b32 s67, s3, 6
    s_add_u32 s67, s67, s11
    s_lshl_b32 s67, s67, 9
    s_lshl_b32 s61, s10, 4
    s_add_u32 s67, s67, s61
    s_add_u32 s67, s67, 0x%x          ; s67 = MLC + (64w + j)*512 + h*16
    v_lshlrev_b32 v11, 2, v1
    v_mov_b32 v56, -1
    ''' % (OP, SP, FP, ML))
    a.v('buffer_store_dword v56, v11, s[44:47], s58 offen sc1', 'PT')
    a.v('buffer_store_dword v56, v11, s[44:47], s66 offen sc1', 'PT')
    EF = o.get('ef', 1)
    if EF == 0: eflag()
    if o.get('qpack', 1): a('s_waitcnt vmcnt(0)')
    if EF == 3: eflag()
    a.stamp(2)
    a('''
    s_mov_b32 s62, 0
    L_Wq:
    s_mov_b64 exec, s[64:65]
    buffer_load_dwordx2 v[54:55], v13, s[44:47], s60 offen sc1
    s_add_u32 s62, s62, 1
    s_waitcnt vmcnt(0)
    v_cmp_ne_u32 s[64:65], v55, v53
    s_cmp_gt_u32 s62, SPIN_N
    s_cbranch_scc1 L_Wq_x
    s_cmp_lg_u64 s[64:65], 0
    s_cbranch_scc1 L_Wq
    L_Wq_x:
    ''')
    if EF == 1: eflag()
    a('s_mov_b64 exec, -1')
    a.vm = []
    for ks in range(4):
        a.d('ds_read_b128 %s, v%d' % (R(16 + 4 * ks, 4), 64 + ks), 'uk')
    a.swap_red('v_add_f32', 54, 55, 16)
    a.swap_red('v_add_f32', 54, 55, 32)
    a('''
    v_cvt_pk_bf16_f32 v54, v54, v54
    ds_write_b16 v15, v54
    ''')
    a.dall()
    a('s_barrier')
    a.stamp(3)
    for ks in range(4):
        a.d('ds_read_b128 %s, v5 offset:%d' % (R(36 + 4 * ks, 4), QB - SM + ks * 64), 'a%d' % ks)
    a('''
    s_lshl_b32 s14, s3, 5
    s_add_u32 s14, s14, 0x%x
    v_lshl_add_u32 v13, v6, 3, s14    ; QO + w*32 + q*8
    v_lshlrev_b32 v12, 4, v7
    v_add_u32 v15, 0x%x, v12          ; QO + (l%%16)*16
    s_lshl_b32 s14, s68, 8
    s_lshl_b32 s15, s68, QCSH
    s_add_u32 s15, s15, 0x%x
    v_add_u32 v56, s14, v12
    v_add_u32 v57, s15, v12
    v_cndmask_b32 v56, v56, v57, s[52:53]
    ''' % (QO, QO, QC))
    for ks in range(4):
        a.dwait('a%d' % ks)
        a('v_mfma_f32_16x16x32_bf16 v[32:35], %s, %s, %s' % (R(16 + 4 * ks, 4), R(36 + 4 * ks, 4), 'v[32:35]' if ks else '0'))
    sc = f2u(128 ** -0.5 * math.log2(math.e))
    a('''
    v_mul_f32 v32, 0x%x, v32
    v_mul_f32 v33, 0x%x, v33
    v_mul_f32 v34, 0x%x, v34
    v_mul_f32 v35, 0x%x, v35
    v_cvt_pk_bf16_f32 v32, v32, v33
    v_cvt_pk_bf16_f32 v33, v34, v35
    ds_write_b64 v13, v[32:33]
    s_waitcnt lgkmcnt(0)
    s_barrier
    s_cmp_lg_u32 s3, 0
    s_cbranch_scc1 L_Wpub
    ds_read_b128 v[32:35], v15
    s_waitcnt lgkmcnt(0)
    v_add3_u32 v36, v32, v33, v34
    v_add_u32 v36, v36, v35
    ''' % (sc, sc, sc, sc))
    a.wave_red('v_add_u32', 36, 37, rows_only=True)
    a('''
    v_sub_u32 v36, v53, v36
    v_cndmask_b32 v32, v32, v36, s[52:53]
    v_cndmask_b32 v33, v33, v53, s[52:53]
    s_mov_b64 exec, QCEX
    buffer_store_dwordx4 v[32:35], v56, s[44:47], 0 offen sc1
    s_mov_b64 exec, -1
    L_Wpub:
    s_barrier
    ''')
    a.stamp(4)
    WW = o.get('wwin', 3)
    W1L, W2L, WOL = 0x8000, 0xC000, 0x10000
    a.srd(40, WUV, 0x400000)
    a.srd(48, WO, 0x400000)
    a("""
    s_mov_b32 s16, s30
    s_mov_b32 s17, s31
    s_mov_b32 s18, %d
    s_mov_b32 s19, 0x20000
    s_mov_b32 s20, s32
    s_mov_b32 s21, s33
    s_mov_b32 s22, %d
    s_mov_b32 s23, 0x20000
    v_readfirstlane_b32 s4, v53
    v_lshrrev_b32 v12, 3, v1          ; r8
    v_and_b32 v13, 7, v1              ; c8
    v_lshlrev_b32 v70, 4, v13
    v_lshl_add_u32 v70, v12, 10, v70  ; r8*1024 + c8*16   (w2 voff)
    v_bfe_u32 v15, v1, 4, 1
    v_lshlrev_b32 v15, 5, v15
    v_xor_b32 v68, v70, v15           ; voffC
    v_xor_b32 v69, 64, v68            ; voffD
    v_mul_u32_u24 v10, 2752, v6
    s_and_b32 s60, s3, 1
    s_lshl_b32 s60, s60, 7
    v_xor_b32 v13, s60, v8
    v_add_u32 v10, v10, v13           ; w1 voff
    s_lshl_b32 s24, s8, 3
    s_add_u32 s24, s24, s3
    s_mul_i32 s24, s24, %d
    s_lshl_b32 s60, s9, 8
    s_add_u32 s24, s24, s60           ; w1 source
    s_lshl_b32 s25, s12, 14
    s_lshl_b32 s60, s3, 7
    s_add_u32 s25, s25, s60           ; w2 source (out of range when not an FFN workgroup)
    s_cmp_lt_u32 s12, 88
    s_cselect_b32 s24, s24, 0x1000000
    s_lshl_b32 s26, s3, 11            ; LDS w*2048
    v_lshl_add_u32 v2, v6, 17, v8
    v_xor_b32 v3, 0x80, v2
    s_lshl_b32 s27, s11, 6
    s_add_u32 s27, s27, s3
    s_lshl_b32 s27, s27, 14
    s_add_u32 s27, s27, s13           ; uv source
    s_lshl_b32 s28, s3, 12            ; LDS w*4096
    s_lshl_b32 s14, s10, 17
    s_lshl_b32 s15, s3, 7
    s_add_u32 s14, s14, s15           ; wo source
    s_lshl_b32 s15, s3, 13
    s_add_u32 s15, s15, 0x%x          ; wo LDS
    v_lshrrev_b32 v71, 2, v7
    v_lshl_add_u32 v71, v6, 3, v71
    v_lshlrev_b32 v71, 7, v71
    v_and_b32 v13, 3, v1
    v_lshl_add_u32 v71, v13, 3, v71
    v_bfe_u32 v13, v1, 3, 2
    v_lshl_add_u32 v71, v13, 5, v71
    v_add_u32 v71, s15, v71
    """ % (512 * 2752, 1376 * 1024, 8 * 2752, WOL))
    a.vm = []
    WOF = 72
    cnt = [0]
    def op(kind, n):
        a.vwait_n((WW if cnt[0] < o.get('wsw', 99) else o.get('wwinb', 4)) - 1)
        cnt[0] += 1
        if kind == 'w1':
            a('s_add_u32 m0, s26, 0x%x' % (W1L + n * 1024)); a('s_add_u32 s60, s24, %d' % (n * 4 * 2752))
            a.v('buffer_load_dwordx4 v10, s[16:19], s60 offen nt lds', 'F')
        elif kind == 'w2':
            a('s_add_u32 m0, s26, 0x%x' % (W2L + n * 1024)); a('s_add_u32 s60, s25, %d' % (n * 8192))
            a.v('buffer_load_dwordx4 v70, s[20:23], s60 offen nt lds', 'F')
        elif kind == 'uv':
            a('s_add_u32 m0, s28, %d' % (n * 1024)); a('s_add_u32 s60, s27, %d' % ((64 * (n & 1) + (n >> 1)) * 8192))
            a.v('buffer_load_dwordx4 v%d, s[40:43], s60 offen nt lds' % (2 if n < 2 else 3), 'U')
        else:
            a('s_add_u32 m0, s15, %d' % ((n % 8) * 1024)); a('s_add_u32 s60, s14, %d' % (n * 8192))
            a.v('buffer_load_dwordx4 v%d, s[48:51], s60 offen %s lds' % (68 if n % 2 == 0 else 69, WOPOL), 'O%d' % (n // 4))
    def wo_read(ks):
        if ('O%d' % ks) in a.vm: a.vwait('O%d' % ks)
        for mt in range(4):
            a('v_xor_b32 v13, 0x%x, v71' % (mt * 32))
            for rdi in range(2):
                a.d('ds_read_b64_tr_b16 %s, v13 offset:%d' % (R(WOF + (mt * 4 + ks) * 4 + 2 * rdi, 2), (ks % 2) * 4096 + rdi * 512), 'wo')
        a.dall()
    def ffn1():
        if 'F' in a.vm: a.vwait('F')
        a('s_barrier')
        a.stamp(10)
        a("""
        s_cmp_ge_u32 s12, 88
        s_cbranch_scc1 L_Wnf2
        s_lshl_b32 s60, s8, 7
        v_add_u32 v13, s60, v5            ; xn + 64x*2 + g*16
        v_add_u32 v15, 0x8000, v4
        """)
        for ks in range(2):
            a('ds_read_b128 %s, v13 offset:%d' % (R(52 + 4 * ks, 4), ks * 64))
            for rdi in range(2):
                a('ds_read_b64_tr_b16 %s, v15 offset:%d' % (R(36 + 4 * ks + 2 * rdi, 2), ks * 8192 + rdi * 1024))
        a("""
        v_lshrrev_b32 v12, 2, v1
        v_and_b32 v13, 3, v1
        v_lshlrev_b32 v13, 3, v13
        v_lshl_add_u32 v12, v12, 7, v13
        s_lshl_b32 s60, s3, 11
        s_add_u32 s60, s60, 0x%x
        v_add_u32 v12, s60, v12
        s_waitcnt lgkmcnt(0)
        v_mfma_f32_16x16x32_bf16 v[32:35], v[52:55], v[36:39], 0
        v_mfma_f32_16x16x32_bf16 v[32:35], v[56:59], v[40:43], v[32:35]
        """ % W2L)
        for mt in range(4):
            a('ds_read_b64_tr_b16 %s, v12 offset:%d' % (R(44 + 2 * mt, 2), mt * 32))
        a("""
        s_lshl_b32 s60, s12, 10
        s_lshl_b32 s61, s3, 7
        s_add_u32 s60, s60, s61
        s_add_u32 s60, s60, 0x%x          ; HP + (8k+x)*1024 + w*128
        v_lshlrev_b32 v12, 3, v7
        v_mov_b32 v33, s4
        s_mov_b64 exec, 0xffff
        buffer_store_dwordx2 v[32:33], v12, s[44:47], s60 offen sc1
        s_mov_b64 exec, -1
        L_Wnf2:
        s_waitcnt lgkmcnt(0)
        """ % HP)
        a.lg = []
    def ffn2():
        a('''
        s_cmp_ge_u32 s12, 86
        s_cbranch_scc1 L_Wnf3
        s_lshl_b32 s60, s9, 13
        s_lshl_b32 s61, s8, 7
        s_add_u32 s60, s60, s61
        s_add_u32 s60, s60, 0x%x          ; HP + k*8192 + x*128
        v_and_b32 v12, 7, v1
        v_lshlrev_b32 v12, 10, v12
        v_lshl_add_u32 v12, v6, 5, v12    ; producer*1024 + g*32
        s_mov_b32 s61, 0
        L_Wh:
        buffer_load_dwordx4 v[52:55], v12, s[44:47], s60 offen sc1
        buffer_load_dwordx4 v[56:59], v12, s[44:47], s60 offen offset:16 sc1
        s_add_u32 s61, s61, 1
        s_waitcnt vmcnt(0)
        v_xor_b32 v13, v53, v55
        v_xor_b32 v14, v57, v59
        v_xor_b32 v15, s4, v53
        v_or3_b32 v13, v13, v14, v15
        v_xor_b32 v14, v53, v57
        v_or_b32 v13, v13, v14
        v_cmp_ne_u32 vcc, 0, v13
        s_cmp_gt_u32 s61, SPIN_N
        s_cbranch_scc1 L_Wh_x
        s_cbranch_vccnz L_Wh
        L_Wh_x:
        ''' % HP)
        for m in ('quad_perm:[1,0,3,2]', 'quad_perm:[2,3,0,1]', 'row_half_mirror'):
            for r in range(4):
                a('v_add_f32_dpp v%d, v%d, v%d %s row_mask:0xf bank_mask:0xf' % (52 + 2 * r, 52 + 2 * r, 52 + 2 * r, m))
        for r in range(4):
            a.rnd_bf16(52 + 2 * r)
            a.silu(52 + 2 * r, 53)
        a('v_cvt_pk_bf16_f32 v32, v52, v54')
        a('v_cvt_pk_bf16_f32 v33, v56, v58')
        for mt in range(4):
            a('v_mfma_f32_16x16x16_bf16 %s, v[32:33], %s, 0' % (R(52 + 4 * mt, 4), R(44 + 2 * mt, 2)))
        a('''
        v_cndmask_b32 v52, v52, v56, s[52:53]
        v_cndmask_b32 v52, v52, v60, s[54:55]
        v_cndmask_b32 v52, v52, v64, s[56:57]
        buffer_store_dword v52, v11, s[44:47], s66 offen sc1
        L_Wnf3:
        ''')
        a('s_waitcnt vmcnt(0)')
        a.vm = []
    seqs = {
        0: 'a0 o0 a1 o1 b0 o2 b1 o3 o4 o5 u0 F o6 o7 R0 o8 o9 u1 o10 o11 R1 o12 o13 u2 o14 o15 u3 R2 G R3',
        1: 'a0 a1 b0 b1 o0 o1 o2 o3 F o4 o5 o6 o7 R0 o8 o9 u0 o10 o11 u1 R1 o12 o13 u2 o14 o15 u3 R2 G R3',
        3: 'o0 o1 o2 o3 a0 o4 a1 o5 b0 o6 b1 o7 R0 o8 o9 u0 F o10 o11 u1 R1 o12 o13 u2 o14 o15 u3 R2 R3',
        2: 'o0 o1 o2 o3 a0 o4 a1 o5 b0 o6 b1 o7 R0 o8 o9 u0 F o10 o11 u1 R1 o12 o13 u2 o14 o15 u3 R2 G R3',
    }
    for t in seqs[o.get('wseq', 2)].split():
        if t == 'F': ffn1()
        elif t == 'G': ffn2()
        elif t[0] == 'R': wo_read(int(t[1:]))
        else: op({'a': 'w1', 'b': 'w2', 'u': 'uv', 'o': 'wo'}[t[0]], int(t[1:]))
    for p in range(4):
        a('v_cmp_eq_u32 vcc, %d, v7' % (2 * p))
        a('v_mov_b32 v%d, 0' % (56 + p))
        a('v_mov_b32 v64, 0xffff')
        a('v_cndmask_b32 v%d, v%d, v64, vcc' % (56 + p, 56 + p))
        a('v_cmp_eq_u32 vcc, %d, v7' % (2 * p + 1))
        a('v_mov_b32 v64, 0xffff0000')
        a('v_cndmask_b32 v%d, v%d, v64, vcc' % (56 + p, 56 + p))
        for i in range(4): a('v_and_b32 v%d, 0x3f803f80, v%d' % (136 + 4 * i + p, 56 + p))
    a("""
    v_lshrrev_b32 v64, 1, v6
    v_mul_u32_u24 v64, 0x%x, v64
    v_lshl_add_u32 v64, v7, 4, v64
    v_and_b32 v65, 1, v6
    v_lshl_add_u32 v64, v65, 3, v64
    s_mul_i32 s60, s3, 288
    s_add_u32 s60, s60, 0x%x
    v_add_u32 v64, s60, v64
    v_and_b32 v65, 7, v1
    v_mul_u32_u24 v65, 288, v65
    v_add_u32 v65, v65, v5
    s_lshl_b32 s60, s3, 5
    s_add_u32 s60, s60, 0x%x
    v_lshl_add_u32 v66, v7, 1, s60
    """ % (8 * 288, ROWS, CB))
    a('s_waitcnt vmcnt(0)')
    a('s_barrier')
    a.stamp(5)
    for ks in range(4):
        for rdi in range(2):
            a.d('ds_read_b64_tr_b16 %s, v4 offset:%d' % (R(16 + 4 * ks + 2 * rdi, 2), ks * 8192 + rdi * 1024), 'uv')
    a.dall()
    a.stamp(6)
    a('''
    v_lshlrev_b32 v14, 11, v7
    s_lshl_b32 s60, s3, 3
    s_add_u32 s60, s60, 0x%x
    v_mov_b32 v70, s60                ; LW + w*8
    v_and_b32 v71, 7, v1
    v_lshlrev_b32 v71, 3, v71
    v_add_u32 v71, 0x%x, v71          ; LW + (l%%8)*8
    v_and_b32 v12, 3, v1
    v_cmp_eq_u32 s[64:65], v12, v6
    s_mov_b32 s60, 0
    s_mov_b64 s[62:63], -1
    L_Wg1:
    s_sleep ML_SLEEP
    s_mov_b64 exec, s[62:63]
    buffer_load_dwordx4 v[52:55], v14, s[44:47], s67 offen sc1
    s_add_u32 s60, s60, 1
    s_waitcnt vmcnt(0)
    v_cmp_ne_u32 s[62:63], s4, v55
    s_cmp_gt_u32 s60, SPIN_N
    s_cbranch_scc1 L_Wg
    s_cmp_lg_u64 s[62:63], 0
    s_cbranch_scc1 L_Wg1
    ''' % (LW, LW))
    a.label('L_Wg')
    a('s_mov_b64 exec, -1')
    for i in range(4):
        a('buffer_load_dwordx4 %s, v9, s[44:47], s69 offen offset:%d sc1' % (R(36 + 4 * i, 4), i * 1024))
    a("""
    s_add_u32 s60, s60, 1
    v_subrev_u32 v15, s4, v54
    v_add3_u32 v15, v15, v52, v53
    v_cndmask_b32 v15, 0, v15, s[64:65]
    v_cmp_neq_f32 vcc, 0, v52
    s_cbranch_vccnz L_Wgen
    """)
    a.label('L_Wj')
    a.wave_red('v_add_f32', 53, 12, rows_only=True)
    a('ds_write_b64 v70, v[52:53]')
    for i in range(4):
        a('s_waitcnt vmcnt(%d)' % (3 - i))
        a('v_mfma_f32_16x16x32_bf16 v[32:35], %s, %s, %s' % (R(136 + 4 * i, 4), R(36 + 4 * i, 4), 'v[32:35]' if i else '0'))
        a('v_add3_u32 v15, v15, v%d, v%d' % (36 + 4 * i, 37 + 4 * i))
        a('v_add3_u32 v15, v15, v%d, v%d' % (38 + 4 * i, 39 + 4 * i))
    a("""
    v_add_u32_dpp v15, v15, v15 quad_perm:[1,0,3,2] row_mask:0xf bank_mask:0xf
    v_add_u32_dpp v15, v15, v15 quad_perm:[2,3,0,1] row_mask:0xf bank_mask:0xf
    v_cvt_pk_bf16_f32 v32, v32, v33
    v_cvt_pk_bf16_f32 v33, v34, v35
    v_add_u32_dpp v15, v15, v15 row_half_mirror row_mask:0xf bank_mask:0xf
    ds_write_b64 v64, v[32:33]
    v_add_u32_dpp v15, v15, v15 row_mirror row_mask:0xf bank_mask:0xf
    v_cmp_ne_u32 vcc, 0, v15
    s_cbranch_vccnz L_Wretry
    L_Wg_x:
    """)
    a.stamp(7)
    if a.stamps:
        a('s_mul_i32 s92, s60, 100')
        a('s_add_u32 s92, s92, s70')
        a('s_addc_u32 s93, s71, 0')
    a("""
    s_waitcnt lgkmcnt(0)
    s_barrier
    """)
    a.stamp(8)
    for ks in range(4):
        a.d('ds_read_b128 %s, v65 offset:%d' % (R(36 + 4 * ks, 4), ROWS - SM + ks * 64), 'a%d' % ks)
    a.d('ds_read_b64 v[52:53], v71', 'lw')
    for ks in range(4):
        a.dwait('a%d' % ks)
        a('v_mfma_f32_16x16x32_bf16 v[32:35], %s, %s, %s' % (R(36 + 4 * ks, 4), R(16 + 4 * ks, 4), 'v[32:35]' if ks else '0'))
    a.dall()
    a('''
    v_cmp_neq_f32 vcc, 0, v52
    s_cbranch_vccnz L_Wgen2
    L_Wj2:
    v_add_f32_dpp v53, v53, v53 quad_perm:[1,0,3,2] row_mask:0xf bank_mask:0xf
    s_nop 1
    v_add_f32_dpp v53, v53, v53 quad_perm:[2,3,0,1] row_mask:0xf bank_mask:0xf
    s_nop 1
    v_add_f32_dpp v53, v53, v53 row_half_mirror row_mask:0xf bank_mask:0xf
    v_add_f32 v32, v32, v33
    v_add_f32 v34, v34, v35
    v_rcp_f32 v67, v53
    v_add_f32 v32, v32, v34
    ''')
    a.swap_red('v_add_f32', 32, 33, 16)
    a('''
    v_mul_f32 v32, v32, v67
    v_cvt_pk_bf16_f32 v32, v32, v32
    ds_write_b16 v66, v32
    s_waitcnt lgkmcnt(0)
    s_barrier
    ''')
    for ks in range(4):
        a.d('ds_read_b128 %s, v5 offset:%d' % (R(36 + 4 * ks, 4), CB - SM + ks * 64), 'a%d' % ks)
    for ks in range(4):
        a.dwait('a%d' % ks)
        for mt in range(4):
            a('v_mfma_f32_16x16x32_bf16 %s, %s, %s, %s' % (R(16 + 4 * mt, 4), R(36 + 4 * ks, 4), R(WOF + (mt * 4 + ks) * 4, 4), R(16 + 4 * mt, 4) if ks else '0'))
    a('''
    v_cndmask_b32 v16, v16, v20, s[52:53]
    v_cndmask_b32 v16, v16, v24, s[54:55]
    v_cndmask_b32 v16, v16, v28, s[56:57]
    buffer_store_dword v16, v11, s[44:47], s58 offen sc1
    ''')
    a.stamp(9)
    if a.stamps:
        a('s_cmp_lg_u32 s3, %d' % o.get('stw', 0))
        a('s_cbranch_scc1 L_end')
        a.write_stamps()
    a('s_endpgm')

def role_Wslow(a, o):
    a.aslow()
    a.label('L_Wgen')
    a('v_mov_b32 v12, v52')
    a.wave_red('v_max_f32', 12, 13, rows_only=True)
    a('''
    v_sub_f32 v54, v52, v12
    v_exp_f32 v54, v54
    v_mov_b32 v52, v12                ; Mw
    v_and_b32 v54, 0xffff0000, v54
    v_mul_f32 v53, v53, v54
    v_lshrrev_b32 v55, 16, v54
    v_or_b32 v54, v54, v55
    v_lshlrev_b32 v13, 2, v6
    ''')
    for i in range(4):
        a('ds_bpermute_b32 v12, v13, v54 offset:%d' % (16 * i))
        a('s_waitcnt lgkmcnt(0)')
        for p in range(4):
            a('v_and_b32 v%d, v12, v%d' % (136 + 4 * i + p, 56 + p))
    a('s_nop 1')
    a('s_branch L_Wj')
    a('''
    L_Wretry:
    s_cmp_gt_u32 s60, SPIN_N
    s_cbranch_scc1 L_Wg_x
    s_mov_b64 s[62:63], -1
    ''')
    for p in range(4):
        for i in range(4): a('v_and_b32 v%d, 0x3f803f80, v%d' % (136 + 4 * i + p, 56 + p))
    a('s_branch L_Wg1')
    a.label('L_Wgen2')
    a('''
    v_mov_b32 v12, v52
    v_max_f32_dpp v12, v12, v12 quad_perm:[1,0,3,2] row_mask:0xf bank_mask:0xf
    v_max_f32_dpp v12, v12, v12 quad_perm:[2,3,0,1] row_mask:0xf bank_mask:0xf
    v_max_f32_dpp v12, v12, v12 row_half_mirror row_mask:0xf bank_mask:0xf
    v_sub_f32 v54, v52, v12
    v_exp_f32 v54, v54
    v_and_b32 v13, 1, v6
    v_lshlrev_b32 v13, 4, v13
    v_mul_f32 v53, v53, v54
    ''')
    for r in range(4):
        a('ds_bpermute_b32 v12, v13, v54 offset:%d' % (4 * r))
        a('s_waitcnt lgkmcnt(0)')
        a('v_mul_f32 v%d, v%d, v12' % (32 + r, 32 + r))
    a('s_nop 1')
    a('s_branch L_Wj2')

def gen(stamps=False, o=None):
    o = o or {}
    a = G(stamps)
    prologue(a, o)
    role_W(a, o)
    role_A(a, o)
    role_final(a, o)
    role_As(a, o)
    role_Wslow(a, o)
    a.label('L_end')
    txt = a.text()
    for k, v in (('QT_SLEEP', o.get('qtsleep', 1)), ('QT_THR', o.get('qtthr', 2)), ('REP_MASK', o.get('repmask', '0x00010001' if o.get('ef', 1) == 2 else '0xff')), ('LSPIN', 200000), ('SPIN_N', SPIN),
                 ('ML_SLEEP', o.get('mlsleep', 1)), ('FIN_SLEEP', o.get('finsleep', 0)), ('UKGATE', o.get('ukgate', 3))):
        txt = txt.replace(k, str(v))
    txt = txt.replace('W1A ', '; ' if o.get('now1', 0) else '')
    txt = txt.replace('PTA ', '' if o.get('pre', 0) else '; ').replace('ML_OFF', '0x%x' % ML)
    qs = o.get('qcsh', 5)
    txt = txt.replace('QCSH+5', str(qs + 5)).replace('QCSH', str(qs)).replace('QCEX', {4: '0x1ffff', 5: '0x3ffff', 6: '0xfffff', 7: '0xffffff'}[qs]).replace('REP_N', str(o.get('repn', 1)))
    txt = txt.replace('NODEP ', '' if o.get('nodep', 0) else '; ')
    if o.get('nodep', 0): txt = txt.replace('s_or_b32 s14, vcc_lo, vcc_hi', 's_mov_b32 s14, 0')
    if o.get('now1', 0): txt = txt.replace('buffer_load_dwordx4 v14, s[40:43], s14 offen', '; ').replace('buffer_load_dwordx4 v14, s[40:43], s60 offen', '; ')
    txt = txt.replace('OUTPT ', '' if o.get('outpt', 0) else '; ')
    txt = txt.replace('REPBASE', 's11' if o.get('ef', 1) == 2 else 's68')
    txt = txt.replace('AMIX ', '' if o.get('amix', 0) else '; ')
    rm = o.get('remap', 0)
    if rm:
        sh = rm + 2
        code = '''    s_cbranch_scc1 L_end
    s_bfe_u32 s8, s2, 0x%x
    s_lshl_b32 s8, s8, 7
    s_and_b32 s9, s2, 0x%x
    s_lshr_b32 s2, s2, %d
    s_lshl_b32 s2, s2, %d
    s_or_b32 s2, s2, s9
    s_or_b32 s2, s2, s8
''' % ((1 << 16) | sh, (1 << sh) - 1, sh + 1, sh)
        txt = txt.replace('    s_cbranch_scc1 L_end\n', code, 1)
    txt = txt.replace('TLBPT ', '' if o.get('tlbpt', 1) else '; ')
    body = hz.fix(txt)
    return kernel_file([(KN + '_kernel', 256, 512, 163840)], [(KN + '_kernel', body, 256, 96, 256)])

if __name__ == '__main__':
    out = sys.argv[1]
    stamps = 'stamps' in sys.argv[2:]
    o = {}
    for kv in sys.argv[2:]:
        if '=' in kv:
            k, v = kv.split('=')
            o[k] = int(v) if v.lstrip('-').isdigit() else v.replace('_', ' ')
    open(out, 'w').write(gen(stamps, o))
```

```python
from roleA34 import *

def role_final(a, o):
    a('''
    s_cmp_lg_u32 s3, 0
    s_cbranch_scc1 L_end
    ''')
    a.stamp(5)
    a.srd(48, WS, FP + 86 * 2048)
    a.srd(40, X, 1024)
    a('''
    v_mov_b32 v40, v24
    s_and_b32 s10, s2, 7
    s_lshl_b32 s10, s10, 6
    s_lshr_b32 s11, s2, 3
    s_lshl_b32 s11, s11, 2
    s_add_u32 s10, s10, s11            ; m0
    s_lshl_b32 s11, s10, 2
    s_lshl_b32 s12, s10, 1
    v_lshlrev_b32 v41, 11, v40
    v_and_b32 v42, 3, v40
    v_lshlrev_b32 v43, 1, v42
    buffer_load_ushort v60, v43, s[40:43], s12 offen
    v_and_b32 v44, 1, v40
    v_cmp_eq_u32 s[60:61], 1, v44
    v_and_b32 v44, 2, v40
    v_cmp_eq_u32 s[62:63], 2, v44
    ''')
    def gather4(base, srd, lab, dst):
        a('s_add_u32 s13, s11, 0x%x' % base)
        a('s_add_u32 s14, s11, 0x%x' % (base + 64 * 2048))
        a('s_mov_b32 s8, 0')
        a('s_mov_b64 s[64:65], -1')
        a('s_mov_b64 s[66:67], -1')
        a.label(lab)
        a('s_sleep FIN_SLEEP')
        a('s_mov_b64 exec, s[64:65]')
        a('s_cbranch_execz %s_a' % lab)
        a('buffer_load_dwordx4 v[48:51], v41, s[%d:%d], s13 offen sc1' % (srd, srd + 3))
        a.label(lab + '_a')
        a('s_mov_b64 exec, s[66:67]')
        a('s_cbranch_execz %s_b' % lab)
        a('buffer_load_dwordx4 v[52:55], v41, s[%d:%d], s14 offen sc1' % (srd, srd + 3))
        a.label(lab + '_b')
        a('''
        s_mov_b64 exec, -1
        s_add_u32 s8, s8, 1
        s_waitcnt vmcnt(0)
        v_max3_u32 v56, v48, v49, v50
        v_max3_u32 v57, v52, v53, v54
        v_max_u32 v56, v56, v51
        v_max_u32 v57, v57, v55
        v_cmp_eq_u32 s[64:65], -1, v56
        v_cmp_eq_u32 s[66:67], -1, v57
        s_cmp_gt_u32 s8, SPIN_N
        s_cbranch_scc1 %s_x
        s_or_b64 s[68:69], s[64:65], s[66:67]
        s_cbranch_scc1 %s
        %s_x:
        v_add_f32 v48, v48, v52
        v_add_f32 v49, v49, v53
        v_add_f32 v50, v50, v54
        v_add_f32 v51, v51, v55
        v_cndmask_b32 v52, v48, v49, s[60:61]
        v_cndmask_b32 v53, v49, v48, s[60:61]
        v_cndmask_b32 v54, v50, v51, s[60:61]
        v_cndmask_b32 v55, v51, v50, s[60:61]
        v_add_f32_dpp v52, v53, v52 quad_perm:[1,0,3,2] row_mask:0xf bank_mask:0xf
        v_add_f32_dpp v54, v55, v54 quad_perm:[1,0,3,2] row_mask:0xf bank_mask:0xf
        v_cndmask_b32 v%d, v52, v54, s[62:63]
        v_cndmask_b32 v53, v54, v52, s[62:63]
        v_add_f32_dpp v%d, v53, v%d quad_perm:[2,3,0,1] row_mask:0xf bank_mask:0xf
        v_add_f32_dpp v%d, v%d, v%d row_ror:4 row_mask:0xf bank_mask:0xf
        v_add_f32_dpp v%d, v%d, v%d row_ror:8 row_mask:0xf bank_mask:0xf
        ''' % ((lab, lab, lab) + (dst,) * 9))
        a.swap_red('v_add_f32', dst, 53, 16)
        a.swap_red('v_add_f32', dst, 53, 32)
    gather4(FP, 48, 'L_gf', 61)
    a.rnd_bf16(61)
    a.silu(61, 53)
    a.rnd_bf16(61)
    a('v_lshlrev_b32 v60, 16, v60')
    a.srd(40, OUT, 1024)
    a.stamp(6)
    gather4(SP, 44, 'L_gs', 62)
    a.rnd_bf16(62)
    a('v_mul_f32 v62, v62, v61')
    a.rnd_bf16(62)
    a('''
    v_add_f32 v62, v62, v60
    v_cvt_pk_bf16_f32 v62, v62, v62
    s_mov_b64 exec, 15
    buffer_store_short v62, v43, s[40:43], s12 offen
    ''')
    a.stamp(7)
    a.write_stamps()
    a('s_endpgm')

def role_As(a, o):
    a.stamps_mute = False
    a.label('L_As')
    ops = [(c, seg, aa) for c in range(2) for seg in range(4) for aa in range(4)]
    AM = o.get('amaj', 1)
    ops = [(c, sp * 2 + sg, aa) for c in range(2) for sp in range(2) for aa in range(4) for sg in range(2)]
    if o.get('hmix', 0): ops = [(c, sp * 2 + sg, aa) for c in range(2) for sp in range(2) for aa in (0, 2, 1, 3) for sg in range(2)]
    def prog(n):
        return {7: 2, 15: 4, 23: 6, 31: 8}.get(n)
    NPRE = o.get('npre', 20); NR = 32 - NPRE
    first = [(i, seg, aa) for i in range(2) for aa in range(4) for seg in range(4)]
    def loads(lo, hi):
        for n in range(lo, hi):
            if n < 0:
                i, seg, aa = first[32 + n]
                a('s_xor_b32 m0, s69, 0x%x' % (65536 + aa * 4096 + seg * 1024))
                a('s_xor_b32 s10, s66, 0x%x' % (65536 + aa * 4096 + seg * 256))
                a.v('buffer_load_dwordx4 v%d, s[40:43], s10 offen nt lds' % (3 if aa < 2 else 0), 'D')
                continue
            c, seg, aa = ops[n]
            a('s_add_u32 s10, s64, 0x%x' % (c * 65536 + aa * 4096 + seg * 256))
            a.v('buffer_load_dwordx4 %s, v%d, s[40:43], s10 offen nt' % (R(128 + 4 * n, 4), 3 if aa < 2 else 0), 'L%d' % n)
    def writes(lo, hi):
        for n in range(lo, hi):
            c, seg, aa = ops[n]
            if ('L%d' % n) in a.vm: a.vwait('L%d' % n)
            a('ds_write_b128 v%d, %s offset:%d' % (100 + c, R(128 + 4 * n, 4), aa * 4096 + seg * 1024))
        a('s_waitcnt lgkmcnt(0)')
    c = [int(x, 16) for x in str(o.get('hsch', 'x64'))[1:]]
    a("""
    s_setprio 3
    s_sub_u32 s3, s3, 4
    s_cmp_lg_u32 s3, 1
    s_cbranch_scc1 L_Apt
    TLBPT s_load_dword s60, s[38:39], 0x1f000
    TLBPT s_load_dword s60, s[26:27], 0x0
    TLBPT s_load_dword s60, s[30:31], 0x0
    TLBPT s_load_dword s60, s[32:33], 0x0
    TLBPT s_load_dword s60, s[24:25], 0x0
    TLBPT s_load_dword s60, s[34:35], 0x0
    TLBPT s_mov_b32 s61, 0x300000
    TLBPT s_load_dword s60, s[38:39], s61
    TLBPT s_load_dword s60, s[26:27], s61
    TLBPT s_load_dword s60, s[24:25], s61
    TLBPT s_mov_b32 s62, 0x502000
    TLBPT s_load_dword s60, s[38:39], s62
    L_Apt:
    s_lshl_b32 s9, s3, 14
    s_add_u32 s64, s8, s9
    s_lshl_b32 s10, s3, 8
    s_or_b32 s66, s64, s10
    s_lshl_b32 s10, s3, 10
    s_or_b32 s69, s9, s10
    s_add_u32 s64, s64, 0x20000
    v_lshl_add_u32 v100, v1, 4, s9
    v_add_u32 v101, 0x10000, v100
    v_mov_b32 v2, 0
    s_mov_b32 s8, 0
    L_Agn:
    s_sleep 8
    global_load_dword v5, v2, s[36:37] sc1
    s_add_u32 s8, s8, 1
    s_waitcnt vmcnt(0)
    v_readfirstlane_b32 s4, v5
    s_cmp_gt_u32 s8, SPIN_N
    s_cbranch_scc1 L_Agn_x
    s_cmp_eq_u32 s4, 0
    s_cbranch_scc1 L_Agn
    L_Agn_x:
    OUTPT global_load_dword v254, v2, s[34:35]
    """)
    K0 = o.get('k0', 12)
    a.vm = []
    for n in range(K0):
        if n >= o.get('k0w', 5): a('s_waitcnt vmcnt(%d)' % (o.get('k0w', 5) - 1))
        loads(n - NR, n - NR + 1)
    a("""
    v_lshlrev_b32 v2, QCSH, v1        ; tag voffset
    v_lshlrev_b32 v98, 4, v1          ; data voffset
    QR0 v_lshlrev_b32 v97, 7, v1          ; flag voffset
    QR1 v_lshlrev_b32 v97, 10, v1
    s_lshl_b32 s9, s3, 13             ; QA + u*8192
    s_add_u32 s65, s9, 4096
    s_lshl_b32 s11, s3, QCSH+5
    s_add_u32 s11, s11, 0x%x          ; QC + u*32 entries
    s_lshr_b32 s12, s3, 1
    s_lshl_b32 s12, s12, 14
    s_and_b32 s13, s3, 1
    s_lshl_b32 s13, s13, 7
    s_add_u32 s12, s12, s13
    s_add_u32 s12, s12, 0x%x
    v_and_b32 v6, 7, v1
    v_lshlrev_b32 v6, 4, v6
    v_lshl_add_u32 v6, v1, 8, v6
    v_add_u32 v6, s12, v6             ; LDS write base
    s_lshl_b32 s4, s4, 5              ; expected sum = 32 * nonce
    v_mov_b32 v72, 0
    v_mov_b32 v73, 0
    QR0 s_lshl_b32 s68, s3, 10
    QR1 s_lshl_b32 s68, s3, 13
    QR1 s_and_b32 s12, s2, 7
    QR1 s_lshl_b32 s12, s12, 7
    QR1 s_add_u32 s68, s68, s12
    s_add_u32 s68, s68, 0x10000
    s_mov_b32 s12, REP_MASK
    s_mov_b32 s13, 0
    NODEP s_branch L_Agt_x
    L_Agt:
    s_sleep QT_SLEEP
    s_mov_b64 exec, s[12:13]
    buffer_load_dwordx2 v[72:73], v97, s[44:47], REPBASE offen sc1
    s_add_u32 s8, s8, 1
    s_waitcnt vmcnt(0)
    v_cmp_ne_u32 s[12:13], v73, v5
    s_cmp_gt_u32 s8, SPIN_N
    s_cbranch_scc1 L_Agt_x
    s_cmp_lg_u32 s12, 0
    s_cbranch_scc1 L_Agt
    L_Agt_x:
    s_mov_b32 exec_lo, -1
    buffer_load_dwordx2 v[72:73], v2, s[44:47], s11 offen sc1
    s_mov_b64 exec, -1
    """ % (QC, STG))
    def dload(i):
        a('buffer_load_dwordx4 %s, v98, s[44:47], s%d offen offset:%d sc1' % (R(8 + 4 * i, 4), 9 if i < 4 else 65, (i % 4) * 1024))
    def dproc(i):
        a('ds_write_b128 v%d, %s' % (40 + i, R(8 + 4 * i, 4)))
        a('v_add3_u32 v%d, v%d, v%d, v%d' % (80 + i, 8 + 4 * i, 9 + 4 * i, 10 + 4 * i))
        a('v_add_u32 v%d, v%d, v%d' % (80 + i, 80 + i, 11 + 4 * i))
    for i in range(8): dload(i)
    a.stamp(1)
    if a.stamps: a('s_mov_b32 s8, 1')
    if o.get('rlate', 0):
        a("""
        s_waitcnt vmcnt(8)
        L_Agr:
        v_cmp_ne_u32 s[12:13], v73, v5
        s_cmp_eq_u32 s12, 0
        s_cbranch_scc1 L_Agr_x
        s_add_u32 s8, s8, 1
        s_cmp_gt_u32 s8, SPIN_N
        s_cbranch_scc1 L_Agr_x
        s_mov_b32 s13, 0
        s_quadmask_b32 s67, s12
        s_mov_b64 exec, s[12:13]
        buffer_load_dwordx2 v[72:73], v2, s[44:47], s11 offen sc1
        s_mov_b64 exec, -1
        """)
        for i in range(8):
            a('s_bitcmp1_b32 s67, %d' % i)
            a('s_cbranch_scc0 L_Agk%d' % i)
            dload(i)
            a.label('L_Agk%d' % i)
        a("""
        s_waitcnt vmcnt(0)
        s_branch L_Agr
        L_Agr_x:
        """)
    a('s_barrier')
    a.vm = []
    loads(K0 - NR, K0 - NR + c[0]); p = K0 - NR + c[0]
    for i in range(8): a('v_xor_b32 v%d, %d, v6' % (40 + i, i << 4))
    for i in range(8):
        a('s_waitcnt vmcnt(%d)' % (7 - i + c[0]))
        dproc(i)
    a("""
    NODEP s_branch L_Agp_x
    v_cmp_ne_u32 s[12:13], v73, v5
    s_cmp_eq_u32 s12, 0
    s_cbranch_scc1 L_Agc
    L_Agp:
    s_mov_b32 s13, 0
    s_quadmask_b32 s67, s12
    s_mov_b64 exec, s[12:13]
    buffer_load_dwordx2 v[72:73], v2, s[44:47], s11 offen sc1
    s_mov_b64 exec, -1
    """)
    for i in range(8):
        a('s_bitcmp1_b32 s67, %d' % i)
        a('s_cbranch_scc0 L_Agl%d' % i)
        dload(i)
        a.label('L_Agl%d' % i)
    a("""
    s_add_u32 s8, s8, 1
    s_waitcnt vmcnt(0)
    v_cmp_ne_u32 s[12:13], v73, v5
    """)
    for i in range(8):
        a('s_bitcmp1_b32 s67, %d' % i)
        a('s_cbranch_scc0 L_Agw%d' % i)
        dproc(i)
        a.label('L_Agw%d' % i)
    a("""
    s_cmp_gt_u32 s8, SPIN_N
    s_cbranch_scc1 L_Agp_x
    s_cmp_lg_u32 s12, 0
    s_cbranch_scc1 L_Agp
    L_Agc:
    v_add3_u32 v4, v72, v80, v81
    v_add3_u32 v74, v82, v83, v84
    v_add3_u32 v4, v4, v85, v86
    v_add3_u32 v4, v4, v74, v87
    """)
    a.wave_red('v_add_u32', 4, 74)
    a("""
    v_readfirstlane_b32 s10, v4
    s_mov_b32 s12, -1
    s_cmp_lg_u32 s10, s4
    s_cbranch_scc1 L_Agp
    L_Agp_x:
    s_waitcnt lgkmcnt(0)
    """)
    a.stamp(3)
    a('s_barrier')
    a('s_setprio 0')
    loads(p, p + c[1]); p += c[1]
    a('''
    v_and_b32 v102, 3, v1
    v_lshlrev_b32 v102, 2, v102
    v_add_u32 v102, 0x%x, v102        ; YF read addr
    s_lshl_b32 s10, s3, 2
    s_add_u32 s10, s10, 0x%x
    v_mov_b32 v103, s10               ; own HF addr
    s_barrier                         ; B1
    ''' % (FL + 16, FL + 32))
    if p < 0: loads(p, 0); p = 0
    a('v_add_u32 v99, 1, v5')
    if 'D' in a.vm: a.vwait('D')
    a('ds_write_b32 v103, v99')
    K = o.get('hk', 18)
    loads(p, K); p = max(p, K)
    def yspin(i):
        a('''
        s_mov_b32 s11, 0
        L_Ay%d:
        ds_read_b32 v99, v102
        s_add_u32 s11, s11, 1
        s_waitcnt lgkmcnt(0)
        v_sub_u32 v99, v99, v5
        v_subrev_u32 v99, %d, v99
        v_cmp_lt_u32 vcc, 7, v99
        s_cmp_gt_u32 s11, LSPIN
        s_cbranch_scc1 L_Ay%dx
        s_cbranch_vccz L_Ay%dx
        s_sleep YSL
        s_branch L_Ay%d
        L_Ay%dx:
        ''' % (i, i, i, i, i, i))
    for n in range(32):
        if n % 16 == 0:
            if n == 16: loads(p, 32); p = 32
            yspin(n // 16)
        cc, seg, aa = ops[n]
        if prog(n): a('v_add_u32 v99, %d, v5' % prog(n))
        if ('L%d' % n) in a.vm: a.vwait('L%d' % n)
        a('ds_write_b128 v%d, %s offset:%d' % (100 + cc, R(128 + 4 * n, 4), aa * 4096 + seg * 1024))
        if prog(n): a('ds_write_b32 v103, v99')
        if o.get('wpace', 0) and n < 24: a('s_sleep %d' % o['wpace'])
        if p < 32: loads(p, p + 1); p += 1
    if a.stamps:
        a('s_mul_i32 s78, s8, 100')
        a('s_add_u32 s78, s78, s70')
        a('s_addc_u32 s79, s71, 0')
        a('s_lshl_b32 s2, s2, 2')
        a('s_add_u32 s2, s2, s3')
        a('s_add_u32 s2, s2, 256')
        a('s_barrier')
        a('s_sleep 127')
        a.write_stamps(vb=104)
    a('s_endpgm')

def layernorm(a):
    for i in range(4):
        a('v_lshlrev_b32 v%d, 16, v%d' % (72 + 2 * i, 68 + i))
        a('v_and_b32 v%d, 0xffff0000, v%d' % (73 + 2 * i, 68 + i))
    a('v_readfirstlane_b32 s60, v72')
    for i in range(8): a('v_subrev_f32 v%d, s60, v%d' % (84 + i, 72 + i))
    a("""
    v_add_f32 v80, v84, v85
    v_mul_f32 v82, v84, v84
    v_add_f32 v81, v86, v87
    v_mul_f32 v83, v85, v85
    v_add_f32 v92, v88, v89
    v_fmac_f32 v82, v86, v86
    v_add_f32 v93, v90, v91
    v_fmac_f32 v83, v87, v87
    v_add_f32 v80, v80, v81
    v_fmac_f32 v82, v88, v88
    v_add_f32 v92, v92, v93
    v_fmac_f32 v83, v89, v89
    v_add_f32 v80, v80, v92
    v_fmac_f32 v82, v90, v90
    v_fmac_f32 v83, v91, v91
    v_add_f32 v82, v82, v83
    """)
    for m in ('quad_perm:[1,0,3,2]', 'quad_perm:[2,3,0,1]', 'row_half_mirror', 'row_mirror'):
        a('v_add_f32_dpp v80, v80, v80 %s row_mask:0xf bank_mask:0xf' % m)
        a('v_add_f32_dpp v82, v82, v82 %s row_mask:0xf bank_mask:0xf' % m)
    for w in (16, 32):
        a('v_mov_b32 v81, v80')
        a('v_mov_b32 v83, v82')
        a('v_permlane%d_swap_b32 v80, v81' % w)
        a('v_permlane%d_swap_b32 v82, v83' % w)
        a('v_add_f32 v80, v80, v81')
        a('v_add_f32 v82, v82, v83')
    a('v_mul_f32 v80, 0x%x, v80' % f2u(1 / 512))
    a('v_mul_f32 v82, 0x%x, v82' % f2u(1 / 512))
    a('v_fma_f32 v82, -v80, v80, v82')
    a('v_add_f32 v80, s60, v80')
    a('v_max_f32 v82, 0, v82')
    a('v_cvt_pk_bf16_f32 v80, v80, v82')
    a('v_and_b32 v82, 0xffff0000, v80')
    a('v_lshlrev_b32 v80, 16, v80')
    a('v_add_f32 v82, 0x%x, v82' % f2u(1e-5))
    for i in range(4):
        a('v_sub_f32 v%d, v%d, v80' % (72 + i, 72 + i))
    a.rnd_bf16(82)
    a('v_sqrt_f32 v82, v82')
    for i in range(4, 8):
        a('v_sub_f32 v%d, v%d, v80' % (72 + i, 72 + i))
    a.rnd_bf16(82)
    a('v_rcp_f32 v82, v82')
    for i in range(4):
        a('v_cvt_pk_bf16_f32 v%d, v%d, v%d' % (68 + i, 72 + 2 * i, 73 + 2 * i))
    for i in range(4):
        a('v_lshlrev_b32 v%d, 16, v%d' % (72 + 2 * i, 68 + i))
        a('v_and_b32 v%d, 0xffff0000, v%d' % (73 + 2 * i, 68 + i))
    for i in range(8):
        a('v_mul_f32 v%d, v%d, v82' % (72 + i, 72 + i))
    for i in range(4):
        a('v_cvt_pk_bf16_f32 v%d, v%d, v%d' % (68 + i, 72 + 2 * i, 73 + 2 * i))

def role_W(a, o):
    WOPOL = o.get('wopol', 'nt'); W1POL = o.get('w1pol', 'nt')
    a.label('L_W')
    a.vm = []; a.lg = []
    a('''
    s_and_b32 s8, s2, 7               ; x
    s_lshr_b32 s9, s2, 3
    s_sub_u32 s9, s9, 16              ; k
    s_lshr_b32 s10, s9, 2
    s_lshl_b32 s11, s8, 2
    s_add_u32 s10, s10, s11           ; h
    s_and_b32 s11, s9, 3              ; j
    s_lshl_b32 s13, s10, 8            ; h*256
    v_lshlrev_b32 v9, 4, v1           ; lane*16
    v_lshrrev_b32 v6, 4, v1           ; g / r
    v_and_b32 v7, 15, v1              ; pc / i
    v_lshlrev_b32 v8, 1, v6
    v_xor_b32 v8, v8, v7
    v_lshlrev_b32 v8, 4, v8           ; (pc ^ (r<<1))*16
    v_lshl_add_u32 v2, v6, 13, v8
    v_xor_b32 v3, 0x80, v2            ; voffB
    s_lshl_b32 s14, s11, 3
    s_add_u32 s14, s14, s3            ; 8j + w
    s_lshl_b32 s15, s14, 17
    s_add_u32 s15, s15, s13           ; (128j + 16w)*8192 + h*256
    s_lshl_b32 s14, s3, 12            ; LDS w*4096
    v_lshlrev_b32 v10, 2, v6
    v_xor_b32 v10, v10, v7
    v_lshlrev_b32 v10, 4, v10
    v_lshl_add_u32 v10, v6, 13, v10
    v_xor_b32 v11, 32, v10
    s_mov_b32 s42, 0x400000
    s_mov_b32 s43, 0x20000
    s_mov_b32 s50, 0x400000
    s_mov_b32 s51, 0x20000
    s_mov_b32 m0, s14
    s_waitcnt lgkmcnt(0)
    s_mov_b32 s40, s20
    s_mov_b32 s41, s21
    s_cmp_lg_u32 s3, 0
    s_cbranch_scc1 L_Wx
    global_load_dwordx4 v[68:71], v9, s[16:17]
    L_Wx:
    ''')
    for i in range(4):
        if i:
            a('s_add_u32 m0, s14, %d' % (i * 1024))
            a('s_add_u32 s60, s15, %d' % (i * 32768))
        a.v('buffer_load_dwordx4 v%d, s[40:43], %s offen nt lds' % (2 if i < 2 else 3, 's60' if i else 's15'), 'WQ')
    a('s_mov_b32 s48, s22')
    a('s_mov_b32 s49, s23')
    if o.get('ukbar', 1): a('s_barrier')
    for i in range(4):
        a('s_add_u32 m0, s14, %d' % (UKL + i * 1024))
        a('s_add_u32 s60, s15, %d' % (i * 32768))
        a.v('buffer_load_dwordx4 v%d, s[48:51], s60 offen nt lds' % (10 if i < 2 else 11), 'UK')
    common2(a)
    if o.get('diag', 0) == 2: a.stamp(5)
    a('v_mov_b32 v14, 0')
    if not o.get('lnfirst', 1):
        a('''
        s_lshl_b32 s12, s9, 3
        s_add_u32 s12, s12, s8            ; fb = 8k + x
        s_cmp_lt_u32 s9, 11
        s_cselect_b32 s12, s12, 1000
        v_mov_b32 v14, 0
        v_lshrrev_b32 v12, 2, v7          ; r' / a
        v_and_b32 v13, 1, v6
        v_lshl_add_u32 v13, v13, 2, v12
        v_lshlrev_b32 v13, 1, v13
        v_bfe_u32 v16, v1, 1, 1
        s_lshl_b32 s60, s3, 1
        v_add_u32 v16, s60, v16
        v_xor_b32 v16, v16, v13
        v_lshlrev_b32 v16, 4, v16
        v_lshl_add_u32 v13, v6, 3, v12
        v_lshl_add_u32 v16, v13, 8, v16
        v_and_b32 v13, 1, v1
        v_lshl_add_u32 v4, v13, 3, v16    ; tr-read base
        v_lshlrev_b32 v5, 4, v6
        v_add_u32 v5, 0x%x, v5            ; SM + g*16
        v_and_b32 v13, 3, v7
        v_and_b32 v16, 2, v12
        v_xor_b32 v16, v16, v6
        v_lshl_add_u32 v16, v13, 2, v16
        v_lshlrev_b32 v16, 4, v16
        v_lshl_add_u32 v16, v7, 8, v16
        s_add_u32 s60, s14, 0x%x
        v_add_u32 v64, s60, v16           ; uk frag read addrs
        v_xor_b32 v65, 64, v64
        v_xor_b32 v66, 0x80, v64
        v_xor_b32 v67, 0xc0, v64
        ''' % (SM, UKL))
    if o.get('qpw', 0):
        a('''
        s_lshl_b32 s60, s10, 12
        s_lshl_b32 s61, s3, 7
        s_add_u32 s60, s60, s61
        s_add_u32 s60, s60, 0x%x
        v_lshlrev_b32 v17, 10, v6
        ''' % QP)
        a.v('buffer_load_dword v254, v17, s[44:47], s60 offen sc1', 'PT')
    a('''
    s_cmp_lg_u32 s3, 0
    s_cbranch_scc1 L_Wln
    s_waitcnt vmcnt(%d)
    s_load_dword s4, s[36:37], 0
    ''' % len(a.vm))
    if o.get('diag', 0) == 2: a.stamp(6)
    layernorm(a)
    if o.get('diag', 0) == 2: a.stamp(7)
    a('''
    v_add_u32 v72, 0x%x, v9
    ds_write_b128 v72, v[68:71]
    s_waitcnt lgkmcnt(0)
    s_mov_b32 s60, 0
    s_branch L_Wn_c
    L_Wn:
    global_load_dword v15, v14, s[36:37] sc1
    s_add_u32 s60, s60, 1
    s_waitcnt vmcnt(0)
    v_readfirstlane_b32 s4, v15
    s_cmp_gt_u32 s60, SPIN_N
    s_cbranch_scc1 L_Wn_x
    L_Wn_c:
    s_cmp_eq_u32 s4, 0
    s_cbranch_scc1 L_Wn
    L_Wn_x:
    v_mov_b32 v72, 0x%x
    v_mov_b32 v15, s4
    ds_write_b32 v72, v15
    s_waitcnt lgkmcnt(0)
    L_Wln:
    ''' % (XN, NB))
    if o.get('lnfirst', 1):
        a('''
        s_lshl_b32 s12, s9, 3
        s_add_u32 s12, s12, s8            ; fb = 8k + x
        s_cmp_lt_u32 s9, 11
        s_cselect_b32 s12, s12, 1000
        v_mov_b32 v14, 0
        v_lshrrev_b32 v12, 2, v7          ; r' / a
        v_and_b32 v13, 1, v6
        v_lshl_add_u32 v13, v13, 2, v12
        v_lshlrev_b32 v13, 1, v13
        v_bfe_u32 v16, v1, 1, 1
        s_lshl_b32 s60, s3, 1
        v_add_u32 v16, s60, v16
        v_xor_b32 v16, v16, v13
        v_lshlrev_b32 v16, 4, v16
        v_lshl_add_u32 v13, v6, 3, v12
        v_lshl_add_u32 v16, v13, 8, v16
        v_and_b32 v13, 1, v1
        v_lshl_add_u32 v4, v13, 3, v16    ; tr-read base
        v_lshlrev_b32 v5, 4, v6
        v_add_u32 v5, 0x%x, v5            ; SM + g*16
        v_and_b32 v13, 3, v7
        v_and_b32 v16, 2, v12
        v_xor_b32 v16, v16, v6
        v_lshl_add_u32 v16, v13, 2, v16
        v_lshlrev_b32 v16, 4, v16
        v_lshl_add_u32 v16, v7, 8, v16
        s_add_u32 s60, s14, 0x%x
        v_add_u32 v64, s60, v16           ; uk frag read addrs
        v_xor_b32 v65, 64, v64
        v_xor_b32 v66, 0x80, v64
        v_xor_b32 v67, 0xc0, v64
        ''' % (SM, UKL))
    if o.get('diag', 0) == 2: a.stamp(8)
    a.vwait('WQ')
    if o.get('diag', 0) == 2: a.stamp(9)
    a('s_barrier')
    a.stamp(1)
    if o.get('diag', 0) == 2: a.stamps_hold = True
    a('s_lshl_b32 s60, s11, 8')
    a('v_add_u32 v13, s60, v5')
    for ks in range(4):
        a.d('ds_read_b128 %s, v13 offset:%d' % (R(52 + 4 * ks - 16 + 16, 4), ks * 64) if False else 'ds_read_b128 %s, v13 offset:%d' % (R(16 + 4 * ks, 4), ks * 64), 'a%d' % ks)
        for rdi in range(2):
            a.d('ds_read_b64_tr_b16 %s, v4 offset:%d' % (R(36 + 4 * ks + 2 * rdi, 2), ks * 8192 + rdi * 1024), 'a%d' % ks)
    a('v_mov_b32 v12, 0x%x' % NB)
    a.d('ds_read_b32 v53, v12', 'n')
    a('''
    s_lshl_b32 s60, s10, 12
    s_lshl_b32 s61, s3, 7
    s_add_u32 s60, s60, s61
    s_add_u32 s60, s60, 0x%x          ; QP + h*4096 + w*128
    s_lshl_b32 s61, s11, 10
    s_add_u32 s61, s61, s60           ; + j*1024
    v_lshlrev_b32 v12, 3, v7          ; d*8
    v_lshl_add_u32 v13, v6, 10, v12   ; jj*1024 + d*8
    v_cmp_ne_u32 s[64:65], s11, v6    ; lanes of the other three
    ''' % QP)
    for ks in range(4):
        a.dwait('a%d' % ks)
        a('v_mfma_f32_16x16x32_bf16 v[32:35], %s, %s, %s' % (R(16 + 4 * ks, 4), R(36 + 4 * ks, 4), 'v[32:35]' if ks else '0'))
    a.dall()
    a('''
    s_lshl_b32 s62, s3, 5
    s_add_u32 s62, s62, 0x%x
    v_lshl_add_u32 v15, v7, 1, s62    ; QB + (16w + d)*2
    v_mov_b32 v55, v53
    v_mov_b32 v52, v32
    v_mov_b32 v54, v32
    s_mov_b64 exec, 0xffff
    buffer_store_dwordx2 v[52:53], v12, s[44:47], s61 offen sc1
    ''' % QB)
    def eflag():
        a('''
        s_or_b32 s5, s3, s11
        s_cmp_lg_u32 s5, 0
        s_cbranch_scc1 L_Wef
        QR0 s_lshl_b32 s5, s10, 7
        QR0 s_add_u32 s5, s5, 0x10000
        QR0 s_mov_b64 exec, 0xffff
        QR0 v_mov_b32 v52, v53
        QR0 buffer_store_dwordx2 v[52:53], v12, s[44:47], s5 offen sc1
        QR1 s_lshl_b32 s5, s10, 10
        QR1 s_add_u32 s5, s5, 0x10000
        QR1 s_mov_b64 exec, -1
        QR1 v_mov_b32 v60, v53
        QR1 v_mov_b32 v61, v53
        QR1 v_mov_b32 v62, v53
        QR1 v_mov_b32 v63, v53
        QR1 buffer_store_dwordx4 v[60:63], v9, s[44:47], s5 offen sc1
        L_Wef:
        ''')
    a('''
    s_mov_b64 exec, -1
    s_lshl_b32 s68, s10, 2
    s_add_u32 s68, s68, s11           ; mi = 4h + j
    s_lshl_b32 s69, s68, 15
    s_lshl_b32 s61, s3, 12
    s_add_u32 s69, s69, s61
    s_lshr_b32 s61, s10, 4
    s_lshl_b32 s61, s61, 12
    s_add_u32 s69, s69, s61
    s_add_u32 s69, s69, 0x%x          ; s69 = inbox base of this wave
    s_lshl_b32 s58, s68, 11
    s_lshl_b32 s61, s3, 8
    s_add_u32 s58, s58, s61
    s_add_u32 s58, s58, 0x%x          ; s58 = SP row of this wave
    s_lshl_b32 s66, s12, 11
    s_add_u32 s66, s66, s61
    s_add_u32 s66, s66, 0x%x          ; s66 = FP row of this wave
    s_cmp_lt_u32 s12, 86
    s_cselect_b32 s66, s66, s58
    s_lshl_b32 s67, s3, 6
    s_add_u32 s67, s67, s11
    s_lshl_b32 s67, s67, 9
    s_lshl_b32 s61, s10, 4
    s_add_u32 s67, s67, s61
    s_add_u32 s67, s67, 0x%x          ; s67 = MLC + (64w + j)*512 + h*16
    v_lshlrev_b32 v11, 2, v1
    v_mov_b32 v56, -1
    ''' % (OP, SP, FP, ML))
    a.v('buffer_store_dword v56, v11, s[44:47], s58 offen sc1', 'PT')
    a.v('buffer_store_dword v56, v11, s[44:47], s66 offen sc1', 'PT')
    EF = o.get('ef', 1)
    if EF == 0: eflag()
    if o.get('qpack', 1): a('s_waitcnt vmcnt(0)')
    if EF == 3: eflag()
    a.stamp(2)
    a('''
    s_mov_b32 s62, 0
    L_Wq:
    s_mov_b64 exec, s[64:65]
    buffer_load_dwordx2 v[54:55], v13, s[44:47], s60 offen sc1
    s_add_u32 s62, s62, 1
    s_waitcnt vmcnt(0)
    v_cmp_ne_u32 s[64:65], v55, v53
    s_cmp_gt_u32 s62, SPIN_N
    s_cbranch_scc1 L_Wq_x
    s_cmp_lg_u64 s[64:65], 0
    s_cbranch_scc1 L_Wq
    L_Wq_x:
    ''')
    if EF == 1: eflag()
    a('s_mov_b64 exec, -1')
    a.vm = []
    for ks in range(4):
        a.d('ds_read_b128 %s, v%d' % (R(16 + 4 * ks, 4), 64 + ks), 'uk')
    a.swap_red('v_add_f32', 54, 55, 16)
    a.swap_red('v_add_f32', 54, 55, 32)
    a('''
    v_cvt_pk_bf16_f32 v54, v54, v54
    ds_write_b16 v15, v54
    ''')
    a.dall()
    a('s_barrier')
    a.stamp(3)
    for ks in range(4):
        a.d('ds_read_b128 %s, v5 offset:%d' % (R(36 + 4 * ks, 4), QB - SM + ks * 64), 'a%d' % ks)
    a('''
    s_lshl_b32 s14, s3, 5
    s_add_u32 s14, s14, 0x%x
    v_lshl_add_u32 v13, v6, 3, s14    ; QO + w*32 + q*8
    v_lshlrev_b32 v12, 4, v7
    v_add_u32 v15, 0x%x, v12          ; QO + (l%%16)*16
    s_lshl_b32 s14, s68, 8
    s_lshl_b32 s15, s68, QCSH
    s_add_u32 s15, s15, 0x%x
    v_add_u32 v56, s14, v12
    v_add_u32 v57, s15, v12
    v_cndmask_b32 v56, v56, v57, s[52:53]
    ''' % (QO, QO, QC))
    for ks in range(4):
        a.dwait('a%d' % ks)
        a('v_mfma_f32_16x16x32_bf16 v[32:35], %s, %s, %s' % (R(16 + 4 * ks, 4), R(36 + 4 * ks, 4), 'v[32:35]' if ks else '0'))
    sc = f2u(128 ** -0.5 * math.log2(math.e))
    a('''
    v_mul_f32 v32, 0x%x, v32
    v_mul_f32 v33, 0x%x, v33
    v_mul_f32 v34, 0x%x, v34
    v_mul_f32 v35, 0x%x, v35
    v_cvt_pk_bf16_f32 v32, v32, v33
    v_cvt_pk_bf16_f32 v33, v34, v35
    ds_write_b64 v13, v[32:33]
    s_waitcnt lgkmcnt(0)
    s_barrier
    s_cmp_lg_u32 s3, 0
    s_cbranch_scc1 L_Wpub
    ds_read_b128 v[32:35], v15
    s_waitcnt lgkmcnt(0)
    v_add3_u32 v36, v32, v33, v34
    v_add_u32 v36, v36, v35
    ''' % (sc, sc, sc, sc))
    a.wave_red('v_add_u32', 36, 37, rows_only=True)
    a('''
    v_sub_u32 v36, v53, v36
    v_cndmask_b32 v32, v32, v36, s[52:53]
    v_cndmask_b32 v33, v33, v53, s[52:53]
    s_mov_b64 exec, QCEX
    buffer_store_dwordx4 v[32:35], v56, s[44:47], 0 offen sc1
    s_mov_b64 exec, -1
    L_Wpub:
    s_barrier
    ''')
    a.stamp(4)
    WW = o.get('wwin', 3)
    W1L, W2L, WOL = 0x8000, 0xC000, 0x10000
    a.srd(40, WUV, 0x400000)
    a.srd(48, WO, 0x400000)
    a("""
    s_mov_b32 s16, s30
    s_mov_b32 s17, s31
    s_mov_b32 s18, %d
    s_mov_b32 s19, 0x20000
    s_mov_b32 s20, s32
    s_mov_b32 s21, s33
    s_mov_b32 s22, %d
    s_mov_b32 s23, 0x20000
    v_readfirstlane_b32 s4, v53
    v_lshrrev_b32 v12, 3, v1          ; r8
    v_and_b32 v13, 7, v1              ; c8
    v_lshlrev_b32 v70, 4, v13
    v_lshl_add_u32 v70, v12, 10, v70  ; r8*1024 + c8*16   (w2 voff)
    v_bfe_u32 v15, v1, 4, 1
    v_lshlrev_b32 v15, 5, v15
    v_xor_b32 v68, v70, v15           ; voffC
    v_xor_b32 v69, 64, v68            ; voffD
    v_mul_u32_u24 v10, 2752, v6
    s_and_b32 s60, s3, 1
    s_lshl_b32 s60, s60, 7
    v_xor_b32 v13, s60, v8
    v_add_u32 v10, v10, v13           ; w1 voff
    s_lshl_b32 s24, s8, 3
    s_add_u32 s24, s24, s3
    s_mul_i32 s24, s24, %d
    s_lshl_b32 s60, s9, 8
    s_add_u32 s24, s24, s60           ; w1 source
    s_lshl_b32 s25, s12, 14
    s_lshl_b32 s60, s3, 7
    s_add_u32 s25, s25, s60           ; w2 source (out of range when not an FFN workgroup)
    s_cmp_lt_u32 s12, 88
    s_cselect_b32 s24, s24, 0x1000000
    s_lshl_b32 s26, s3, 11            ; LDS w*2048
    v_lshl_add_u32 v2, v6, 17, v8
    v_xor_b32 v3, 0x80, v2
    s_lshl_b32 s27, s11, 6
    s_add_u32 s27, s27, s3
    s_lshl_b32 s27, s27, 14
    s_add_u32 s27, s27, s13           ; uv source
    s_lshl_b32 s28, s3, 12            ; LDS w*4096
    s_lshl_b32 s14, s10, 17
    s_lshl_b32 s15, s3, 7
    s_add_u32 s14, s14, s15           ; wo source
    s_lshl_b32 s15, s3, 13
    s_add_u32 s15, s15, 0x%x          ; wo LDS
    v_lshrrev_b32 v71, 2, v7
    v_lshl_add_u32 v71, v6, 3, v71
    v_lshlrev_b32 v71, 7, v71
    v_and_b32 v13, 3, v1
    v_lshl_add_u32 v71, v13, 3, v71
    v_bfe_u32 v13, v1, 3, 2
    v_lshl_add_u32 v71, v13, 5, v71
    v_add_u32 v71, s15, v71
    """ % (512 * 2752, 1376 * 1024, 8 * 2752, WOL))
    a.vm = []
    WOF = 72
    cnt = [0]; curw = [0]
    def op(kind, n):
        a.vwait_n((curw[0] or (WW if cnt[0] < o.get('wsw', 14) else o.get('wwinb', 4))) - 1)
        cnt[0] += 1
        if kind == 'w1':
            a('s_add_u32 m0, s26, 0x%x' % (W1L + n * 1024)); a('s_add_u32 s60, s24, %d' % (n * 4 * 2752))
            a.v('buffer_load_dwordx4 v10, s[16:19], s60 offen nt lds', 'F')
        elif kind == 'w2':
            a('s_add_u32 m0, s26, 0x%x' % (W2L + n * 1024)); a('s_add_u32 s60, s25, %d' % (n * 8192))
            a.v('buffer_load_dwordx4 v70, s[20:23], s60 offen nt lds', 'F')
        elif kind == 'uv':
            a('s_add_u32 m0, s28, %d' % (n * 1024)); a('s_add_u32 s60, s27, %d' % ((64 * (n & 1) + (n >> 1)) * 8192))
            a.v('buffer_load_dwordx4 v%d, s[40:43], s60 offen nt lds' % (2 if n < 2 else 3), 'U')
        else:
            a('s_add_u32 m0, s15, %d' % ((n % 8) * 1024)); a('s_add_u32 s60, s14, %d' % (n * 8192))
            a.v('buffer_load_dwordx4 v%d, s[48:51], s60 offen %s lds' % (68 if n % 2 == 0 else 69, WOPOL), 'O%d' % (n // 4))
    def wo_read(ks):
        if ('O%d' % ks) in a.vm: a.vwait('O%d' % ks)
        for mt in range(4):
            a('v_xor_b32 v13, 0x%x, v71' % (mt * 32))
            for rdi in range(2):
                a.d('ds_read_b64_tr_b16 %s, v13 offset:%d' % (R(WOF + (mt * 4 + ks) * 4 + 2 * rdi, 2), (ks % 2) * 4096 + rdi * 512), 'wo')
        a.dall()
    def ffn1():
        if 'F' in a.vm: a.vwait('F')
        a('s_barrier')
        a.stamp(10)
        a("""
        s_cmp_ge_u32 s12, 88
        s_cbranch_scc1 L_Wnf2
        s_lshl_b32 s60, s8, 7
        v_add_u32 v13, s60, v5            ; xn + 64x*2 + g*16
        v_add_u32 v15, 0x8000, v4
        """)
        for ks in range(2):
            a('ds_read_b128 %s, v13 offset:%d' % (R(52 + 4 * ks, 4), ks * 64))
            for rdi in range(2):
                a('ds_read_b64_tr_b16 %s, v15 offset:%d' % (R(36 + 4 * ks + 2 * rdi, 2), ks * 8192 + rdi * 1024))
        a("""
        v_lshrrev_b32 v12, 2, v1
        v_and_b32 v13, 3, v1
        v_lshlrev_b32 v13, 3, v13
        v_lshl_add_u32 v12, v12, 7, v13
        s_lshl_b32 s60, s3, 11
        s_add_u32 s60, s60, 0x%x
        v_add_u32 v12, s60, v12
        s_waitcnt lgkmcnt(0)
        v_mfma_f32_16x16x32_bf16 v[32:35], v[52:55], v[36:39], 0
        v_mfma_f32_16x16x32_bf16 v[32:35], v[56:59], v[40:43], v[32:35]
        """ % W2L)
        for mt in range(4):
            a('ds_read_b64_tr_b16 %s, v12 offset:%d' % (R(44 + 2 * mt, 2), mt * 32))
        a("""
        s_lshl_b32 s60, s12, 10
        s_lshl_b32 s61, s3, 7
        s_add_u32 s60, s60, s61
        s_add_u32 s60, s60, 0x%x          ; HP + (8k+x)*1024 + w*128
        v_lshlrev_b32 v12, 3, v7
        v_mov_b32 v33, s4
        s_mov_b64 exec, 0xffff
        buffer_store_dwordx2 v[32:33], v12, s[44:47], s60 offen sc1
        s_mov_b64 exec, -1
        L_Wnf2:
        s_waitcnt lgkmcnt(0)
        """ % HP)
        a.lg = []
    def ffn2():
        a('''
        s_cmp_ge_u32 s12, 86
        s_cbranch_scc1 L_Wnf3
        s_lshl_b32 s60, s9, 13
        s_lshl_b32 s61, s8, 7
        s_add_u32 s60, s60, s61
        s_add_u32 s60, s60, 0x%x          ; HP + k*8192 + x*128
        v_and_b32 v12, 7, v1
        v_lshlrev_b32 v12, 10, v12
        v_lshl_add_u32 v12, v6, 5, v12    ; producer*1024 + g*32
        s_mov_b32 s61, 0
        L_Wh:
        buffer_load_dwordx4 v[52:55], v12, s[44:47], s60 offen sc1
        buffer_load_dwordx4 v[56:59], v12, s[44:47], s60 offen offset:16 sc1
        s_add_u32 s61, s61, 1
        s_waitcnt vmcnt(0)
        v_xor_b32 v13, v53, v55
        v_xor_b32 v14, v57, v59
        v_xor_b32 v15, s4, v53
        v_or3_b32 v13, v13, v14, v15
        v_xor_b32 v14, v53, v57
        v_or_b32 v13, v13, v14
        v_cmp_ne_u32 vcc, 0, v13
        s_cmp_gt_u32 s61, SPIN_N
        s_cbranch_scc1 L_Wh_x
        s_cbranch_vccnz L_Wh
        L_Wh_x:
        ''' % HP)
        for m in ('quad_perm:[1,0,3,2]', 'quad_perm:[2,3,0,1]', 'row_half_mirror'):
            for r in range(4):
                a('v_add_f32_dpp v%d, v%d, v%d %s row_mask:0xf bank_mask:0xf' % (52 + 2 * r, 52 + 2 * r, 52 + 2 * r, m))
        for r in range(4):
            a.rnd_bf16(52 + 2 * r)
            a.silu(52 + 2 * r, 53)
        a('v_cvt_pk_bf16_f32 v32, v52, v54')
        a('v_cvt_pk_bf16_f32 v33, v56, v58')
        for mt in range(4):
            a('v_mfma_f32_16x16x16_bf16 %s, v[32:33], %s, 0' % (R(52 + 4 * mt, 4), R(44 + 2 * mt, 2)))
        a('''
        v_cndmask_b32 v52, v52, v56, s[52:53]
        v_cndmask_b32 v52, v52, v60, s[54:55]
        v_cndmask_b32 v52, v52, v64, s[56:57]
        buffer_store_dword v52, v11, s[44:47], s66 offen sc1
        L_Wnf3:
        ''')
        a('s_waitcnt vmcnt(0)')
        a.vm = []
    seqs = {
        0: 'a0 o0 a1 o1 b0 o2 b1 o3 o4 o5 u0 F o6 o7 R0 o8 o9 u1 o10 o11 R1 o12 o13 u2 o14 o15 u3 R2 G R3',
        1: 'a0 a1 b0 b1 o0 o1 o2 o3 F o4 o5 o6 o7 R0 o8 o9 u0 o10 o11 u1 R1 o12 o13 u2 o14 o15 u3 R2 G R3',
        7: 'w3 o0 o1 o2 o3 o4 o5 a0 w8 a1 b0 b1 u0 u1 u2 u3 w3 o6 o7 F R0 o8 o9 o10 o11 R1 o12 o13 o14 o15 R2 G R3',
        8: 'w3 o0 o1 o2 a0 w8 a1 b0 b1 u0 u1 u2 u3 w3 o3 o4 o5 F o6 o7 R0 o8 o9 o10 o11 R1 o12 o13 o14 o15 R2 G R3',
        9: 'w2 o0 o1 o2 o3 a0 w5 a1 b0 b1 u0 u1 u2 u3 w3 o4 o5 F o6 o7 R0 o8 o9 o10 o11 R1 o12 o13 o14 o15 R2 G R3',
        10: 'w3 o0 o1 o2 o3 o4 o5 o6 o7 R0 a0 w8 a1 b0 b1 u0 u1 u2 u3 w3 o8 o9 F o10 o11 R1 o12 o13 o14 o15 R2 G R3',
        11: 'w4 o0 o1 o2 o3 o4 o5 o6 o7 R0 o8 o9 o10 o11 R1 a0 a1 b0 b1 w3 o12 o13 o14 F o15 u0 u1 u2 u3 R2 G R3',
        3: 'o0 o1 o2 o3 a0 o4 a1 o5 b0 o6 b1 o7 R0 o8 o9 u0 F o10 o11 u1 R1 o12 o13 u2 o14 o15 u3 R2 R3',
        2: 'o0 o1 o2 o3 a0 o4 a1 o5 b0 o6 b1 o7 R0 o8 o9 u0 F o10 o11 u1 R1 o12 o13 u2 o14 o15 u3 R2 G R3',
    }
    for t in seqs[o.get('wseq', 2)].split():
        if t[0] == 'w': curw[0] = int(t[1:])
        elif t == 'F': ffn1()
        elif t == 'G': ffn2()
        elif t[0] == 'R': wo_read(int(t[1:]))
        else: op({'a': 'w1', 'b': 'w2', 'u': 'uv', 'o': 'wo'}[t[0]], int(t[1:]))
    for p in range(4):
        a('v_cmp_eq_u32 vcc, %d, v7' % (2 * p))
        a('v_mov_b32 v%d, 0' % (56 + p))
        a('v_mov_b32 v64, 0xffff')
        a('v_cndmask_b32 v%d, v%d, v64, vcc' % (56 + p, 56 + p))
        a('v_cmp_eq_u32 vcc, %d, v7' % (2 * p + 1))
        a('v_mov_b32 v64, 0xffff0000')
        a('v_cndmask_b32 v%d, v%d, v64, vcc' % (56 + p, 56 + p))
        for i in range(4): a('v_and_b32 v%d, 0x3f803f80, v%d' % (136 + 4 * i + p, 56 + p))
    a("""
    v_lshrrev_b32 v64, 1, v6
    v_mul_u32_u24 v64, 0x%x, v64
    v_lshl_add_u32 v64, v7, 4, v64
    v_and_b32 v65, 1, v6
    v_lshl_add_u32 v64, v65, 3, v64
    s_mul_i32 s60, s3, 288
    s_add_u32 s60, s60, 0x%x
    v_add_u32 v64, s60, v64
    v_and_b32 v65, 7, v1
    v_mul_u32_u24 v65, 288, v65
    v_add_u32 v65, v65, v5
    s_lshl_b32 s60, s3, 5
    s_add_u32 s60, s60, 0x%x
    v_lshl_add_u32 v66, v7, 1, s60
    """ % (8 * 288, ROWS, CB))
    a('s_waitcnt vmcnt(0)')
    a('s_barrier')
    a.stamp(5)
    for ks in range(4):
        for rdi in range(2):
            a.d('ds_read_b64_tr_b16 %s, v4 offset:%d' % (R(16 + 4 * ks + 2 * rdi, 2), ks * 8192 + rdi * 1024), 'uv')
    a.dall()
    a.stamp(6)
    a('''
    v_lshlrev_b32 v14, 11, v7
    s_lshl_b32 s60, s3, 3
    s_add_u32 s60, s60, 0x%x
    v_mov_b32 v70, s60                ; LW + w*8
    v_and_b32 v71, 7, v1
    v_lshlrev_b32 v71, 3, v71
    v_add_u32 v71, 0x%x, v71          ; LW + (l%%8)*8
    v_and_b32 v12, 3, v1
    v_cmp_eq_u32 s[64:65], v12, v6
    s_mov_b32 s60, 0
    s_mov_b64 s[62:63], -1
    L_Wg1:
    s_sleep ML_SLEEP
    s_mov_b64 exec, s[62:63]
    buffer_load_dwordx4 v[52:55], v14, s[44:47], s67 offen sc1
    s_add_u32 s60, s60, 1
    s_waitcnt vmcnt(0)
    v_cmp_ne_u32 s[62:63], s4, v55
    s_cmp_gt_u32 s60, SPIN_N
    s_cbranch_scc1 L_Wg
    s_cmp_lg_u64 s[62:63], 0
    s_cbranch_scc1 L_Wg1
    ''' % (LW, LW))
    a.label('L_Wg')
    a('s_mov_b64 exec, -1')
    for i in range(4):
        a('buffer_load_dwordx4 %s, v9, s[44:47], s69 offen offset:%d sc1' % (R(36 + 4 * i, 4), i * 1024))
    a("""
    s_add_u32 s60, s60, 1
    v_subrev_u32 v15, s4, v54
    v_add3_u32 v15, v15, v52, v53
    v_cndmask_b32 v15, 0, v15, s[64:65]
    v_cmp_neq_f32 vcc, 0, v52
    s_cbranch_vccnz L_Wgen
    """)
    a.label('L_Wj')
    a.wave_red('v_add_f32', 53, 12, rows_only=True)
    a('ds_write_b64 v70, v[52:53]')
    for i in range(4):
        a('s_waitcnt vmcnt(%d)' % (3 - i))
        a('v_mfma_f32_16x16x32_bf16 v[32:35], %s, %s, %s' % (R(136 + 4 * i, 4), R(36 + 4 * i, 4), 'v[32:35]' if i else '0'))
        a('v_add3_u32 v15, v15, v%d, v%d' % (36 + 4 * i, 37 + 4 * i))
        a('v_add3_u32 v15, v15, v%d, v%d' % (38 + 4 * i, 39 + 4 * i))
    a("""
    v_add_u32_dpp v15, v15, v15 quad_perm:[1,0,3,2] row_mask:0xf bank_mask:0xf
    v_add_u32_dpp v15, v15, v15 quad_perm:[2,3,0,1] row_mask:0xf bank_mask:0xf
    v_cvt_pk_bf16_f32 v32, v32, v33
    v_cvt_pk_bf16_f32 v33, v34, v35
    v_add_u32_dpp v15, v15, v15 row_half_mirror row_mask:0xf bank_mask:0xf
    ds_write_b64 v64, v[32:33]
    v_add_u32_dpp v15, v15, v15 row_mirror row_mask:0xf bank_mask:0xf
    v_cmp_ne_u32 vcc, 0, v15
    s_cbranch_vccnz L_Wretry
    L_Wg_x:
    """)
    a.stamp(7)
    if a.stamps:
        a('s_mul_i32 s92, s60, 100')
        a('s_add_u32 s92, s92, s70')
        a('s_addc_u32 s93, s71, 0')
    a("""
    s_waitcnt lgkmcnt(0)
    s_barrier
    """)
    a.stamp(8)
    for ks in range(4):
        a.d('ds_read_b128 %s, v65 offset:%d' % (R(36 + 4 * ks, 4), ROWS - SM + ks * 64), 'a%d' % ks)
    a.d('ds_read_b64 v[52:53], v71', 'lw')
    for ks in range(4):
        a.dwait('a%d' % ks)
        a('v_mfma_f32_16x16x32_bf16 v[32:35], %s, %s, %s' % (R(36 + 4 * ks, 4), R(16 + 4 * ks, 4), 'v[32:35]' if ks else '0'))
    a.dall()
    a('''
    v_cmp_neq_f32 vcc, 0, v52
    s_cbranch_vccnz L_Wgen2
    L_Wj2:
    v_add_f32_dpp v53, v53, v53 quad_perm:[1,0,3,2] row_mask:0xf bank_mask:0xf
    s_nop 1
    v_add_f32_dpp v53, v53, v53 quad_perm:[2,3,0,1] row_mask:0xf bank_mask:0xf
    s_nop 1
    v_add_f32_dpp v53, v53, v53 row_half_mirror row_mask:0xf bank_mask:0xf
    v_add_f32 v32, v32, v33
    v_add_f32 v34, v34, v35
    v_rcp_f32 v67, v53
    v_add_f32 v32, v32, v34
    ''')
    a.swap_red('v_add_f32', 32, 33, 16)
    a('''
    v_mul_f32 v32, v32, v67
    v_cvt_pk_bf16_f32 v32, v32, v32
    ds_write_b16 v66, v32
    s_waitcnt lgkmcnt(0)
    s_barrier
    ''')
    for ks in range(4):
        a.d('ds_read_b128 %s, v5 offset:%d' % (R(36 + 4 * ks, 4), CB - SM + ks * 64), 'a%d' % ks)
    for ks in range(4):
        a.dwait('a%d' % ks)
        for mt in range(4):
            a('v_mfma_f32_16x16x32_bf16 %s, %s, %s, %s' % (R(16 + 4 * mt, 4), R(36 + 4 * ks, 4), R(WOF + (mt * 4 + ks) * 4, 4), R(16 + 4 * mt, 4) if ks else '0'))
    a('''
    v_cndmask_b32 v16, v16, v20, s[52:53]
    v_cndmask_b32 v16, v16, v24, s[54:55]
    v_cndmask_b32 v16, v16, v28, s[56:57]
    buffer_store_dword v16, v11, s[44:47], s58 offen sc1
    ''')
    a.stamp(9)
    if a.stamps:
        a('s_cmp_lg_u32 s3, %d' % o.get('stw', 0))
        a('s_cbranch_scc1 L_end')
        a.write_stamps()
    a('s_endpgm')

def role_Wslow(a, o):
    a.aslow()
    a.label('L_Wgen')
    a('v_mov_b32 v12, v52')
    a.wave_red('v_max_f32', 12, 13, rows_only=True)
    a('''
    v_sub_f32 v54, v52, v12
    v_exp_f32 v54, v54
    v_mov_b32 v52, v12                ; Mw
    v_and_b32 v54, 0xffff0000, v54
    v_mul_f32 v53, v53, v54
    v_lshrrev_b32 v55, 16, v54
    v_or_b32 v54, v54, v55
    v_lshlrev_b32 v13, 2, v6
    ''')
    for i in range(4):
        a('ds_bpermute_b32 v12, v13, v54 offset:%d' % (16 * i))
        a('s_waitcnt lgkmcnt(0)')
        for p in range(4):
            a('v_and_b32 v%d, v12, v%d' % (136 + 4 * i + p, 56 + p))
    a('s_nop 1')
    a('s_branch L_Wj')
    a('''
    L_Wretry:
    s_cmp_gt_u32 s60, SPIN_N
    s_cbranch_scc1 L_Wg_x
    s_mov_b64 s[62:63], -1
    ''')
    for p in range(4):
        for i in range(4): a('v_and_b32 v%d, 0x3f803f80, v%d' % (136 + 4 * i + p, 56 + p))
    a('s_branch L_Wg1')
    a.label('L_Wgen2')
    a('''
    v_mov_b32 v12, v52
    v_max_f32_dpp v12, v12, v12 quad_perm:[1,0,3,2] row_mask:0xf bank_mask:0xf
    v_max_f32_dpp v12, v12, v12 quad_perm:[2,3,0,1] row_mask:0xf bank_mask:0xf
    v_max_f32_dpp v12, v12, v12 row_half_mirror row_mask:0xf bank_mask:0xf
    v_sub_f32 v54, v52, v12
    v_exp_f32 v54, v54
    v_and_b32 v13, 1, v6
    v_lshlrev_b32 v13, 4, v13
    v_mul_f32 v53, v53, v54
    ''')
    for r in range(4):
        a('ds_bpermute_b32 v12, v13, v54 offset:%d' % (4 * r))
        a('s_waitcnt lgkmcnt(0)')
        a('v_mul_f32 v%d, v%d, v12' % (32 + r, 32 + r))
    a('s_nop 1')
    a('s_branch L_Wj2')

def gen(stamps=False, o=None):
    o = o or {}
    a = G(stamps)
    prologue(a, o)
    role_W(a, o)
    role_A(a, o)
    role_final(a, o)
    role_As(a, o)
    role_Wslow(a, o)
    a.label('L_end')
    txt = a.text()
    for k, v in (('QT_SLEEP', o.get('qtsleep', 1)), ('QT_THR', o.get('qtthr', 2)), ('REP_MASK', o.get('repmask', '0x00010001' if o.get('ef', 1) == 2 else '0xff')), ('LSPIN', 200000), ('SPIN_N', SPIN),
                 ('ML_SLEEP', o.get('mlsleep', 1)), ('FIN_SLEEP', o.get('finsleep', 0)), ('UKGATE', o.get('ukgate', 3))):
        txt = txt.replace(k, str(v))
    txt = txt.replace('W1A ', '; ' if o.get('now1', 0) else '')
    txt = txt.replace('PTA ', '' if o.get('pre', 0) else '; ').replace('ML_OFF', '0x%x' % ML)
    qs = o.get('qcsh', 5)
    txt = txt.replace('QCSH+5', str(qs + 5)).replace('QCSH', str(qs)).replace('QCEX', {4: '0x1ffff', 5: '0x3ffff', 6: '0xfffff', 7: '0xffffff'}[qs]).replace('REP_N', str(o.get('repn', 1)))
    txt = txt.replace('NODEP ', '' if o.get('nodep', 0) else '; ')
    if o.get('nodep', 0): txt = txt.replace('s_or_b32 s14, vcc_lo, vcc_hi', 's_mov_b32 s14, 0')
    if o.get('now1', 0): txt = txt.replace('buffer_load_dwordx4 v14, s[40:43], s14 offen', '; ').replace('buffer_load_dwordx4 v14, s[40:43], s60 offen', '; ')
    txt = txt.replace('OUTPT ', '' if o.get('outpt', 0) else '; ')
    txt = txt.replace('REPBASE', 's11' if o.get('ef', 1) == 2 else 's68')
    txt = txt.replace('AMIX ', '' if o.get('amix', 0) else '; ')
    rm = o.get('remap', 0)
    if rm:
        sh = rm + 2
        code = '''    s_cbranch_scc1 L_end
    s_bfe_u32 s8, s2, 0x%x
    s_lshl_b32 s8, s8, 7
    s_and_b32 s9, s2, 0x%x
    s_lshr_b32 s2, s2, %d
    s_lshl_b32 s2, s2, %d
    s_or_b32 s2, s2, s9
    s_or_b32 s2, s2, s8
''' % ((1 << 16) | sh, (1 << sh) - 1, sh + 1, sh)
        txt = txt.replace('    s_cbranch_scc1 L_end\n', code, 1)
    txt = txt.replace('TLBPT ', '' if o.get('tlbpt', 1) else '; ')
    txt = txt.replace('YSL', str(o.get('ysl', 1)))
    qr = o.get('qr', 0)
    txt = txt.replace('QR0 ', '; ' if qr else '').replace('QR1 ', '' if qr else '; ')
    body = hz.fix(txt)
    return kernel_file([(KN + '_kernel', 256, 512, 163840)], [(KN + '_kernel', body, 256, 96, 256)])

if __name__ == '__main__':
    out = sys.argv[1]
    stamps = 'stamps' in sys.argv[2:]
    o = {}
    for kv in sys.argv[2:]:
        if '=' in kv:
            k, v = kv.split('=')
            o[k] = int(v) if v.lstrip('-').isdigit() else v.replace('_', ' ')
    open(out, 'w').write(gen(stamps, o))
```

```python
from gen14 import *

RLB = STG + 0x2000
RB = STG + 0x3100

def role_A(a, o):
    AW = o.get('awin', 8); AW0 = o.get('awin0', 1); AN0 = o.get('an0', 3); NPRE = o.get('npre', 20)
    a.label('L_A')
    a.stamps_hold = False
    a.vm = []; a.lg = []; a.slow = []
    common2(a)
    a.srd(40, CKV, 0x2000000)
    def voffs(x, y):
        a('''
        v_mbcnt_lo_u32_b32 v%d, -1, 0
        v_mbcnt_hi_u32_b32 v%d, -1, v%d
        v_lshrrev_b32 v%d, 4, v%d
        v_and_b32 v%d, 15, v%d
        v_lshlrev_b32 v%d, 4, v%d
        v_mul_u32_u24 v%d, 0x440, v%d
        v_xor_b32 v%d, v%d, v%d
        v_xor_b32 v%d, 32, v%d
        ''' % (x, x, x, y, x, x, x, x, x, y, y, x, x, y, y, x))
    voffs(3, 0)
    a("""
    s_and_b32 s59, s2, 7
    s_lshl_b32 s59, s59, 4
    s_lshr_b32 s8, s2, 3
    s_add_u32 s59, s59, s8            ; p
    s_lshl_b32 s8, s59, 18
    s_cmp_ge_u32 s3, 4
    s_cbranch_scc1 L_As
    s_lshl_b32 s9, s3, 14
    s_add_u32 s8, s8, s9
    s_lshl_b32 s10, s3, 8
    s_or_b32 s66, s8, s10
    s_lshl_b32 s10, s3, 10
    s_or_b32 s67, s9, s10
    AMIX s_and_b32 s10, s3, 1
    AMIX s_lshl_b32 s10, s10, 13
    AMIX s_or_b32 s66, s66, s10
    AMIX s_or_b32 s67, s67, s10
    s_mov_b32 s15, 0
    v_mov_b32 v10, 0
    v_mov_b32 v11, 0
    """)
    def dma_one(i, seg, aa, win=None):
        if win is not None: a.vwait_n(win - 1)
        a('s_xor_b32 m0, s67, 0x%x' % ((i % 2) * 65536 + aa * 4096 + seg * 1024))
        a('s_xor_b32 s10, s66, 0x%x' % (i * 65536 + aa * 4096 + seg * 256))
        a.v('buffer_load_dwordx4 v%d, s[40:43], s10 offen nt lds' % (3 if aa < 2 else 0), 'C%d' % i)
    a.label('L_Apass')
    a('''
    AMIX s_and_b32 s10, s3, 1
    AMIX s_lshl_b32 s10, s10, 5
    AMIX v_xor_b32 v3, s10, v3
    AMIX v_xor_b32 v0, s10, v0
    ''')
    a.vm = []
    first = [(i, seg, aa) for i in range(2) for aa in range(4) for seg in range(4)]
    for n in range(AW0): dma_one(*first[n])
    a("""
    v_mbcnt_lo_u32_b32 v1, -1, 0
    v_mbcnt_hi_u32_b32 v1, -1, v1
    v_lshrrev_b32 v16, 4, v1          ; g / q
    v_and_b32 v17, 15, v1             ; l%%16
    v_lshlrev_b32 v5, 4, v1
    v_add_u32 v5, 0x%x, v5            ; p_rd
    v_lshlrev_b32 v18, 4, v16
    v_xor_b32 v32, v5, v18            ; q frag read (even ks)
    v_xor_b32 v33, 64, v32            ; (odd ks)
    ; p_wr = PB + (w>>1)*2048 + (2(w&1) + (q>>1))*256 + h16*16 + (q&1)*8
    s_lshr_b32 s10, s3, 1
    s_lshl_b32 s10, s10, 11
    s_and_b32 s11, s3, 1
    s_lshl_b32 s11, s11, 9
    s_add_u32 s10, s10, s11
    s_add_u32 s10, s10, 0x%x
    v_lshrrev_b32 v18, 1, v16         ; q>>1
    v_lshlrev_b32 v19, 8, v18
    v_lshl_add_u32 v19, v17, 4, v19
    v_and_b32 v20, 1, v16             ; q&1
    v_lshl_add_u32 v19, v20, 3, v19
    v_add_u32 v4, s10, v19
    ; pv addr: (g>>1)*16384 + 2(g&1)*4096 + w*1024 + r*256 + ((c'/2) ^ ((r<<2) | 2(g&1)))*16 + (c'&1)*8
    v_lshrrev_b32 v21, 2, v17         ; r (pv) / a (qk)
    v_bfe_u32 v22, v1, 1, 1
    v_lshl_add_u32 v22, v20, 1, v22
    v_lshl_add_u32 v22, v21, 2, v22
    v_lshlrev_b32 v22, 4, v22
    v_lshl_add_u32 v22, v21, 8, v22
    v_lshl_add_u32 v22, v20, 13, v22
    v_lshl_add_u32 v22, v18, 14, v22
    v_and_b32 v23, 1, v1
    v_lshl_add_u32 v22, v23, 3, v22
    s_lshr_b32 s10, s3, 1
    s_lshl_b32 s10, s10, 10
    s_and_b32 s11, s3, 1
    s_lshl_b32 s11, s11, 7
    s_or_b32 s10, s10, s11
    v_xor_b32 v2, s10, v22
    ; qk addr: w*16384 + a*4096 + r*256 + ((r<<2) | (g ^ (a&2)))*16
    v_and_b32 v22, 3, v17
    v_and_b32 v23, 2, v21
    v_xor_b32 v23, v23, v16
    v_lshl_add_u32 v23, v22, 2, v23
    v_lshlrev_b32 v23, 4, v23
    v_lshl_add_u32 v23, v22, 8, v23
    v_lshl_add_u32 v23, v21, 12, v23
    v_add_u32 v12, s9, v23
    v_xor_b32 v13, 64, v12
    v_xor_b32 v14, 0x80, v12
    v_xor_b32 v15, 0xc0, v12
    v_mov_b32 v6, 0
    v_mov_b32 v7, 0
    v_mov_b32 v8, 0xff800000
    v_mov_b32 v9, 0xff800000
    """ % (PB, PB))
    SS = [[16, 20], [24, 28]]; P = [32, 36, 40, 44]; XQ = [48, 52, 56, 60]
    def O(hh, ct): return 64 + (hh * 8 + ct) * 4
    def QF(hh, ks): return 128 + (hh * 16 + ks) * 4
    def s_init(i, hh):
        for r in range(4): a('v_mov_b32 v%d, v%d' % (SS[i % 2][hh] + r, 10 + hh))
    s_init(0, 0); s_init(0, 1)
    for n in range(AW0, NPRE): dma_one(*first[n], AW0 if n < AN0 else AW)
    def hcheck(need):
        lab = a.newlabel('L_Ahc')
        a('s_cmp_ge_u32 s62, %d' % need)
        a('s_cbranch_scc0 %s' % lab)
        a.label(lab + 'b')
        a.slow.append('''
        %s:
        s_mov_b32 s11, 0
        %sl:
        ds_read_b32 v1, v3 offset:32
        s_add_u32 s11, s11, 1
        s_waitcnt lgkmcnt(0)
        v_readfirstlane_b32 s62, v1
        s_sub_u32 s62, s62, s57
        s_cmp_gt_u32 s62, 15
        s_cselect_b32 s62, 0, s62
        s_cmp_gt_u32 s11, LSPIN
        s_cbranch_scc1 %sb
        s_cmp_lt_u32 s62, %d
        s_cbranch_scc1 %sl
        s_branch %sb
        ''' % (lab, lab, lab, need, lab, lab))
    def pcheck(off=0, redo=''):
        lab = a.newlabel('L_Apc')
        a('v_subrev_u32 v1, s63, v1')
        a('v_cmp_lt_u32 vcc, 7, v1')
        a('s_cbranch_vccnz %s' % lab)
        a.label(lab + 'b')
        a.slow.append('''
        %s:
        s_mov_b32 s11, 0
        %sl:
        ds_read_b32 v1, v0 offset:%d
        s_add_u32 s11, s11, 1
        s_waitcnt lgkmcnt(0)
        v_subrev_u32 v1, s63, v1
        v_cmp_lt_u32 vcc, 7, v1
        s_cmp_gt_u32 s11, LSPIN
        s_cbranch_scc1 %sr
        s_cbranch_vccnz %sl
        %sr:
        %s
        s_branch %sb
        ''' % (lab, lab, off, lab, lab, lab, redo, lab))
    pairs = [SS[1], XQ[0:2], XQ[2:4]]
    KB = pairs[2] + pairs[0] + pairs[1] + P + pairs[2] + P
    def kbuf(g): return 64 + 4 * g if g < 16 else KB[g % 16]
    def rk(g):
        i, seg, k = g // 16, (g % 16) // 4, g % 4
        if ('C%d' % i) in a.vm: a.vwait('C%d' % i)
        if i >= 2 and g % 8 == 0: hcheck((i - 2) * 4 + seg + 2)
        if i and seg == 0: a('v_xor_b32 v%d, 0x10000, v%d' % (12 + k, 12 + k))
        a.d('ds_read_b128 %s, v%d offset:%d' % (R(kbuf(g), 4), 12 + k, seg * 1024), 'k%d' % g)
    def step(g, nxt=True):
        i = g // 16
        a.dwait('k%d' % g)
        for hh in range(2):
            s = SS[0][hh]
            a('v_mfma_f32_16x16x32_bf16 %s, %s, %s, %s' % (R(s, 4), R(kbuf(g), 4), R(QF(hh, g % 16), 4), R(s, 4)))
        if nxt: rk(g + 5)
    pvstate = [0]
    def pv_addr(i, ct):
        want = (i % 2) * 65536 + ((ct & 3) << 5) + ((ct >> 2) << 11)
        if want != pvstate[0]:
            a('v_xor_b32 v2, 0x%x, v2' % (want ^ pvstate[0]))
            pvstate[0] = want
    def rv(i, ct, ks2, dst):
        pv_addr(i, ct)
        for rdi in range(2):
            a.d('ds_read_b64_tr_b16 %s, v2 offset:%d' % (R(dst + 2 * rdi, 2), ks2 * 32768 + rdi * 4096), 'v%d_%d' % (ct, ks2))
    for g in range(16): rk(g)
    if 'C0' in a.vm: a.vwait('C0')
    if o.get('diaga', -1) < 0: a.stamp(10)
    a('s_barrier')
    if o.get('diaga', -1) < 0: a.stamp(11)
    a('v_mov_b32 v35, 0')
    a.v('global_load_dword v34, v35, s[36:37] sc1', 'N')
    a('s_cmp_eq_u32 s15, 0')
    a('s_cbranch_scc1 L_Anr')
    sv = list(a.vm)
    for n in range(NPRE, 32): dma_one(*first[n])
    a('s_waitcnt vmcnt(0)')
    a.vm = sv
    a.label('L_Anr')

    for ct in range(3):
        for ks2 in range(2): rv(0, ct, ks2, pairs[ct][ks2])
    a('''
    v_and_b32 v0, 3, v1
    v_lshlrev_b32 v0, 2, v0
    v_add_u32 v0, 0x%x, v0            ; flag read addr
    s_lshl_b32 s10, s3, 2
    s_add_u32 s10, s10, 0x%x
    v_mov_b32 v3, s10                 ; own flag addr
    s_mov_b32 s62, 0
    ''' % (FL, FL))
    a.dall()
    DA = o.get('diaga', -1)
    def ds(i, k):
        if DA == i:
            a('s_memtime s[%d:%d]' % (70 + 2 * k, 71 + 2 * k))
    a.stamp(1)
    a('s_barrier')
    a.stamp(2)
    if DA >= 0: a.stamps_mute = True
    ds(9, 3)
    a('s_cmp_lg_u32 s15, 0')
    a('s_cbranch_scc1 L_Anoq')
    def rq(ks):
        for hh in range(2):
            a.d('ds_read_b128 %s, v%d offset:%d' % (R(QF(hh, ks), 4), 32 + (ks & 1), (hh * 16 + ks) * 1024), 'q%d' % ks)
    QD = 6
    for ks in range(QD): rq(ks)
    vm0 = list(a.vm)
    for g in range(12):
        a.dwait('q%d' % g)
        step(g, False)
        if g + QD < 16: rq(g + QD)
        if g in (0, 5): ds(9, 4 if g == 0 else 5)
    a.dall()
    a('s_branch L_Aq2')
    a.label('L_Anoq')
    vm1 = list(a.vm)
    a('s_waitcnt vmcnt(0)')
    a('s_add_u32 s10, s58, 24')
    a('v_mov_b32 v1, s10')
    a('ds_write_b32 v3, v1 offset:32')
    for g in range(12): step(g, False)
    a.dall()
    a.vm = vm1
    a.label('L_Aq2')
    ds(9, 6)
    if 'N' in a.vm: a.vwait('N')
    a('''
    v_readfirstlane_b32 s58, v34
    s_lshl_b32 s10, s15, 4
    s_add_u32 s57, s58, s10
    s_barrier                         ; B1
    ''')
    ds(9, 7)
    def half(g, hh):
        a.dwait('k%d' % g)
        a('v_mfma_f32_16x16x32_bf16 %s, %s, %s, %s' % (R(SS[0][hh], 4), R(kbuf(g), 4), R(QF(hh, g % 16), 4), R(SS[0][hh], 4)))
    def last4(g, fill=None):
        for k in range(0, 4):
            half(g + k, 0)
            if fill: fill()
        for k in range(4):
            half(g + k, 1)
            if fill: fill()
    last4(12)
    ds(9, 8)
    E = 36
    def sm_ops(i):
        S = SS[0]; pb = (i % 2) * 4096
        def ex(hh, rs): return [(lambda hh=hh, r=r: a('v_exp_f32 v%d, v%d' % (E + 4 * hh + r, S[hh] + r))) for r in rs]
        def cw(hh):
            def f():
                for r in range(2):
                    a('v_cvt_pk_bf16_f32 v%d, v%d, v%d' % (32 + 2 * hh + r, E + 4 * hh + 2 * r, E + 4 * hh + 2 * r + 1))
                a.d('ds_write_b64 v4, %s offset:%d' % (R(32 + 2 * hh, 2), pb + 1024 * hh), 'w')
            return f
        def flag():
            a('s_add_u32 s63, s57, %d' % i)
            a('v_mov_b32 v1, s63')
            a.d('ds_write_b32 v3, v1', 'w')
        def mxl(hh):
            def f():
                a('v_add_f32 v%d, v%d, v%d' % (E + 4 * hh, E + 4 * hh, E + 4 * hh + 1))
                a('v_add_f32 v%d, v%d, v%d' % (E + 4 * hh + 2, E + 4 * hh + 2, E + 4 * hh + 3))
                a('v_max3_f32 v%d, v%d, v%d, v%d' % (8 + hh, 8 + hh, S[hh], S[hh] + 1))
                a('v_add_f32 v%d, v%d, v%d' % (6 + hh, 6 + hh, E + 4 * hh))
                a('v_max3_f32 v%d, v%d, v%d, v%d' % (8 + hh, 8 + hh, S[hh] + 2, S[hh] + 3))
                a('v_add_f32 v%d, v%d, v%d' % (6 + hh, 6 + hh, E + 4 * hh + 2))
            return f
        def chk():
            for f in ((0, 1, 2, 3) if i < 3 else (0, 2, 1, 3)):
                a.d('ds_read_b128 %s, v5 offset:%d' % (R(P[f], 4), pb + f * 1024), 'p%d' % f)
        return ex, cw, flag, mxl, chk
    VCK = o.get('vck', 7)
    for i in range(3):
        ds(i, 3)
        ex, cw, flag, mxl, chk = sm_ops(i)
        g0 = 16 * (i + 1)
        for f in ex(0, range(4)): f()
        cw(0)()
        for f in ex(1, range(4)): f()
        cw(1)()
        flag()
        ds(i, 4)
        mxl(0)(); mxl(1)()
        a.d('ds_read_b32 v1, v0', 'pf')
        n0 = len(a.lines)
        chk()
        redo = [l.strip() for l in a.lines[n0:] if 's_waitcnt' not in l] + ['s_waitcnt lgkmcnt(0)']
        s_init(0, 0); s_init(0, 1)
        a.dwait('pf')
        pcheck(0, '\n'.join(redo))
        ds(i, 5)
        for ct in range(8):
            for ks2 in range(2):
                a.dwait('v%d_%d' % (ct, ks2))
                for hh in range(2):
                    a.dwait('p%d' % (ks2 * 2 + hh))
                    cin = '0' if (i == 0 and ks2 == 0) else R(O(hh, ct), 4)
                    a('v_mfma_f32_16x16x32_bf16 %s, %s, %s, %s' % (R(O(hh, ct), 4), R(P[ks2 * 2 + hh], 4), R(pairs[ct % 3][ks2], 4), cin))
                    if 3 <= ct + 2 < 8:
                        if hh == 0: pv_addr(i, ct + 2)
                        a.d('ds_read_b64_tr_b16 %s, v2 offset:%d' % (R(pairs[(ct + 2) % 3][ks2] + 2 * hh, 2), ks2 * 32768 + hh * 4096), 'v%d_%d' % (ct + 2, ks2))
                if ct == 0 and ks2 == 0: ds(i, 6)
                if ct == 4 and ks2 == 0: ds(i, 7)
                if ct == 5 and ks2 == 1: a.d('ds_read_b32 v1, v3 offset:32', 'hf')
                if ct == 6 and ks2 == 1:
                    a.dall()
                    if i >= 0:
                        a('''
                    v_readfirstlane_b32 s62, v1
                    s_sub_u32 s62, s62, s57
                    s_cmp_gt_u32 s62, 15
                    s_cselect_b32 s62, 0, s62
                    ''')
                    if i == 0:
                        a.vall()
                        hcheck(1)
                    if i < 2:
                        a('v_mov_b32 v1, s63')
                        a.d('ds_write_b32 v3, v1 offset:16', 'w')
                        a.stamp(8 + i)
                        a('s_cmp_lg_u32 s15, 0')
                        a('s_cbranch_scc1 L_Arf%d' % i)
                        a.label('L_Arb%d' % i)
                    rk(g0); rk(g0 + 1)
                if ct == 7 and ks2 == 0: rk(g0 + 2); rk(g0 + 3)
        ds(i, 8)
        rk(g0 + 4)
        if i < 2:
            vq = [(ct, ks2) for ct in range(3) for ks2 in range(2)]
            def vfill():
                if vq:
                    ct, ks2 = vq.pop(0)
                    rv(i + 1, ct, ks2, pairs[ct][ks2])
            for s in range(12):
                step(g0 + s, s < 11)
                if s == 0: ds(i, 9)
                if s == 8: ds(i, 10)
                if s == VCK - 3:
                    if i == 1: a('s_add_u32 s63, s57, 4')
                    a.d('ds_read_b32 v1, v0 offset:%d' % (16 + 16 * i), 'ha')
                if s == VCK:
                    a.dwait('ha')
                    pcheck(16 + 16 * i)
                if s > VCK and len(vq) > 2: vfill()
            last4(g0 + 12, vfill)
        else:
            for s in range(8): step(g0 + s, s < 3)
        ds(i, 11)
    a('''
    v_mbcnt_lo_u32_b32 v24, -1, 0
    v_mbcnt_hi_u32_b32 v24, -1, v24
    v_and_b32 v25, 15, v24
    v_lshrrev_b32 v27, 4, v24
    v_lshlrev_b32 v26, 6, v25
    v_lshl_add_u32 v26, v27, 2, v26
    s_lshl_b32 s10, s3, 4
    s_add_u32 s10, s10, 0x%x
    v_add_u32 v26, s10, v26           ; l write addr
    v_lshlrev_b32 v25, 4, v25
    v_lshl_add_u32 v25, v27, 19, v25  ; O store voffset
    v_bfe_u32 v28, v24, 3, 1
    v_lshl_add_u32 v27, v27, 2, v28
    v_bfe_u32 v28, v24, 2, 1
    v_lshl_add_u32 v27, v28, 1, v27
    v_and_b32 v28, 1, v24
    v_lshl_add_u32 v27, v28, 4, v27   ; h(lane)
    v_and_b32 v28, 2, v24
    v_lshlrev_b32 v28, 4, v28
    v_lshl_add_u32 v28, v27, 6, v28
    v_add_u32 v28, 0x%x, v28          ; l read addr
    v_lshlrev_b32 v29, 4, v27         ; MLC voffset
    s_lshl_b32 s10, s3, 15
    s_lshl_b32 s12, s59, 8
    s_add_u32 s10, s10, s12
    s_add_u32 s13, s10, 0x%x
    s_lshl_b32 s12, s59, 2
    s_add_u32 s12, s12, s3
    s_lshl_b32 s12, s12, 9
    s_add_u32 s12, s12, 0x%x
    s_mov_b32 s60, 0xaaaaaaaa
    s_mov_b32 s61, 0xaaaaaaaa
    s_mov_b32 s64, 0x33333333
    s_mov_b32 s65, 0x33333333
    s_add_u32 s63, s57, 6
    ''' % (RLB, RLB, OP, ML))
    a.d('ds_read_b32 v1, v0 offset:32', 'ha')
    a.dwait('ha')
    pcheck(32)
    for ct in range(4):
        for ks2 in range(2): rv(3, ct, ks2, 128 + (ct * 2 + ks2) * 4)
    pv_addr(3, 4)
    a.dall()
    a('s_barrier')
    a.stamp(3)
    ds(3, 3)
    ds(6, 3)
    KL = P + XQ
    for n in range(8):
        a.d('ds_read_b128 %s, v%d offset:%d' % (R(KL[n], 4), 12 + n % 4, (2 + n // 4) * 1024), 'k%d' % n)
    def VF(ct, ks2): return (128 if ct < 4 else 192) + ((ct % 4) * 2 + ks2) * 4
    vl = [(ct, ks2) for ct in range(8) for ks2 in range(2)]
    vi = 8
    def more(n=1):
        nonlocal vi
        for _ in range(n):
            if vi < 16:
                rv(3, vl[vi][0], vl[vi][1], VF(*vl[vi])); vi += 1
    def qk(n, hh):
        a.dwait('k%d' % n)
        a('v_mfma_f32_16x16x32_bf16 %s, %s, %s, %s' % (R(SS[0][hh], 4), R(KL[n], 4), R(QF(hh, 8 + n), 4), R(SS[0][hh], 4)))
    EE = [188, 232]; CV = [182, 236]; pb = 4096
    def ex(hh, r): a('v_exp_f32 v%d, v%d' % (EE[hh] + r, SS[0][hh] + r))
    def cw(hh):
        for r in range(2):
            a('v_cvt_pk_bf16_f32 v%d, v%d, v%d' % (CV[hh] + r, EE[hh] + 2 * r, EE[hh] + 2 * r + 1))
        a.d('ds_write_b64 v4, %s offset:%d' % (R(CV[hh], 2), pb + 1024 * hh), 'w')
    def ladd(hh):
        e = EE[hh]
        a('v_add_f32 v%d, v%d, v%d' % (e, e, e + 1))
        a('v_add_f32 v%d, v%d, v%d' % (e + 2, e + 2, e + 3))
        a('v_add_f32 v%d, v%d, v%d' % (6 + hh, 6 + hh, e))
        a('v_add_f32 v%d, v%d, v%d' % (6 + hh, 6 + hh, e + 2))
    def mx(hh):
        S = SS[0][hh]
        a('v_max3_f32 v%d, v%d, v%d, v%d' % (8 + hh, 8 + hh, S, S + 1))
        a('v_max3_f32 v%d, v%d, v%d, v%d' % (8 + hh, 8 + hh, S + 2, S + 3))
    def rp(f): a.d('ds_read_b128 %s, v5 offset:%d' % (R(P[f], 4), pb + f * 1024), 'p%d' % f)
    for n in range(8):
        qk(n, 0)
        if n == 0: ds(6, 4)
        if n in (3, 5, 7): more()
    ds(6, 5)
    for n in range(8):
        qk(n, 1)
        if n in (1,): more()
        if 3 <= n <= 4: ex(0, 2 * (n - 3)); ex(0, 2 * (n - 3) + 1)
        if n == 5: cw(0)
    ds(6, 6)
    a.dwait('w')
    ds(6, 7)
    a('s_barrier')
    ds(6, 8)
    rp(0); rp(2)
    for r in range(4): ex(1, r)
    cw(1)
    ds(6, 9)
    ds(3, 4)
    ds(4, 3)
    PK = [XQ, [16, 20, 160, 164]]
    CS = 168
    def pack(hh, r):
        for k in range(4):
            a('v_cvt_pk_bf16_f32 v%d, v%d, v%d' % (PK[hh][r] + k, O(hh, 2 * k) + r, O(hh, 2 * k + 1) + r))
    def st(hh, r):
        a('s_add_u32 s11, s13, 0x%x' % ((16 * hh + r) * 131072))
        a('buffer_store_dwordx4 %s, v25, s[44:47], s11 offen sc1' % R(PK[hh][r], 4))
    def cs(hh, r):
        b = PK[hh][r]; c = CS + 4 * hh + r
        a('v_add3_u32 v%d, v%d, v%d, v%d' % (c, b, b + 1, b + 2))
        a('v_add_u32 v%d, v%d, v%d' % (c, c, b + 3))
    T = 176
    def stepA(i):
        a('v_add_u32_dpp v%d, v%d, v%d row_ror:8 row_mask:0xf bank_mask:0x3' % (T + i, CS + 2 * i, CS + 2 * i))
        a('v_add_u32_dpp v%d, v%d, v%d row_ror:8 row_mask:0xf bank_mask:0xc' % (T + i, CS + 2 * i + 1, CS + 2 * i + 1))
    def stepB(hh):
        a('v_add_u32_dpp v%d, v%d, v%d row_half_mirror row_mask:0xf bank_mask:0x5' % (T + 4 + hh, T + 2 * hh, T + 2 * hh))
        a('v_add_u32_dpp v%d, v%d, v%d row_half_mirror row_mask:0xf bank_mask:0xa' % (T + 4 + hh, T + 2 * hh + 1, T + 2 * hh + 1))
        a('v_add_u32_dpp v%d, v%d, v%d quad_perm:[1,0,3,2] row_mask:0xf bank_mask:0xf' % (T + 4 + hh, T + 4 + hh, T + 4 + hh))
    def lchk():
        a.d('ds_read_b128 v[224:227], v28', 'rl')
        a.d('ds_read_b128 v[228:231], v28 offset:16', 'rl')
    def ls1():
        a.dwait('rl')
        a('''
        v_add_f32 v224, v224, v225
        v_add_f32 v226, v226, v227
        v_add_f32 v228, v228, v229
        v_add_f32 v230, v230, v231
        ''')
    def ls2():
        a('''
        v_add_f32 v224, v224, v226
        v_add_f32 v228, v228, v230
        v_add_f32 v185, v224, v228
        v_mov_b32 v187, s58
        ''')
    def lw():
        ladd(1)
        a.d('ds_write2st64_b32 v26, v6, v7 offset0:0 offset1:4', 'w')
    def barB():
        a.dwait('w')
        a('s_barrier')
        rp(1); rp(3)
    f0 = {0: lambda: (more(1), ladd(0)), 1: lambda: (more(1), lw()), 2: lambda: more(1), 3: lambda: more(1), 4: barB, 5: lchk, 6: lambda: mx(0), 7: lambda: mx(1)}
    f1 = {0: ls1, 1: ls2, 2: lambda: (pack(0, 0), a('v_add_f32_dpp v185, v185, v185 quad_perm:[2,3,0,1] row_mask:0xf bank_mask:0xf')), 3: lambda: (st(0, 0), pack(0, 1)), 4: lambda: (st(0, 1), pack(0, 2)), 5: lambda: (st(0, 2), pack(0, 3)),
          6: lambda: (st(0, 3), cs(0, 0), cs(0, 1)), 7: lambda: (cs(0, 2), cs(0, 3), stepA(0))}
    for hh in range(2):
        for ct in range(8):
            for ks2 in range(2):
                a.dwait('v%d_%d' % (ct, ks2)); a.dwait('p%d' % (ks2 * 2 + hh))
                a('v_mfma_f32_16x16x32_bf16 %s, %s, %s, %s' % (R(O(hh, ct), 4), R(P[ks2 * 2 + hh], 4), R(VF(ct, ks2), 4), R(O(hh, ct), 4)))
            f = (f0 if hh == 0 else f1).get(ct)
            if f: f()
            if hh == 0 and ct in (1, 2, 4, 7): ds(4, {1: 4, 2: 5, 4: 6, 7: 7}[ct])
            if hh == 1 and ct in (2, 7): ds(4, {2: 8, 7: 9}[ct])
    a.stamp(4)
    ds(3, 5)
    stepA(1)
    a("""
    v_subrev_u32 v186, 0x2f800000, v185
    v_cmp_le_u32 vcc, 0x24000000, v186
    """)
    NE = o.get('nearly', 0)
    pack(1, 0)
    stepB(0)
    for r in range(4):
        if r < 3: pack(1, r + 1)
        if r < NE: st(1, r)
        cs(1, r)
        if r == 2: stepA(2)
    a("""
    s_or_b32 s14, vcc_lo, vcc_hi
    s_or_b32 s11, s14, s15
    s_cbranch_scc1 L_Aslow
    v_mov_b32 v184, 0
    L_Aok:
    """)
    stepA(3)
    a('v_sub_u32 v186, v187, v184')
    stepB(1)
    a('v_sub_u32 v186, v186, v185')
    a('v_cndmask_b32 v%d, v%d, v%d, s[60:61]' % (T + 4, T + 4, T + 5))
    a('v_add_u32_dpp v%d, v%d, v%d quad_perm:[2,3,0,1] row_mask:0xf bank_mask:0xf' % (T + 4, T + 4, T + 4))
    a("""
    v_sub_u32 v186, v186, v%d
    s_mov_b64 exec, s[64:65]
    buffer_store_dwordx4 v[184:187], v29, s[44:47], s12 offen sc1
    s_mov_b64 exec, -1
    """ % (T + 4))
    for r in range(NE, 4): st(1, r)
    ds(3, 6)

    def slow():
        for i in range(2):
            a.label('L_Arf%d' % i)
            a('s_waitcnt lgkmcnt(0)')
            a('s_barrier')
            voffs(1, 0)
            for seg in range(4):
                for aa in range(4):
                    a('s_add_u32 m0, s9, 0x%x' % (i * 65536 + aa * 4096 + seg * 1024))
                    a('s_add_u32 s10, s8, 0x%x' % ((i + 2) * 65536 + aa * 4096 + seg * 256))
                    a('buffer_load_dwordx4 v%d, s[40:43], s10 offen nt lds' % (1 if aa < 2 else 0))
            a('''
            v_mbcnt_lo_u32_b32 v0, -1, 0
            v_and_b32 v0, 3, v0
            v_lshlrev_b32 v0, 2, v0
            v_add_u32 v0, 0x%x, v0
            s_waitcnt vmcnt(0)
            s_barrier
            s_branch L_Arb%d
            ''' % (FL, i))
        for t in a.slow: a(t)
        a.label('L_Aslow')
        a("""
        v_lshlrev_b32 v30, 2, v27
        v_add_u32 v30, 0x%x, v30
        s_cmp_lg_u32 s15, 0
        s_cbranch_scc1 L_Aslow2
        ; first pass was unsafe: rerun with the true (rounded up) per-head max
        ds_write2st64_b32 v26, v8, v9 offset0:8 offset1:12
        s_waitcnt lgkmcnt(0)
        s_barrier
        ds_read_b128 v[224:227], v28 offset:2048
        ds_read_b128 v[228:231], v28 offset:2064
        s_waitcnt lgkmcnt(0)
        v_max3_f32 v224, v224, v225, v226
        v_max3_f32 v227, v227, v228, v229
        v_max3_f32 v224, v224, v230, v231
        v_max_f32 v184, v224, v227
        v_max_f32_dpp v184, v184, v184 quad_perm:[2,3,0,1] row_mask:0xf bank_mask:0xf
        v_ceil_f32 v184, v184
        ds_write_b32 v30, v184
        v_and_b32 v31, 15, v24
        v_lshlrev_b32 v30, 2, v31
        v_add_u32 v30, 0x%x, v30
        v_lshrrev_b32 v232, 4, v24
        v_lshlrev_b32 v232, 4, v232
        v_lshl_add_u32 v31, v31, 10, v232
        s_mov_b32 s10, 0x4000
        s_waitcnt vmcnt(0) lgkmcnt(0)
        ds_read_b32 v10, v30
        ds_read_b32 v11, v30 offset:64
        """ % (RB, RB))
        for hh in range(2):
            for ks in range(16):
                a('buffer_load_dwordx4 %s, v31, s[44:47], %s offen offset:%d sc1' % (R(QF(hh, ks), 4), 's10' if hh else '0', ks * 64))
        a("""
        s_mov_b32 s15, 1
        s_waitcnt vmcnt(0) lgkmcnt(0)
        v_sub_f32 v10, 0, v10
        v_sub_f32 v11, 0, v11
        """)
        voffs(3, 0)
        a("""
        s_barrier
        s_branch L_Apass
        L_Aslow2:
        ds_read_b32 v184, v30
        s_waitcnt lgkmcnt(0)
        s_branch L_Aok
        """)
    a.aslow = slow
```

```python
from roleA31 import *

def role_final(a, o):
    a('''
    s_cmp_lg_u32 s3, 0
    s_cbranch_scc1 L_end
    ''')
    a.stamp(5)
    a.srd(48, WS, FP + 86 * 2048)
    a.srd(40, X, 1024)
    a('''
    v_mov_b32 v40, v24
    s_and_b32 s10, s2, 7
    s_lshl_b32 s10, s10, 6
    s_lshr_b32 s11, s2, 3
    s_lshl_b32 s11, s11, 2
    s_add_u32 s10, s10, s11            ; m0
    s_lshl_b32 s11, s10, 2
    s_lshl_b32 s12, s10, 1
    v_lshlrev_b32 v41, 11, v40
    v_and_b32 v42, 3, v40
    v_lshlrev_b32 v43, 1, v42
    buffer_load_ushort v60, v43, s[40:43], s12 offen
    v_and_b32 v44, 1, v40
    v_cmp_eq_u32 s[60:61], 1, v44
    v_and_b32 v44, 2, v40
    v_cmp_eq_u32 s[62:63], 2, v44
    ''')
    def gather4(base, srd, lab, dst):
        a('s_add_u32 s13, s11, 0x%x' % base)
        a('s_add_u32 s14, s11, 0x%x' % (base + 64 * 2048))
        a('s_mov_b32 s8, 0')
        a('s_mov_b64 s[64:65], -1')
        a('s_mov_b64 s[66:67], -1')
        a.label(lab)
        a('s_sleep FIN_SLEEP')
        a('s_mov_b64 exec, s[64:65]')
        a('s_cbranch_execz %s_a' % lab)
        a('buffer_load_dwordx4 v[48:51], v41, s[%d:%d], s13 offen sc1' % (srd, srd + 3))
        a.label(lab + '_a')
        a('s_mov_b64 exec, s[66:67]')
        a('s_cbranch_execz %s_b' % lab)
        a('buffer_load_dwordx4 v[52:55], v41, s[%d:%d], s14 offen sc1' % (srd, srd + 3))
        a.label(lab + '_b')
        a('''
        s_mov_b64 exec, -1
        s_add_u32 s8, s8, 1
        s_waitcnt vmcnt(0)
        v_max3_u32 v56, v48, v49, v50
        v_max3_u32 v57, v52, v53, v54
        v_max_u32 v56, v56, v51
        v_max_u32 v57, v57, v55
        v_cmp_eq_u32 s[64:65], -1, v56
        v_cmp_eq_u32 s[66:67], -1, v57
        s_cmp_gt_u32 s8, SPIN_N
        s_cbranch_scc1 %s_x
        s_or_b64 s[68:69], s[64:65], s[66:67]
        s_cbranch_scc1 %s
        %s_x:
        v_add_f32 v48, v48, v52
        v_add_f32 v49, v49, v53
        v_add_f32 v50, v50, v54
        v_add_f32 v51, v51, v55
        v_cndmask_b32 v52, v48, v49, s[60:61]
        v_cndmask_b32 v53, v49, v48, s[60:61]
        v_cndmask_b32 v54, v50, v51, s[60:61]
        v_cndmask_b32 v55, v51, v50, s[60:61]
        v_add_f32_dpp v52, v53, v52 quad_perm:[1,0,3,2] row_mask:0xf bank_mask:0xf
        v_add_f32_dpp v54, v55, v54 quad_perm:[1,0,3,2] row_mask:0xf bank_mask:0xf
        v_cndmask_b32 v%d, v52, v54, s[62:63]
        v_cndmask_b32 v53, v54, v52, s[62:63]
        v_add_f32_dpp v%d, v53, v%d quad_perm:[2,3,0,1] row_mask:0xf bank_mask:0xf
        v_add_f32_dpp v%d, v%d, v%d row_ror:4 row_mask:0xf bank_mask:0xf
        v_add_f32_dpp v%d, v%d, v%d row_ror:8 row_mask:0xf bank_mask:0xf
        ''' % ((lab, lab, lab) + (dst,) * 9))
        a.swap_red('v_add_f32', dst, 53, 16)
        a.swap_red('v_add_f32', dst, 53, 32)
    gather4(FP, 48, 'L_gf', 61)
    a.rnd_bf16(61)
    a.silu(61, 53)
    a.rnd_bf16(61)
    a('v_lshlrev_b32 v60, 16, v60')
    a.srd(40, OUT, 1024)
    a.stamp(6)
    gather4(SP, 44, 'L_gs', 62)
    a.rnd_bf16(62)
    a('v_mul_f32 v62, v62, v61')
    a.rnd_bf16(62)
    a('''
    v_add_f32 v62, v62, v60
    v_cvt_pk_bf16_f32 v62, v62, v62
    s_mov_b64 exec, 15
    buffer_store_short v62, v43, s[40:43], s12 offen
    ''')
    a.stamp(7)
    a.write_stamps()
    a('s_endpgm')

def role_As(a, o):
    a.stamps_mute = False
    a.label('L_As')
    ops = [(c, seg, aa) for c in range(2) for seg in range(4) for aa in range(4)]
    AM = o.get('amaj', 1)
    ops = [(c, sp * 2 + sg, aa) for c in range(2) for sp in range(2) for aa in range(4) for sg in range(2)]
    if o.get('hmix', 0): ops = [(c, sp * 2 + sg, aa) for c in range(2) for sp in range(2) for aa in (0, 2, 1, 3) for sg in range(2)]
    def prog(n):
        return {7: 2, 15: 4, 23: 6}.get(n)
    NPRE = o.get('npre', 20); NR = 32 - NPRE
    first = [(i, seg, aa) for i in range(2) for aa in range(4) for seg in range(4)]
    def loads(lo, hi):
        for n in range(lo, hi):
            if n < 0:
                i, seg, aa = first[32 + n]
                a('s_xor_b32 m0, s69, 0x%x' % (65536 + aa * 4096 + seg * 1024))
                a('s_xor_b32 s10, s66, 0x%x' % (65536 + aa * 4096 + seg * 256))
                a.v('buffer_load_dwordx4 v%d, s[40:43], s10 offen nt lds' % (3 if aa < 2 else 0), 'D')
                continue
            c, seg, aa = ops[n]
            a('s_add_u32 s10, s64, 0x%x' % (c * 65536 + aa * 4096 + seg * 256))
            a.v('buffer_load_dwordx4 %s, v%d, s[40:43], s10 offen nt' % (R(128 + 4 * n, 4), 3 if aa < 2 else 0), 'L%d' % n)
    def writes(lo, hi):
        for n in range(lo, hi):
            c, seg, aa = ops[n]
            if ('L%d' % n) in a.vm: a.vwait('L%d' % n)
            a('ds_write_b128 v%d, %s offset:%d' % (100 + c, R(128 + 4 * n, 4), aa * 4096 + seg * 1024))
        a('s_waitcnt lgkmcnt(0)')
    c = [int(x, 16) for x in str(o.get('hsch', 'x64'))[1:]]
    a("""
    s_setprio 3
    s_sub_u32 s3, s3, 4
    s_lshl_b32 s9, s3, 14
    s_add_u32 s64, s8, s9
    s_lshl_b32 s10, s3, 8
    s_or_b32 s66, s64, s10
    s_lshl_b32 s10, s3, 10
    s_or_b32 s69, s9, s10
    s_add_u32 s64, s64, 0x20000
    v_lshl_add_u32 v100, v1, 4, s9
    v_add_u32 v101, 0x10000, v100
    v_mov_b32 v2, 0
    s_mov_b32 s8, 0
    L_Agn:
    s_sleep 8
    global_load_dword v5, v2, s[36:37] sc1
    s_add_u32 s8, s8, 1
    s_waitcnt vmcnt(0)
    v_readfirstlane_b32 s4, v5
    s_cmp_gt_u32 s8, SPIN_N
    s_cbranch_scc1 L_Agn_x
    s_cmp_eq_u32 s4, 0
    s_cbranch_scc1 L_Agn
    L_Agn_x:
    OUTPT global_load_dword v254, v2, s[34:35]
    """)
    K0 = o.get('k0', 12)
    a.vm = []
    for n in range(K0):
        if n >= o.get('k0w', 4): a('s_waitcnt vmcnt(%d)' % (o.get('k0w', 4) - 1))
        loads(n - NR, n - NR + 1)
    a("""
    v_lshlrev_b32 v2, QCSH, v1        ; tag voffset
    v_lshlrev_b32 v98, 4, v1          ; data voffset
    v_lshlrev_b32 v97, 7, v1          ; flag voffset
    s_lshl_b32 s9, s3, 13             ; QA + u*8192
    s_add_u32 s65, s9, 4096
    s_lshl_b32 s11, s3, QCSH+5
    s_add_u32 s11, s11, 0x%x          ; QC + u*32 entries
    s_lshr_b32 s12, s3, 1
    s_lshl_b32 s12, s12, 14
    s_and_b32 s13, s3, 1
    s_lshl_b32 s13, s13, 7
    s_add_u32 s12, s12, s13
    s_add_u32 s12, s12, 0x%x
    v_and_b32 v6, 7, v1
    v_lshlrev_b32 v6, 4, v6
    v_lshl_add_u32 v6, v1, 8, v6
    v_add_u32 v6, s12, v6             ; LDS write base
    s_lshl_b32 s4, s4, 5              ; expected sum = 32 * nonce
    v_mov_b32 v72, 0
    v_mov_b32 v73, 0
    s_lshl_b32 s68, s3, 10
    s_add_u32 s68, s68, 0x10000
    s_mov_b32 s12, REP_MASK
    s_mov_b32 s13, 0
    NODEP s_branch L_Agt_x
    L_Agt:
    s_sleep QT_SLEEP
    s_mov_b64 exec, s[12:13]
    buffer_load_dwordx2 v[72:73], v97, s[44:47], REPBASE offen sc1
    s_add_u32 s8, s8, 1
    s_waitcnt vmcnt(0)
    v_cmp_ne_u32 s[12:13], v73, v5
    s_cmp_gt_u32 s8, SPIN_N
    s_cbranch_scc1 L_Agt_x
    s_cmp_lg_u32 s12, 0
    s_cbranch_scc1 L_Agt
    L_Agt_x:
    s_mov_b32 exec_lo, -1
    buffer_load_dwordx2 v[72:73], v2, s[44:47], s11 offen sc1
    s_mov_b64 exec, -1
    """ % (QC, STG))
    def dload(i):
        a('buffer_load_dwordx4 %s, v98, s[44:47], s%d offen offset:%d sc1' % (R(8 + 4 * i, 4), 9 if i < 4 else 65, (i % 4) * 1024))
    def dproc(i):
        a('ds_write_b128 v%d, %s' % (40 + i, R(8 + 4 * i, 4)))
        a('v_add3_u32 v%d, v%d, v%d, v%d' % (80 + i, 8 + 4 * i, 9 + 4 * i, 10 + 4 * i))
        a('v_add_u32 v%d, v%d, v%d' % (80 + i, 80 + i, 11 + 4 * i))
    for i in range(8): dload(i)
    a.stamp(1)
    if a.stamps: a('s_mov_b32 s8, 1')
    if o.get('rlate', 0):
        a("""
        s_waitcnt vmcnt(8)
        L_Agr:
        v_cmp_ne_u32 s[12:13], v73, v5
        s_cmp_eq_u32 s12, 0
        s_cbranch_scc1 L_Agr_x
        s_add_u32 s8, s8, 1
        s_cmp_gt_u32 s8, SPIN_N
        s_cbranch_scc1 L_Agr_x
        s_mov_b32 s13, 0
        s_quadmask_b32 s67, s12
        s_mov_b64 exec, s[12:13]
        buffer_load_dwordx2 v[72:73], v2, s[44:47], s11 offen sc1
        s_mov_b64 exec, -1
        """)
        for i in range(8):
            a('s_bitcmp1_b32 s67, %d' % i)
            a('s_cbranch_scc0 L_Agk%d' % i)
            dload(i)
            a.label('L_Agk%d' % i)
        a("""
        s_waitcnt vmcnt(0)
        s_branch L_Agr
        L_Agr_x:
        """)
    a('s_barrier')
    a.vm = []
    loads(K0 - NR, K0 - NR + c[0]); p = K0 - NR + c[0]
    for i in range(8): a('v_xor_b32 v%d, %d, v6' % (40 + i, i << 4))
    for i in range(8):
        a('s_waitcnt vmcnt(%d)' % (7 - i + c[0]))
        dproc(i)
    a("""
    NODEP s_branch L_Agp_x
    v_cmp_ne_u32 s[12:13], v73, v5
    s_cmp_eq_u32 s12, 0
    s_cbranch_scc1 L_Agc
    L_Agp:
    s_mov_b32 s13, 0
    s_quadmask_b32 s67, s12
    s_mov_b64 exec, s[12:13]
    buffer_load_dwordx2 v[72:73], v2, s[44:47], s11 offen sc1
    s_mov_b64 exec, -1
    """)
    for i in range(8):
        a('s_bitcmp1_b32 s67, %d' % i)
        a('s_cbranch_scc0 L_Agl%d' % i)
        dload(i)
        a.label('L_Agl%d' % i)
    a("""
    s_add_u32 s8, s8, 1
    s_waitcnt vmcnt(0)
    v_cmp_ne_u32 s[12:13], v73, v5
    """)
    for i in range(8):
        a('s_bitcmp1_b32 s67, %d' % i)
        a('s_cbranch_scc0 L_Agw%d' % i)
        dproc(i)
        a.label('L_Agw%d' % i)
    a("""
    s_cmp_gt_u32 s8, SPIN_N
    s_cbranch_scc1 L_Agp_x
    s_cmp_lg_u32 s12, 0
    s_cbranch_scc1 L_Agp
    L_Agc:
    v_add3_u32 v4, v72, v80, v81
    v_add3_u32 v74, v82, v83, v84
    v_add3_u32 v4, v4, v85, v86
    v_add3_u32 v4, v4, v74, v87
    """)
    a.wave_red('v_add_u32', 4, 74)
    a("""
    v_readfirstlane_b32 s10, v4
    s_mov_b32 s12, -1
    s_cmp_lg_u32 s10, s4
    s_cbranch_scc1 L_Agp
    L_Agp_x:
    s_waitcnt lgkmcnt(0)
    """)
    a.stamp(3)
    a('s_barrier')
    a('s_setprio 0')
    loads(p, p + c[1]); p += c[1]
    a('''
    v_and_b32 v102, 3, v1
    v_lshlrev_b32 v102, 2, v102
    v_add_u32 v102, 0x%x, v102        ; YF read addr
    s_lshl_b32 s10, s3, 2
    s_add_u32 s10, s10, 0x%x
    v_mov_b32 v103, s10               ; own HF addr
    s_barrier                         ; B1
    ''' % (FL + 16, FL + 32))
    if p < 0: loads(p, 0); p = 0
    a('v_add_u32 v99, 1, v5')
    if 'D' in a.vm: a.vwait('D')
    a('ds_write_b32 v103, v99')
    K = o.get('hk', 18)
    loads(p, K); p = max(p, K)
    def yspin(i):
        a('''
        s_mov_b32 s11, 0
        L_Ay%d:
        ds_read_b32 v99, v102
        s_add_u32 s11, s11, 1
        s_waitcnt lgkmcnt(0)
        v_sub_u32 v99, v99, v5
        v_subrev_u32 v99, %d, v99
        v_cmp_lt_u32 vcc, 7, v99
        s_cmp_gt_u32 s11, LSPIN
        s_cbranch_scc1 L_Ay%dx
        s_cbranch_vccz L_Ay%dx
        s_sleep 1
        s_branch L_Ay%d
        L_Ay%dx:
        ''' % (i, i, i, i, i, i))
    for n in range(32):
        if n % 16 == 0:
            if n == 16: loads(p, 32); p = 32
            yspin(n // 16)
        cc, seg, aa = ops[n]
        if prog(n): a('v_add_u32 v99, %d, v5' % prog(n))
        if ('L%d' % n) in a.vm: a.vwait('L%d' % n)
        a('ds_write_b128 v%d, %s offset:%d' % (100 + cc, R(128 + 4 * n, 4), aa * 4096 + seg * 1024))
        if prog(n): a('ds_write_b32 v103, v99')
        if p < 32: loads(p, p + 1); p += 1
    a('s_waitcnt lgkmcnt(0)')
    a('s_barrier')
    if a.stamps:
        a('s_mul_i32 s78, s8, 100')
        a('s_add_u32 s78, s78, s70')
        a('s_addc_u32 s79, s71, 0')
        a('s_lshl_b32 s2, s2, 2')
        a('s_add_u32 s2, s2, s3')
        a('s_add_u32 s2, s2, 256')
        a('s_barrier')
        a('s_barrier')
        a('s_sleep 127')
        a.write_stamps(vb=104)
    a('s_endpgm')

def role_W(a, o):
    WOPOL = o.get('wopol', 'nt'); W1POL = o.get('w1pol', 'nt')
    a.label('L_W')
    a.vm = []; a.lg = []
    a('''
    s_and_b32 s8, s2, 7               ; x
    s_lshr_b32 s9, s2, 3
    s_sub_u32 s9, s9, 16              ; k
    s_lshr_b32 s10, s9, 2
    s_lshl_b32 s11, s8, 2
    s_add_u32 s10, s10, s11           ; h
    s_and_b32 s11, s9, 3              ; j
    s_lshl_b32 s13, s10, 8            ; h*256
    v_lshlrev_b32 v9, 4, v1           ; lane*16
    v_lshrrev_b32 v6, 4, v1           ; g / r
    v_and_b32 v7, 15, v1              ; pc / i
    v_lshlrev_b32 v8, 1, v6
    v_xor_b32 v8, v8, v7
    v_lshlrev_b32 v8, 4, v8           ; (pc ^ (r<<1))*16
    v_lshl_add_u32 v2, v6, 13, v8
    v_xor_b32 v3, 0x80, v2            ; voffB
    s_lshl_b32 s14, s11, 3
    s_add_u32 s14, s14, s3            ; 8j + w
    s_lshl_b32 s15, s14, 17
    s_add_u32 s15, s15, s13           ; (128j + 16w)*8192 + h*256
    s_lshl_b32 s14, s3, 12            ; LDS w*4096
    v_lshlrev_b32 v10, 2, v6
    v_xor_b32 v10, v10, v7
    v_lshlrev_b32 v10, 4, v10
    v_lshl_add_u32 v10, v6, 13, v10
    v_xor_b32 v11, 32, v10
    s_mov_b32 s42, 0x400000
    s_mov_b32 s43, 0x20000
    s_mov_b32 s50, 0x400000
    s_mov_b32 s51, 0x20000
    s_mov_b32 m0, s14
    s_waitcnt lgkmcnt(0)
    s_mov_b32 s40, s20
    s_mov_b32 s41, s21
    s_cmp_lg_u32 s3, 0
    s_cbranch_scc1 L_Wx
    global_load_dwordx4 v[68:71], v9, s[16:17]
    L_Wx:
    ''')
    for i in range(4):
        if i:
            a('s_add_u32 m0, s14, %d' % (i * 1024))
            a('s_add_u32 s60, s15, %d' % (i * 32768))
        a.v('buffer_load_dwordx4 v%d, s[40:43], %s offen nt lds' % (2 if i < 2 else 3, 's60' if i else 's15'), 'WQ')
    a('s_mov_b32 s48, s22')
    a('s_mov_b32 s49, s23')
    if o.get('ukbar', 1): a('s_barrier')
    for i in range(4):
        a('s_add_u32 m0, s14, %d' % (UKL + i * 1024))
        a('s_add_u32 s60, s15, %d' % (i * 32768))
        a.v('buffer_load_dwordx4 v%d, s[48:51], s60 offen nt lds' % (10 if i < 2 else 11), 'UK')
    common2(a)
    if o.get('diag', 0) == 2: a.stamp(5)
    a('''
    s_lshl_b32 s12, s9, 3
    s_add_u32 s12, s12, s8            ; fb = 8k + x
    s_cmp_lt_u32 s9, 11
    s_cselect_b32 s12, s12, 1000
    v_mov_b32 v14, 0
    v_lshrrev_b32 v12, 2, v7          ; r' / a
    v_and_b32 v13, 1, v6
    v_lshl_add_u32 v13, v13, 2, v12
    v_lshlrev_b32 v13, 1, v13
    v_bfe_u32 v16, v1, 1, 1
    s_lshl_b32 s60, s3, 1
    v_add_u32 v16, s60, v16
    v_xor_b32 v16, v16, v13
    v_lshlrev_b32 v16, 4, v16
    v_lshl_add_u32 v13, v6, 3, v12
    v_lshl_add_u32 v16, v13, 8, v16
    v_and_b32 v13, 1, v1
    v_lshl_add_u32 v4, v13, 3, v16    ; tr-read base
    v_lshlrev_b32 v5, 4, v6
    v_add_u32 v5, 0x%x, v5            ; SM + g*16
    v_and_b32 v13, 3, v7
    v_and_b32 v16, 2, v12
    v_xor_b32 v16, v16, v6
    v_lshl_add_u32 v16, v13, 2, v16
    v_lshlrev_b32 v16, 4, v16
    v_lshl_add_u32 v16, v7, 8, v16
    s_add_u32 s60, s14, 0x%x
    v_add_u32 v64, s60, v16           ; uk frag read addrs
    v_xor_b32 v65, 64, v64
    v_xor_b32 v66, 0x80, v64
    v_xor_b32 v67, 0xc0, v64
    ''' % (SM, UKL))
    a('''
    s_lshl_b32 s68, s10, 2
    s_add_u32 s68, s68, s11           ; mi = 4h + j
    s_lshl_b32 s64, s68, 15
    s_lshl_b32 s61, s3, 12
    s_add_u32 s69, s64, s61
    s_add_u32 s69, s69, 0x%x          ; s69 = inbox base of this wave
    s_lshl_b32 s58, s68, 11
    s_lshl_b32 s61, s3, 8
    s_add_u32 s58, s58, s61
    s_add_u32 s58, s58, 0x%x          ; s58 = SP row of this wave
    s_lshl_b32 s66, s12, 11
    s_add_u32 s66, s66, s61
    s_add_u32 s66, s66, 0x%x          ; s66 = FP row of this wave
    s_cmp_lt_u32 s12, 86
    s_cselect_b32 s66, s66, s58
    s_lshl_b32 s67, s3, 6
    s_add_u32 s67, s67, s11
    s_lshl_b32 s67, s67, 9
    s_lshl_b32 s61, s10, 4
    s_add_u32 s67, s67, s61
    s_add_u32 s67, s67, 0x%x          ; s67 = MLC + (64w + j)*512 + h*16
    v_lshlrev_b32 v11, 2, v1
    v_mov_b32 v16, -1
    ''' % (OP, SP, FP, ML))
    a.v('buffer_store_dword v16, v11, s[44:47], s58 offen sc1', 'PT')
    a.v('buffer_store_dword v16, v11, s[44:47], s66 offen sc1', 'PT')
    if o.get('qpw', 0):
        a('''
        s_lshl_b32 s60, s10, 12
        s_lshl_b32 s61, s3, 7
        s_add_u32 s60, s60, s61
        s_add_u32 s60, s60, 0x%x
        v_lshlrev_b32 v17, 10, v6
        ''' % QP)
        a.v('buffer_load_dword v254, v17, s[44:47], s60 offen sc1', 'PT')
    a('''
    s_cmp_lg_u32 s3, 0
    s_cbranch_scc1 L_Wln
    s_waitcnt vmcnt(%d)
    s_load_dword s4, s[36:37], 0
    ''' % len(a.vm))
    if o.get('diag', 0) == 2: a.stamp(6)
    layernorm(a)
    if o.get('diag', 0) == 2: a.stamp(7)
    a('''
    v_add_u32 v72, 0x%x, v9
    ds_write_b128 v72, v[68:71]
    s_waitcnt lgkmcnt(0)
    s_mov_b32 s60, 0
    s_branch L_Wn_c
    L_Wn:
    global_load_dword v15, v14, s[36:37] sc1
    s_add_u32 s60, s60, 1
    s_waitcnt vmcnt(0)
    v_readfirstlane_b32 s4, v15
    s_cmp_gt_u32 s60, SPIN_N
    s_cbranch_scc1 L_Wn_x
    L_Wn_c:
    s_cmp_eq_u32 s4, 0
    s_cbranch_scc1 L_Wn
    L_Wn_x:
    v_mov_b32 v72, 0x%x
    v_mov_b32 v15, s4
    ds_write_b32 v72, v15
    s_waitcnt lgkmcnt(0)
    L_Wln:
    ''' % (XN, NB))
    if o.get('diag', 0) == 2: a.stamp(8)
    a.vwait('WQ')
    if o.get('diag', 0) == 2: a.stamp(9)
    a('s_barrier')
    a.stamp(1)
    a('s_lshl_b32 s60, s11, 8')
    a('v_add_u32 v13, s60, v5')
    for ks in range(4):
        a.d('ds_read_b128 %s, v13 offset:%d' % (R(52 + 4 * ks - 16 + 16, 4), ks * 64) if False else 'ds_read_b128 %s, v13 offset:%d' % (R(16 + 4 * ks, 4), ks * 64), 'a%d' % ks)
        for rdi in range(2):
            a.d('ds_read_b64_tr_b16 %s, v4 offset:%d' % (R(36 + 4 * ks + 2 * rdi, 2), ks * 8192 + rdi * 1024), 'a%d' % ks)
    a('v_mov_b32 v12, 0x%x' % NB)
    a.d('ds_read_b32 v53, v12', 'n')
    a('''
    s_lshl_b32 s60, s10, 12
    s_lshl_b32 s61, s3, 7
    s_add_u32 s60, s60, s61
    s_add_u32 s60, s60, 0x%x          ; QP + h*4096 + w*128
    s_lshl_b32 s61, s11, 10
    s_add_u32 s61, s61, s60           ; + j*1024
    v_lshlrev_b32 v12, 3, v7          ; d*8
    v_lshl_add_u32 v13, v6, 10, v12   ; jj*1024 + d*8
    v_cmp_ne_u32 s[64:65], s11, v6    ; lanes of the other three
    ''' % QP)
    for ks in range(4):
        a.dwait('a%d' % ks)
        a('v_mfma_f32_16x16x32_bf16 v[32:35], %s, %s, %s' % (R(16 + 4 * ks, 4), R(36 + 4 * ks, 4), 'v[32:35]' if ks else '0'))
    a.dall()
    a('''
    s_lshl_b32 s62, s3, 5
    s_add_u32 s62, s62, 0x%x
    v_lshl_add_u32 v15, v7, 1, s62    ; QB + (16w + d)*2
    v_mov_b32 v55, v53
    v_mov_b32 v52, v32
    v_mov_b32 v54, v32
    s_mov_b64 exec, 0xffff
    buffer_store_dwordx2 v[52:53], v12, s[44:47], s61 offen sc1
    ''' % QB)
    def eflag():
        a('''
        s_or_b32 s5, s3, s11
        s_cmp_lg_u32 s5, 0
        s_cbranch_scc1 L_Wef
        s_lshl_b32 s5, s10, 7
        s_add_u32 s5, s5, 0x10000
        s_mov_b64 exec, 0xffff
        v_mov_b32 v52, v53
        buffer_store_dwordx2 v[52:53], v12, s[44:47], s5 offen sc1
        L_Wef:
        ''')
    EF = o.get('ef', 1)
    if EF == 0: eflag()
    if o.get('qpack', 1): a('s_waitcnt vmcnt(0)')
    if EF == 3: eflag()
    a.stamp(2)
    a('''
    s_mov_b32 s62, 0
    L_Wq:
    s_mov_b64 exec, s[64:65]
    buffer_load_dwordx2 v[54:55], v13, s[44:47], s60 offen sc1
    s_add_u32 s62, s62, 1
    s_waitcnt vmcnt(0)
    v_cmp_ne_u32 s[64:65], v55, v53
    s_cmp_gt_u32 s62, SPIN_N
    s_cbranch_scc1 L_Wq_x
    s_cmp_lg_u64 s[64:65], 0
    s_cbranch_scc1 L_Wq
    L_Wq_x:
    ''')
    if EF == 1: eflag()
    a('s_mov_b64 exec, -1')
    a.vm = []
    for ks in range(4):
        a.d('ds_read_b128 %s, v%d' % (R(16 + 4 * ks, 4), 64 + ks), 'uk')
    a.swap_red('v_add_f32', 54, 55, 16)
    a.swap_red('v_add_f32', 54, 55, 32)
    a('''
    v_cvt_pk_bf16_f32 v54, v54, v54
    ds_write_b16 v15, v54
    ''')
    a.dall()
    a('s_barrier')
    a.stamp(3)
    for ks in range(4):
        a.d('ds_read_b128 %s, v5 offset:%d' % (R(36 + 4 * ks, 4), QB - SM + ks * 64), 'a%d' % ks)
    a('''
    s_lshl_b32 s14, s3, 5
    s_add_u32 s14, s14, 0x%x
    v_lshl_add_u32 v13, v6, 3, s14    ; QO + w*32 + q*8
    v_lshlrev_b32 v12, 4, v7
    v_add_u32 v15, 0x%x, v12          ; QO + (l%%16)*16
    s_lshl_b32 s14, s68, 8
    s_lshl_b32 s15, s68, QCSH
    s_add_u32 s15, s15, 0x%x
    v_add_u32 v56, s14, v12
    v_add_u32 v57, s15, v12
    v_cndmask_b32 v56, v56, v57, s[52:53]
    ''' % (QO, QO, QC))
    for ks in range(4):
        a.dwait('a%d' % ks)
        a('v_mfma_f32_16x16x32_bf16 v[32:35], %s, %s, %s' % (R(16 + 4 * ks, 4), R(36 + 4 * ks, 4), 'v[32:35]' if ks else '0'))
    sc = f2u(128 ** -0.5 * math.log2(math.e))
    a('''
    v_mul_f32 v32, 0x%x, v32
    v_mul_f32 v33, 0x%x, v33
    v_mul_f32 v34, 0x%x, v34
    v_mul_f32 v35, 0x%x, v35
    v_cvt_pk_bf16_f32 v32, v32, v33
    v_cvt_pk_bf16_f32 v33, v34, v35
    ds_write_b64 v13, v[32:33]
    s_waitcnt lgkmcnt(0)
    s_barrier
    s_cmp_lg_u32 s3, 0
    s_cbranch_scc1 L_Wpub
    ds_read_b128 v[32:35], v15
    s_waitcnt lgkmcnt(0)
    v_add3_u32 v36, v32, v33, v34
    v_add_u32 v36, v36, v35
    ''' % (sc, sc, sc, sc))
    a.wave_red('v_add_u32', 36, 37, rows_only=True)
    a('''
    v_sub_u32 v36, v53, v36
    v_cndmask_b32 v32, v32, v36, s[52:53]
    v_cndmask_b32 v33, v33, v53, s[52:53]
    s_mov_b64 exec, QCEX
    buffer_store_dwordx4 v[32:35], v56, s[44:47], 0 offen sc1
    s_mov_b64 exec, -1
    L_Wpub:
    s_barrier
    ''')
    a.stamp(4)
    WW = o.get('wwin', 3)
    W1L, W2L, WOL = 0x8000, 0xC000, 0x10000
    a.srd(40, WUV, 0x400000)
    a.srd(48, WO, 0x400000)
    a("""
    s_mov_b32 s16, s30
    s_mov_b32 s17, s31
    s_mov_b32 s18, %d
    s_mov_b32 s19, 0x20000
    s_mov_b32 s20, s32
    s_mov_b32 s21, s33
    s_mov_b32 s22, %d
    s_mov_b32 s23, 0x20000
    v_readfirstlane_b32 s4, v53
    v_lshrrev_b32 v12, 3, v1          ; r8
    v_and_b32 v13, 7, v1              ; c8
    v_lshlrev_b32 v70, 4, v13
    v_lshl_add_u32 v70, v12, 10, v70  ; r8*1024 + c8*16   (w2 voff)
    v_bfe_u32 v15, v1, 4, 1
    v_lshlrev_b32 v15, 5, v15
    v_xor_b32 v68, v70, v15           ; voffC
    v_xor_b32 v69, 64, v68            ; voffD
    v_mul_u32_u24 v10, 2752, v6
    s_and_b32 s60, s3, 1
    s_lshl_b32 s60, s60, 7
    v_xor_b32 v13, s60, v8
    v_add_u32 v10, v10, v13           ; w1 voff
    s_lshl_b32 s24, s8, 3
    s_add_u32 s24, s24, s3
    s_mul_i32 s24, s24, %d
    s_lshl_b32 s60, s9, 8
    s_add_u32 s24, s24, s60           ; w1 source
    s_lshl_b32 s25, s12, 14
    s_lshl_b32 s60, s3, 7
    s_add_u32 s25, s25, s60           ; w2 source (out of range when not an FFN workgroup)
    s_cmp_lt_u32 s12, 88
    s_cselect_b32 s24, s24, 0x1000000
    s_lshl_b32 s26, s3, 11            ; LDS w*2048
    v_lshl_add_u32 v2, v6, 17, v8
    v_xor_b32 v3, 0x80, v2
    s_lshl_b32 s27, s11, 5
    s_add_u32 s27, s27, s3
    s_lshl_b32 s27, s27, 14
    s_add_u32 s27, s27, s13           ; uv source
    s_lshl_b32 s28, s3, 12            ; LDS w*4096
    s_lshl_b32 s14, s10, 17
    s_lshl_b32 s15, s3, 7
    s_add_u32 s14, s14, s15           ; wo source
    s_lshl_b32 s15, s3, 13
    s_add_u32 s15, s15, 0x%x          ; wo LDS
    v_lshrrev_b32 v71, 2, v7
    v_lshl_add_u32 v71, v6, 3, v71
    v_lshlrev_b32 v71, 7, v71
    v_and_b32 v13, 3, v1
    v_lshl_add_u32 v71, v13, 3, v71
    v_bfe_u32 v13, v1, 3, 2
    v_lshl_add_u32 v71, v13, 5, v71
    v_add_u32 v71, s15, v71
    """ % (512 * 2752, 1376 * 1024, 8 * 2752, WOL))
    a.vm = []
    WOF = 72
    cnt = [0]
    def op(kind, n):
        a.vwait_n((WW if cnt[0] < o.get('wsw', 99) else o.get('wwinb', 4)) - 1)
        cnt[0] += 1
        if kind == 'w1':
            a('s_add_u32 m0, s26, 0x%x' % (W1L + n * 1024)); a('s_add_u32 s60, s24, %d' % (n * 4 * 2752))
            a.v('buffer_load_dwordx4 v10, s[16:19], s60 offen nt lds', 'F')
        elif kind == 'w2':
            a('s_add_u32 m0, s26, 0x%x' % (W2L + n * 1024)); a('s_add_u32 s60, s25, %d' % (n * 8192))
            a.v('buffer_load_dwordx4 v70, s[20:23], s60 offen nt lds', 'F')
        elif kind == 'uv':
            a('s_add_u32 m0, s28, %d' % (n * 1024)); a('s_add_u32 s60, s27, %d' % ((256 * (n & 1) + (n >> 1)) * 8192))
            a.v('buffer_load_dwordx4 v%d, s[40:43], s60 offen nt lds' % (2 if n < 2 else 3), 'U')
        else:
            a('s_add_u32 m0, s15, %d' % ((n % 8) * 1024)); a('s_add_u32 s60, s14, %d' % (n * 8192))
            a.v('buffer_load_dwordx4 v%d, s[48:51], s60 offen %s lds' % (68 if n % 2 == 0 else 69, WOPOL), 'O%d' % (n // 4))
    def wo_read(ks):
        if ('O%d' % ks) in a.vm: a.vwait('O%d' % ks)
        for mt in range(4):
            a('v_xor_b32 v13, 0x%x, v71' % (mt * 32))
            for rdi in range(2):
                a.d('ds_read_b64_tr_b16 %s, v13 offset:%d' % (R(WOF + (mt * 4 + ks) * 4 + 2 * rdi, 2), (ks % 2) * 4096 + rdi * 512), 'wo')
        a.dall()
    def ffn1():
        if 'F' in a.vm: a.vwait('F')
        a('s_barrier')
        a.stamp(10)
        a("""
        s_cmp_ge_u32 s12, 88
        s_cbranch_scc1 L_Wnf2
        s_lshl_b32 s60, s8, 7
        v_add_u32 v13, s60, v5            ; xn + 64x*2 + g*16
        v_add_u32 v15, 0x8000, v4
        """)
        for ks in range(2):
            a('ds_read_b128 %s, v13 offset:%d' % (R(52 + 4 * ks, 4), ks * 64))
            for rdi in range(2):
                a('ds_read_b64_tr_b16 %s, v15 offset:%d' % (R(36 + 4 * ks + 2 * rdi, 2), ks * 8192 + rdi * 1024))
        a("""
        v_lshrrev_b32 v12, 2, v1
        v_and_b32 v13, 3, v1
        v_lshlrev_b32 v13, 3, v13
        v_lshl_add_u32 v12, v12, 7, v13
        s_lshl_b32 s60, s3, 11
        s_add_u32 s60, s60, 0x%x
        v_add_u32 v12, s60, v12
        s_waitcnt lgkmcnt(0)
        v_mfma_f32_16x16x32_bf16 v[32:35], v[52:55], v[36:39], 0
        v_mfma_f32_16x16x32_bf16 v[32:35], v[56:59], v[40:43], v[32:35]
        """ % W2L)
        for mt in range(4):
            a('ds_read_b64_tr_b16 %s, v12 offset:%d' % (R(44 + 2 * mt, 2), mt * 32))
        a("""
        s_lshl_b32 s60, s12, 10
        s_lshl_b32 s61, s3, 7
        s_add_u32 s60, s60, s61
        s_add_u32 s60, s60, 0x%x          ; HP + (8k+x)*1024 + w*128
        v_lshlrev_b32 v12, 3, v7
        v_mov_b32 v33, s4
        s_mov_b64 exec, 0xffff
        buffer_store_dwordx2 v[32:33], v12, s[44:47], s60 offen sc1
        s_mov_b64 exec, -1
        L_Wnf2:
        s_waitcnt lgkmcnt(0)
        """ % HP)
        a.lg = []
    def ffn2():
        a('''
        s_cmp_ge_u32 s12, 86
        s_cbranch_scc1 L_Wnf3
        s_lshl_b32 s60, s9, 13
        s_lshl_b32 s61, s8, 7
        s_add_u32 s60, s60, s61
        s_add_u32 s60, s60, 0x%x          ; HP + k*8192 + x*128
        v_and_b32 v12, 7, v1
        v_lshlrev_b32 v12, 10, v12
        v_lshl_add_u32 v12, v6, 5, v12    ; producer*1024 + g*32
        s_mov_b32 s61, 0
        L_Wh:
        buffer_load_dwordx4 v[52:55], v12, s[44:47], s60 offen sc1
        buffer_load_dwordx4 v[56:59], v12, s[44:47], s60 offen offset:16 sc1
        s_add_u32 s61, s61, 1
        s_waitcnt vmcnt(0)
        v_xor_b32 v13, v53, v55
        v_xor_b32 v14, v57, v59
        v_xor_b32 v15, s4, v53
        v_or3_b32 v13, v13, v14, v15
        v_xor_b32 v14, v53, v57
        v_or_b32 v13, v13, v14
        v_cmp_ne_u32 vcc, 0, v13
        s_cmp_gt_u32 s61, SPIN_N
        s_cbranch_scc1 L_Wh_x
        s_cbranch_vccnz L_Wh
        L_Wh_x:
        ''' % HP)
        for m in ('quad_perm:[1,0,3,2]', 'quad_perm:[2,3,0,1]', 'row_half_mirror'):
            for r in range(4):
                a('v_add_f32_dpp v%d, v%d, v%d %s row_mask:0xf bank_mask:0xf' % (52 + 2 * r, 52 + 2 * r, 52 + 2 * r, m))
        for r in range(4):
            a.rnd_bf16(52 + 2 * r)
            a.silu(52 + 2 * r, 53)
        a('v_cvt_pk_bf16_f32 v32, v52, v54')
        a('v_cvt_pk_bf16_f32 v33, v56, v58')
        for mt in range(4):
            a('v_mfma_f32_16x16x16_bf16 %s, v[32:33], %s, 0' % (R(52 + 4 * mt, 4), R(44 + 2 * mt, 2)))
        a('''
        v_cndmask_b32 v52, v52, v56, s[52:53]
        v_cndmask_b32 v52, v52, v60, s[54:55]
        v_cndmask_b32 v52, v52, v64, s[56:57]
        buffer_store_dword v52, v11, s[44:47], s66 offen sc1
        L_Wnf3:
        ''')
        a('s_waitcnt vmcnt(0)')
        a.vm = []
    seqs = {
        0: 'a0 o0 a1 o1 b0 o2 b1 o3 o4 o5 u0 F o6 o7 R0 o8 o9 u1 o10 o11 R1 o12 o13 u2 o14 o15 u3 R2 G R3',
        1: 'a0 a1 b0 b1 o0 o1 o2 o3 F o4 o5 o6 o7 R0 o8 o9 u0 o10 o11 u1 R1 o12 o13 u2 o14 o15 u3 R2 G R3',
        3: 'o0 o1 o2 o3 a0 o4 a1 o5 b0 o6 b1 o7 R0 o8 o9 u0 F o10 o11 u1 R1 o12 o13 u2 o14 o15 u3 R2 R3',
        2: 'o0 o1 o2 o3 a0 o4 a1 o5 b0 o6 b1 o7 R0 o8 o9 u0 F o10 o11 u1 R1 o12 o13 u2 o14 o15 u3 R2 G R3',
    }
    for t in seqs[o.get('wseq', 2)].split():
        if t == 'F': ffn1()
        elif t == 'G': ffn2()
        elif t[0] == 'R': wo_read(int(t[1:]))
        else: op({'a': 'w1', 'b': 'w2', 'u': 'uv', 'o': 'wo'}[t[0]], int(t[1:]))
    for p in range(4):
        a('v_cmp_eq_u32 vcc, %d, v7' % (2 * p))
        a('v_mov_b32 v%d, 0' % (56 + p))
        a('v_mov_b32 v64, 0xffff')
        a('v_cndmask_b32 v%d, v%d, v64, vcc' % (56 + p, 56 + p))
        a('v_cmp_eq_u32 vcc, %d, v7' % (2 * p + 1))
        a('v_mov_b32 v64, 0xffff0000')
        a('v_cndmask_b32 v%d, v%d, v64, vcc' % (56 + p, 56 + p))
        for i in range(4): a('v_and_b32 v%d, 0x3f803f80, v%d' % (136 + 4 * i + p, 56 + p))
    a("""
    v_lshrrev_b32 v64, 1, v6
    v_mul_u32_u24 v64, 0x%x, v64
    v_lshl_add_u32 v64, v7, 4, v64
    v_and_b32 v65, 1, v6
    v_lshl_add_u32 v64, v65, 3, v64
    s_mul_i32 s60, s3, 288
    s_add_u32 s60, s60, 0x%x
    v_add_u32 v64, s60, v64
    v_and_b32 v65, 7, v1
    v_mul_u32_u24 v65, 288, v65
    v_add_u32 v65, v65, v5
    s_lshl_b32 s60, s3, 5
    s_add_u32 s60, s60, 0x%x
    v_lshl_add_u32 v66, v7, 1, s60
    """ % (8 * 288, ROWS, CB))
    a('s_waitcnt vmcnt(0)')
    a('s_barrier')
    a.stamp(5)
    for ks in range(4):
        for rdi in range(2):
            a.d('ds_read_b64_tr_b16 %s, v4 offset:%d' % (R(16 + 4 * ks + 2 * rdi, 2), ks * 8192 + rdi * 1024), 'uv')
    a.dall()
    a.stamp(6)
    a('''
    v_lshlrev_b32 v14, 11, v7
    s_lshl_b32 s60, s3, 3
    s_add_u32 s60, s60, 0x%x
    v_mov_b32 v70, s60                ; LW + w*8
    v_and_b32 v71, 7, v1
    v_lshlrev_b32 v71, 3, v71
    v_add_u32 v71, 0x%x, v71          ; LW + (l%%8)*8
    v_and_b32 v12, 3, v1
    v_cmp_eq_u32 s[64:65], v12, v6
    s_mov_b32 s60, 0
    s_mov_b64 s[62:63], -1
    L_Wg1:
    s_sleep ML_SLEEP
    s_mov_b64 exec, s[62:63]
    buffer_load_dwordx4 v[52:55], v14, s[44:47], s67 offen sc1
    s_add_u32 s60, s60, 1
    s_waitcnt vmcnt(0)
    v_cmp_ne_u32 s[62:63], s4, v55
    s_cmp_gt_u32 s60, SPIN_N
    s_cbranch_scc1 L_Wg
    s_cmp_lg_u64 s[62:63], 0
    s_cbranch_scc1 L_Wg1
    ''' % (LW, LW))
    a.label('L_Wg')
    a('s_mov_b64 exec, -1')
    for i in range(4):
        a('buffer_load_dwordx4 %s, v9, s[44:47], s69 offen offset:%d sc1' % (R(36 + 4 * i, 4), i * 1024))
    a("""
    s_add_u32 s60, s60, 1
    v_subrev_u32 v15, s4, v54
    v_add3_u32 v15, v15, v52, v53
    v_cndmask_b32 v15, 0, v15, s[64:65]
    v_cmp_neq_f32 vcc, 0, v52
    s_cbranch_vccnz L_Wgen
    """)
    a.label('L_Wj')
    a.wave_red('v_add_f32', 53, 12, rows_only=True)
    a('ds_write_b64 v70, v[52:53]')
    for i in range(4):
        a('s_waitcnt vmcnt(%d)' % (3 - i))
        a('v_mfma_f32_16x16x32_bf16 v[32:35], %s, %s, %s' % (R(136 + 4 * i, 4), R(36 + 4 * i, 4), 'v[32:35]' if i else '0'))
        a('v_add3_u32 v15, v15, v%d, v%d' % (36 + 4 * i, 37 + 4 * i))
        a('v_add3_u32 v15, v15, v%d, v%d' % (38 + 4 * i, 39 + 4 * i))
    a("""
    v_add_u32_dpp v15, v15, v15 quad_perm:[1,0,3,2] row_mask:0xf bank_mask:0xf
    v_add_u32_dpp v15, v15, v15 quad_perm:[2,3,0,1] row_mask:0xf bank_mask:0xf
    v_cvt_pk_bf16_f32 v32, v32, v33
    v_cvt_pk_bf16_f32 v33, v34, v35
    v_add_u32_dpp v15, v15, v15 row_half_mirror row_mask:0xf bank_mask:0xf
    ds_write_b64 v64, v[32:33]
    v_add_u32_dpp v15, v15, v15 row_mirror row_mask:0xf bank_mask:0xf
    v_cmp_ne_u32 vcc, 0, v15
    s_cbranch_vccnz L_Wretry
    L_Wg_x:
    """)
    a.stamp(7)
    if a.stamps:
        a('s_mul_i32 s92, s60, 100')
        a('s_add_u32 s92, s92, s70')
        a('s_addc_u32 s93, s71, 0')
    a("""
    s_waitcnt lgkmcnt(0)
    s_barrier
    """)
    a.stamp(8)
    for ks in range(4):
        a.d('ds_read_b128 %s, v65 offset:%d' % (R(36 + 4 * ks, 4), ROWS - SM + ks * 64), 'a%d' % ks)
    a.d('ds_read_b64 v[52:53], v71', 'lw')
    for ks in range(4):
        a.dwait('a%d' % ks)
        a('v_mfma_f32_16x16x32_bf16 v[32:35], %s, %s, %s' % (R(36 + 4 * ks, 4), R(16 + 4 * ks, 4), 'v[32:35]' if ks else '0'))
    a.dall()
    a('''
    v_cmp_neq_f32 vcc, 0, v52
    s_cbranch_vccnz L_Wgen2
    L_Wj2:
    v_add_f32_dpp v53, v53, v53 quad_perm:[1,0,3,2] row_mask:0xf bank_mask:0xf
    s_nop 1
    v_add_f32_dpp v53, v53, v53 quad_perm:[2,3,0,1] row_mask:0xf bank_mask:0xf
    s_nop 1
    v_add_f32_dpp v53, v53, v53 row_half_mirror row_mask:0xf bank_mask:0xf
    v_add_f32 v32, v32, v33
    v_add_f32 v34, v34, v35
    v_rcp_f32 v67, v53
    v_add_f32 v32, v32, v34
    ''')
    a.swap_red('v_add_f32', 32, 33, 16)
    a('''
    v_mul_f32 v32, v32, v67
    v_cvt_pk_bf16_f32 v32, v32, v32
    ds_write_b16 v66, v32
    s_waitcnt lgkmcnt(0)
    s_barrier
    ''')
    for ks in range(4):
        a.d('ds_read_b128 %s, v5 offset:%d' % (R(36 + 4 * ks, 4), CB - SM + ks * 64), 'a%d' % ks)
    for ks in range(4):
        a.dwait('a%d' % ks)
        for mt in range(4):
            a('v_mfma_f32_16x16x32_bf16 %s, %s, %s, %s' % (R(16 + 4 * mt, 4), R(36 + 4 * ks, 4), R(WOF + (mt * 4 + ks) * 4, 4), R(16 + 4 * mt, 4) if ks else '0'))
    a('''
    v_cndmask_b32 v16, v16, v20, s[52:53]
    v_cndmask_b32 v16, v16, v24, s[54:55]
    v_cndmask_b32 v16, v16, v28, s[56:57]
    buffer_store_dword v16, v11, s[44:47], s58 offen sc1
    ''')
    a.stamp(9)
    if a.stamps:
        a('s_cmp_lg_u32 s3, %d' % o.get('stw', 0))
        a('s_cbranch_scc1 L_end')
        a.write_stamps()
    a('s_endpgm')

def role_Wslow(a, o):
    a.aslow()
    a.label('L_Wgen')
    a('v_mov_b32 v12, v52')
    a.wave_red('v_max_f32', 12, 13, rows_only=True)
    a('''
    v_sub_f32 v54, v52, v12
    v_exp_f32 v54, v54
    v_mov_b32 v52, v12                ; Mw
    v_and_b32 v54, 0xffff0000, v54
    v_mul_f32 v53, v53, v54
    v_lshrrev_b32 v55, 16, v54
    v_or_b32 v54, v54, v55
    v_lshlrev_b32 v13, 2, v6
    ''')
    for i in range(4):
        a('ds_bpermute_b32 v12, v13, v54 offset:%d' % (16 * i))
        a('s_waitcnt lgkmcnt(0)')
        for p in range(4):
            a('v_and_b32 v%d, v12, v%d' % (136 + 4 * i + p, 56 + p))
    a('s_nop 1')
    a('s_branch L_Wj')
    a('''
    L_Wretry:
    s_cmp_gt_u32 s60, SPIN_N
    s_cbranch_scc1 L_Wg_x
    s_mov_b64 s[62:63], -1
    ''')
    for p in range(4):
        for i in range(4): a('v_and_b32 v%d, 0x3f803f80, v%d' % (136 + 4 * i + p, 56 + p))
    a('s_branch L_Wg1')
    a.label('L_Wgen2')
    a('''
    v_mov_b32 v12, v52
    v_max_f32_dpp v12, v12, v12 quad_perm:[1,0,3,2] row_mask:0xf bank_mask:0xf
    v_max_f32_dpp v12, v12, v12 quad_perm:[2,3,0,1] row_mask:0xf bank_mask:0xf
    v_max_f32_dpp v12, v12, v12 row_half_mirror row_mask:0xf bank_mask:0xf
    v_sub_f32 v54, v52, v12
    v_exp_f32 v54, v54
    v_and_b32 v13, 1, v6
    v_lshlrev_b32 v13, 4, v13
    v_mul_f32 v53, v53, v54
    ''')
    for r in range(4):
        a('ds_bpermute_b32 v12, v13, v54 offset:%d' % (4 * r))
        a('s_waitcnt lgkmcnt(0)')
        a('v_mul_f32 v%d, v%d, v12' % (32 + r, 32 + r))
    a('s_nop 1')
    a('s_branch L_Wj2')

def gen(stamps=False, o=None):
    o = o or {}
    a = G(stamps)
    prologue(a, o)
    role_W(a, o)
    role_A(a, o)
    role_final(a, o)
    role_As(a, o)
    role_Wslow(a, o)
    a.label('L_end')
    txt = a.text()
    for k, v in (('QT_SLEEP', o.get('qtsleep', 1)), ('QT_THR', o.get('qtthr', 2)), ('REP_MASK', o.get('repmask', '0x00010001' if o.get('ef', 1) == 2 else '0xff')), ('LSPIN', 200000), ('SPIN_N', SPIN),
                 ('ML_SLEEP', o.get('mlsleep', 1)), ('FIN_SLEEP', o.get('finsleep', 0)), ('UKGATE', o.get('ukgate', 3))):
        txt = txt.replace(k, str(v))
    txt = txt.replace('W1A ', '; ' if o.get('now1', 0) else '')
    txt = txt.replace('PTA ', '' if o.get('pre', 0) else '; ').replace('ML_OFF', '0x%x' % ML)
    qs = o.get('qcsh', 5)
    txt = txt.replace('QCSH+5', str(qs + 5)).replace('QCSH', str(qs)).replace('QCEX', {4: '0x1ffff', 5: '0x3ffff', 6: '0xfffff', 7: '0xffffff'}[qs]).replace('REP_N', str(o.get('repn', 1)))
    txt = txt.replace('NODEP ', '' if o.get('nodep', 0) else '; ')
    if o.get('nodep', 0): txt = txt.replace('s_or_b32 s14, vcc_lo, vcc_hi', 's_mov_b32 s14, 0')
    if o.get('now1', 0): txt = txt.replace('buffer_load_dwordx4 v14, s[40:43], s14 offen', '; ').replace('buffer_load_dwordx4 v14, s[40:43], s60 offen', '; ')
    txt = txt.replace('OUTPT ', '' if o.get('outpt', 1) else '; ')
    txt = txt.replace('REPBASE', 's11' if o.get('ef', 1) == 2 else 's68')
    txt = txt.replace('AMIX ', '' if o.get('amix', 0) else '; ')
    rm = o.get('remap', 0)
    if rm:
        sh = rm + 2
        code = '''    s_cbranch_scc1 L_end
    s_bfe_u32 s8, s2, 0x%x
    s_lshl_b32 s8, s8, 7
    s_and_b32 s9, s2, 0x%x
    s_lshr_b32 s2, s2, %d
    s_lshl_b32 s2, s2, %d
    s_or_b32 s2, s2, s9
    s_or_b32 s2, s2, s8
''' % ((1 << 16) | sh, (1 << sh) - 1, sh + 1, sh)
        txt = txt.replace('    s_cbranch_scc1 L_end\n', code, 1)
    body = hz.fix(txt)
    return kernel_file([(KN + '_kernel', 256, 512, 163840)], [(KN + '_kernel', body, 256, 96, 256)])

if __name__ == '__main__':
    out = sys.argv[1]
    stamps = 'stamps' in sys.argv[2:]
    o = {}
    for kv in sys.argv[2:]:
        if '=' in kv:
            k, v = kv.split('=')
            o[k] = int(v) if v.lstrip('-').isdigit() else v.replace('_', ' ')
    open(out, 'w').write(gen(stamps, o))
```

```python
from gen14 import *

RLB = STG + 0x2000
RB = STG + 0x3100
HP = 0x504000

def role_A(a, o):
    AW = o.get('awin', 8); AW0 = o.get('awin0', 1); AN0 = o.get('an0', 3); NPRE = o.get('npre', 20)
    a.label('L_A')
    a.stamps_hold = False
    a.vm = []; a.lg = []; a.slow = []
    common2(a)
    a.srd(40, CKV, 0x2000000)
    def voffs(x, y):
        a('''
        v_mbcnt_lo_u32_b32 v%d, -1, 0
        v_mbcnt_hi_u32_b32 v%d, -1, v%d
        v_lshrrev_b32 v%d, 4, v%d
        v_and_b32 v%d, 15, v%d
        v_lshlrev_b32 v%d, 4, v%d
        v_mul_u32_u24 v%d, 0x440, v%d
        v_xor_b32 v%d, v%d, v%d
        v_xor_b32 v%d, 32, v%d
        ''' % (x, x, x, y, x, x, x, x, x, y, y, x, x, y, y, x))
    voffs(3, 0)
    a("""
    s_and_b32 s59, s2, 7
    s_lshl_b32 s59, s59, 4
    s_lshr_b32 s8, s2, 3
    s_add_u32 s59, s59, s8            ; p
    s_lshl_b32 s8, s59, 18
    s_cmp_ge_u32 s3, 4
    s_cbranch_scc1 L_As
    s_lshl_b32 s9, s3, 14
    s_add_u32 s8, s8, s9
    s_lshl_b32 s10, s3, 8
    s_or_b32 s66, s8, s10
    s_lshl_b32 s10, s3, 10
    s_or_b32 s67, s9, s10
    AMIX s_and_b32 s10, s3, 1
    AMIX s_lshl_b32 s10, s10, 13
    AMIX s_or_b32 s66, s66, s10
    AMIX s_or_b32 s67, s67, s10
    s_mov_b32 s15, 0
    v_mov_b32 v10, 0
    v_mov_b32 v11, 0
    """)
    def dma_one(i, seg, aa, win=None):
        if win is not None: a.vwait_n(win - 1)
        a('s_xor_b32 m0, s67, 0x%x' % ((i % 2) * 65536 + aa * 4096 + seg * 1024))
        a('s_xor_b32 s10, s66, 0x%x' % (i * 65536 + aa * 4096 + seg * 256))
        a.v('buffer_load_dwordx4 v%d, s[40:43], s10 offen nt lds' % (3 if aa < 2 else 0), 'C%d' % i)
    a.label('L_Apass')
    a('''
    AMIX s_and_b32 s10, s3, 1
    AMIX s_lshl_b32 s10, s10, 5
    AMIX v_xor_b32 v3, s10, v3
    AMIX v_xor_b32 v0, s10, v0
    ''')
    a.vm = []
    first = [(i, seg, aa) for i in range(2) for aa in range(4) for seg in range(4)]
    for n in range(AW0): dma_one(*first[n])
    a("""
    v_mbcnt_lo_u32_b32 v1, -1, 0
    v_mbcnt_hi_u32_b32 v1, -1, v1
    v_lshrrev_b32 v16, 4, v1          ; g / q
    v_and_b32 v17, 15, v1             ; l%%16
    v_lshlrev_b32 v5, 4, v1
    v_add_u32 v5, 0x%x, v5            ; p_rd
    v_lshlrev_b32 v18, 4, v16
    v_xor_b32 v32, v5, v18            ; q frag read (even ks)
    v_xor_b32 v33, 64, v32            ; (odd ks)
    ; p_wr = PB + (w>>1)*2048 + (2(w&1) + (q>>1))*256 + h16*16 + (q&1)*8
    s_lshr_b32 s10, s3, 1
    s_lshl_b32 s10, s10, 11
    s_and_b32 s11, s3, 1
    s_lshl_b32 s11, s11, 9
    s_add_u32 s10, s10, s11
    s_add_u32 s10, s10, 0x%x
    v_lshrrev_b32 v18, 1, v16         ; q>>1
    v_lshlrev_b32 v19, 8, v18
    v_lshl_add_u32 v19, v17, 4, v19
    v_and_b32 v20, 1, v16             ; q&1
    v_lshl_add_u32 v19, v20, 3, v19
    v_add_u32 v4, s10, v19
    ; pv addr: (g>>1)*16384 + 2(g&1)*4096 + w*1024 + r*256 + ((c'/2) ^ ((r<<2) | 2(g&1)))*16 + (c'&1)*8
    v_lshrrev_b32 v21, 2, v17         ; r (pv) / a (qk)
    v_bfe_u32 v22, v1, 1, 1
    v_lshl_add_u32 v22, v20, 1, v22
    v_lshl_add_u32 v22, v21, 2, v22
    v_lshlrev_b32 v22, 4, v22
    v_lshl_add_u32 v22, v21, 8, v22
    v_lshl_add_u32 v22, v20, 13, v22
    v_lshl_add_u32 v22, v18, 14, v22
    v_and_b32 v23, 1, v1
    v_lshl_add_u32 v22, v23, 3, v22
    s_lshr_b32 s10, s3, 1
    s_lshl_b32 s10, s10, 10
    s_and_b32 s11, s3, 1
    s_lshl_b32 s11, s11, 7
    s_or_b32 s10, s10, s11
    v_xor_b32 v2, s10, v22
    ; qk addr: w*16384 + a*4096 + r*256 + ((r<<2) | (g ^ (a&2)))*16
    v_and_b32 v22, 3, v17
    v_and_b32 v23, 2, v21
    v_xor_b32 v23, v23, v16
    v_lshl_add_u32 v23, v22, 2, v23
    v_lshlrev_b32 v23, 4, v23
    v_lshl_add_u32 v23, v22, 8, v23
    v_lshl_add_u32 v23, v21, 12, v23
    v_add_u32 v12, s9, v23
    v_xor_b32 v13, 64, v12
    v_xor_b32 v14, 0x80, v12
    v_xor_b32 v15, 0xc0, v12
    v_mov_b32 v6, 0
    v_mov_b32 v7, 0
    v_mov_b32 v8, 0xff800000
    v_mov_b32 v9, 0xff800000
    """ % (PB, PB))
    SS = [[16, 20], [24, 28]]; P = [32, 36, 40, 44]; XQ = [48, 52, 56, 60]
    def O(hh, ct): return 64 + (hh * 8 + ct) * 4
    def QF(hh, ks): return 128 + (hh * 16 + ks) * 4
    def s_init(i, hh):
        for r in range(4): a('v_mov_b32 v%d, v%d' % (SS[i % 2][hh] + r, 10 + hh))
    s_init(0, 0); s_init(0, 1); s_init(1, 0); s_init(1, 1)
    for n in range(AW0, NPRE): dma_one(*first[n], AW0 if n < AN0 else AW)
    def hcheck(need):
        lab = a.newlabel('L_Ahc')
        a('s_cmp_ge_u32 s62, %d' % need)
        a('s_cbranch_scc0 %s' % lab)
        a.label(lab + 'b')
        a.slow.append('''
        %s:
        s_mov_b32 s11, 0
        %sl:
        ds_read_b32 v1, v3 offset:32
        s_add_u32 s11, s11, 1
        s_waitcnt lgkmcnt(0)
        v_readfirstlane_b32 s62, v1
        s_sub_u32 s62, s62, s57
        s_cmp_gt_u32 s62, 15
        s_cselect_b32 s62, 0, s62
        s_cmp_gt_u32 s11, LSPIN
        s_cbranch_scc1 %sb
        s_cmp_lt_u32 s62, %d
        s_cbranch_scc1 %sl
        s_branch %sb
        ''' % (lab, lab, lab, need, lab, lab))
    def pcheck(off=0, redo=''):
        lab = a.newlabel('L_Apc')
        a('v_subrev_u32 v1, s63, v1')
        a('v_cmp_lt_u32 vcc, 7, v1')
        a('s_cbranch_vccnz %s' % lab)
        a.label(lab + 'b')
        a.slow.append('''
        %s:
        s_mov_b32 s11, 0
        %sl:
        ds_read_b32 v1, v0 offset:%d
        s_add_u32 s11, s11, 1
        s_waitcnt lgkmcnt(0)
        v_subrev_u32 v1, s63, v1
        v_cmp_lt_u32 vcc, 7, v1
        s_cmp_gt_u32 s11, LSPIN
        s_cbranch_scc1 %sr
        s_cbranch_vccnz %sl
        %sr:
        %s
        s_branch %sb
        ''' % (lab, lab, off, lab, lab, lab, redo, lab))
    pairs = [SS[1], XQ[0:2], XQ[2:4]]
    KB = pairs[2] + pairs[0] + pairs[1] + P + pairs[2] + P
    def kbuf(g):
        if g < 16: return 64 + 4 * g
        if g < 19: return P[g - 15]
        if g < 32: return 64 + 4 * (g - 16)
        return KB[g % 16]
    def sreg(g, hh): return SS[1][hh] if g < 16 else SS[0][hh]
    def rk(g):
        i, seg, k = g // 16, (g % 16) // 4, g % 4
        if ('C%d' % i) in a.vm: a.vwait('C%d' % i)
        if i >= 2 and g % 8 == 0: hcheck((i - 2) * 4 + seg + 2)
        if i and seg == 0: a('v_xor_b32 v%d, 0x10000, v%d' % (12 + k, 12 + k))
        a.d('ds_read_b128 %s, v%d offset:%d' % (R(kbuf(g), 4), 12 + k, seg * 1024), 'k%d' % g)
    def step(g, nxt=True):
        i = g // 16
        a.dwait('k%d' % g)
        for hh in range(2):
            s = sreg(g, hh)
            a('v_mfma_f32_16x16x32_bf16 %s, %s, %s, %s' % (R(s, 4), R(kbuf(g), 4), R(QF(hh, g % 16), 4), R(s, 4)))
        if nxt: rk(g + 5)
    pvstate = [0]
    def pv_addr(i, ct):
        want = (i % 2) * 65536 + ((ct & 3) << 5) + ((ct >> 2) << 11)
        if want != pvstate[0]:
            a('v_xor_b32 v2, 0x%x, v2' % (want ^ pvstate[0]))
            pvstate[0] = want
    def rv(i, ct, ks2, dst):
        pv_addr(i, ct)
        for rdi in range(2):
            a.d('ds_read_b64_tr_b16 %s, v2 offset:%d' % (R(dst + 2 * rdi, 2), ks2 * 32768 + rdi * 4096), 'v%d_%d_%d' % (i, ct, ks2))
    for g in range(16): rk(g)
    a.vall()
    if o.get('diaga', -1) < 0: a.stamp(10)
    a('s_barrier')
    if o.get('diaga', -1) < 0: a.stamp(11)
    a('v_mov_b32 v35, 0')
    a.v('global_load_dword v34, v35, s[36:37] sc1', 'N')
    a('s_cmp_eq_u32 s15, 0')
    a('s_cbranch_scc1 L_Anr')
    sv = list(a.vm)
    for n in range(NPRE, 32): dma_one(*first[n])
    a('s_waitcnt vmcnt(0)')
    a.vm = sv
    a.label('L_Anr')

    for ct in range(2):
        for ks2 in range(2): rv(0, ct, ks2, pairs[ct + 1][ks2])
    for g in range(16, 19): rk(g)
    a('''
    v_and_b32 v0, 3, v1
    v_lshlrev_b32 v0, 2, v0
    v_add_u32 v0, 0x%x, v0            ; flag read addr
    s_lshl_b32 s10, s3, 2
    s_add_u32 s10, s10, 0x%x
    v_mov_b32 v3, s10                 ; own flag addr
    s_mov_b32 s62, 0
    ''' % (FL, FL))
    a.dall()
    DA = o.get('diaga', -1)
    def ds(i, k):
        if DA == i:
            a('s_memtime s[%d:%d]' % (70 + 2 * k, 71 + 2 * k))
    a.stamp(1)
    a('s_barrier')
    if o.get('cprio', 0): a('s_setprio %d' % o['cprio'])
    a.stamp(2)
    if DA >= 0: a.stamps_mute = True
    ds(9, 3)
    a('s_cmp_lg_u32 s15, 0')
    a('s_cbranch_scc1 L_Anoq')
    def rq(ks):
        for hh in range(2):
            a.d('ds_read_b128 %s, v%d offset:%d' % (R(QF(hh, ks), 4), 32 + (ks & 1), (hh * 16 + ks) * 1024), 'q%d' % ks)
    QD = 5
    mix = [0, 1]
    for n in range(7): mix += [16 + n, 2 + 2 * n, 3 + 2 * n]
    mix += [23]
    def mixed(withq):
        nk = [19]
        for g in mix:
            if g < 16 and withq: a.dwait('q%d' % g)
            step(g, False)
            if g < 16:
                if withq and g + QD < 16: rq(g + QD)
                if g >= 4: rk(nk[0]); nk[0] += 1
        return nk[0]
    for ks in range(QD): rq(ks)
    mixed(True)
    a.dall()
    a('s_branch L_Aq2')
    a.label('L_Anoq')
    vm1 = list(a.vm)
    a('s_waitcnt vmcnt(0)')
    a('s_add_u32 s10, s58, 24')
    a('v_mov_b32 v1, s10')
    a('ds_write_b32 v3, v1 offset:32')
    nk = mixed(False)
    assert nk == 31
    a.dall()
    a.vm = vm1
    a.label('L_Aq2')
    ds(9, 6)
    if 'N' in a.vm: a.vwait('N')
    a('''
    v_readfirstlane_b32 s58, v34
    s_lshl_b32 s10, s15, 4
    s_add_u32 s57, s58, s10
    s_barrier                         ; B1
    ''')
    ds(9, 7)
    def half(g, hh):
        a.dwait('k%d' % g)
        a('v_mfma_f32_16x16x32_bf16 %s, %s, %s, %s' % (R(sreg(g, hh), 4), R(kbuf(g), 4), R(QF(hh, g % 16), 4), R(sreg(g, hh), 4)))
    def last4(g, fill=None):
        for k in range(0, 4):
            half(g + k, 0)
            if fill: fill()
        for k in range(4):
            half(g + k, 1)
            if fill: fill()
    E = 36
    def sm_ops(i):
        S = SS[1] if i == 0 else SS[0]; pb = (i % 2) * 4096
        def ex(hh, rs): return [(lambda hh=hh, r=r: a('v_exp_f32 v%d, v%d' % (E + 4 * hh + r, S[hh] + r))) for r in rs]
        def cw(hh):
            def f():
                for r in range(2):
                    a('v_cvt_pk_bf16_f32 v%d, v%d, v%d' % (32 + 2 * hh + r, E + 4 * hh + 2 * r, E + 4 * hh + 2 * r + 1))
                a.d('ds_write_b64 v4, %s offset:%d' % (R(32 + 2 * hh, 2), pb + 1024 * hh), 'w')
            return f
        def flag():
            a('s_add_u32 s63, s57, %d' % i)
            a('v_mov_b32 v1, s63')
            a.d('ds_write_b32 v3, v1', 'w')
        def mxl(hh):
            def f():
                a('v_add_f32 v%d, v%d, v%d' % (E + 4 * hh, E + 4 * hh, E + 4 * hh + 1))
                a('v_add_f32 v%d, v%d, v%d' % (E + 4 * hh + 2, E + 4 * hh + 2, E + 4 * hh + 3))
                a('v_max3_f32 v%d, v%d, v%d, v%d' % (8 + hh, 8 + hh, S[hh], S[hh] + 1))
                a('v_add_f32 v%d, v%d, v%d' % (6 + hh, 6 + hh, E + 4 * hh))
                a('v_max3_f32 v%d, v%d, v%d, v%d' % (8 + hh, 8 + hh, S[hh] + 2, S[hh] + 3))
                a('v_add_f32 v%d, v%d, v%d' % (6 + hh, 6 + hh, E + 4 * hh + 2))
            return f
        def chk():
            for f in ((0, 1, 2, 3) if i < 3 else (0, 2, 1, 3)):
                a.d('ds_read_b128 %s, v5 offset:%d' % (R(P[f], 4), pb + f * 1024), 'p%d' % f)
        return ex, cw, flag, mxl, chk
    VCK = o.get('vck', 7)
    rk(31)
    ex, cw, flag, mxl, chk = sm_ops(0)
    def pfr(): a.d('ds_read_b32 v1, v0', 'pf')
    def pck():
        a.dwait('pf'); pcheck(); chk()
    e0 = ex(0, range(4)); e1 = ex(1, range(4))
    fl = [[e0[0], e0[1]], [e0[2], e0[3]], [cw(0)], [e1[0], e1[1]], [e1[2], e1[3]], [cw(1)], [flag], [mxl(0)], [mxl(1)], [pfr],
          [lambda: rv(0, 2, 0, pairs[0][0])], [lambda: rv(0, 2, 1, pairs[0][1])], [pck], [], [], []]
    for n in range(16):
        half(24 + n // 2, n % 2)
        for f in fl[n]: f()
    ds(9, 8)
    S = SS[0]
    def ip(hh):
        b = S[hh]
        return [lambda: (a('v_max3_f32 v%d, v%d, v%d, v%d' % (8 + hh, 8 + hh, b, b + 1)), a('v_max3_f32 v%d, v%d, v%d, v%d' % (8 + hh, 8 + hh, b + 2, b + 3))),
                lambda: a('v_exp_f32 v%d, v%d' % (b, b)), lambda: a('v_exp_f32 v%d, v%d' % (b + 1, b + 1)),
                lambda: a('v_exp_f32 v%d, v%d' % (b + 2, b + 2)), lambda: a('v_exp_f32 v%d, v%d' % (b + 3, b + 3)),
                lambda: (a('v_add_f32 v%d, v%d, v%d' % (6 + hh, 6 + hh, b)), a('v_cvt_pk_bf16_f32 v%d, v%d, v%d' % (b, b, b + 1))),
                lambda: (a('v_add_f32 v%d, v%d, v%d' % (6 + hh, 6 + hh, b + 1)), a('v_cvt_pk_bf16_f32 v%d, v%d, v%d' % (b + 1, b + 2, b + 3))),
                lambda: (a('v_add_f32 v%d, v%d, v%d' % (b + 2, b + 2, b + 3)), a.d('ds_write_b64 v4, %s offset:%d' % (R(b, 2), 4096 + 1024 * hh), 'w')),
                lambda: a('v_add_f32 v%d, v%d, v%d' % (6 + hh, 6 + hh, b + 2))]
    flag1 = sm_ops(1)[2]
    q = [None, None, None] + ip(0) + ip(1)[:8] + [lambda: (flag1(), ip(1)[8]())] + [None, None, pfr]
    order0 = [(ct, ks2) for ct in range(6) for ks2 in range(2)] + [(6, 0), (7, 0), (6, 1), (7, 1)]
    vnext = [(0, ct, ks2) for ct in range(3, 8) for ks2 in range(2)] + [(1, 0, 0), (1, 0, 1)]
    def vbuf(i, ct, ks2): return pairs[(ct + 1 - i) % 3][ks2]
    n = 0
    for pos, (ct, ks2) in enumerate(order0):
        a.dwait('v0_%d_%d' % (ct, ks2))
        for hh in range(2):
            a.dwait('p%d' % (ks2 * 2 + hh))
            cin = '0' if ks2 == 0 else R(O(hh, ct), 4)
            a('v_mfma_f32_16x16x32_bf16 %s, %s, %s, %s' % (R(O(hh, ct), 4), R(P[ks2 * 2 + hh], 4), R(vbuf(0, ct, ks2), 4), cin))
            if 2 <= pos < 14:
                vi_, vc, vk = vnext[pos - 2]
                if hh == 0: pv_addr(vi_, vc)
                a.d('ds_read_b64_tr_b16 %s, v2 offset:%d' % (R(vbuf(vi_, vc, vk) + 2 * hh, 2), vk * 32768 + hh * 4096), 'v%d_%d_%d' % (vi_, vc, vk))
            if n < len(q) and q[n]: q[n]()
            n += 1
        if pos == 13:
            a.dwait('pf'); pcheck()
            for f in (0, 1): a.d('ds_read_b128 %s, v5 offset:%d' % (R(P[f], 4), 4096 + f * 1024), 'p%d' % f)
            a.dwait('v0_7_1')
            a('v_mov_b32 v1, s57')
            a.d('ds_write_b32 v3, v1 offset:16', 'w')
            a.stamp(8)
            a('s_cmp_lg_u32 s15, 0')
            a('s_cbranch_scc1 L_Arf0')
            a.label('L_Arb0')
        if pos == 14: rv(1, 1, 0, vbuf(1, 1, 0))
    for f in (2, 3): a.d('ds_read_b128 %s, v5 offset:%d' % (R(P[f], 4), 4096 + f * 1024), 'p%d' % f)
    rv(1, 1, 1, vbuf(1, 1, 1))
    ds(9, 9)
    for i in range(1, 3):
        ds(i, 3)
        ex, cw, flag, mxl, chk = sm_ops(i)
        g0 = 16 * (i + 1)
        if i == 2:
            for f in ex(0, range(4)): f()
            cw(0)()
            for f in ex(1, range(4)): f()
            cw(1)()
            flag()
            ds(i, 4)
            mxl(0)(); mxl(1)()
            a.d('ds_read_b32 v1, v0', 'pf')
            n0 = len(a.lines)
            chk()
            redo = [l.strip() for l in a.lines[n0:] if 's_waitcnt' not in l] + ['s_waitcnt lgkmcnt(0)']
            s_init(0, 0); s_init(0, 1)
            a.dwait('pf')
            pcheck(0, '\n'.join(redo))
        ds(i, 5)
        for ct in range(8):
            for ks2 in range(2):
                a.dwait('v%d_%d_%d' % (i, ct, ks2))
                for hh in range(2):
                    a.dwait('p%d' % (ks2 * 2 + hh))
                    cin = '0' if (i == 0 and ks2 == 0) else R(O(hh, ct), 4)
                    a('v_mfma_f32_16x16x32_bf16 %s, %s, %s, %s' % (R(O(hh, ct), 4), R(P[ks2 * 2 + hh], 4), R(pairs[ct % 3][ks2], 4), cin))
                    if (3 if i == 2 else 2) <= ct + 2 < 8:
                        if hh == 0: pv_addr(i, ct + 2)
                        a.d('ds_read_b64_tr_b16 %s, v2 offset:%d' % (R(pairs[(ct + 2) % 3][ks2] + 2 * hh, 2), ks2 * 32768 + hh * 4096), 'v%d_%d_%d' % (i, ct + 2, ks2))
                if ct == 0 and ks2 == 0: ds(i, 6)
                if i == 1 and ct == 2: s_init(0, ks2)
                if ct == 4 and ks2 == 0: ds(i, 7)
                if ct == 5 and ks2 == 1: a.d('ds_read_b32 v1, v3 offset:32', 'hf')
                if ct == 6 and ks2 == 1:
                    a.dall()
                    if i >= 0:
                        a('''
                    v_readfirstlane_b32 s62, v1
                    s_sub_u32 s62, s62, s57
                    s_cmp_gt_u32 s62, 15
                    s_cselect_b32 s62, 0, s62
                    ''')
                    if i == 0:
                        a.vall()
                        hcheck(1)
                    if i < 2:
                        a('v_mov_b32 v1, s63')
                        a.d('ds_write_b32 v3, v1 offset:16', 'w')
                        a.stamp(8 + i)
                        a('s_cmp_lg_u32 s15, 0')
                        a('s_cbranch_scc1 L_Arf%d' % i)
                        a.label('L_Arb%d' % i)
                    rk(g0); rk(g0 + 1)
                if ct == 7 and ks2 == 0: rk(g0 + 2); rk(g0 + 3)
        ds(i, 8)
        rk(g0 + 4)
        if i < 2:
            vq = [(ct, ks2) for ct in range(3) for ks2 in range(2)]
            def vfill():
                if vq:
                    ct, ks2 = vq.pop(0)
                    rv(i + 1, ct, ks2, pairs[ct][ks2])
            for s in range(12):
                step(g0 + s, s < 11)
                if s == 0: ds(i, 9)
                if s == 8: ds(i, 10)
                if s == VCK - 3:
                    if i == 1: a('s_add_u32 s63, s57, 4')
                    a.d('ds_read_b32 v1, v0 offset:%d' % (16 + 16 * i), 'ha')
                if s == VCK:
                    a.dwait('ha')
                    pcheck(16 + 16 * i)
                if s > VCK and len(vq) > 2: vfill()
            last4(g0 + 12, vfill)
        else:
            for s in range(8): step(g0 + s, s < 3)
        ds(i, 11)
    a('''
    v_mbcnt_lo_u32_b32 v24, -1, 0
    v_mbcnt_hi_u32_b32 v24, -1, v24
    v_and_b32 v25, 15, v24
    v_lshrrev_b32 v27, 4, v24
    v_lshlrev_b32 v26, 6, v25
    v_lshl_add_u32 v26, v27, 2, v26
    s_lshl_b32 s10, s3, 4
    s_add_u32 s10, s10, 0x%x
    v_add_u32 v26, s10, v26           ; l write addr
    v_lshlrev_b32 v25, 4, v25
    v_lshl_add_u32 v25, v27, 19, v25  ; O store voffset
    v_bfe_u32 v28, v24, 3, 1
    v_lshl_add_u32 v27, v27, 2, v28
    v_bfe_u32 v28, v24, 2, 1
    v_lshl_add_u32 v27, v28, 1, v27
    v_and_b32 v28, 1, v24
    v_lshl_add_u32 v27, v28, 4, v27   ; h(lane)
    v_and_b32 v28, 2, v24
    v_lshlrev_b32 v28, 4, v28
    v_lshl_add_u32 v28, v27, 6, v28
    v_add_u32 v28, 0x%x, v28          ; l read addr
    v_lshlrev_b32 v29, 4, v27         ; MLC voffset
    s_lshl_b32 s10, s3, 15
    s_lshl_b32 s12, s59, 8
    s_add_u32 s10, s10, s12
    s_add_u32 s13, s10, 0x%x
    s_lshl_b32 s12, s59, 2
    s_add_u32 s12, s12, s3
    s_lshl_b32 s12, s12, 9
    s_add_u32 s12, s12, 0x%x
    s_mov_b32 s60, 0xaaaaaaaa
    s_mov_b32 s61, 0xaaaaaaaa
    s_mov_b32 s64, 0x33333333
    s_mov_b32 s65, 0x33333333
    s_add_u32 s63, s57, 6
    ''' % (RLB, RLB, OP, ML))
    a.d('ds_read_b32 v1, v0 offset:32', 'ha')
    a.dwait('ha')
    pcheck(32)
    for ct in range(4):
        for ks2 in range(2): rv(3, ct, ks2, 128 + (ct * 2 + ks2) * 4)
    pv_addr(3, 4)
    a.dall()
    a('s_barrier')
    a.stamp(3)
    ds(3, 3)
    ds(6, 3)
    KL = P + XQ
    for n in range(8):
        a.d('ds_read_b128 %s, v%d offset:%d' % (R(KL[n], 4), 12 + n % 4, (2 + n // 4) * 1024), 'k%d' % n)
    def VF(ct, ks2): return (128 if ct < 4 else 192) + ((ct % 4) * 2 + ks2) * 4
    vl = [(ct, ks2) for ct in range(8) for ks2 in range(2)]
    vi = 8
    def more(n=1):
        nonlocal vi
        for _ in range(n):
            if vi < 16:
                rv(3, vl[vi][0], vl[vi][1], VF(*vl[vi])); vi += 1
    def qk(n, hh):
        a.dwait('k%d' % n)
        a('v_mfma_f32_16x16x32_bf16 %s, %s, %s, %s' % (R(SS[0][hh], 4), R(KL[n], 4), R(QF(hh, 8 + n), 4), R(SS[0][hh], 4)))
    EE = [188, 232]; CV = [182, 236]; pb = 4096
    def ex(hh, r): a('v_exp_f32 v%d, v%d' % (EE[hh] + r, SS[0][hh] + r))
    def cw(hh):
        for r in range(2):
            a('v_cvt_pk_bf16_f32 v%d, v%d, v%d' % (CV[hh] + r, EE[hh] + 2 * r, EE[hh] + 2 * r + 1))
        a.d('ds_write_b64 v4, %s offset:%d' % (R(CV[hh], 2), pb + 1024 * hh), 'w')
    def ladd(hh):
        e = EE[hh]
        a('v_add_f32 v%d, v%d, v%d' % (e, e, e + 1))
        a('v_add_f32 v%d, v%d, v%d' % (e + 2, e + 2, e + 3))
        a('v_add_f32 v%d, v%d, v%d' % (6 + hh, 6 + hh, e))
        a('v_add_f32 v%d, v%d, v%d' % (6 + hh, 6 + hh, e + 2))
    def mx(hh):
        S = SS[0][hh]
        a('v_max3_f32 v%d, v%d, v%d, v%d' % (8 + hh, 8 + hh, S, S + 1))
        a('v_max3_f32 v%d, v%d, v%d, v%d' % (8 + hh, 8 + hh, S + 2, S + 3))
    def rp(f): a.d('ds_read_b128 %s, v5 offset:%d' % (R(P[f], 4), pb + f * 1024), 'p%d' % f)
    for n in range(8):
        qk(n, 0)
        if n == 0: ds(6, 4)
        if n in (3, 5, 7): more()
    ds(6, 5)
    for n in range(8):
        qk(n, 1)
        if n in (1,): more()
        if 3 <= n <= 4: ex(0, 2 * (n - 3)); ex(0, 2 * (n - 3) + 1)
        if n == 5: cw(0)
    ds(6, 6)
    a.dwait('w')
    ds(6, 7)
    a('s_barrier')
    ds(6, 8)
    rp(0); rp(2)
    for r in range(4): ex(1, r)
    cw(1)
    ds(6, 9)
    ds(3, 4)
    ds(4, 3)
    PK = [XQ, [16, 20, 160, 164]]
    CS = 168
    def pack(hh, r):
        for k in range(4):
            a('v_cvt_pk_bf16_f32 v%d, v%d, v%d' % (PK[hh][r] + k, O(hh, 2 * k) + r, O(hh, 2 * k + 1) + r))
    def st(hh, r):
        a('s_add_u32 s11, s13, 0x%x' % ((16 * hh + r) * 131072 + hh * 4096))
        a('buffer_store_dwordx4 %s, v25, s[44:47], s11 offen sc1' % R(PK[hh][r], 4))
    def cs(hh, r):
        b = PK[hh][r]; c = CS + 4 * hh + r
        a('v_add3_u32 v%d, v%d, v%d, v%d' % (c, b, b + 1, b + 2))
        a('v_add_u32 v%d, v%d, v%d' % (c, c, b + 3))
    T = 176
    def stepA(i):
        a('v_add_u32_dpp v%d, v%d, v%d row_ror:8 row_mask:0xf bank_mask:0x3' % (T + i, CS + 2 * i, CS + 2 * i))
        a('v_add_u32_dpp v%d, v%d, v%d row_ror:8 row_mask:0xf bank_mask:0xc' % (T + i, CS + 2 * i + 1, CS + 2 * i + 1))
    def stepB(hh):
        a('v_add_u32_dpp v%d, v%d, v%d row_half_mirror row_mask:0xf bank_mask:0x5' % (T + 4 + hh, T + 2 * hh, T + 2 * hh))
        a('v_add_u32_dpp v%d, v%d, v%d row_half_mirror row_mask:0xf bank_mask:0xa' % (T + 4 + hh, T + 2 * hh + 1, T + 2 * hh + 1))
        a('v_add_u32_dpp v%d, v%d, v%d quad_perm:[1,0,3,2] row_mask:0xf bank_mask:0xf' % (T + 4 + hh, T + 4 + hh, T + 4 + hh))
    def lchk():
        a.d('ds_read_b128 v[224:227], v28', 'rl')
        a.d('ds_read_b128 v[228:231], v28 offset:16', 'rl')
    def ls1():
        a.dwait('rl')
        a('''
        v_add_f32 v224, v224, v225
        v_add_f32 v226, v226, v227
        v_add_f32 v228, v228, v229
        v_add_f32 v230, v230, v231
        ''')
    def ls2():
        a('''
        v_add_f32 v224, v224, v226
        v_add_f32 v228, v228, v230
        v_add_f32 v185, v224, v228
        v_mov_b32 v187, s58
        ''')
    def lw():
        ladd(1)
        a.d('ds_write2st64_b32 v26, v6, v7 offset0:0 offset1:4', 'w')
    def barB():
        a.dwait('w')
        a('s_barrier')
        rp(1); rp(3)
    f0 = {0: lambda: (more(1), ladd(0)), 1: lambda: (more(1), lw()), 2: lambda: more(1), 3: lambda: more(1), 4: barB, 5: lchk, 6: lambda: mx(0), 7: lambda: mx(1)}
    f1 = {0: ls1, 1: ls2, 2: lambda: (pack(0, 0), a('v_add_f32_dpp v185, v185, v185 quad_perm:[2,3,0,1] row_mask:0xf bank_mask:0xf')), 3: lambda: (st(0, 0), pack(0, 1)), 4: lambda: (st(0, 1), pack(0, 2)), 5: lambda: (st(0, 2), pack(0, 3)),
          6: lambda: (st(0, 3), cs(0, 0), cs(0, 1)), 7: lambda: (cs(0, 2), cs(0, 3), stepA(0))}
    for hh in range(2):
        for ct in range(8):
            for ks2 in range(2):
                a.dwait('v3_%d_%d' % (ct, ks2)); a.dwait('p%d' % (ks2 * 2 + hh))
                a('v_mfma_f32_16x16x32_bf16 %s, %s, %s, %s' % (R(O(hh, ct), 4), R(P[ks2 * 2 + hh], 4), R(VF(ct, ks2), 4), R(O(hh, ct), 4)))
            f = (f0 if hh == 0 else f1).get(ct)
            if f: f()
            if hh == 0 and ct in (1, 2, 4, 7): ds(4, {1: 4, 2: 5, 4: 6, 7: 7}[ct])
            if hh == 1 and ct in (2, 7): ds(4, {2: 8, 7: 9}[ct])
    a.stamp(4)
    ds(3, 5)
    stepA(1)
    a("""
    v_subrev_u32 v186, 0x2f800000, v185
    v_cmp_le_u32 vcc, 0x24000000, v186
    """)
    NE = o.get('nearly', 0)
    pack(1, 0)
    stepB(0)
    for r in range(4):
        if r < 3: pack(1, r + 1)
        if r < NE: st(1, r)
        cs(1, r)
        if r == 2: stepA(2)
    a("""
    s_or_b32 s14, vcc_lo, vcc_hi
    s_or_b32 s11, s14, s15
    s_cbranch_scc1 L_Aslow
    v_mov_b32 v184, 0
    L_Aok:
    """)
    stepA(3)
    a('v_sub_u32 v186, v187, v184')
    stepB(1)
    a('v_sub_u32 v186, v186, v185')
    a('v_cndmask_b32 v%d, v%d, v%d, s[60:61]' % (T + 4, T + 4, T + 5))
    a('v_add_u32_dpp v%d, v%d, v%d quad_perm:[2,3,0,1] row_mask:0xf bank_mask:0xf' % (T + 4, T + 4, T + 4))
    a("""
    v_sub_u32 v186, v186, v%d
    s_mov_b64 exec, s[64:65]
    buffer_store_dwordx4 v[184:187], v29, s[44:47], s12 offen sc1
    s_mov_b64 exec, -1
    """ % (T + 4))
    for r in range(NE, 4): st(1, r)
    ds(3, 6)

    def slow():
        for i in range(2):
            a.label('L_Arf%d' % i)
            a('s_waitcnt lgkmcnt(0)')
            a('s_barrier')
            voffs(1, 0)
            for seg in range(4):
                for aa in range(4):
                    a('s_add_u32 m0, s9, 0x%x' % (i * 65536 + aa * 4096 + seg * 1024))
                    a('s_add_u32 s10, s8, 0x%x' % ((i + 2) * 65536 + aa * 4096 + seg * 256))
                    a('buffer_load_dwordx4 v%d, s[40:43], s10 offen nt lds' % (1 if aa < 2 else 0))
            a('''
            v_mbcnt_lo_u32_b32 v0, -1, 0
            v_and_b32 v0, 3, v0
            v_lshlrev_b32 v0, 2, v0
            v_add_u32 v0, 0x%x, v0
            s_waitcnt vmcnt(0)
            s_barrier
            s_branch L_Arb%d
            ''' % (FL, i))
        for t in a.slow: a(t)
        a.label('L_Aslow')
        a("""
        v_lshlrev_b32 v30, 2, v27
        v_add_u32 v30, 0x%x, v30
        s_cmp_lg_u32 s15, 0
        s_cbranch_scc1 L_Aslow2
        ; first pass was unsafe: rerun with the true (rounded up) per-head max
        ds_write2st64_b32 v26, v8, v9 offset0:8 offset1:12
        s_waitcnt lgkmcnt(0)
        s_barrier
        ds_read_b128 v[224:227], v28 offset:2048
        ds_read_b128 v[228:231], v28 offset:2064
        s_waitcnt lgkmcnt(0)
        v_max3_f32 v224, v224, v225, v226
        v_max3_f32 v227, v227, v228, v229
        v_max3_f32 v224, v224, v230, v231
        v_max_f32 v184, v224, v227
        v_max_f32_dpp v184, v184, v184 quad_perm:[2,3,0,1] row_mask:0xf bank_mask:0xf
        v_ceil_f32 v184, v184
        ds_write_b32 v30, v184
        v_and_b32 v31, 15, v24
        v_lshlrev_b32 v30, 2, v31
        v_add_u32 v30, 0x%x, v30
        v_lshrrev_b32 v232, 4, v24
        v_lshlrev_b32 v232, 4, v232
        v_lshl_add_u32 v31, v31, 10, v232
        s_mov_b32 s10, 0x4000
        s_waitcnt vmcnt(0) lgkmcnt(0)
        ds_read_b32 v10, v30
        ds_read_b32 v11, v30 offset:64
        """ % (RB, RB))
        for hh in range(2):
            for ks in range(16):
                a('buffer_load_dwordx4 %s, v31, s[44:47], %s offen offset:%d sc1' % (R(QF(hh, ks), 4), 's10' if hh else '0', ks * 64))
        a("""
        s_mov_b32 s15, 1
        s_waitcnt vmcnt(0) lgkmcnt(0)
        v_sub_f32 v10, 0, v10
        v_sub_f32 v11, 0, v11
        """)
        voffs(3, 0)
        a("""
        s_barrier
        s_branch L_Apass
        L_Aslow2:
        ds_read_b32 v184, v30
        s_waitcnt lgkmcnt(0)
        s_branch L_Aok
        """)
    a.aslow = slow
```

```python
from roleA36 import *

def role_final(a, o):
    a('''
    s_cmp_lg_u32 s3, 0
    s_cbranch_scc1 L_end
    ''')
    a.stamp(5)
    a.srd(48, WS, FP + 86 * 2048)
    a.srd(40, X, 1024)
    a('''
    v_mov_b32 v40, v24
    s_and_b32 s10, s2, 7
    s_lshl_b32 s10, s10, 6
    s_lshr_b32 s11, s2, 3
    s_lshl_b32 s11, s11, 2
    s_add_u32 s10, s10, s11            ; m0
    s_lshl_b32 s11, s10, 2
    s_lshl_b32 s12, s10, 1
    v_lshlrev_b32 v41, 11, v40
    v_and_b32 v42, 3, v40
    v_lshlrev_b32 v43, 1, v42
    buffer_load_ushort v60, v43, s[40:43], s12 offen
    v_and_b32 v44, 1, v40
    v_cmp_eq_u32 s[60:61], 1, v44
    v_and_b32 v44, 2, v40
    v_cmp_eq_u32 s[62:63], 2, v44
    ''')
    def gather4(base, srd, lab, dst):
        a('s_add_u32 s13, s11, 0x%x' % base)
        a('s_add_u32 s14, s11, 0x%x' % (base + 64 * 2048))
        a('s_mov_b32 s8, 0')
        a('s_mov_b64 s[64:65], -1')
        a('s_mov_b64 s[66:67], -1')
        a.label(lab)
        a('s_sleep FIN_SLEEP')
        a('s_mov_b64 exec, s[64:65]')
        a('s_cbranch_execz %s_a' % lab)
        a('buffer_load_dwordx4 v[48:51], v41, s[%d:%d], s13 offen sc1' % (srd, srd + 3))
        a.label(lab + '_a')
        a('s_mov_b64 exec, s[66:67]')
        a('s_cbranch_execz %s_b' % lab)
        a('buffer_load_dwordx4 v[52:55], v41, s[%d:%d], s14 offen sc1' % (srd, srd + 3))
        a.label(lab + '_b')
        a('''
        s_mov_b64 exec, -1
        s_add_u32 s8, s8, 1
        s_waitcnt vmcnt(0)
        v_max3_u32 v56, v48, v49, v50
        v_max3_u32 v57, v52, v53, v54
        v_max_u32 v56, v56, v51
        v_max_u32 v57, v57, v55
        v_cmp_eq_u32 s[64:65], -1, v56
        v_cmp_eq_u32 s[66:67], -1, v57
        s_cmp_gt_u32 s8, SPIN_N
        s_cbranch_scc1 %s_x
        s_or_b64 s[68:69], s[64:65], s[66:67]
        s_cbranch_scc1 %s
        %s_x:
        v_add_f32 v48, v48, v52
        v_add_f32 v49, v49, v53
        v_add_f32 v50, v50, v54
        v_add_f32 v51, v51, v55
        v_cndmask_b32 v52, v48, v49, s[60:61]
        v_cndmask_b32 v53, v49, v48, s[60:61]
        v_cndmask_b32 v54, v50, v51, s[60:61]
        v_cndmask_b32 v55, v51, v50, s[60:61]
        v_add_f32_dpp v52, v53, v52 quad_perm:[1,0,3,2] row_mask:0xf bank_mask:0xf
        v_add_f32_dpp v54, v55, v54 quad_perm:[1,0,3,2] row_mask:0xf bank_mask:0xf
        v_cndmask_b32 v%d, v52, v54, s[62:63]
        v_cndmask_b32 v53, v54, v52, s[62:63]
        v_add_f32_dpp v%d, v53, v%d quad_perm:[2,3,0,1] row_mask:0xf bank_mask:0xf
        v_add_f32_dpp v%d, v%d, v%d row_ror:4 row_mask:0xf bank_mask:0xf
        v_add_f32_dpp v%d, v%d, v%d row_ror:8 row_mask:0xf bank_mask:0xf
        ''' % ((lab, lab, lab) + (dst,) * 9))
        a.swap_red('v_add_f32', dst, 53, 16)
        a.swap_red('v_add_f32', dst, 53, 32)
    gather4(FP, 48, 'L_gf', 61)
    a.rnd_bf16(61)
    a.silu(61, 53)
    a.rnd_bf16(61)
    a('v_lshlrev_b32 v60, 16, v60')
    a.srd(40, OUT, 1024)
    a.stamp(6)
    gather4(SP, 44, 'L_gs', 62)
    a.rnd_bf16(62)
    a('v_mul_f32 v62, v62, v61')
    a.rnd_bf16(62)
    a('''
    v_add_f32 v62, v62, v60
    v_cvt_pk_bf16_f32 v62, v62, v62
    s_mov_b64 exec, 15
    buffer_store_short v62, v43, s[40:43], s12 offen
    ''')
    a.stamp(7)
    a.write_stamps()
    a('s_endpgm')

def role_As(a, o):
    a.stamps_mute = False
    a.label('L_As')
    ops = [(c, seg, aa) for c in range(2) for seg in range(4) for aa in range(4)]
    AM = o.get('amaj', 1)
    ops = [(c, sp * 2 + sg, aa) for c in range(2) for sp in range(2) for aa in range(4) for sg in range(2)]
    if o.get('hmix', 0): ops = [(c, sp * 2 + sg, aa) for c in range(2) for sp in range(2) for aa in (0, 2, 1, 3) for sg in range(2)]
    def prog(n):
        return {7: 2, 15: 4, 23: 6}.get(n)
    NPRE = o.get('npre', 20); NR = 32 - NPRE
    first = [(i, seg, aa) for i in range(2) for aa in range(4) for seg in range(4)]
    def loads(lo, hi):
        for n in range(lo, hi):
            if n < 0:
                i, seg, aa = first[32 + n]
                a('s_xor_b32 m0, s69, 0x%x' % (65536 + aa * 4096 + seg * 1024))
                a('s_xor_b32 s10, s66, 0x%x' % (65536 + aa * 4096 + seg * 256))
                a.v('buffer_load_dwordx4 v%d, s[40:43], s10 offen nt lds' % (3 if aa < 2 else 0), 'D')
                continue
            c, seg, aa = ops[n]
            a('s_add_u32 s10, s64, 0x%x' % (c * 65536 + aa * 4096 + seg * 256))
            a.v('buffer_load_dwordx4 %s, v%d, s[40:43], s10 offen nt' % (R(128 + 4 * n, 4), 3 if aa < 2 else 0), 'L%d' % n)
    def writes(lo, hi):
        for n in range(lo, hi):
            c, seg, aa = ops[n]
            if ('L%d' % n) in a.vm: a.vwait('L%d' % n)
            a('ds_write_b128 v%d, %s offset:%d' % (100 + c, R(128 + 4 * n, 4), aa * 4096 + seg * 1024))
        a('s_waitcnt lgkmcnt(0)')
    c = [int(x, 16) for x in str(o.get('hsch', 'x64'))[1:]]
    a("""
    s_setprio 3
    s_sub_u32 s3, s3, 4
    s_cmp_lg_u32 s3, 1
    s_cbranch_scc1 L_Apt
    TLBPT s_load_dword s60, s[38:39], 0x1f000
    TLBPT s_load_dword s60, s[26:27], 0x0
    TLBPT s_load_dword s60, s[30:31], 0x0
    TLBPT s_load_dword s60, s[32:33], 0x0
    TLBPT s_load_dword s60, s[24:25], 0x0
    TLBPT s_load_dword s60, s[34:35], 0x0
    TLBPT s_mov_b32 s61, 0x300000
    TLBPT s_load_dword s60, s[38:39], s61
    TLBPT s_load_dword s60, s[26:27], s61
    TLBPT s_load_dword s60, s[24:25], s61
    TLBPT s_mov_b32 s62, 0x502000
    TLBPT s_load_dword s60, s[38:39], s62
    L_Apt:
    s_lshl_b32 s9, s3, 14
    s_add_u32 s64, s8, s9
    s_lshl_b32 s10, s3, 8
    s_or_b32 s66, s64, s10
    s_lshl_b32 s10, s3, 10
    s_or_b32 s69, s9, s10
    s_add_u32 s64, s64, 0x20000
    v_lshl_add_u32 v100, v1, 4, s9
    v_add_u32 v101, 0x10000, v100
    v_mov_b32 v2, 0
    s_mov_b32 s8, 0
    L_Agn:
    s_sleep 8
    global_load_dword v5, v2, s[36:37] sc1
    s_add_u32 s8, s8, 1
    s_waitcnt vmcnt(0)
    v_readfirstlane_b32 s4, v5
    s_cmp_gt_u32 s8, SPIN_N
    s_cbranch_scc1 L_Agn_x
    s_cmp_eq_u32 s4, 0
    s_cbranch_scc1 L_Agn
    L_Agn_x:
    OUTPT global_load_dword v254, v2, s[34:35]
    """)
    K0 = o.get('k0', 12)
    assert K0 >= NR
    a.vm = []
    for n in range(K0):
        if n >= o.get('k0w', 5): a('s_waitcnt vmcnt(%d)' % (o.get('k0w', 5) - 1))
        loads(n - NR, n - NR + 1)
    a("""
    v_lshlrev_b32 v2, QCSH, v1        ; tag voffset
    v_lshlrev_b32 v98, 4, v1          ; data voffset
    QR0 v_lshlrev_b32 v97, 7, v1          ; flag voffset
    QR1 v_lshlrev_b32 v97, 10, v1
    s_lshl_b32 s9, s3, 13             ; QA + u*8192
    s_add_u32 s65, s9, 4096
    s_lshl_b32 s11, s3, QCSH+5
    s_add_u32 s11, s11, 0x%x          ; QC + u*32 entries
    s_lshr_b32 s12, s3, 1
    s_lshl_b32 s12, s12, 14
    s_and_b32 s13, s3, 1
    s_lshl_b32 s13, s13, 7
    s_add_u32 s12, s12, s13
    s_add_u32 s12, s12, 0x%x
    v_and_b32 v6, 7, v1
    v_lshlrev_b32 v6, 4, v6
    v_lshl_add_u32 v6, v1, 8, v6
    v_add_u32 v6, s12, v6             ; LDS write base
    s_lshl_b32 s4, s4, 5              ; expected sum = 32 * nonce
    v_mov_b32 v72, 0
    v_mov_b32 v73, 0
    QR0 s_lshl_b32 s68, s3, 10
    QR1 s_lshl_b32 s68, s3, 13
    QR1 s_and_b32 s12, s2, 7
    QR1 s_lshl_b32 s12, s12, 7
    QR1 s_add_u32 s68, s68, s12
    s_add_u32 s68, s68, 0x10000
    s_mov_b32 s12, REP_MASK
    s_mov_b32 s13, 0
    NODEP s_branch L_Agt_x
    L_Agt:
    s_sleep QT_SLEEP
    s_mov_b64 exec, s[12:13]
    buffer_load_dwordx2 v[72:73], v97, s[44:47], REPBASE offen sc1
    s_add_u32 s8, s8, 1
    s_waitcnt vmcnt(0)
    v_cmp_ne_u32 s[12:13], v73, v5
    s_cmp_gt_u32 s8, SPIN_N
    s_cbranch_scc1 L_Agt_x
    s_cmp_lg_u32 s12, 0
    s_cbranch_scc1 L_Agt
    L_Agt_x:
    s_mov_b32 exec_lo, -1
    buffer_load_dwordx2 v[72:73], v2, s[44:47], s11 offen sc1
    s_mov_b64 exec, -1
    """ % (QC, STG))
    def dload(i):
        a('buffer_load_dwordx4 %s, v98, s[44:47], s%d offen offset:%d sc1' % (R(8 + 4 * i, 4), 9 if i < 4 else 65, (i % 4) * 1024))
    def dproc(i):
        a('ds_write_b128 v%d, %s' % (40 + i, R(8 + 4 * i, 4)))
        a('v_add3_u32 v%d, v%d, v%d, v%d' % (80 + i, 8 + 4 * i, 9 + 4 * i, 10 + 4 * i))
        a('v_add_u32 v%d, v%d, v%d' % (80 + i, 80 + i, 11 + 4 * i))
    for i in range(8): dload(i)
    a.stamp(1)
    if a.stamps: a('s_mov_b32 s8, 1')
    if o.get('rlate', 0):
        a("""
        s_waitcnt vmcnt(8)
        L_Agr:
        v_cmp_ne_u32 s[12:13], v73, v5
        s_cmp_eq_u32 s12, 0
        s_cbranch_scc1 L_Agr_x
        s_add_u32 s8, s8, 1
        s_cmp_gt_u32 s8, SPIN_N
        s_cbranch_scc1 L_Agr_x
        s_mov_b32 s13, 0
        s_quadmask_b32 s67, s12
        s_mov_b64 exec, s[12:13]
        buffer_load_dwordx2 v[72:73], v2, s[44:47], s11 offen sc1
        s_mov_b64 exec, -1
        """)
        for i in range(8):
            a('s_bitcmp1_b32 s67, %d' % i)
            a('s_cbranch_scc0 L_Agk%d' % i)
            dload(i)
            a.label('L_Agk%d' % i)
        a("""
        s_waitcnt vmcnt(0)
        s_branch L_Agr
        L_Agr_x:
        """)
    a('s_barrier')
    a.vm = []
    loads(K0 - NR, K0 - NR + c[0]); p = K0 - NR + c[0]
    for i in range(8): a('v_xor_b32 v%d, %d, v6' % (40 + i, i << 4))
    for i in range(8):
        a('s_waitcnt vmcnt(%d)' % (7 - i + c[0]))
        dproc(i)
    a("""
    NODEP s_branch L_Agp_x
    v_cmp_ne_u32 s[12:13], v73, v5
    s_cmp_eq_u32 s12, 0
    s_cbranch_scc1 L_Agc
    L_Agp:
    s_mov_b32 s13, 0
    s_quadmask_b32 s67, s12
    s_mov_b64 exec, s[12:13]
    buffer_load_dwordx2 v[72:73], v2, s[44:47], s11 offen sc1
    s_mov_b64 exec, -1
    """)
    for i in range(8):
        a('s_bitcmp1_b32 s67, %d' % i)
        a('s_cbranch_scc0 L_Agl%d' % i)
        dload(i)
        a.label('L_Agl%d' % i)
    a("""
    s_add_u32 s8, s8, 1
    s_waitcnt vmcnt(0)
    v_cmp_ne_u32 s[12:13], v73, v5
    """)
    for i in range(8):
        a('s_bitcmp1_b32 s67, %d' % i)
        a('s_cbranch_scc0 L_Agw%d' % i)
        dproc(i)
        a.label('L_Agw%d' % i)
    a("""
    s_cmp_gt_u32 s8, SPIN_N
    s_cbranch_scc1 L_Agp_x
    s_cmp_lg_u32 s12, 0
    s_cbranch_scc1 L_Agp
    L_Agc:
    v_add3_u32 v4, v72, v80, v81
    v_add3_u32 v74, v82, v83, v84
    v_add3_u32 v4, v4, v85, v86
    v_add3_u32 v4, v4, v74, v87
    """)
    a.wave_red('v_add_u32', 4, 74)
    a("""
    v_readfirstlane_b32 s10, v4
    s_mov_b32 s12, -1
    s_cmp_lg_u32 s10, s4
    s_cbranch_scc1 L_Agp
    L_Agp_x:
    s_waitcnt lgkmcnt(0)
    """)
    a.stamp(3)
    a('s_barrier')
    a('s_setprio 0')
    loads(p, p + c[1]); p += c[1]
    a('''
    v_and_b32 v102, 3, v1
    v_lshlrev_b32 v102, 2, v102
    v_add_u32 v102, 0x%x, v102        ; YF read addr
    s_lshl_b32 s10, s3, 2
    s_add_u32 s10, s10, 0x%x
    v_mov_b32 v103, s10               ; own HF addr
    s_barrier                         ; B1
    ''' % (FL + 16, FL + 32))
    if p < 0: loads(p, 0); p = 0
    a('v_add_u32 v99, 1, v5')
    if 'D' in a.vm: a.vwait('D')
    a('ds_write_b32 v103, v99')
    K = o.get('hk', 24)
    loads(p, K); p = max(p, K)
    def yspin(i):
        a('''
        s_mov_b32 s11, 0
        L_Ay%d:
        ds_read_b32 v99, v102
        s_add_u32 s11, s11, 1
        s_waitcnt lgkmcnt(0)
        v_sub_u32 v99, v99, v5
        v_subrev_u32 v99, %d, v99
        v_cmp_lt_u32 vcc, 7, v99
        s_cmp_gt_u32 s11, LSPIN
        s_cbranch_scc1 L_Ay%dx
        s_cbranch_vccz L_Ay%dx
        s_sleep YSL
        s_branch L_Ay%d
        L_Ay%dx:
        ''' % (i, i, i, i, i, i))
    for n in range(32):
        if n % 16 == 0:
            if n == 16: loads(p, 32); p = 32
            yspin(n // 16)
        cc, seg, aa = ops[n]
        if prog(n): a('v_add_u32 v99, %d, v5' % prog(n))
        if ('L%d' % n) in a.vm: a.vwait('L%d' % n)
        a('ds_write_b128 v%d, %s offset:%d' % (100 + cc, R(128 + 4 * n, 4), aa * 4096 + seg * 1024))
        if prog(n): a('ds_write_b32 v103, v99')
        if o.get('wpace', 0) and n < 24: a('s_sleep %d' % o['wpace'])
        if p < 32: loads(p, p + 1); p += 1
    a('s_waitcnt lgkmcnt(0)')
    a('s_barrier')
    if a.stamps:
        a('s_mul_i32 s78, s8, 100')
        a('s_add_u32 s78, s78, s70')
        a('s_addc_u32 s79, s71, 0')
        a('s_lshl_b32 s2, s2, 2')
        a('s_add_u32 s2, s2, s3')
        a('s_add_u32 s2, s2, 256')
        a('s_barrier')
        a('s_barrier')
        a('s_sleep 127')
        a.write_stamps(vb=104)
    a('s_endpgm')

def layernorm(a):
    for i in range(4):
        a('v_lshlrev_b32 v%d, 16, v%d' % (72 + 2 * i, 68 + i))
        a('v_and_b32 v%d, 0xffff0000, v%d' % (73 + 2 * i, 68 + i))
    a('v_readfirstlane_b32 s60, v72')
    for i in range(8): a('v_subrev_f32 v%d, s60, v%d' % (84 + i, 72 + i))
    a("""
    v_add_f32 v80, v84, v85
    v_mul_f32 v82, v84, v84
    v_add_f32 v81, v86, v87
    v_mul_f32 v83, v85, v85
    v_add_f32 v92, v88, v89
    v_fmac_f32 v82, v86, v86
    v_add_f32 v93, v90, v91
    v_fmac_f32 v83, v87, v87
    v_add_f32 v80, v80, v81
    v_fmac_f32 v82, v88, v88
    v_add_f32 v92, v92, v93
    v_fmac_f32 v83, v89, v89
    v_add_f32 v80, v80, v92
    v_fmac_f32 v82, v90, v90
    v_fmac_f32 v83, v91, v91
    v_add_f32 v82, v82, v83
    """)
    for m in ('quad_perm:[1,0,3,2]', 'quad_perm:[2,3,0,1]', 'row_half_mirror', 'row_mirror'):
        a('v_add_f32_dpp v80, v80, v80 %s row_mask:0xf bank_mask:0xf' % m)
        a('v_add_f32_dpp v82, v82, v82 %s row_mask:0xf bank_mask:0xf' % m)
    for w in (16, 32):
        a('v_mov_b32 v81, v80')
        a('v_mov_b32 v83, v82')
        a('v_permlane%d_swap_b32 v80, v81' % w)
        a('v_permlane%d_swap_b32 v82, v83' % w)
        a('v_add_f32 v80, v80, v81')
        a('v_add_f32 v82, v82, v83')
    a('v_mul_f32 v80, 0x%x, v80' % f2u(1 / 512))
    a('v_mul_f32 v82, 0x%x, v82' % f2u(1 / 512))
    a('v_fma_f32 v82, -v80, v80, v82')
    a('v_add_f32 v80, s60, v80')
    a('v_max_f32 v82, 0, v82')
    a('v_cvt_pk_bf16_f32 v80, v80, v82')
    a('v_and_b32 v82, 0xffff0000, v80')
    a('v_lshlrev_b32 v80, 16, v80')
    a('v_add_f32 v82, 0x%x, v82' % f2u(1e-5))
    for i in range(4):
        a('v_sub_f32 v%d, v%d, v80' % (72 + i, 72 + i))
    a.rnd_bf16(82)
    a('v_sqrt_f32 v82, v82')
    for i in range(4, 8):
        a('v_sub_f32 v%d, v%d, v80' % (72 + i, 72 + i))
    a.rnd_bf16(82)
    a('v_rcp_f32 v82, v82')
    for i in range(4):
        a('v_cvt_pk_bf16_f32 v%d, v%d, v%d' % (68 + i, 72 + 2 * i, 73 + 2 * i))
    for i in range(4):
        a('v_lshlrev_b32 v%d, 16, v%d' % (72 + 2 * i, 68 + i))
        a('v_and_b32 v%d, 0xffff0000, v%d' % (73 + 2 * i, 68 + i))
    for i in range(8):
        a('v_mul_f32 v%d, v%d, v82' % (72 + i, 72 + i))
    for i in range(4):
        a('v_cvt_pk_bf16_f32 v%d, v%d, v%d' % (68 + i, 72 + 2 * i, 73 + 2 * i))

def role_W(a, o):
    WOPOL = o.get('wopol', 'nt'); W1POL = o.get('w1pol', 'nt')
    a.label('L_W')
    a.vm = []; a.lg = []
    a('''
    s_and_b32 s8, s2, 7               ; x
    s_lshr_b32 s9, s2, 3
    s_sub_u32 s9, s9, 16              ; k
    s_lshr_b32 s10, s9, 2
    s_lshl_b32 s11, s8, 2
    s_add_u32 s10, s10, s11           ; h
    s_and_b32 s11, s9, 3              ; j
    s_lshl_b32 s13, s10, 8            ; h*256
    v_lshlrev_b32 v9, 4, v1           ; lane*16
    v_lshrrev_b32 v6, 4, v1           ; g / r
    v_and_b32 v7, 15, v1              ; pc / i
    v_lshlrev_b32 v8, 1, v6
    v_xor_b32 v8, v8, v7
    v_lshlrev_b32 v8, 4, v8           ; (pc ^ (r<<1))*16
    v_lshl_add_u32 v2, v6, 13, v8
    v_xor_b32 v3, 0x80, v2            ; voffB
    s_lshl_b32 s14, s11, 3
    s_add_u32 s14, s14, s3            ; 8j + w
    s_lshl_b32 s15, s14, 17
    s_add_u32 s15, s15, s13           ; (128j + 16w)*8192 + h*256
    s_lshl_b32 s14, s3, 12            ; LDS w*4096
    v_lshlrev_b32 v10, 2, v6
    v_xor_b32 v10, v10, v7
    v_lshlrev_b32 v10, 4, v10
    v_lshl_add_u32 v10, v6, 13, v10
    v_xor_b32 v11, 32, v10
    s_mov_b32 s42, 0x400000
    s_mov_b32 s43, 0x20000
    s_mov_b32 s50, 0x400000
    s_mov_b32 s51, 0x20000
    s_mov_b32 m0, s14
    s_waitcnt lgkmcnt(0)
    s_mov_b32 s40, s20
    s_mov_b32 s41, s21
    s_cmp_lg_u32 s3, 0
    s_cbranch_scc1 L_Wx
    global_load_dwordx4 v[68:71], v9, s[16:17]
    L_Wx:
    ''')
    for i in range(4):
        if i:
            a('s_add_u32 m0, s14, %d' % (i * 1024))
            a('s_add_u32 s60, s15, %d' % (i * 32768))
        a.v('buffer_load_dwordx4 v%d, s[40:43], %s offen nt lds' % (2 if i < 2 else 3, 's60' if i else 's15'), 'WQ')
    a('s_mov_b32 s48, s22')
    a('s_mov_b32 s49, s23')
    if o.get('ukbar', 1): a('s_barrier')
    for i in range(4):
        a('s_add_u32 m0, s14, %d' % (UKL + i * 1024))
        a('s_add_u32 s60, s15, %d' % (i * 32768))
        a.v('buffer_load_dwordx4 v%d, s[48:51], s60 offen nt lds' % (10 if i < 2 else 11), 'UK')
    common2(a)
    if o.get('diag', 0) == 2: a.stamp(5)
    a('v_mov_b32 v14, 0')
    if not o.get('lnfirst', 1):
        a('''
        s_lshl_b32 s12, s9, 3
        s_add_u32 s12, s12, s8            ; fb = 8k + x
        s_cmp_lt_u32 s9, 11
        s_cselect_b32 s12, s12, 1000
        v_mov_b32 v14, 0
        v_lshrrev_b32 v12, 2, v7          ; r' / a
        v_and_b32 v13, 1, v6
        v_lshl_add_u32 v13, v13, 2, v12
        v_lshlrev_b32 v13, 1, v13
        v_bfe_u32 v16, v1, 1, 1
        s_lshl_b32 s60, s3, 1
        v_add_u32 v16, s60, v16
        v_xor_b32 v16, v16, v13
        v_lshlrev_b32 v16, 4, v16
        v_lshl_add_u32 v13, v6, 3, v12
        v_lshl_add_u32 v16, v13, 8, v16
        v_and_b32 v13, 1, v1
        v_lshl_add_u32 v4, v13, 3, v16    ; tr-read base
        v_lshlrev_b32 v5, 4, v6
        v_add_u32 v5, 0x%x, v5            ; SM + g*16
        v_and_b32 v13, 3, v7
        v_and_b32 v16, 2, v12
        v_xor_b32 v16, v16, v6
        v_lshl_add_u32 v16, v13, 2, v16
        v_lshlrev_b32 v16, 4, v16
        v_lshl_add_u32 v16, v7, 8, v16
        s_add_u32 s60, s14, 0x%x
        v_add_u32 v64, s60, v16           ; uk frag read addrs
        v_xor_b32 v65, 64, v64
        v_xor_b32 v66, 0x80, v64
        v_xor_b32 v67, 0xc0, v64
        ''' % (SM, UKL))
    if o.get('qpw', 0):
        a('''
        s_lshl_b32 s60, s10, 12
        s_lshl_b32 s61, s3, 7
        s_add_u32 s60, s60, s61
        s_add_u32 s60, s60, 0x%x
        v_lshlrev_b32 v17, 10, v6
        ''' % QP)
        a.v('buffer_load_dword v254, v17, s[44:47], s60 offen sc1', 'PT')
    a('''
    s_cmp_lg_u32 s3, 0
    s_cbranch_scc1 L_Wln
    s_waitcnt vmcnt(%d)
    s_load_dword s4, s[36:37], 0
    ''' % len(a.vm))
    if o.get('diag', 0) == 2: a.stamp(6)
    layernorm(a)
    if o.get('diag', 0) == 2: a.stamp(7)
    a('''
    v_add_u32 v72, 0x%x, v9
    ds_write_b128 v72, v[68:71]
    s_waitcnt lgkmcnt(0)
    s_mov_b32 s60, 0
    s_branch L_Wn_c
    L_Wn:
    global_load_dword v15, v14, s[36:37] sc1
    s_add_u32 s60, s60, 1
    s_waitcnt vmcnt(0)
    v_readfirstlane_b32 s4, v15
    s_cmp_gt_u32 s60, SPIN_N
    s_cbranch_scc1 L_Wn_x
    L_Wn_c:
    s_cmp_eq_u32 s4, 0
    s_cbranch_scc1 L_Wn
    L_Wn_x:
    v_mov_b32 v72, 0x%x
    v_mov_b32 v15, s4
    ds_write_b32 v72, v15
    s_waitcnt lgkmcnt(0)
    L_Wln:
    ''' % (XN, NB))
    if o.get('lnfirst', 1):
        a('''
        s_lshl_b32 s12, s9, 3
        s_add_u32 s12, s12, s8            ; fb = 8k + x
        s_cmp_lt_u32 s9, 11
        s_cselect_b32 s12, s12, 1000
        v_mov_b32 v14, 0
        v_lshrrev_b32 v12, 2, v7          ; r' / a
        v_and_b32 v13, 1, v6
        v_lshl_add_u32 v13, v13, 2, v12
        v_lshlrev_b32 v13, 1, v13
        v_bfe_u32 v16, v1, 1, 1
        s_lshl_b32 s60, s3, 1
        v_add_u32 v16, s60, v16
        v_xor_b32 v16, v16, v13
        v_lshlrev_b32 v16, 4, v16
        v_lshl_add_u32 v13, v6, 3, v12
        v_lshl_add_u32 v16, v13, 8, v16
        v_and_b32 v13, 1, v1
        v_lshl_add_u32 v4, v13, 3, v16    ; tr-read base
        v_lshlrev_b32 v5, 4, v6
        v_add_u32 v5, 0x%x, v5            ; SM + g*16
        v_and_b32 v13, 3, v7
        v_and_b32 v16, 2, v12
        v_xor_b32 v16, v16, v6
        v_lshl_add_u32 v16, v13, 2, v16
        v_lshlrev_b32 v16, 4, v16
        v_lshl_add_u32 v16, v7, 8, v16
        s_add_u32 s60, s14, 0x%x
        v_add_u32 v64, s60, v16           ; uk frag read addrs
        v_xor_b32 v65, 64, v64
        v_xor_b32 v66, 0x80, v64
        v_xor_b32 v67, 0xc0, v64
        ''' % (SM, UKL))
    if o.get('diag', 0) == 2: a.stamp(8)
    a.vwait('WQ')
    if o.get('diag', 0) == 2: a.stamp(9)
    a('s_barrier')
    a.stamp(1)
    if o.get('diag', 0) == 2: a.stamps_hold = True
    a('s_lshl_b32 s60, s11, 8')
    a('v_add_u32 v13, s60, v5')
    for ks in range(4):
        a.d('ds_read_b128 %s, v13 offset:%d' % (R(52 + 4 * ks - 16 + 16, 4), ks * 64) if False else 'ds_read_b128 %s, v13 offset:%d' % (R(16 + 4 * ks, 4), ks * 64), 'a%d' % ks)
        for rdi in range(2):
            a.d('ds_read_b64_tr_b16 %s, v4 offset:%d' % (R(36 + 4 * ks + 2 * rdi, 2), ks * 8192 + rdi * 1024), 'a%d' % ks)
    a('v_mov_b32 v12, 0x%x' % NB)
    a.d('ds_read_b32 v53, v12', 'n')
    a('''
    s_lshl_b32 s60, s10, 12
    s_lshl_b32 s61, s3, 7
    s_add_u32 s60, s60, s61
    s_add_u32 s60, s60, 0x%x          ; QP + h*4096 + w*128
    s_lshl_b32 s61, s11, 10
    s_add_u32 s61, s61, s60           ; + j*1024
    v_lshlrev_b32 v12, 3, v7          ; d*8
    v_lshl_add_u32 v13, v6, 10, v12   ; jj*1024 + d*8
    v_cmp_ne_u32 s[64:65], s11, v6    ; lanes of the other three
    ''' % QP)
    for ks in range(4):
        a.dwait('a%d' % ks)
        a('v_mfma_f32_16x16x32_bf16 v[32:35], %s, %s, %s' % (R(16 + 4 * ks, 4), R(36 + 4 * ks, 4), 'v[32:35]' if ks else '0'))
    a.dall()
    a('''
    s_lshl_b32 s62, s3, 5
    s_add_u32 s62, s62, 0x%x
    v_lshl_add_u32 v15, v7, 1, s62    ; QB + (16w + d)*2
    v_mov_b32 v55, v53
    v_mov_b32 v52, v32
    v_mov_b32 v54, v32
    s_mov_b64 exec, 0xffff
    buffer_store_dwordx2 v[52:53], v12, s[44:47], s61 offen sc1
    ''' % QB)
    def eflag():
        a('''
        s_or_b32 s5, s3, s11
        s_cmp_lg_u32 s5, 0
        s_cbranch_scc1 L_Wef
        QR0 s_lshl_b32 s5, s10, 7
        QR0 s_add_u32 s5, s5, 0x10000
        QR0 s_mov_b64 exec, 0xffff
        QR0 v_mov_b32 v52, v53
        QR0 buffer_store_dwordx2 v[52:53], v12, s[44:47], s5 offen sc1
        QR1 s_lshl_b32 s5, s10, 10
        QR1 s_add_u32 s5, s5, 0x10000
        QR1 s_mov_b64 exec, -1
        QR1 v_mov_b32 v60, v53
        QR1 v_mov_b32 v61, v53
        QR1 v_mov_b32 v62, v53
        QR1 v_mov_b32 v63, v53
        QR1 buffer_store_dwordx4 v[60:63], v9, s[44:47], s5 offen sc1
        L_Wef:
        ''')
    a('''
    s_mov_b64 exec, -1
    s_lshl_b32 s68, s10, 2
    s_add_u32 s68, s68, s11           ; mi = 4h + j
    s_lshl_b32 s69, s68, 15
    s_lshl_b32 s61, s3, 12
    s_add_u32 s69, s69, s61
    s_lshr_b32 s61, s10, 4
    s_lshl_b32 s61, s61, 12
    s_add_u32 s69, s69, s61
    s_add_u32 s69, s69, 0x%x          ; s69 = inbox base of this wave
    s_lshl_b32 s58, s68, 11
    s_lshl_b32 s61, s3, 8
    s_add_u32 s58, s58, s61
    s_add_u32 s58, s58, 0x%x          ; s58 = SP row of this wave
    s_lshl_b32 s66, s12, 11
    s_add_u32 s66, s66, s61
    s_add_u32 s66, s66, 0x%x          ; s66 = FP row of this wave
    s_cmp_lt_u32 s12, 86
    s_cselect_b32 s66, s66, s58
    s_lshl_b32 s67, s3, 6
    s_add_u32 s67, s67, s11
    s_lshl_b32 s67, s67, 9
    s_lshl_b32 s61, s10, 4
    s_add_u32 s67, s67, s61
    s_add_u32 s67, s67, 0x%x          ; s67 = MLC + (64w + j)*512 + h*16
    v_lshlrev_b32 v11, 2, v1
    v_mov_b32 v56, -1
    ''' % (OP, SP, FP, ML))
    a.v('buffer_store_dword v56, v11, s[44:47], s58 offen sc1', 'PT')
    a.v('buffer_store_dword v56, v11, s[44:47], s66 offen sc1', 'PT')
    EF = o.get('ef', 1)
    if EF == 0: eflag()
    if o.get('qpack', 1): a('s_waitcnt vmcnt(0)')
    if EF == 3: eflag()
    a.stamp(2)
    a('''
    s_mov_b32 s62, 0
    L_Wq:
    s_mov_b64 exec, s[64:65]
    buffer_load_dwordx2 v[54:55], v13, s[44:47], s60 offen sc1
    s_add_u32 s62, s62, 1
    s_waitcnt vmcnt(0)
    v_cmp_ne_u32 s[64:65], v55, v53
    s_cmp_gt_u32 s62, SPIN_N
    s_cbranch_scc1 L_Wq_x
    s_cmp_lg_u64 s[64:65], 0
    s_cbranch_scc1 L_Wq
    L_Wq_x:
    ''')
    if EF == 1: eflag()
    a('s_mov_b64 exec, -1')
    a.vm = []
    for ks in range(4):
        a.d('ds_read_b128 %s, v%d' % (R(16 + 4 * ks, 4), 64 + ks), 'uk')
    a.swap_red('v_add_f32', 54, 55, 16)
    a.swap_red('v_add_f32', 54, 55, 32)
    a('''
    v_cvt_pk_bf16_f32 v54, v54, v54
    ds_write_b16 v15, v54
    ''')
    a.dall()
    a('s_barrier')
    a.stamp(3)
    for ks in range(4):
        a.d('ds_read_b128 %s, v5 offset:%d' % (R(36 + 4 * ks, 4), QB - SM + ks * 64), 'a%d' % ks)
    a('''
    s_lshl_b32 s14, s3, 5
    s_add_u32 s14, s14, 0x%x
    v_lshl_add_u32 v13, v6, 3, s14    ; QO + w*32 + q*8
    v_lshlrev_b32 v12, 4, v7
    v_add_u32 v15, 0x%x, v12          ; QO + (l%%16)*16
    s_lshl_b32 s14, s68, 8
    s_lshl_b32 s15, s68, QCSH
    s_add_u32 s15, s15, 0x%x
    v_add_u32 v56, s14, v12
    v_add_u32 v57, s15, v12
    v_cndmask_b32 v56, v56, v57, s[52:53]
    ''' % (QO, QO, QC))
    for ks in range(4):
        a.dwait('a%d' % ks)
        a('v_mfma_f32_16x16x32_bf16 v[32:35], %s, %s, %s' % (R(16 + 4 * ks, 4), R(36 + 4 * ks, 4), 'v[32:35]' if ks else '0'))
    sc = f2u(128 ** -0.5 * math.log2(math.e))
    a('''
    v_mul_f32 v32, 0x%x, v32
    v_mul_f32 v33, 0x%x, v33
    v_mul_f32 v34, 0x%x, v34
    v_mul_f32 v35, 0x%x, v35
    v_cvt_pk_bf16_f32 v32, v32, v33
    v_cvt_pk_bf16_f32 v33, v34, v35
    ds_write_b64 v13, v[32:33]
    s_waitcnt lgkmcnt(0)
    s_barrier
    s_cmp_lg_u32 s3, 0
    s_cbranch_scc1 L_Wpub
    ds_read_b128 v[32:35], v15
    s_waitcnt lgkmcnt(0)
    v_add3_u32 v36, v32, v33, v34
    v_add_u32 v36, v36, v35
    ''' % (sc, sc, sc, sc))
    a.wave_red('v_add_u32', 36, 37, rows_only=True)
    a('''
    v_sub_u32 v36, v53, v36
    v_cndmask_b32 v32, v32, v36, s[52:53]
    v_cndmask_b32 v33, v33, v53, s[52:53]
    s_mov_b64 exec, QCEX
    buffer_store_dwordx4 v[32:35], v56, s[44:47], 0 offen sc1
    s_mov_b64 exec, -1
    L_Wpub:
    s_barrier
    ''')
    a.stamp(4)
    WW = o.get('wwin', 3)
    W1L, W2L, WOL = 0x8000, 0xC000, 0x10000
    a.srd(40, WUV, 0x400000)
    a.srd(48, WO, 0x400000)
    a("""
    s_mov_b32 s16, s30
    s_mov_b32 s17, s31
    s_mov_b32 s18, %d
    s_mov_b32 s19, 0x20000
    s_mov_b32 s20, s32
    s_mov_b32 s21, s33
    s_mov_b32 s22, %d
    s_mov_b32 s23, 0x20000
    v_readfirstlane_b32 s4, v53
    v_lshrrev_b32 v12, 3, v1          ; r8
    v_and_b32 v13, 7, v1              ; c8
    v_lshlrev_b32 v70, 4, v13
    v_lshl_add_u32 v70, v12, 10, v70  ; r8*1024 + c8*16   (w2 voff)
    v_bfe_u32 v15, v1, 4, 1
    v_lshlrev_b32 v15, 5, v15
    v_xor_b32 v68, v70, v15           ; voffC
    v_xor_b32 v69, 64, v68            ; voffD
    v_mul_u32_u24 v10, 2752, v6
    s_and_b32 s60, s3, 1
    s_lshl_b32 s60, s60, 7
    v_xor_b32 v13, s60, v8
    v_add_u32 v10, v10, v13           ; w1 voff
    s_lshl_b32 s24, s8, 3
    s_add_u32 s24, s24, s3
    s_mul_i32 s24, s24, %d
    s_lshl_b32 s60, s9, 8
    s_add_u32 s24, s24, s60           ; w1 source
    s_lshl_b32 s25, s12, 14
    s_lshl_b32 s60, s3, 7
    s_add_u32 s25, s25, s60           ; w2 source (out of range when not an FFN workgroup)
    s_cmp_lt_u32 s12, 88
    s_cselect_b32 s24, s24, 0x1000000
    s_lshl_b32 s26, s3, 11            ; LDS w*2048
    v_lshl_add_u32 v2, v6, 17, v8
    v_xor_b32 v3, 0x80, v2
    s_lshl_b32 s27, s11, 5
    s_add_u32 s27, s27, s3
    s_lshl_b32 s27, s27, 14
    s_add_u32 s27, s27, s13           ; uv source
    s_lshl_b32 s28, s3, 12            ; LDS w*4096
    s_lshl_b32 s14, s10, 17
    s_lshl_b32 s15, s3, 7
    s_add_u32 s14, s14, s15           ; wo source
    s_lshl_b32 s15, s3, 13
    s_add_u32 s15, s15, 0x%x          ; wo LDS
    v_lshrrev_b32 v71, 2, v7
    v_lshl_add_u32 v71, v6, 3, v71
    v_lshlrev_b32 v71, 7, v71
    v_and_b32 v13, 3, v1
    v_lshl_add_u32 v71, v13, 3, v71
    v_bfe_u32 v13, v1, 3, 2
    v_lshl_add_u32 v71, v13, 5, v71
    v_add_u32 v71, s15, v71
    """ % (512 * 2752, 1376 * 1024, 8 * 2752, WOL))
    a.vm = []
    WOF = 72
    cnt = [0]; curw = [0]
    def op(kind, n):
        a.vwait_n((curw[0] or (WW if cnt[0] < o.get('wsw', 14) else o.get('wwinb', 4))) - 1)
        cnt[0] += 1
        if kind == 'w1':
            a('s_add_u32 m0, s26, 0x%x' % (W1L + n * 1024)); a('s_add_u32 s60, s24, %d' % (n * 4 * 2752))
            a.v('buffer_load_dwordx4 v10, s[16:19], s60 offen nt lds', 'F')
        elif kind == 'w2':
            a('s_add_u32 m0, s26, 0x%x' % (W2L + n * 1024)); a('s_add_u32 s60, s25, %d' % (n * 8192))
            a.v('buffer_load_dwordx4 v70, s[20:23], s60 offen nt lds', 'F')
        elif kind == 'uv':
            a('s_add_u32 m0, s28, %d' % (n * 1024)); a('s_add_u32 s60, s27, %d' % ((256 * (n & 1) + (n >> 1)) * 8192))
            a.v('buffer_load_dwordx4 v%d, s[40:43], s60 offen nt lds' % (2 if n < 2 else 3), 'U')
        else:
            a('s_add_u32 m0, s15, %d' % ((n % 8) * 1024)); a('s_add_u32 s60, s14, %d' % (n * 8192))
            a.v('buffer_load_dwordx4 v%d, s[48:51], s60 offen %s lds' % (68 if n % 2 == 0 else 69, WOPOL), 'O%d' % (n // 4))
    def wo_read(ks):
        if ('O%d' % ks) in a.vm: a.vwait('O%d' % ks)
        for mt in range(4):
            a('v_xor_b32 v13, 0x%x, v71' % (mt * 32))
            for rdi in range(2):
                a.d('ds_read_b64_tr_b16 %s, v13 offset:%d' % (R(WOF + (mt * 4 + ks) * 4 + 2 * rdi, 2), (ks % 2) * 4096 + rdi * 512), 'wo')
        a.dall()
    def ffn1():
        if 'F' in a.vm: a.vwait('F')
        a('s_barrier')
        a.stamp(10)
        a("""
        s_cmp_ge_u32 s12, 88
        s_cbranch_scc1 L_Wnf2
        s_lshl_b32 s60, s8, 7
        v_add_u32 v13, s60, v5            ; xn + 64x*2 + g*16
        v_add_u32 v15, 0x8000, v4
        """)
        for ks in range(2):
            a('ds_read_b128 %s, v13 offset:%d' % (R(52 + 4 * ks, 4), ks * 64))
            for rdi in range(2):
                a('ds_read_b64_tr_b16 %s, v15 offset:%d' % (R(36 + 4 * ks + 2 * rdi, 2), ks * 8192 + rdi * 1024))
        a("""
        v_lshrrev_b32 v12, 2, v1
        v_and_b32 v13, 3, v1
        v_lshlrev_b32 v13, 3, v13
        v_lshl_add_u32 v12, v12, 7, v13
        s_lshl_b32 s60, s3, 11
        s_add_u32 s60, s60, 0x%x
        v_add_u32 v12, s60, v12
        s_waitcnt lgkmcnt(0)
        v_mfma_f32_16x16x32_bf16 v[32:35], v[52:55], v[36:39], 0
        v_mfma_f32_16x16x32_bf16 v[32:35], v[56:59], v[40:43], v[32:35]
        """ % W2L)
        for mt in range(4):
            a('ds_read_b64_tr_b16 %s, v12 offset:%d' % (R(44 + 2 * mt, 2), mt * 32))
        a("""
        s_lshl_b32 s60, s12, 10
        s_lshl_b32 s61, s3, 7
        s_add_u32 s60, s60, s61
        s_add_u32 s60, s60, 0x%x          ; HP + (8k+x)*1024 + w*128
        v_lshlrev_b32 v12, 3, v7
        v_mov_b32 v33, s4
        s_mov_b64 exec, 0xffff
        buffer_store_dwordx2 v[32:33], v12, s[44:47], s60 offen sc1
        s_mov_b64 exec, -1
        L_Wnf2:
        s_waitcnt lgkmcnt(0)
        """ % HP)
        a.lg = []
    def ffn2():
        a('''
        s_cmp_ge_u32 s12, 86
        s_cbranch_scc1 L_Wnf3
        s_lshl_b32 s60, s9, 13
        s_lshl_b32 s61, s8, 7
        s_add_u32 s60, s60, s61
        s_add_u32 s60, s60, 0x%x          ; HP + k*8192 + x*128
        v_and_b32 v12, 7, v1
        v_lshlrev_b32 v12, 10, v12
        v_lshl_add_u32 v12, v6, 5, v12    ; producer*1024 + g*32
        s_mov_b32 s61, 0
        L_Wh:
        buffer_load_dwordx4 v[52:55], v12, s[44:47], s60 offen sc1
        buffer_load_dwordx4 v[56:59], v12, s[44:47], s60 offen offset:16 sc1
        s_add_u32 s61, s61, 1
        s_waitcnt vmcnt(0)
        v_xor_b32 v13, v53, v55
        v_xor_b32 v14, v57, v59
        v_xor_b32 v15, s4, v53
        v_or3_b32 v13, v13, v14, v15
        v_xor_b32 v14, v53, v57
        v_or_b32 v13, v13, v14
        v_cmp_ne_u32 vcc, 0, v13
        s_cmp_gt_u32 s61, SPIN_N
        s_cbranch_scc1 L_Wh_x
        s_cbranch_vccnz L_Wh
        L_Wh_x:
        ''' % HP)
        for m in ('quad_perm:[1,0,3,2]', 'quad_perm:[2,3,0,1]', 'row_half_mirror'):
            for r in range(4):
                a('v_add_f32_dpp v%d, v%d, v%d %s row_mask:0xf bank_mask:0xf' % (52 + 2 * r, 52 + 2 * r, 52 + 2 * r, m))
        for r in range(4):
            a.rnd_bf16(52 + 2 * r)
            a.silu(52 + 2 * r, 53)
        a('v_cvt_pk_bf16_f32 v32, v52, v54')
        a('v_cvt_pk_bf16_f32 v33, v56, v58')
        for mt in range(4):
            a('v_mfma_f32_16x16x16_bf16 %s, v[32:33], %s, 0' % (R(52 + 4 * mt, 4), R(44 + 2 * mt, 2)))
        a('''
        v_cndmask_b32 v52, v52, v56, s[52:53]
        v_cndmask_b32 v52, v52, v60, s[54:55]
        v_cndmask_b32 v52, v52, v64, s[56:57]
        buffer_store_dword v52, v11, s[44:47], s66 offen sc1
        L_Wnf3:
        ''')
        a('s_waitcnt vmcnt(0)')
        a.vm = []
    seqs = {
        0: 'a0 o0 a1 o1 b0 o2 b1 o3 o4 o5 u0 F o6 o7 R0 o8 o9 u1 o10 o11 R1 o12 o13 u2 o14 o15 u3 R2 G R3',
        1: 'a0 a1 b0 b1 o0 o1 o2 o3 F o4 o5 o6 o7 R0 o8 o9 u0 o10 o11 u1 R1 o12 o13 u2 o14 o15 u3 R2 G R3',
        7: 'w3 o0 o1 o2 o3 o4 o5 a0 w8 a1 b0 b1 u0 u1 u2 u3 w3 o6 o7 F R0 o8 o9 o10 o11 R1 o12 o13 o14 o15 R2 G R3',
        8: 'w3 o0 o1 o2 a0 w8 a1 b0 b1 u0 u1 u2 u3 w3 o3 o4 o5 F o6 o7 R0 o8 o9 o10 o11 R1 o12 o13 o14 o15 R2 G R3',
        9: 'w2 o0 o1 o2 o3 a0 w5 a1 b0 b1 u0 u1 u2 u3 w3 o4 o5 F o6 o7 R0 o8 o9 o10 o11 R1 o12 o13 o14 o15 R2 G R3',
        10: 'w3 o0 o1 o2 o3 o4 o5 o6 o7 R0 a0 w8 a1 b0 b1 u0 u1 u2 u3 w3 o8 o9 F o10 o11 R1 o12 o13 o14 o15 R2 G R3',
        11: 'w4 o0 o1 o2 o3 o4 o5 o6 o7 R0 o8 o9 o10 o11 R1 a0 a1 b0 b1 w3 o12 o13 o14 F o15 u0 u1 u2 u3 R2 G R3',
        3: 'o0 o1 o2 o3 a0 o4 a1 o5 b0 o6 b1 o7 R0 o8 o9 u0 F o10 o11 u1 R1 o12 o13 u2 o14 o15 u3 R2 R3',
        2: 'o0 o1 o2 o3 a0 o4 a1 o5 b0 o6 b1 o7 R0 o8 o9 u0 F o10 o11 u1 R1 o12 o13 u2 o14 o15 u3 R2 G R3',
    }
    for t in seqs[o.get('wseq', 2)].split():
        if t[0] == 'w': curw[0] = int(t[1:])
        elif t == 'F': ffn1()
        elif t == 'G': ffn2()
        elif t[0] == 'R': wo_read(int(t[1:]))
        else: op({'a': 'w1', 'b': 'w2', 'u': 'uv', 'o': 'wo'}[t[0]], int(t[1:]))
    for p in range(4):
        a('v_cmp_eq_u32 vcc, %d, v7' % (2 * p))
        a('v_mov_b32 v%d, 0' % (56 + p))
        a('v_mov_b32 v64, 0xffff')
        a('v_cndmask_b32 v%d, v%d, v64, vcc' % (56 + p, 56 + p))
        a('v_cmp_eq_u32 vcc, %d, v7' % (2 * p + 1))
        a('v_mov_b32 v64, 0xffff0000')
        a('v_cndmask_b32 v%d, v%d, v64, vcc' % (56 + p, 56 + p))
        for i in range(4): a('v_and_b32 v%d, 0x3f803f80, v%d' % (136 + 4 * i + p, 56 + p))
    a("""
    v_lshrrev_b32 v64, 1, v6
    v_mul_u32_u24 v64, 0x%x, v64
    v_lshl_add_u32 v64, v7, 4, v64
    v_and_b32 v65, 1, v6
    v_lshl_add_u32 v64, v65, 3, v64
    s_mul_i32 s60, s3, 288
    s_add_u32 s60, s60, 0x%x
    v_add_u32 v64, s60, v64
    v_and_b32 v65, 7, v1
    v_mul_u32_u24 v65, 288, v65
    v_add_u32 v65, v65, v5
    s_lshl_b32 s60, s3, 5
    s_add_u32 s60, s60, 0x%x
    v_lshl_add_u32 v66, v7, 1, s60
    """ % (8 * 288, ROWS, CB))
    a('s_waitcnt vmcnt(0)')
    a('s_barrier')
    a.stamp(5)
    for ks in range(4):
        for rdi in range(2):
            a.d('ds_read_b64_tr_b16 %s, v4 offset:%d' % (R(16 + 4 * ks + 2 * rdi, 2), ks * 8192 + rdi * 1024), 'uv')
    a.dall()
    a.stamp(6)
    a('''
    v_lshlrev_b32 v14, 11, v7
    s_lshl_b32 s60, s3, 3
    s_add_u32 s60, s60, 0x%x
    v_mov_b32 v70, s60                ; LW + w*8
    v_and_b32 v71, 7, v1
    v_lshlrev_b32 v71, 3, v71
    v_add_u32 v71, 0x%x, v71          ; LW + (l%%8)*8
    v_and_b32 v12, 3, v1
    v_cmp_eq_u32 s[64:65], v12, v6
    s_mov_b32 s60, 0
    s_mov_b64 s[62:63], -1
    L_Wg1:
    s_sleep ML_SLEEP
    s_mov_b64 exec, s[62:63]
    buffer_load_dwordx4 v[52:55], v14, s[44:47], s67 offen sc1
    s_add_u32 s60, s60, 1
    s_waitcnt vmcnt(0)
    v_cmp_ne_u32 s[62:63], s4, v55
    s_cmp_gt_u32 s60, SPIN_N
    s_cbranch_scc1 L_Wg
    s_cmp_lg_u64 s[62:63], 0
    s_cbranch_scc1 L_Wg1
    ''' % (LW, LW))
    a.label('L_Wg')
    a('s_mov_b64 exec, -1')
    for i in range(4):
        a('buffer_load_dwordx4 %s, v9, s[44:47], s69 offen offset:%d sc1' % (R(36 + 4 * i, 4), i * 1024))
    a("""
    s_add_u32 s60, s60, 1
    v_subrev_u32 v15, s4, v54
    v_add3_u32 v15, v15, v52, v53
    v_cndmask_b32 v15, 0, v15, s[64:65]
    v_cmp_neq_f32 vcc, 0, v52
    s_cbranch_vccnz L_Wgen
    """)
    a.label('L_Wj')
    a.wave_red('v_add_f32', 53, 12, rows_only=True)
    a('ds_write_b64 v70, v[52:53]')
    for i in range(4):
        a('s_waitcnt vmcnt(%d)' % (3 - i))
        a('v_mfma_f32_16x16x32_bf16 v[32:35], %s, %s, %s' % (R(136 + 4 * i, 4), R(36 + 4 * i, 4), 'v[32:35]' if i else '0'))
        a('v_add3_u32 v15, v15, v%d, v%d' % (36 + 4 * i, 37 + 4 * i))
        a('v_add3_u32 v15, v15, v%d, v%d' % (38 + 4 * i, 39 + 4 * i))
    a("""
    v_add_u32_dpp v15, v15, v15 quad_perm:[1,0,3,2] row_mask:0xf bank_mask:0xf
    v_add_u32_dpp v15, v15, v15 quad_perm:[2,3,0,1] row_mask:0xf bank_mask:0xf
    v_cvt_pk_bf16_f32 v32, v32, v33
    v_cvt_pk_bf16_f32 v33, v34, v35
    v_add_u32_dpp v15, v15, v15 row_half_mirror row_mask:0xf bank_mask:0xf
    ds_write_b64 v64, v[32:33]
    v_add_u32_dpp v15, v15, v15 row_mirror row_mask:0xf bank_mask:0xf
    v_cmp_ne_u32 vcc, 0, v15
    s_cbranch_vccnz L_Wretry
    L_Wg_x:
    """)
    a.stamp(7)
    if a.stamps:
        a('s_mul_i32 s92, s60, 100')
        a('s_add_u32 s92, s92, s70')
        a('s_addc_u32 s93, s71, 0')
    a("""
    s_waitcnt lgkmcnt(0)
    s_barrier
    """)
    a.stamp(8)
    for ks in range(4):
        a.d('ds_read_b128 %s, v65 offset:%d' % (R(36 + 4 * ks, 4), ROWS - SM + ks * 64), 'a%d' % ks)
    a.d('ds_read_b64 v[52:53], v71', 'lw')
    for ks in range(4):
        a.dwait('a%d' % ks)
        a('v_mfma_f32_16x16x32_bf16 v[32:35], %s, %s, %s' % (R(36 + 4 * ks, 4), R(16 + 4 * ks, 4), 'v[32:35]' if ks else '0'))
    a.dall()
    a('''
    v_cmp_neq_f32 vcc, 0, v52
    s_cbranch_vccnz L_Wgen2
    L_Wj2:
    v_add_f32_dpp v53, v53, v53 quad_perm:[1,0,3,2] row_mask:0xf bank_mask:0xf
    s_nop 1
    v_add_f32_dpp v53, v53, v53 quad_perm:[2,3,0,1] row_mask:0xf bank_mask:0xf
    s_nop 1
    v_add_f32_dpp v53, v53, v53 row_half_mirror row_mask:0xf bank_mask:0xf
    v_add_f32 v32, v32, v33
    v_add_f32 v34, v34, v35
    v_rcp_f32 v67, v53
    v_add_f32 v32, v32, v34
    ''')
    a.swap_red('v_add_f32', 32, 33, 16)
    a('''
    v_mul_f32 v32, v32, v67
    v_cvt_pk_bf16_f32 v32, v32, v32
    ds_write_b16 v66, v32
    s_waitcnt lgkmcnt(0)
    s_barrier
    ''')
    for ks in range(4):
        a.d('ds_read_b128 %s, v5 offset:%d' % (R(36 + 4 * ks, 4), CB - SM + ks * 64), 'a%d' % ks)
    for ks in range(4):
        a.dwait('a%d' % ks)
        for mt in range(4):
            a('v_mfma_f32_16x16x32_bf16 %s, %s, %s, %s' % (R(16 + 4 * mt, 4), R(36 + 4 * ks, 4), R(WOF + (mt * 4 + ks) * 4, 4), R(16 + 4 * mt, 4) if ks else '0'))
    a('''
    v_cndmask_b32 v16, v16, v20, s[52:53]
    v_cndmask_b32 v16, v16, v24, s[54:55]
    v_cndmask_b32 v16, v16, v28, s[56:57]
    buffer_store_dword v16, v11, s[44:47], s58 offen sc1
    ''')
    a.stamp(9)
    if a.stamps:
        a('s_cmp_lg_u32 s3, %d' % o.get('stw', 0))
        a('s_cbranch_scc1 L_end')
        a.write_stamps()
    a('s_endpgm')

def role_Wslow(a, o):
    a.aslow()
    a.label('L_Wgen')
    a('v_mov_b32 v12, v52')
    a.wave_red('v_max_f32', 12, 13, rows_only=True)
    a('''
    v_sub_f32 v54, v52, v12
    v_exp_f32 v54, v54
    v_mov_b32 v52, v12                ; Mw
    v_and_b32 v54, 0xffff0000, v54
    v_mul_f32 v53, v53, v54
    v_lshrrev_b32 v55, 16, v54
    v_or_b32 v54, v54, v55
    v_lshlrev_b32 v13, 2, v6
    ''')
    for i in range(4):
        a('ds_bpermute_b32 v12, v13, v54 offset:%d' % (16 * i))
        a('s_waitcnt lgkmcnt(0)')
        for p in range(4):
            a('v_and_b32 v%d, v12, v%d' % (136 + 4 * i + p, 56 + p))
    a('s_nop 1')
    a('s_branch L_Wj')
    a('''
    L_Wretry:
    s_cmp_gt_u32 s60, SPIN_N
    s_cbranch_scc1 L_Wg_x
    s_mov_b64 s[62:63], -1
    ''')
    for p in range(4):
        for i in range(4): a('v_and_b32 v%d, 0x3f803f80, v%d' % (136 + 4 * i + p, 56 + p))
    a('s_branch L_Wg1')
    a.label('L_Wgen2')
    a('''
    v_mov_b32 v12, v52
    v_max_f32_dpp v12, v12, v12 quad_perm:[1,0,3,2] row_mask:0xf bank_mask:0xf
    v_max_f32_dpp v12, v12, v12 quad_perm:[2,3,0,1] row_mask:0xf bank_mask:0xf
    v_max_f32_dpp v12, v12, v12 row_half_mirror row_mask:0xf bank_mask:0xf
    v_sub_f32 v54, v52, v12
    v_exp_f32 v54, v54
    v_and_b32 v13, 1, v6
    v_lshlrev_b32 v13, 4, v13
    v_mul_f32 v53, v53, v54
    ''')
    for r in range(4):
        a('ds_bpermute_b32 v12, v13, v54 offset:%d' % (4 * r))
        a('s_waitcnt lgkmcnt(0)')
        a('v_mul_f32 v%d, v%d, v12' % (32 + r, 32 + r))
    a('s_nop 1')
    a('s_branch L_Wj2')

def gen(stamps=False, o=None):
    o = o or {}
    a = G(stamps)
    prologue(a, o)
    role_W(a, o)
    role_A(a, o)
    role_final(a, o)
    role_As(a, o)
    role_Wslow(a, o)
    a.label('L_end')
    txt = a.text()
    for k, v in (('QT_SLEEP', o.get('qtsleep', 1)), ('QT_THR', o.get('qtthr', 2)), ('REP_MASK', o.get('repmask', '0x00010001' if o.get('ef', 1) == 2 else '0xff')), ('LSPIN', 200000), ('SPIN_N', SPIN),
                 ('ML_SLEEP', o.get('mlsleep', 1)), ('FIN_SLEEP', o.get('finsleep', 0)), ('UKGATE', o.get('ukgate', 3))):
        txt = txt.replace(k, str(v))
    txt = txt.replace('W1A ', '; ' if o.get('now1', 0) else '')
    txt = txt.replace('PTA ', '' if o.get('pre', 0) else '; ').replace('ML_OFF', '0x%x' % ML)
    qs = o.get('qcsh', 5)
    txt = txt.replace('QCSH+5', str(qs + 5)).replace('QCSH', str(qs)).replace('QCEX', {4: '0x1ffff', 5: '0x3ffff', 6: '0xfffff', 7: '0xffffff'}[qs]).replace('REP_N', str(o.get('repn', 1)))
    txt = txt.replace('NODEP ', '' if o.get('nodep', 0) else '; ')
    if o.get('nodep', 0): txt = txt.replace('s_or_b32 s14, vcc_lo, vcc_hi', 's_mov_b32 s14, 0')
    if o.get('now1', 0): txt = txt.replace('buffer_load_dwordx4 v14, s[40:43], s14 offen', '; ').replace('buffer_load_dwordx4 v14, s[40:43], s60 offen', '; ')
    txt = txt.replace('OUTPT ', '' if o.get('outpt', 0) else '; ')
    txt = txt.replace('REPBASE', 's11' if o.get('ef', 1) == 2 else 's68')
    txt = txt.replace('AMIX ', '' if o.get('amix', 0) else '; ')
    rm = o.get('remap', 0)
    if rm:
        sh = rm + 2
        code = '''    s_cbranch_scc1 L_end
    s_bfe_u32 s8, s2, 0x%x
    s_lshl_b32 s8, s8, 7
    s_and_b32 s9, s2, 0x%x
    s_lshr_b32 s2, s2, %d
    s_lshl_b32 s2, s2, %d
    s_or_b32 s2, s2, s9
    s_or_b32 s2, s2, s8
''' % ((1 << 16) | sh, (1 << sh) - 1, sh + 1, sh)
        txt = txt.replace('    s_cbranch_scc1 L_end\n', code, 1)
    txt = txt.replace('TLBPT ', '' if o.get('tlbpt', 1) else '; ')
    txt = txt.replace('YSL', str(o.get('ysl', 1)))
    qr = o.get('qr', 0)
    txt = txt.replace('QR0 ', '; ' if qr else '').replace('QR1 ', '' if qr else '; ')
    body = hz.fix(txt)
    return kernel_file([(KN + '_kernel', 256, 512, 163840)], [(KN + '_kernel', body, 256, 96, 256)])

if __name__ == '__main__':
    out = sys.argv[1]
    stamps = 'stamps' in sys.argv[2:]
    o = {}
    for kv in sys.argv[2:]:
        if '=' in kv:
            k, v = kv.split('=')
            o[k] = int(v) if v.lstrip('-').isdigit() else v.replace('_', ' ')
    open(out, 'w').write(gen(stamps, o))
```

```python
from roleA36 import *

def role_final(a, o):
    a('''
    s_cmp_lg_u32 s3, 0
    s_cbranch_scc1 L_end
    ''')
    a.stamp(5)
    a.srd(48, WS, FP + 86 * 2048)
    a.srd(40, X, 1024)
    a('''
    v_mov_b32 v40, v24
    s_and_b32 s10, s2, 7
    s_lshl_b32 s10, s10, 6
    s_lshr_b32 s11, s2, 3
    s_lshl_b32 s11, s11, 2
    s_add_u32 s10, s10, s11            ; m0
    s_lshl_b32 s11, s10, 2
    s_lshl_b32 s12, s10, 1
    v_lshlrev_b32 v41, 11, v40
    v_and_b32 v42, 3, v40
    v_lshlrev_b32 v43, 1, v42
    buffer_load_ushort v60, v43, s[40:43], s12 offen
    v_and_b32 v44, 1, v40
    v_cmp_eq_u32 s[60:61], 1, v44
    v_and_b32 v44, 2, v40
    v_cmp_eq_u32 s[62:63], 2, v44
    ''')
    def gather4(base, srd, lab, dst):
        a('s_add_u32 s13, s11, 0x%x' % base)
        a('s_add_u32 s14, s11, 0x%x' % (base + 64 * 2048))
        a('s_mov_b32 s8, 0')
        if lab == 'L_gs' and o.get('frep', 4):
            a('''
            s_mov_b32 s64, %s
            s_mov_b32 s65, %s
            s_mov_b64 exec, s[64:65]
            L_gr:
            buffer_load_dword v48, v41, s[44:47], s13 offen sc1
            buffer_load_dword v52, v41, s[44:47], s14 offen sc1
            s_add_u32 s8, s8, 1
            s_waitcnt vmcnt(0)
            v_cmp_ne_u32 s[66:67], -1, v48
            v_cmp_ne_u32 s[68:69], -1, v52
            s_bcnt1_i32_b64 s66, s[66:67]
            s_bcnt1_i32_b64 s68, s[68:69]
            s_add_u32 s66, s66, s68
            s_cmp_gt_u32 s8, SPIN_N
            s_cbranch_scc1 L_gr_x
            s_cmp_lt_u32 s66, %d
            s_cbranch_scc1 L_gr
            L_gr_x:
            ''' % (o.get('fmask', '0x00010001'), o.get('fmask', '0x00010001'), o.get('frep', 4)))
        a('s_mov_b64 s[64:65], -1')
        a('s_mov_b64 s[66:67], -1')
        a.label(lab)
        a('s_sleep FIN_SLEEP')
        a('s_mov_b64 exec, s[64:65]')
        a('s_cbranch_execz %s_a' % lab)
        a('buffer_load_dwordx4 v[48:51], v41, s[%d:%d], s13 offen sc1' % (srd, srd + 3))
        a.label(lab + '_a')
        a('s_mov_b64 exec, s[66:67]')
        a('s_cbranch_execz %s_b' % lab)
        a('buffer_load_dwordx4 v[52:55], v41, s[%d:%d], s14 offen sc1' % (srd, srd + 3))
        a.label(lab + '_b')
        a('''
        s_mov_b64 exec, -1
        s_add_u32 s8, s8, 1
        s_waitcnt vmcnt(0)
        v_max3_u32 v56, v48, v49, v50
        v_max3_u32 v57, v52, v53, v54
        v_max_u32 v56, v56, v51
        v_max_u32 v57, v57, v55
        v_cmp_eq_u32 s[64:65], -1, v56
        v_cmp_eq_u32 s[66:67], -1, v57
        s_cmp_gt_u32 s8, SPIN_N
        s_cbranch_scc1 %s_x
        s_or_b64 s[68:69], s[64:65], s[66:67]
        s_cbranch_scc1 %s
        %s_x:
        v_add_f32 v48, v48, v52
        v_add_f32 v49, v49, v53
        v_add_f32 v50, v50, v54
        v_add_f32 v51, v51, v55
        v_cndmask_b32 v52, v48, v49, s[60:61]
        v_cndmask_b32 v53, v49, v48, s[60:61]
        v_cndmask_b32 v54, v50, v51, s[60:61]
        v_cndmask_b32 v55, v51, v50, s[60:61]
        v_add_f32_dpp v52, v53, v52 quad_perm:[1,0,3,2] row_mask:0xf bank_mask:0xf
        v_add_f32_dpp v54, v55, v54 quad_perm:[1,0,3,2] row_mask:0xf bank_mask:0xf
        v_cndmask_b32 v%d, v52, v54, s[62:63]
        v_cndmask_b32 v53, v54, v52, s[62:63]
        v_add_f32_dpp v%d, v53, v%d quad_perm:[2,3,0,1] row_mask:0xf bank_mask:0xf
        v_add_f32_dpp v%d, v%d, v%d row_ror:4 row_mask:0xf bank_mask:0xf
        v_add_f32_dpp v%d, v%d, v%d row_ror:8 row_mask:0xf bank_mask:0xf
        ''' % ((lab, lab, lab) + (dst,) * 9))
        a.swap_red('v_add_f32', dst, 53, 16)
        a.swap_red('v_add_f32', dst, 53, 32)
    gather4(FP, 48, 'L_gf', 61)
    a.rnd_bf16(61)
    a.silu(61, 53)
    a.rnd_bf16(61)
    a('v_lshlrev_b32 v60, 16, v60')
    a.srd(40, OUT, 1024)
    a.stamp(6)
    gather4(SP, 44, 'L_gs', 62)
    a.rnd_bf16(62)
    a('v_mul_f32 v62, v62, v61')
    a.rnd_bf16(62)
    a('''
    v_add_f32 v62, v62, v60
    v_cvt_pk_bf16_f32 v62, v62, v62
    s_mov_b64 exec, 15
    buffer_store_short v62, v43, s[40:43], s12 offen
    ''')
    a.stamp(7)
    a.write_stamps()
    a('s_endpgm')

def role_As(a, o):
    a.stamps_mute = False
    a.label('L_As')
    ops = [(c, seg, aa) for c in range(2) for seg in range(4) for aa in range(4)]
    AM = o.get('amaj', 1)
    ops = [(c, sp * 2 + sg, aa) for c in range(2) for sp in range(2) for aa in range(4) for sg in range(2)]
    if o.get('hmix', 0): ops = [(c, sp * 2 + sg, aa) for c in range(2) for sp in range(2) for aa in (0, 2, 1, 3) for sg in range(2)]
    def prog(n):
        return {7: 2, 15: 4, 23: 6}.get(n)
    NPRE = o.get('npre', 20); NR = 32 - NPRE
    first = [(i, seg, aa) for i in range(2) for aa in range(4) for seg in range(4)]
    def loads(lo, hi):
        for n in range(lo, hi):
            if n < 0:
                i, seg, aa = first[32 + n]
                a('s_xor_b32 m0, s69, 0x%x' % (65536 + aa * 4096 + seg * 1024))
                a('s_xor_b32 s10, s66, 0x%x' % (65536 + aa * 4096 + seg * 256))
                a.v('buffer_load_dwordx4 v%d, s[40:43], s10 offen nt lds' % (3 if aa < 2 else 0), 'D')
                continue
            c, seg, aa = ops[n]
            a('s_add_u32 s10, s64, 0x%x' % (c * 65536 + aa * 4096 + seg * 256))
            a.v('buffer_load_dwordx4 %s, v%d, s[40:43], s10 offen nt' % (R(128 + 4 * n, 4), 3 if aa < 2 else 0), 'L%d' % n)
    def writes(lo, hi):
        for n in range(lo, hi):
            c, seg, aa = ops[n]
            if ('L%d' % n) in a.vm: a.vwait('L%d' % n)
            a('ds_write_b128 v%d, %s offset:%d' % (100 + c, R(128 + 4 * n, 4), aa * 4096 + seg * 1024))
        a('s_waitcnt lgkmcnt(0)')
    c = [int(x, 16) for x in str(o.get('hsch', 'x64'))[1:]]
    a("""
    s_setprio 3
    s_sub_u32 s3, s3, 4
    s_cmp_lg_u32 s3, 1
    s_cbranch_scc1 L_Apt
    TLBPT s_load_dword s60, s[38:39], 0x1f000
    TLBPT s_load_dword s60, s[26:27], 0x0
    TLBPT s_load_dword s60, s[30:31], 0x0
    TLBPT s_load_dword s60, s[32:33], 0x0
    TLBPT s_load_dword s60, s[24:25], 0x0
    TLBPT s_load_dword s60, s[34:35], 0x0
    TLBPT s_mov_b32 s61, 0x300000
    TLBPT s_load_dword s60, s[38:39], s61
    TLBPT s_load_dword s60, s[26:27], s61
    TLBPT s_load_dword s60, s[24:25], s61
    TLBPT s_mov_b32 s62, 0x502000
    TLBPT s_load_dword s60, s[38:39], s62
    L_Apt:
    s_lshl_b32 s9, s3, 14
    s_add_u32 s64, s8, s9
    s_lshl_b32 s10, s3, 8
    s_or_b32 s66, s64, s10
    s_lshl_b32 s10, s3, 10
    s_or_b32 s69, s9, s10
    s_add_u32 s64, s64, 0x20000
    v_lshl_add_u32 v100, v1, 4, s9
    v_add_u32 v101, 0x10000, v100
    v_mov_b32 v2, 0
    s_mov_b32 s8, 0
    L_Agn:
    s_sleep 8
    global_load_dword v5, v2, s[36:37] sc1
    s_add_u32 s8, s8, 1
    s_waitcnt vmcnt(0)
    v_readfirstlane_b32 s4, v5
    s_cmp_gt_u32 s8, SPIN_N
    s_cbranch_scc1 L_Agn_x
    s_cmp_eq_u32 s4, 0
    s_cbranch_scc1 L_Agn
    L_Agn_x:
    OUTPT global_load_dword v254, v2, s[34:35]
    """)
    K0 = o.get('k0', 12)
    assert K0 >= NR
    a.vm = []
    for n in range(K0):
        if n >= o.get('k0w', 4): a('s_waitcnt vmcnt(%d)' % (o.get('k0w', 4) - 1))
        loads(n - NR, n - NR + 1)
    a("""
    v_lshlrev_b32 v2, QCSH, v1        ; tag voffset
    v_lshlrev_b32 v98, 4, v1          ; data voffset
    QR0 v_lshlrev_b32 v97, 7, v1          ; flag voffset
    QR1 v_lshlrev_b32 v97, 10, v1
    s_lshl_b32 s9, s3, 13             ; QA + u*8192
    s_add_u32 s65, s9, 4096
    s_lshl_b32 s11, s3, QCSH+5
    s_add_u32 s11, s11, 0x%x          ; QC + u*32 entries
    s_lshr_b32 s12, s3, 1
    s_lshl_b32 s12, s12, 14
    s_and_b32 s13, s3, 1
    s_lshl_b32 s13, s13, 7
    s_add_u32 s12, s12, s13
    s_add_u32 s12, s12, 0x%x
    v_and_b32 v6, 7, v1
    v_lshlrev_b32 v6, 4, v6
    v_lshl_add_u32 v6, v1, 8, v6
    v_add_u32 v6, s12, v6             ; LDS write base
    s_lshl_b32 s4, s4, 5              ; expected sum = 32 * nonce
    v_mov_b32 v72, 0
    v_mov_b32 v73, 0
    QR0 s_lshl_b32 s68, s3, 10
    QR1 s_lshl_b32 s68, s3, 13
    QR1 s_and_b32 s12, s2, 7
    QR1 s_lshl_b32 s12, s12, 7
    QR1 s_add_u32 s68, s68, s12
    s_add_u32 s68, s68, 0x10000
    s_mov_b32 s12, REP_MASK
    s_mov_b32 s13, 0
    NODEP s_branch L_Agt_x
    L_Agt:
    s_sleep QT_SLEEP
    s_mov_b64 exec, s[12:13]
    buffer_load_dwordx2 v[72:73], v97, s[44:47], REPBASE offen sc1
    s_add_u32 s8, s8, 1
    s_waitcnt vmcnt(0)
    v_cmp_ne_u32 s[12:13], v73, v5
    s_cmp_gt_u32 s8, SPIN_N
    s_cbranch_scc1 L_Agt_x
    s_cmp_lg_u32 s12, 0
    s_cbranch_scc1 L_Agt
    L_Agt_x:
    s_mov_b32 exec_lo, -1
    buffer_load_dwordx2 v[72:73], v2, s[44:47], s11 offen sc1
    s_mov_b64 exec, -1
    """ % (QC, STG))
    def dload(i):
        a('buffer_load_dwordx4 %s, v98, s[44:47], s%d offen offset:%d sc1' % (R(8 + 4 * i, 4), 9 if i < 4 else 65, (i % 4) * 1024))
    def dproc(i):
        a('ds_write_b128 v%d, %s' % (40 + i, R(8 + 4 * i, 4)))
        a('v_add3_u32 v%d, v%d, v%d, v%d' % (80 + i, 8 + 4 * i, 9 + 4 * i, 10 + 4 * i))
        a('v_add_u32 v%d, v%d, v%d' % (80 + i, 80 + i, 11 + 4 * i))
    for i in range(8): dload(i)
    a.stamp(1)
    if a.stamps: a('s_mov_b32 s8, 1')
    if o.get('rlate', 0):
        a("""
        s_waitcnt vmcnt(8)
        L_Agr:
        v_cmp_ne_u32 s[12:13], v73, v5
        s_cmp_eq_u32 s12, 0
        s_cbranch_scc1 L_Agr_x
        s_add_u32 s8, s8, 1
        s_cmp_gt_u32 s8, SPIN_N
        s_cbranch_scc1 L_Agr_x
        s_mov_b32 s13, 0
        s_quadmask_b32 s67, s12
        s_mov_b64 exec, s[12:13]
        buffer_load_dwordx2 v[72:73], v2, s[44:47], s11 offen sc1
        s_mov_b64 exec, -1
        """)
        for i in range(8):
            a('s_bitcmp1_b32 s67, %d' % i)
            a('s_cbranch_scc0 L_Agk%d' % i)
            dload(i)
            a.label('L_Agk%d' % i)
        a("""
        s_waitcnt vmcnt(0)
        s_branch L_Agr
        L_Agr_x:
        """)
    a('s_barrier')
    a.vm = []
    loads(K0 - NR, K0 - NR + c[0]); p = K0 - NR + c[0]
    for i in range(8): a('v_xor_b32 v%d, %d, v6' % (40 + i, i << 4))
    for i in range(8):
        a('s_waitcnt vmcnt(%d)' % (7 - i + c[0]))
        dproc(i)
    a("""
    NODEP s_branch L_Agp_x
    v_cmp_ne_u32 s[12:13], v73, v5
    s_cmp_eq_u32 s12, 0
    s_cbranch_scc1 L_Agc
    L_Agp:
    s_mov_b32 s13, 0
    s_quadmask_b32 s67, s12
    s_mov_b64 exec, s[12:13]
    buffer_load_dwordx2 v[72:73], v2, s[44:47], s11 offen sc1
    s_mov_b64 exec, -1
    """)
    for i in range(8):
        a('s_bitcmp1_b32 s67, %d' % i)
        a('s_cbranch_scc0 L_Agl%d' % i)
        dload(i)
        a.label('L_Agl%d' % i)
    a("""
    s_add_u32 s8, s8, 1
    s_waitcnt vmcnt(0)
    v_cmp_ne_u32 s[12:13], v73, v5
    """)
    for i in range(8):
        a('s_bitcmp1_b32 s67, %d' % i)
        a('s_cbranch_scc0 L_Agw%d' % i)
        dproc(i)
        a.label('L_Agw%d' % i)
    a("""
    s_cmp_gt_u32 s8, SPIN_N
    s_cbranch_scc1 L_Agp_x
    s_cmp_lg_u32 s12, 0
    s_cbranch_scc1 L_Agp
    L_Agc:
    v_add3_u32 v4, v72, v80, v81
    v_add3_u32 v74, v82, v83, v84
    v_add3_u32 v4, v4, v85, v86
    v_add3_u32 v4, v4, v74, v87
    """)
    a.wave_red('v_add_u32', 4, 74)
    a("""
    v_readfirstlane_b32 s10, v4
    s_mov_b32 s12, -1
    s_cmp_lg_u32 s10, s4
    s_cbranch_scc1 L_Agp
    L_Agp_x:
    s_waitcnt lgkmcnt(0)
    """)
    a.stamp(3)
    a('s_barrier')
    a('s_setprio 0')
    loads(p, p + c[1]); p += c[1]
    a('''
    v_and_b32 v102, 3, v1
    v_lshlrev_b32 v102, 2, v102
    v_add_u32 v102, 0x%x, v102        ; YF read addr
    s_lshl_b32 s10, s3, 2
    s_add_u32 s10, s10, 0x%x
    v_mov_b32 v103, s10               ; own HF addr
    s_barrier                         ; B1
    ''' % (FL + 16, FL + 32))
    if p < 0: loads(p, 0); p = 0
    a('v_add_u32 v99, 1, v5')
    if 'D' in a.vm: a.vwait('D')
    a('ds_write_b32 v103, v99')
    K = o.get('hk', 22)
    loads(p, K); p = max(p, K)
    def yspin(i):
        a('''
        s_mov_b32 s11, 0
        L_Ay%d:
        ds_read_b32 v99, v102
        s_add_u32 s11, s11, 1
        s_waitcnt lgkmcnt(0)
        v_sub_u32 v99, v99, v5
        v_subrev_u32 v99, %d, v99
        v_cmp_lt_u32 vcc, 7, v99
        s_cmp_gt_u32 s11, LSPIN
        s_cbranch_scc1 L_Ay%dx
        s_cbranch_vccz L_Ay%dx
        s_sleep YSL
        s_branch L_Ay%d
        L_Ay%dx:
        ''' % (i, i, i, i, i, i))
    NS = 32 - o.get('dma3', 8)
    for n in range(NS):
        if n % 16 == 0:
            if n == 16: loads(p, NS); p = NS
            yspin(n // 16)
            if n == 16:
                a('s_lshl_b32 s9, s3, 14')
                for m in range(NS, 32):
                    cc, seg, aa = ops[m]
                    a('s_add_u32 m0, s9, 0x%x' % (65536 + aa * 4096 + seg * 1024))
                    a('s_add_u32 s10, s64, 0x%x' % (65536 + aa * 4096 + seg * 256))
                    a.v('buffer_load_dwordx4 v%d, s[40:43], s10 offen nt lds' % (3 if aa < 2 else 0), 'L%d' % m)
        cc, seg, aa = ops[n]
        if prog(n): a('v_add_u32 v99, %d, v5' % prog(n))
        if ('L%d' % n) in a.vm: a.vwait('L%d' % n)
        a('ds_write_b128 v%d, %s offset:%d' % (100 + cc, R(128 + 4 * n, 4), aa * 4096 + seg * 1024))
        if prog(n): a('ds_write_b32 v103, v99')
        if n >= o.get('wfirst', 8):
            for _ in range(o.get('lpw', 2)):
                if p < NS: loads(p, p + 1); p += 1
    if NS < 24:
        a('v_add_u32 v99, 6, v5')
        a.vwait('L23')
        a('ds_write_b32 v103, v99')
    a('s_waitcnt vmcnt(0)')
    a('s_waitcnt lgkmcnt(0)')
    a('s_barrier')
    if a.stamps:
        a('s_mul_i32 s78, s8, 100')
        a('s_add_u32 s78, s78, s70')
        a('s_addc_u32 s79, s71, 0')
        a('s_lshl_b32 s2, s2, 2')
        a('s_add_u32 s2, s2, s3')
        a('s_add_u32 s2, s2, 256')
        a('s_barrier')
        a('s_barrier')
        a('s_sleep 127')
        a.write_stamps(vb=104)
    a('s_endpgm')

def layernorm(a):
    for i in range(4):
        a('v_lshlrev_b32 v%d, 16, v%d' % (72 + 2 * i, 68 + i))
        a('v_and_b32 v%d, 0xffff0000, v%d' % (73 + 2 * i, 68 + i))
    a('v_readfirstlane_b32 s60, v72')
    for i in range(8): a('v_subrev_f32 v%d, s60, v%d' % (84 + i, 72 + i))
    a("""
    v_add_f32 v80, v84, v85
    v_mul_f32 v82, v84, v84
    v_add_f32 v81, v86, v87
    v_mul_f32 v83, v85, v85
    v_add_f32 v92, v88, v89
    v_fmac_f32 v82, v86, v86
    v_add_f32 v93, v90, v91
    v_fmac_f32 v83, v87, v87
    v_add_f32 v80, v80, v81
    v_fmac_f32 v82, v88, v88
    v_add_f32 v92, v92, v93
    v_fmac_f32 v83, v89, v89
    v_add_f32 v80, v80, v92
    v_fmac_f32 v82, v90, v90
    v_fmac_f32 v83, v91, v91
    v_add_f32 v82, v82, v83
    """)
    for m in ('quad_perm:[1,0,3,2]', 'quad_perm:[2,3,0,1]', 'row_half_mirror', 'row_mirror'):
        a('v_add_f32_dpp v80, v80, v80 %s row_mask:0xf bank_mask:0xf' % m)
        a('v_add_f32_dpp v82, v82, v82 %s row_mask:0xf bank_mask:0xf' % m)
    for w in (16, 32):
        a('v_mov_b32 v81, v80')
        a('v_mov_b32 v83, v82')
        a('v_permlane%d_swap_b32 v80, v81' % w)
        a('v_permlane%d_swap_b32 v82, v83' % w)
        a('v_add_f32 v80, v80, v81')
        a('v_add_f32 v82, v82, v83')
    a('v_mul_f32 v80, 0x%x, v80' % f2u(1 / 512))
    a('v_mul_f32 v82, 0x%x, v82' % f2u(1 / 512))
    a('v_fma_f32 v82, -v80, v80, v82')
    a('v_add_f32 v80, s60, v80')
    a('v_max_f32 v82, 0, v82')
    a('v_cvt_pk_bf16_f32 v80, v80, v82')
    a('v_and_b32 v82, 0xffff0000, v80')
    a('v_lshlrev_b32 v80, 16, v80')
    a('v_add_f32 v82, 0x%x, v82' % f2u(1e-5))
    for i in range(4):
        a('v_sub_f32 v%d, v%d, v80' % (72 + i, 72 + i))
    a.rnd_bf16(82)
    a('v_sqrt_f32 v82, v82')
    for i in range(4, 8):
        a('v_sub_f32 v%d, v%d, v80' % (72 + i, 72 + i))
    a.rnd_bf16(82)
    a('v_rcp_f32 v82, v82')
    for i in range(4):
        a('v_cvt_pk_bf16_f32 v%d, v%d, v%d' % (68 + i, 72 + 2 * i, 73 + 2 * i))
    for i in range(4):
        a('v_lshlrev_b32 v%d, 16, v%d' % (72 + 2 * i, 68 + i))
        a('v_and_b32 v%d, 0xffff0000, v%d' % (73 + 2 * i, 68 + i))
    for i in range(8):
        a('v_mul_f32 v%d, v%d, v82' % (72 + i, 72 + i))
    for i in range(4):
        a('v_cvt_pk_bf16_f32 v%d, v%d, v%d' % (68 + i, 72 + 2 * i, 73 + 2 * i))

def role_W(a, o):
    WOPOL = o.get('wopol', 'nt'); W1POL = o.get('w1pol', 'nt')
    a.label('L_W')
    a.vm = []; a.lg = []
    a('''
    s_and_b32 s8, s2, 7               ; x
    s_lshr_b32 s9, s2, 3
    s_sub_u32 s9, s9, 16              ; k
    s_lshr_b32 s10, s9, 2
    s_lshl_b32 s11, s8, 2
    s_add_u32 s10, s10, s11           ; h
    s_and_b32 s11, s9, 3              ; j
    s_lshl_b32 s13, s10, 8            ; h*256
    v_lshlrev_b32 v9, 4, v1           ; lane*16
    v_lshrrev_b32 v6, 4, v1           ; g / r
    v_and_b32 v7, 15, v1              ; pc / i
    v_lshlrev_b32 v8, 1, v6
    v_xor_b32 v8, v8, v7
    v_lshlrev_b32 v8, 4, v8           ; (pc ^ (r<<1))*16
    v_lshl_add_u32 v2, v6, 13, v8
    v_xor_b32 v3, 0x80, v2            ; voffB
    s_lshl_b32 s14, s11, 3
    s_add_u32 s14, s14, s3            ; 8j + w
    s_lshl_b32 s15, s14, 17
    s_add_u32 s15, s15, s13           ; (128j + 16w)*8192 + h*256
    s_lshl_b32 s14, s3, 12            ; LDS w*4096
    v_lshlrev_b32 v10, 2, v6
    v_xor_b32 v10, v10, v7
    v_lshlrev_b32 v10, 4, v10
    v_lshl_add_u32 v10, v6, 13, v10
    v_xor_b32 v11, 32, v10
    s_mov_b32 s42, 0x400000
    s_mov_b32 s43, 0x20000
    s_mov_b32 s50, 0x400000
    s_mov_b32 s51, 0x20000
    s_mov_b32 m0, s14
    s_waitcnt lgkmcnt(0)
    s_mov_b32 s40, s20
    s_mov_b32 s41, s21
    s_cmp_lg_u32 s3, 0
    s_cbranch_scc1 L_Wx
    global_load_dwordx4 v[68:71], v9, s[16:17]
    L_Wx:
    ''')
    for i in range(4):
        if i:
            a('s_add_u32 m0, s14, %d' % (i * 1024))
            a('s_add_u32 s60, s15, %d' % (i * 32768))
        a.v('buffer_load_dwordx4 v%d, s[40:43], %s offen nt lds' % (2 if i < 2 else 3, 's60' if i else 's15'), 'WQ')
    a('s_mov_b32 s48, s22')
    a('s_mov_b32 s49, s23')
    if o.get('ukbar', 1): a('s_barrier')
    for i in range(4):
        a('s_add_u32 m0, s14, %d' % (UKL + i * 1024))
        a('s_add_u32 s60, s15, %d' % (i * 32768))
        a.v('buffer_load_dwordx4 v%d, s[48:51], s60 offen nt lds' % (10 if i < 2 else 11), 'UK')
    common2(a)
    if o.get('diag', 0) == 2: a.stamp(5)
    a('v_mov_b32 v14, 0')
    if not o.get('lnfirst', 1):
        a('''
        s_lshl_b32 s12, s9, 3
        s_add_u32 s12, s12, s8            ; fb = 8k + x
        s_cmp_lt_u32 s9, 11
        s_cselect_b32 s12, s12, 1000
        v_mov_b32 v14, 0
        v_lshrrev_b32 v12, 2, v7          ; r' / a
        v_and_b32 v13, 1, v6
        v_lshl_add_u32 v13, v13, 2, v12
        v_lshlrev_b32 v13, 1, v13
        v_bfe_u32 v16, v1, 1, 1
        s_lshl_b32 s60, s3, 1
        v_add_u32 v16, s60, v16
        v_xor_b32 v16, v16, v13
        v_lshlrev_b32 v16, 4, v16
        v_lshl_add_u32 v13, v6, 3, v12
        v_lshl_add_u32 v16, v13, 8, v16
        v_and_b32 v13, 1, v1
        v_lshl_add_u32 v4, v13, 3, v16    ; tr-read base
        v_lshlrev_b32 v5, 4, v6
        v_add_u32 v5, 0x%x, v5            ; SM + g*16
        v_and_b32 v13, 3, v7
        v_and_b32 v16, 2, v12
        v_xor_b32 v16, v16, v6
        v_lshl_add_u32 v16, v13, 2, v16
        v_lshlrev_b32 v16, 4, v16
        v_lshl_add_u32 v16, v7, 8, v16
        s_add_u32 s60, s14, 0x%x
        v_add_u32 v64, s60, v16           ; uk frag read addrs
        v_xor_b32 v65, 64, v64
        v_xor_b32 v66, 0x80, v64
        v_xor_b32 v67, 0xc0, v64
        ''' % (SM, UKL))
    if o.get('qpw', 0):
        a('''
        s_lshl_b32 s60, s10, 12
        s_lshl_b32 s61, s3, 7
        s_add_u32 s60, s60, s61
        s_add_u32 s60, s60, 0x%x
        v_lshlrev_b32 v17, 10, v6
        ''' % QP)
        a.v('buffer_load_dword v254, v17, s[44:47], s60 offen sc1', 'PT')
    a('''
    s_cmp_lg_u32 s3, 0
    s_cbranch_scc1 L_Wln
    s_waitcnt vmcnt(%d)
    s_load_dword s4, s[36:37], 0
    ''' % len(a.vm))
    if o.get('diag', 0) == 2: a.stamp(6)
    layernorm(a)
    if o.get('diag', 0) == 2: a.stamp(7)
    a('''
    v_add_u32 v72, 0x%x, v9
    ds_write_b128 v72, v[68:71]
    s_waitcnt lgkmcnt(0)
    s_mov_b32 s60, 0
    s_branch L_Wn_c
    L_Wn:
    global_load_dword v15, v14, s[36:37] sc1
    s_add_u32 s60, s60, 1
    s_waitcnt vmcnt(0)
    v_readfirstlane_b32 s4, v15
    s_cmp_gt_u32 s60, SPIN_N
    s_cbranch_scc1 L_Wn_x
    L_Wn_c:
    s_cmp_eq_u32 s4, 0
    s_cbranch_scc1 L_Wn
    L_Wn_x:
    v_mov_b32 v72, 0x%x
    v_mov_b32 v15, s4
    ds_write_b32 v72, v15
    s_waitcnt lgkmcnt(0)
    L_Wln:
    ''' % (XN, NB))
    if o.get('lnfirst', 1):
        a('''
        s_lshl_b32 s12, s9, 3
        s_add_u32 s12, s12, s8            ; fb = 8k + x
        s_cmp_lt_u32 s9, 11
        s_cselect_b32 s12, s12, 1000
        v_mov_b32 v14, 0
        v_lshrrev_b32 v12, 2, v7          ; r' / a
        v_and_b32 v13, 1, v6
        v_lshl_add_u32 v13, v13, 2, v12
        v_lshlrev_b32 v13, 1, v13
        v_bfe_u32 v16, v1, 1, 1
        s_lshl_b32 s60, s3, 1
        v_add_u32 v16, s60, v16
        v_xor_b32 v16, v16, v13
        v_lshlrev_b32 v16, 4, v16
        v_lshl_add_u32 v13, v6, 3, v12
        v_lshl_add_u32 v16, v13, 8, v16
        v_and_b32 v13, 1, v1
        v_lshl_add_u32 v4, v13, 3, v16    ; tr-read base
        v_lshlrev_b32 v5, 4, v6
        v_add_u32 v5, 0x%x, v5            ; SM + g*16
        v_and_b32 v13, 3, v7
        v_and_b32 v16, 2, v12
        v_xor_b32 v16, v16, v6
        v_lshl_add_u32 v16, v13, 2, v16
        v_lshlrev_b32 v16, 4, v16
        v_lshl_add_u32 v16, v7, 8, v16
        s_add_u32 s60, s14, 0x%x
        v_add_u32 v64, s60, v16           ; uk frag read addrs
        v_xor_b32 v65, 64, v64
        v_xor_b32 v66, 0x80, v64
        v_xor_b32 v67, 0xc0, v64
        ''' % (SM, UKL))
    if o.get('diag', 0) == 2: a.stamp(8)
    a.vwait('WQ')
    if o.get('diag', 0) == 2: a.stamp(9)
    a('s_barrier')
    a.stamp(1)
    if o.get('diag', 0) == 2: a.stamps_hold = True
    a('s_lshl_b32 s60, s11, 8')
    a('v_add_u32 v13, s60, v5')
    for ks in range(4):
        a.d('ds_read_b128 %s, v13 offset:%d' % (R(52 + 4 * ks - 16 + 16, 4), ks * 64) if False else 'ds_read_b128 %s, v13 offset:%d' % (R(16 + 4 * ks, 4), ks * 64), 'a%d' % ks)
        for rdi in range(2):
            a.d('ds_read_b64_tr_b16 %s, v4 offset:%d' % (R(36 + 4 * ks + 2 * rdi, 2), ks * 8192 + rdi * 1024), 'a%d' % ks)
    a('v_mov_b32 v12, 0x%x' % NB)
    a.d('ds_read_b32 v53, v12', 'n')
    a('''
    s_lshl_b32 s60, s10, 12
    s_lshl_b32 s61, s3, 7
    s_add_u32 s60, s60, s61
    s_add_u32 s60, s60, 0x%x          ; QP + h*4096 + w*128
    s_lshl_b32 s61, s11, 10
    s_add_u32 s61, s61, s60           ; + j*1024
    v_lshlrev_b32 v12, 3, v7          ; d*8
    v_lshl_add_u32 v13, v6, 10, v12   ; jj*1024 + d*8
    v_cmp_ne_u32 s[64:65], s11, v6    ; lanes of the other three
    ''' % QP)
    for ks in range(4):
        a.dwait('a%d' % ks)
        a('v_mfma_f32_16x16x32_bf16 v[32:35], %s, %s, %s' % (R(16 + 4 * ks, 4), R(36 + 4 * ks, 4), 'v[32:35]' if ks else '0'))
    a.dall()
    a('''
    s_lshl_b32 s62, s3, 5
    s_add_u32 s62, s62, 0x%x
    v_lshl_add_u32 v15, v7, 1, s62    ; QB + (16w + d)*2
    v_mov_b32 v55, v53
    v_mov_b32 v52, v32
    v_mov_b32 v54, v32
    s_mov_b64 exec, 0xffff
    buffer_store_dwordx2 v[52:53], v12, s[44:47], s61 offen sc1
    ''' % QB)
    def eflag():
        a('''
        s_or_b32 s5, s3, s11
        s_cmp_lg_u32 s5, 0
        s_cbranch_scc1 L_Wef
        QR0 s_lshl_b32 s5, s10, 7
        QR0 s_add_u32 s5, s5, 0x10000
        QR0 s_mov_b64 exec, 0xffff
        QR0 v_mov_b32 v52, v53
        QR0 buffer_store_dwordx2 v[52:53], v12, s[44:47], s5 offen sc1
        QR1 s_lshl_b32 s5, s10, 10
        QR1 s_add_u32 s5, s5, 0x10000
        QR1 s_mov_b64 exec, -1
        QR1 v_mov_b32 v60, v53
        QR1 v_mov_b32 v61, v53
        QR1 v_mov_b32 v62, v53
        QR1 v_mov_b32 v63, v53
        QR1 buffer_store_dwordx4 v[60:63], v9, s[44:47], s5 offen sc1
        L_Wef:
        ''')
    a('''
    s_mov_b64 exec, -1
    s_lshl_b32 s68, s10, 2
    s_add_u32 s68, s68, s11           ; mi = 4h + j
    s_lshl_b32 s69, s68, 15
    s_lshl_b32 s61, s3, 12
    s_add_u32 s69, s69, s61
    s_lshr_b32 s61, s10, 4
    s_lshl_b32 s61, s61, 12
    s_add_u32 s69, s69, s61
    s_add_u32 s69, s69, 0x%x          ; s69 = inbox base of this wave
    s_lshl_b32 s58, s68, 11
    s_lshl_b32 s61, s3, 8
    s_add_u32 s58, s58, s61
    s_add_u32 s58, s58, 0x%x          ; s58 = SP row of this wave
    s_lshl_b32 s66, s12, 11
    s_add_u32 s66, s66, s61
    s_add_u32 s66, s66, 0x%x          ; s66 = FP row of this wave
    s_cmp_lt_u32 s12, 86
    s_cselect_b32 s66, s66, s58
    s_lshl_b32 s67, s3, 6
    s_add_u32 s67, s67, s11
    s_lshl_b32 s67, s67, 9
    s_lshl_b32 s61, s10, 4
    s_add_u32 s67, s67, s61
    s_add_u32 s67, s67, 0x%x          ; s67 = MLC + (64w + j)*512 + h*16
    v_lshlrev_b32 v11, 2, v1
    v_mov_b32 v56, -1
    ''' % (OP, SP, FP, ML))
    a.v('buffer_store_dword v56, v11, s[44:47], s58 offen sc1', 'PT')
    a.v('buffer_store_dword v56, v11, s[44:47], s66 offen sc1', 'PT')
    EF = o.get('ef', 1)
    if EF == 0: eflag()
    if o.get('qpack', 1): a('s_waitcnt vmcnt(0)')
    if EF == 3: eflag()
    a.stamp(2)
    a('''
    s_mov_b32 s62, 0
    L_Wq:
    s_mov_b64 exec, s[64:65]
    buffer_load_dwordx2 v[54:55], v13, s[44:47], s60 offen sc1
    s_add_u32 s62, s62, 1
    s_waitcnt vmcnt(0)
    v_cmp_ne_u32 s[64:65], v55, v53
    s_cmp_gt_u32 s62, SPIN_N
    s_cbranch_scc1 L_Wq_x
    s_cmp_lg_u64 s[64:65], 0
    s_cbranch_scc1 L_Wq
    L_Wq_x:
    ''')
    if EF == 1: eflag()
    a('s_mov_b64 exec, -1')
    a.vm = []
    for ks in range(4):
        a.d('ds_read_b128 %s, v%d' % (R(16 + 4 * ks, 4), 64 + ks), 'uk')
    a.swap_red('v_add_f32', 54, 55, 16)
    a.swap_red('v_add_f32', 54, 55, 32)
    a('''
    v_cvt_pk_bf16_f32 v54, v54, v54
    ds_write_b16 v15, v54
    ''')
    a.dall()
    a('s_barrier')
    a.stamp(3)
    for ks in range(4):
        a.d('ds_read_b128 %s, v5 offset:%d' % (R(36 + 4 * ks, 4), QB - SM + ks * 64), 'a%d' % ks)
    a('''
    s_lshl_b32 s14, s3, 5
    s_add_u32 s14, s14, 0x%x
    v_lshl_add_u32 v13, v6, 3, s14    ; QO + w*32 + q*8
    v_lshlrev_b32 v12, 4, v7
    v_add_u32 v15, 0x%x, v12          ; QO + (l%%16)*16
    s_lshl_b32 s14, s68, 8
    s_lshl_b32 s15, s68, QCSH
    s_add_u32 s15, s15, 0x%x
    v_add_u32 v56, s14, v12
    v_add_u32 v57, s15, v12
    v_cndmask_b32 v56, v56, v57, s[52:53]
    ''' % (QO, QO, QC))
    for ks in range(4):
        a.dwait('a%d' % ks)
        a('v_mfma_f32_16x16x32_bf16 v[32:35], %s, %s, %s' % (R(16 + 4 * ks, 4), R(36 + 4 * ks, 4), 'v[32:35]' if ks else '0'))
    sc = f2u(128 ** -0.5 * math.log2(math.e))
    a('''
    v_mul_f32 v32, 0x%x, v32
    v_mul_f32 v33, 0x%x, v33
    v_mul_f32 v34, 0x%x, v34
    v_mul_f32 v35, 0x%x, v35
    v_cvt_pk_bf16_f32 v32, v32, v33
    v_cvt_pk_bf16_f32 v33, v34, v35
    ds_write_b64 v13, v[32:33]
    s_waitcnt lgkmcnt(0)
    s_barrier
    s_cmp_lg_u32 s3, 0
    s_cbranch_scc1 L_Wpub
    ds_read_b128 v[32:35], v15
    s_waitcnt lgkmcnt(0)
    v_add3_u32 v36, v32, v33, v34
    v_add_u32 v36, v36, v35
    ''' % (sc, sc, sc, sc))
    a.wave_red('v_add_u32', 36, 37, rows_only=True)
    a('''
    v_sub_u32 v36, v53, v36
    v_cndmask_b32 v32, v32, v36, s[52:53]
    v_cndmask_b32 v33, v33, v53, s[52:53]
    s_mov_b64 exec, QCEX
    buffer_store_dwordx4 v[32:35], v56, s[44:47], 0 offen sc1
    s_mov_b64 exec, -1
    L_Wpub:
    s_barrier
    ''')
    a.stamp(4)
    WW = o.get('wwin', 3)
    W1L, W2L, WOL = 0x8000, 0xC000, 0x10000
    a.srd(40, WUV, 0x400000)
    a.srd(48, WO, 0x400000)
    a("""
    s_mov_b32 s16, s30
    s_mov_b32 s17, s31
    s_mov_b32 s18, %d
    s_mov_b32 s19, 0x20000
    s_mov_b32 s20, s32
    s_mov_b32 s21, s33
    s_mov_b32 s22, %d
    s_mov_b32 s23, 0x20000
    v_readfirstlane_b32 s4, v53
    v_lshrrev_b32 v12, 3, v1          ; r8
    v_and_b32 v13, 7, v1              ; c8
    v_lshlrev_b32 v70, 4, v13
    v_lshl_add_u32 v70, v12, 10, v70  ; r8*1024 + c8*16   (w2 voff)
    v_bfe_u32 v15, v1, 4, 1
    v_lshlrev_b32 v15, 5, v15
    v_xor_b32 v68, v70, v15           ; voffC
    v_xor_b32 v69, 64, v68            ; voffD
    v_mul_u32_u24 v10, 2752, v6
    s_and_b32 s60, s3, 1
    s_lshl_b32 s60, s60, 7
    v_xor_b32 v13, s60, v8
    v_add_u32 v10, v10, v13           ; w1 voff
    s_lshl_b32 s24, s8, 3
    s_add_u32 s24, s24, s3
    s_mul_i32 s24, s24, %d
    s_lshl_b32 s60, s9, 8
    s_add_u32 s24, s24, s60           ; w1 source
    s_lshl_b32 s25, s12, 14
    s_lshl_b32 s60, s3, 7
    s_add_u32 s25, s25, s60           ; w2 source (out of range when not an FFN workgroup)
    s_cmp_lt_u32 s12, 88
    s_cselect_b32 s24, s24, 0x1000000
    s_lshl_b32 s26, s3, 11            ; LDS w*2048
    v_lshl_add_u32 v2, v6, 17, v8
    v_xor_b32 v3, 0x80, v2
    s_lshl_b32 s27, s11, 5
    s_add_u32 s27, s27, s3
    s_lshl_b32 s27, s27, 14
    s_add_u32 s27, s27, s13           ; uv source
    s_lshl_b32 s28, s3, 12            ; LDS w*4096
    s_lshl_b32 s14, s10, 17
    s_lshl_b32 s15, s3, 7
    s_add_u32 s14, s14, s15           ; wo source
    s_lshl_b32 s15, s3, 13
    s_add_u32 s15, s15, 0x%x          ; wo LDS
    v_lshrrev_b32 v71, 2, v7
    v_lshl_add_u32 v71, v6, 3, v71
    v_lshlrev_b32 v71, 7, v71
    v_and_b32 v13, 3, v1
    v_lshl_add_u32 v71, v13, 3, v71
    v_bfe_u32 v13, v1, 3, 2
    v_lshl_add_u32 v71, v13, 5, v71
    v_add_u32 v71, s15, v71
    """ % (512 * 2752, 1376 * 1024, 8 * 2752, WOL))
    a.vm = []
    WOF = 72
    cnt = [0]; curw = [0]
    def op(kind, n):
        a.vwait_n((curw[0] or (WW if cnt[0] < o.get('wsw', 14) else o.get('wwinb', 4))) - 1)
        cnt[0] += 1
        if kind == 'w1':
            a('s_add_u32 m0, s26, 0x%x' % (W1L + n * 1024)); a('s_add_u32 s60, s24, %d' % (n * 4 * 2752))
            a.v('buffer_load_dwordx4 v10, s[16:19], s60 offen nt lds', 'F')
        elif kind == 'w2':
            a('s_add_u32 m0, s26, 0x%x' % (W2L + n * 1024)); a('s_add_u32 s60, s25, %d' % (n * 8192))
            a.v('buffer_load_dwordx4 v70, s[20:23], s60 offen nt lds', 'F')
        elif kind == 'uv':
            a('s_add_u32 m0, s28, %d' % (n * 1024)); a('s_add_u32 s60, s27, %d' % ((256 * (n & 1) + (n >> 1)) * 8192))
            a.v('buffer_load_dwordx4 v%d, s[40:43], s60 offen nt lds' % (2 if n < 2 else 3), 'U')
        else:
            a('s_add_u32 m0, s15, %d' % ((n % 8) * 1024)); a('s_add_u32 s60, s14, %d' % (n * 8192))
            a.v('buffer_load_dwordx4 v%d, s[48:51], s60 offen %s lds' % (68 if n % 2 == 0 else 69, WOPOL), 'O%d' % (n // 4))
    def wo_read(ks):
        if ('O%d' % ks) in a.vm: a.vwait('O%d' % ks)
        for mt in range(4):
            a('v_xor_b32 v13, 0x%x, v71' % (mt * 32))
            for rdi in range(2):
                a.d('ds_read_b64_tr_b16 %s, v13 offset:%d' % (R(WOF + (mt * 4 + ks) * 4 + 2 * rdi, 2), (ks % 2) * 4096 + rdi * 512), 'wo')
        a.dall()
    def ffn1():
        if 'F' in a.vm: a.vwait('F')
        a('s_barrier')
        a.stamp(10)
        a("""
        s_cmp_ge_u32 s12, 88
        s_cbranch_scc1 L_Wnf2
        s_lshl_b32 s60, s8, 7
        v_add_u32 v13, s60, v5            ; xn + 64x*2 + g*16
        v_add_u32 v15, 0x8000, v4
        """)
        for ks in range(2):
            a('ds_read_b128 %s, v13 offset:%d' % (R(52 + 4 * ks, 4), ks * 64))
            for rdi in range(2):
                a('ds_read_b64_tr_b16 %s, v15 offset:%d' % (R(36 + 4 * ks + 2 * rdi, 2), ks * 8192 + rdi * 1024))
        a("""
        v_lshrrev_b32 v12, 2, v1
        v_and_b32 v13, 3, v1
        v_lshlrev_b32 v13, 3, v13
        v_lshl_add_u32 v12, v12, 7, v13
        s_lshl_b32 s60, s3, 11
        s_add_u32 s60, s60, 0x%x
        v_add_u32 v12, s60, v12
        s_waitcnt lgkmcnt(0)
        v_mfma_f32_16x16x32_bf16 v[32:35], v[52:55], v[36:39], 0
        v_mfma_f32_16x16x32_bf16 v[32:35], v[56:59], v[40:43], v[32:35]
        """ % W2L)
        for mt in range(4):
            a('ds_read_b64_tr_b16 %s, v12 offset:%d' % (R(44 + 2 * mt, 2), mt * 32))
        a("""
        s_lshl_b32 s60, s12, 10
        s_lshl_b32 s61, s3, 7
        s_add_u32 s60, s60, s61
        s_add_u32 s60, s60, 0x%x          ; HP + (8k+x)*1024 + w*128
        v_lshlrev_b32 v12, 3, v7
        v_mov_b32 v33, s4
        s_mov_b64 exec, 0xffff
        buffer_store_dwordx2 v[32:33], v12, s[44:47], s60 offen sc1
        s_mov_b64 exec, -1
        L_Wnf2:
        s_waitcnt lgkmcnt(0)
        """ % HP)
        a.lg = []
    def ffn2():
        a('''
        s_cmp_ge_u32 s12, 86
        s_cbranch_scc1 L_Wnf3
        s_lshl_b32 s60, s9, 13
        s_lshl_b32 s61, s8, 7
        s_add_u32 s60, s60, s61
        s_add_u32 s60, s60, 0x%x          ; HP + k*8192 + x*128
        v_and_b32 v12, 7, v1
        v_lshlrev_b32 v12, 10, v12
        v_lshl_add_u32 v12, v6, 5, v12    ; producer*1024 + g*32
        s_mov_b32 s61, 0
        L_Wh:
        buffer_load_dwordx4 v[52:55], v12, s[44:47], s60 offen sc1
        buffer_load_dwordx4 v[56:59], v12, s[44:47], s60 offen offset:16 sc1
        s_add_u32 s61, s61, 1
        s_waitcnt vmcnt(0)
        v_xor_b32 v13, v53, v55
        v_xor_b32 v14, v57, v59
        v_xor_b32 v15, s4, v53
        v_or3_b32 v13, v13, v14, v15
        v_xor_b32 v14, v53, v57
        v_or_b32 v13, v13, v14
        v_cmp_ne_u32 vcc, 0, v13
        s_cmp_gt_u32 s61, SPIN_N
        s_cbranch_scc1 L_Wh_x
        s_cbranch_vccnz L_Wh
        L_Wh_x:
        ''' % HP)
        for m in ('quad_perm:[1,0,3,2]', 'quad_perm:[2,3,0,1]', 'row_half_mirror'):
            for r in range(4):
                a('v_add_f32_dpp v%d, v%d, v%d %s row_mask:0xf bank_mask:0xf' % (52 + 2 * r, 52 + 2 * r, 52 + 2 * r, m))
        for r in range(4):
            a.rnd_bf16(52 + 2 * r)
            a.silu(52 + 2 * r, 53)
        a('v_cvt_pk_bf16_f32 v32, v52, v54')
        a('v_cvt_pk_bf16_f32 v33, v56, v58')
        for mt in range(4):
            a('v_mfma_f32_16x16x16_bf16 %s, v[32:33], %s, 0' % (R(52 + 4 * mt, 4), R(44 + 2 * mt, 2)))
        a('''
        v_cndmask_b32 v52, v52, v56, s[52:53]
        v_cndmask_b32 v52, v52, v60, s[54:55]
        v_cndmask_b32 v52, v52, v64, s[56:57]
        buffer_store_dword v52, v11, s[44:47], s66 offen sc1
        L_Wnf3:
        ''')
        a('s_waitcnt vmcnt(0)')
        a.vm = []
    seqs = {
        0: 'a0 o0 a1 o1 b0 o2 b1 o3 o4 o5 u0 F o6 o7 R0 o8 o9 u1 o10 o11 R1 o12 o13 u2 o14 o15 u3 R2 G R3',
        1: 'a0 a1 b0 b1 o0 o1 o2 o3 F o4 o5 o6 o7 R0 o8 o9 u0 o10 o11 u1 R1 o12 o13 u2 o14 o15 u3 R2 G R3',
        7: 'w3 o0 o1 o2 o3 o4 o5 a0 w8 a1 b0 b1 u0 u1 u2 u3 w3 o6 o7 F R0 o8 o9 o10 o11 R1 o12 o13 o14 o15 R2 G R3',
        8: 'w3 o0 o1 o2 a0 w8 a1 b0 b1 u0 u1 u2 u3 w3 o3 o4 o5 F o6 o7 R0 o8 o9 o10 o11 R1 o12 o13 o14 o15 R2 G R3',
        9: 'w2 o0 o1 o2 o3 a0 w5 a1 b0 b1 u0 u1 u2 u3 w3 o4 o5 F o6 o7 R0 o8 o9 o10 o11 R1 o12 o13 o14 o15 R2 G R3',
        10: 'w3 o0 o1 o2 o3 o4 o5 o6 o7 R0 a0 w8 a1 b0 b1 u0 u1 u2 u3 w3 o8 o9 F o10 o11 R1 o12 o13 o14 o15 R2 G R3',
        11: 'w4 o0 o1 o2 o3 o4 o5 o6 o7 R0 o8 o9 o10 o11 R1 a0 a1 b0 b1 w3 o12 o13 o14 F o15 u0 u1 u2 u3 R2 G R3',
        3: 'o0 o1 o2 o3 a0 o4 a1 o5 b0 o6 b1 o7 R0 o8 o9 u0 F o10 o11 u1 R1 o12 o13 u2 o14 o15 u3 R2 R3',
        2: 'o0 o1 o2 o3 a0 o4 a1 o5 b0 o6 b1 o7 R0 o8 o9 u0 F o10 o11 u1 R1 o12 o13 u2 o14 o15 u3 R2 G R3',
    }
    for t in seqs[o.get('wseq', 2)].split():
        if t[0] == 'w': curw[0] = int(t[1:])
        elif t == 'F': ffn1()
        elif t == 'G': ffn2()
        elif t[0] == 'R': wo_read(int(t[1:]))
        else: op({'a': 'w1', 'b': 'w2', 'u': 'uv', 'o': 'wo'}[t[0]], int(t[1:]))
    for p in range(4):
        a('v_cmp_eq_u32 vcc, %d, v7' % (2 * p))
        a('v_mov_b32 v%d, 0' % (56 + p))
        a('v_mov_b32 v64, 0xffff')
        a('v_cndmask_b32 v%d, v%d, v64, vcc' % (56 + p, 56 + p))
        a('v_cmp_eq_u32 vcc, %d, v7' % (2 * p + 1))
        a('v_mov_b32 v64, 0xffff0000')
        a('v_cndmask_b32 v%d, v%d, v64, vcc' % (56 + p, 56 + p))
        for i in range(4): a('v_and_b32 v%d, 0x3f803f80, v%d' % (136 + 4 * i + p, 56 + p))
    a("""
    v_lshrrev_b32 v64, 1, v6
    v_mul_u32_u24 v64, 0x%x, v64
    v_lshl_add_u32 v64, v7, 4, v64
    v_and_b32 v65, 1, v6
    v_lshl_add_u32 v64, v65, 3, v64
    s_mul_i32 s60, s3, 288
    s_add_u32 s60, s60, 0x%x
    v_add_u32 v64, s60, v64
    v_and_b32 v65, 7, v1
    v_mul_u32_u24 v65, 288, v65
    v_add_u32 v65, v65, v5
    s_lshl_b32 s60, s3, 5
    s_add_u32 s60, s60, 0x%x
    v_lshl_add_u32 v66, v7, 1, s60
    """ % (8 * 288, ROWS, CB))
    a('s_waitcnt vmcnt(0)')
    a('s_barrier')
    a.stamp(5)
    for ks in range(4):
        for rdi in range(2):
            a.d('ds_read_b64_tr_b16 %s, v4 offset:%d' % (R(16 + 4 * ks + 2 * rdi, 2), ks * 8192 + rdi * 1024), 'uv')
    a.dall()
    a.stamp(6)
    a('''
    v_lshlrev_b32 v14, 11, v7
    s_lshl_b32 s60, s3, 3
    s_add_u32 s60, s60, 0x%x
    v_mov_b32 v70, s60                ; LW + w*8
    v_and_b32 v71, 7, v1
    v_lshlrev_b32 v71, 3, v71
    v_add_u32 v71, 0x%x, v71          ; LW + (l%%8)*8
    v_and_b32 v12, 3, v1
    v_cmp_eq_u32 s[64:65], v12, v6
    s_mov_b32 s60, 0
    s_mov_b64 s[62:63], -1
    L_Wg1:
    s_sleep ML_SLEEP
    s_mov_b64 exec, s[62:63]
    buffer_load_dwordx4 v[52:55], v14, s[44:47], s67 offen sc1
    s_add_u32 s60, s60, 1
    s_waitcnt vmcnt(0)
    v_cmp_ne_u32 s[62:63], s4, v55
    s_cmp_gt_u32 s60, SPIN_N
    s_cbranch_scc1 L_Wg
    s_cmp_lg_u64 s[62:63], 0
    s_cbranch_scc1 L_Wg1
    ''' % (LW, LW))
    a.label('L_Wg')
    a('s_mov_b64 exec, -1')
    for i in range(4):
        a('buffer_load_dwordx4 %s, v9, s[44:47], s69 offen offset:%d sc1' % (R(36 + 4 * i, 4), i * 1024))
    a("""
    s_add_u32 s60, s60, 1
    v_subrev_u32 v15, s4, v54
    v_add3_u32 v15, v15, v52, v53
    v_cndmask_b32 v15, 0, v15, s[64:65]
    v_cmp_neq_f32 vcc, 0, v52
    s_cbranch_vccnz L_Wgen
    """)
    a.label('L_Wj')
    a.wave_red('v_add_f32', 53, 12, rows_only=True)
    a('ds_write_b64 v70, v[52:53]')
    for i in range(4):
        a('s_waitcnt vmcnt(%d)' % (3 - i))
        a('v_mfma_f32_16x16x32_bf16 v[32:35], %s, %s, %s' % (R(136 + 4 * i, 4), R(36 + 4 * i, 4), 'v[32:35]' if i else '0'))
        a('v_add3_u32 v15, v15, v%d, v%d' % (36 + 4 * i, 37 + 4 * i))
        a('v_add3_u32 v15, v15, v%d, v%d' % (38 + 4 * i, 39 + 4 * i))
    a("""
    v_add_u32_dpp v15, v15, v15 quad_perm:[1,0,3,2] row_mask:0xf bank_mask:0xf
    v_add_u32_dpp v15, v15, v15 quad_perm:[2,3,0,1] row_mask:0xf bank_mask:0xf
    v_cvt_pk_bf16_f32 v32, v32, v33
    v_cvt_pk_bf16_f32 v33, v34, v35
    v_add_u32_dpp v15, v15, v15 row_half_mirror row_mask:0xf bank_mask:0xf
    ds_write_b64 v64, v[32:33]
    v_add_u32_dpp v15, v15, v15 row_mirror row_mask:0xf bank_mask:0xf
    v_cmp_ne_u32 vcc, 0, v15
    s_cbranch_vccnz L_Wretry
    L_Wg_x:
    """)
    a.stamp(7)
    if a.stamps:
        a('s_mul_i32 s92, s60, 100')
        a('s_add_u32 s92, s92, s70')
        a('s_addc_u32 s93, s71, 0')
    a("""
    s_waitcnt lgkmcnt(0)
    s_barrier
    """)
    a.stamp(8)
    for ks in range(4):
        a.d('ds_read_b128 %s, v65 offset:%d' % (R(36 + 4 * ks, 4), ROWS - SM + ks * 64), 'a%d' % ks)
    a.d('ds_read_b64 v[52:53], v71', 'lw')
    for ks in range(4):
        a.dwait('a%d' % ks)
        a('v_mfma_f32_16x16x32_bf16 v[32:35], %s, %s, %s' % (R(36 + 4 * ks, 4), R(16 + 4 * ks, 4), 'v[32:35]' if ks else '0'))
    a.dall()
    a('''
    v_cmp_neq_f32 vcc, 0, v52
    s_cbranch_vccnz L_Wgen2
    L_Wj2:
    v_add_f32_dpp v53, v53, v53 quad_perm:[1,0,3,2] row_mask:0xf bank_mask:0xf
    s_nop 1
    v_add_f32_dpp v53, v53, v53 quad_perm:[2,3,0,1] row_mask:0xf bank_mask:0xf
    s_nop 1
    v_add_f32_dpp v53, v53, v53 row_half_mirror row_mask:0xf bank_mask:0xf
    v_add_f32 v32, v32, v33
    v_add_f32 v34, v34, v35
    v_rcp_f32 v67, v53
    v_add_f32 v32, v32, v34
    ''')
    a.swap_red('v_add_f32', 32, 33, 16)
    a('''
    v_mul_f32 v32, v32, v67
    v_cvt_pk_bf16_f32 v32, v32, v32
    ds_write_b16 v66, v32
    s_waitcnt lgkmcnt(0)
    s_barrier
    ''')
    for ks in range(4):
        a.d('ds_read_b128 %s, v5 offset:%d' % (R(36 + 4 * ks, 4), CB - SM + ks * 64), 'a%d' % ks)
    for ks in range(4):
        a.dwait('a%d' % ks)
        for mt in range(4):
            a('v_mfma_f32_16x16x32_bf16 %s, %s, %s, %s' % (R(16 + 4 * mt, 4), R(36 + 4 * ks, 4), R(WOF + (mt * 4 + ks) * 4, 4), R(16 + 4 * mt, 4) if ks else '0'))
    a('''
    v_cndmask_b32 v16, v16, v20, s[52:53]
    v_cndmask_b32 v16, v16, v24, s[54:55]
    v_cndmask_b32 v16, v16, v28, s[56:57]
    buffer_store_dword v16, v11, s[44:47], s58 offen sc1
    ''')
    a.stamp(9)
    if a.stamps:
        a('s_cmp_lg_u32 s3, %d' % o.get('stw', 0))
        a('s_cbranch_scc1 L_end')
        a.write_stamps()
    a('s_endpgm')

def role_Wslow(a, o):
    a.aslow()
    a.label('L_Wgen')
    a('v_mov_b32 v12, v52')
    a.wave_red('v_max_f32', 12, 13, rows_only=True)
    a('''
    v_sub_f32 v54, v52, v12
    v_exp_f32 v54, v54
    v_mov_b32 v52, v12                ; Mw
    v_and_b32 v54, 0xffff0000, v54
    v_mul_f32 v53, v53, v54
    v_lshrrev_b32 v55, 16, v54
    v_or_b32 v54, v54, v55
    v_lshlrev_b32 v13, 2, v6
    ''')
    for i in range(4):
        a('ds_bpermute_b32 v12, v13, v54 offset:%d' % (16 * i))
        a('s_waitcnt lgkmcnt(0)')
        for p in range(4):
            a('v_and_b32 v%d, v12, v%d' % (136 + 4 * i + p, 56 + p))
    a('s_nop 1')
    a('s_branch L_Wj')
    a('''
    L_Wretry:
    s_cmp_gt_u32 s60, SPIN_N
    s_cbranch_scc1 L_Wg_x
    s_mov_b64 s[62:63], -1
    ''')
    for p in range(4):
        for i in range(4): a('v_and_b32 v%d, 0x3f803f80, v%d' % (136 + 4 * i + p, 56 + p))
    a('s_branch L_Wg1')
    a.label('L_Wgen2')
    a('''
    v_mov_b32 v12, v52
    v_max_f32_dpp v12, v12, v12 quad_perm:[1,0,3,2] row_mask:0xf bank_mask:0xf
    v_max_f32_dpp v12, v12, v12 quad_perm:[2,3,0,1] row_mask:0xf bank_mask:0xf
    v_max_f32_dpp v12, v12, v12 row_half_mirror row_mask:0xf bank_mask:0xf
    v_sub_f32 v54, v52, v12
    v_exp_f32 v54, v54
    v_and_b32 v13, 1, v6
    v_lshlrev_b32 v13, 4, v13
    v_mul_f32 v53, v53, v54
    ''')
    for r in range(4):
        a('ds_bpermute_b32 v12, v13, v54 offset:%d' % (4 * r))
        a('s_waitcnt lgkmcnt(0)')
        a('v_mul_f32 v%d, v%d, v12' % (32 + r, 32 + r))
    a('s_nop 1')
    a('s_branch L_Wj2')

def gen(stamps=False, o=None):
    o = o or {}
    a = G(stamps)
    prologue(a, o)
    role_W(a, o)
    role_A(a, o)
    role_final(a, o)
    role_As(a, o)
    role_Wslow(a, o)
    a.label('L_end')
    txt = a.text()
    for k, v in (('QT_SLEEP', o.get('qtsleep', 1)), ('QT_THR', o.get('qtthr', 2)), ('REP_MASK', o.get('repmask', '0x00010001' if o.get('ef', 1) == 2 else '0xff')), ('LSPIN', 200000), ('SPIN_N', SPIN),
                 ('ML_SLEEP', o.get('mlsleep', 1)), ('FIN_SLEEP', o.get('finsleep', 0)), ('UKGATE', o.get('ukgate', 3))):
        txt = txt.replace(k, str(v))
    txt = txt.replace('W1A ', '; ' if o.get('now1', 0) else '')
    txt = txt.replace('PTA ', '' if o.get('pre', 0) else '; ').replace('ML_OFF', '0x%x' % ML)
    qs = o.get('qcsh', 5)
    txt = txt.replace('QCSH+5', str(qs + 5)).replace('QCSH', str(qs)).replace('QCEX', {4: '0x1ffff', 5: '0x3ffff', 6: '0xfffff', 7: '0xffffff'}[qs]).replace('REP_N', str(o.get('repn', 1)))
    txt = txt.replace('NODEP ', '' if o.get('nodep', 0) else '; ')
    if o.get('nodep', 0): txt = txt.replace('s_or_b32 s14, vcc_lo, vcc_hi', 's_mov_b32 s14, 0')
    if o.get('now1', 0): txt = txt.replace('buffer_load_dwordx4 v14, s[40:43], s14 offen', '; ').replace('buffer_load_dwordx4 v14, s[40:43], s60 offen', '; ')
    txt = txt.replace('OUTPT ', '' if o.get('outpt', 0) else '; ')
    txt = txt.replace('REPBASE', 's11' if o.get('ef', 1) == 2 else 's68')
    txt = txt.replace('AMIX ', '' if o.get('amix', 0) else '; ')
    rm = o.get('remap', 0)
    if rm:
        sh = rm + 2
        code = '''    s_cbranch_scc1 L_end
    s_bfe_u32 s8, s2, 0x%x
    s_lshl_b32 s8, s8, 7
    s_and_b32 s9, s2, 0x%x
    s_lshr_b32 s2, s2, %d
    s_lshl_b32 s2, s2, %d
    s_or_b32 s2, s2, s9
    s_or_b32 s2, s2, s8
''' % ((1 << 16) | sh, (1 << sh) - 1, sh + 1, sh)
        txt = txt.replace('    s_cbranch_scc1 L_end\n', code, 1)
    txt = txt.replace('TLBPT ', '' if o.get('tlbpt', 1) else '; ')
    txt = txt.replace('YSL', str(o.get('ysl', 1)))
    qr = o.get('qr', 0)
    txt = txt.replace('QR0 ', '; ' if qr else '').replace('QR1 ', '' if qr else '; ')
    body = hz.fix(txt)
    return kernel_file([(KN + '_kernel', 256, 512, 163840)], [(KN + '_kernel', body, 256, 96, 256)])

if __name__ == '__main__':
    out = sys.argv[1]
    stamps = 'stamps' in sys.argv[2:]
    o = {}
    for kv in sys.argv[2:]:
        if '=' in kv:
            k, v = kv.split('=')
            o[k] = int(v) if v.lstrip('-').isdigit() else v.replace('_', ' ')
    open(out, 'w').write(gen(stamps, o))
```

```python
from gen14 import *

RLB = STG + 0x2000
RB = STG + 0x3100
HP = 0x504000

def role_A(a, o):
    AW = o.get('awin', 8); AW0 = o.get('awin0', 1); AN0 = o.get('an0', 3); NPRE = o.get('npre', 20)
    a.label('L_A')
    a.stamps_hold = False
    a.vm = []; a.lg = []; a.slow = []
    common2(a)
    a.srd(40, CKV, 0x2000000)
    def voffs(x, y):
        a('''
        v_mbcnt_lo_u32_b32 v%d, -1, 0
        v_mbcnt_hi_u32_b32 v%d, -1, v%d
        v_lshrrev_b32 v%d, 4, v%d
        v_and_b32 v%d, 15, v%d
        v_lshlrev_b32 v%d, 4, v%d
        v_mul_u32_u24 v%d, 0x440, v%d
        v_xor_b32 v%d, v%d, v%d
        v_xor_b32 v%d, 32, v%d
        ''' % (x, x, x, y, x, x, x, x, x, y, y, x, x, y, y, x))
    voffs(3, 0)
    a("""
    s_and_b32 s59, s2, 7
    s_lshl_b32 s59, s59, 4
    s_lshr_b32 s8, s2, 3
    s_add_u32 s59, s59, s8            ; p
    s_lshl_b32 s8, s59, 18
    s_cmp_ge_u32 s3, 4
    s_cbranch_scc1 L_As
    s_lshl_b32 s9, s3, 14
    s_add_u32 s8, s8, s9
    s_lshl_b32 s10, s3, 8
    s_or_b32 s66, s8, s10
    s_lshl_b32 s10, s3, 10
    s_or_b32 s67, s9, s10
    AMIX s_and_b32 s10, s3, 1
    AMIX s_lshl_b32 s10, s10, 13
    AMIX s_or_b32 s66, s66, s10
    AMIX s_or_b32 s67, s67, s10
    s_mov_b32 s15, 0
    v_mov_b32 v10, 0
    v_mov_b32 v11, 0
    """)
    def dma_one(i, seg, aa, win=None):
        if win is not None: a.vwait_n(win - 1)
        a('s_xor_b32 m0, s67, 0x%x' % ((i % 2) * 65536 + aa * 4096 + seg * 1024))
        a('s_xor_b32 s10, s66, 0x%x' % (i * 65536 + aa * 4096 + seg * 256))
        a.v('buffer_load_dwordx4 v%d, s[40:43], s10 offen nt lds' % (3 if aa < 2 else 0), 'C%d' % i)
    a.label('L_Apass')
    a('''
    AMIX s_and_b32 s10, s3, 1
    AMIX s_lshl_b32 s10, s10, 5
    AMIX v_xor_b32 v3, s10, v3
    AMIX v_xor_b32 v0, s10, v0
    ''')
    a.vm = []
    first = [(i, seg, aa) for i in range(2) for aa in range(4) for seg in range(4)]
    for n in range(AW0): dma_one(*first[n])
    a("""
    v_mbcnt_lo_u32_b32 v1, -1, 0
    v_mbcnt_hi_u32_b32 v1, -1, v1
    v_lshrrev_b32 v16, 4, v1          ; g / q
    v_and_b32 v17, 15, v1             ; l%%16
    v_lshlrev_b32 v5, 4, v1
    v_add_u32 v5, 0x%x, v5            ; p_rd
    v_lshlrev_b32 v18, 4, v16
    v_xor_b32 v32, v5, v18            ; q frag read (even ks)
    v_xor_b32 v33, 64, v32            ; (odd ks)
    ; p_wr = PB + (w>>1)*2048 + (2(w&1) + (q>>1))*256 + h16*16 + (q&1)*8
    s_lshr_b32 s10, s3, 1
    s_lshl_b32 s10, s10, 11
    s_and_b32 s11, s3, 1
    s_lshl_b32 s11, s11, 9
    s_add_u32 s10, s10, s11
    s_add_u32 s10, s10, 0x%x
    v_lshrrev_b32 v18, 1, v16         ; q>>1
    v_lshlrev_b32 v19, 8, v18
    v_lshl_add_u32 v19, v17, 4, v19
    v_and_b32 v20, 1, v16             ; q&1
    v_lshl_add_u32 v19, v20, 3, v19
    v_add_u32 v4, s10, v19
    ; pv addr: (g>>1)*16384 + 2(g&1)*4096 + w*1024 + r*256 + ((c'/2) ^ ((r<<2) | 2(g&1)))*16 + (c'&1)*8
    v_lshrrev_b32 v21, 2, v17         ; r (pv) / a (qk)
    v_bfe_u32 v22, v1, 1, 1
    v_lshl_add_u32 v22, v20, 1, v22
    v_lshl_add_u32 v22, v21, 2, v22
    v_lshlrev_b32 v22, 4, v22
    v_lshl_add_u32 v22, v21, 8, v22
    v_lshl_add_u32 v22, v20, 13, v22
    v_lshl_add_u32 v22, v18, 14, v22
    v_and_b32 v23, 1, v1
    v_lshl_add_u32 v22, v23, 3, v22
    s_lshr_b32 s10, s3, 1
    s_lshl_b32 s10, s10, 10
    s_and_b32 s11, s3, 1
    s_lshl_b32 s11, s11, 7
    s_or_b32 s10, s10, s11
    v_xor_b32 v2, s10, v22
    ; qk addr: w*16384 + a*4096 + r*256 + ((r<<2) | (g ^ (a&2)))*16
    v_and_b32 v22, 3, v17
    v_and_b32 v23, 2, v21
    v_xor_b32 v23, v23, v16
    v_lshl_add_u32 v23, v22, 2, v23
    v_lshlrev_b32 v23, 4, v23
    v_lshl_add_u32 v23, v22, 8, v23
    v_lshl_add_u32 v23, v21, 12, v23
    v_add_u32 v12, s9, v23
    v_xor_b32 v13, 64, v12
    v_xor_b32 v14, 0x80, v12
    v_xor_b32 v15, 0xc0, v12
    v_mov_b32 v6, 0
    v_mov_b32 v7, 0
    v_mov_b32 v8, 0xff800000
    v_mov_b32 v9, 0xff800000
    """ % (PB, PB))
    SS = [[16, 20], [24, 28]]; P = [32, 36, 40, 44]; XQ = [48, 52, 56, 60]
    def O(hh, ct): return 64 + (hh * 8 + ct) * 4
    def QF(hh, ks): return 128 + (hh * 16 + ks) * 4
    def s_init(i, hh):
        for r in range(4): a('v_mov_b32 v%d, v%d' % (SS[i % 2][hh] + r, 10 + hh))
    s_init(0, 0); s_init(0, 1); s_init(1, 0); s_init(1, 1)
    for n in range(AW0, NPRE): dma_one(*first[n], AW0 if n < AN0 else AW)
    def hcheck(need):
        lab = a.newlabel('L_Ahc')
        a('s_cmp_ge_u32 s62, %d' % need)
        a('s_cbranch_scc0 %s' % lab)
        a.label(lab + 'b')
        a.slow.append('''
        %s:
        s_mov_b32 s11, 0
        %sl:
        ds_read_b32 v1, v3 offset:32
        s_add_u32 s11, s11, 1
        s_waitcnt lgkmcnt(0)
        v_readfirstlane_b32 s62, v1
        s_sub_u32 s62, s62, s57
        s_cmp_gt_u32 s62, 15
        s_cselect_b32 s62, 0, s62
        s_cmp_gt_u32 s11, LSPIN
        s_cbranch_scc1 %sb
        s_cmp_lt_u32 s62, %d
        s_cbranch_scc1 %sl
        s_branch %sb
        ''' % (lab, lab, lab, need, lab, lab))
    def pcheck(off=0, redo=''):
        lab = a.newlabel('L_Apc')
        a('v_subrev_u32 v1, s63, v1')
        a('v_cmp_lt_u32 vcc, 7, v1')
        a('s_cbranch_vccnz %s' % lab)
        a.label(lab + 'b')
        a.slow.append('''
        %s:
        s_mov_b32 s11, 0
        %sl:
        ds_read_b32 v1, v0 offset:%d
        s_add_u32 s11, s11, 1
        s_waitcnt lgkmcnt(0)
        v_subrev_u32 v1, s63, v1
        v_cmp_lt_u32 vcc, 7, v1
        s_cmp_gt_u32 s11, LSPIN
        s_cbranch_scc1 %sr
        s_cbranch_vccnz %sl
        %sr:
        %s
        s_branch %sb
        ''' % (lab, lab, off, lab, lab, lab, redo, lab))
    pairs = [SS[1], XQ[0:2], XQ[2:4]]
    KB = pairs[2] + pairs[0] + pairs[1] + P + pairs[2] + P
    def kbuf(g):
        if g < 16: return 64 + 4 * g
        if g < 19: return P[g - 15]
        if g < 32: return 64 + 4 * (g - 16)
        return KB[g % 16]
    def sreg(g, hh): return SS[1][hh] if g < 16 else SS[0][hh]
    def rk(g):
        i, seg, k = g // 16, (g % 16) // 4, g % 4
        if ('C%d' % i) in a.vm: a.vwait('C%d' % i)
        if i >= 2 and g % 8 == 0: hcheck((i - 2) * 4 + seg + 2)
        if i and seg == 0: a('v_xor_b32 v%d, 0x10000, v%d' % (12 + k, 12 + k))
        a.d('ds_read_b128 %s, v%d offset:%d' % (R(kbuf(g), 4), 12 + k, seg * 1024), 'k%d' % g)
    def step(g, nxt=True):
        i = g // 16
        if o.get('w2', 0) and g >= 32 and g % 2 == 0 and g % 16 and ('k%d' % (g + 1)) in a.lg: a.dwait('k%d' % (g + 1))
        a.dwait('k%d' % g)
        for hh in range(2):
            s = sreg(g, hh)
            a('v_mfma_f32_16x16x32_bf16 %s, %s, %s, %s' % (R(s, 4), R(kbuf(g), 4), R(QF(hh, g % 16), 4), R(s, 4)))
        if nxt: rk(g + 5)
    pvstate = [0]
    def pv_addr(i, ct):
        want = (i % 2) * 65536 + ((ct & 3) << 5) + ((ct >> 2) << 11)
        if want != pvstate[0]:
            a('v_xor_b32 v2, 0x%x, v2' % (want ^ pvstate[0]))
            pvstate[0] = want
    def rv(i, ct, ks2, dst):
        pv_addr(i, ct)
        for rdi in range(2):
            a.d('ds_read_b64_tr_b16 %s, v2 offset:%d' % (R(dst + 2 * rdi, 2), ks2 * 32768 + rdi * 4096), 'v%d_%d_%d' % (i, ct, ks2))
    for g in range(16): rk(g)
    a.vall()
    if o.get('diaga', -1) < 0: a.stamp(10)
    a('s_barrier')
    if o.get('diaga', -1) < 0: a.stamp(11)
    a('v_mov_b32 v35, 0')
    a.v('global_load_dword v34, v35, s[36:37] sc1', 'N')
    a('s_cmp_eq_u32 s15, 0')
    a('s_cbranch_scc1 L_Anr')
    sv = list(a.vm)
    for n in range(NPRE, 32): dma_one(*first[n])
    a('s_waitcnt vmcnt(0)')
    a.vm = sv
    a.label('L_Anr')

    for ct in range(2):
        for ks2 in range(2): rv(0, ct, ks2, pairs[ct + 1][ks2])
    for g in range(16, 19): rk(g)
    a('''
    v_and_b32 v0, 3, v1
    v_lshlrev_b32 v0, 2, v0
    v_add_u32 v0, 0x%x, v0            ; flag read addr
    s_lshl_b32 s10, s3, 2
    s_add_u32 s10, s10, 0x%x
    v_mov_b32 v3, s10                 ; own flag addr
    s_mov_b32 s62, 0
    ''' % (FL, FL))
    a.dall()
    DA = o.get('diaga', -1)
    def ds(i, k):
        if DA == i:
            a('s_memtime s[%d:%d]' % (70 + 2 * k, 71 + 2 * k))
    a.stamp(1)
    a('s_barrier')
    if o.get('cprio', 0): a('s_setprio %d' % o['cprio'])
    a.stamp(2)
    if DA >= 0: a.stamps_mute = True
    ds(9, 3)
    a('s_cmp_lg_u32 s15, 0')
    a('s_cbranch_scc1 L_Anoq')
    def rq(ks):
        for hh in range(2):
            a.d('ds_read_b128 %s, v%d offset:%d' % (R(QF(hh, ks), 4), 32 + (ks & 1), (hh * 16 + ks) * 1024), 'q%d' % ks)
    QD = o.get('qd', 5)
    mix = [0, 1]
    for n in range(7): mix += [16 + n, 2 + 2 * n, 3 + 2 * n]
    mix += [23]
    def mixed(withq):
        nk = [19]
        for g in mix:
            if g < 16 and withq: a.dwait('q%d' % (g + 1 if (o.get('w2', 0) and g >= 2 and g % 2 == 0) else g))
            step(g, False)
            if g < 16:
                if withq and g + QD < 16: rq(g + QD)
                if g >= 4: rk(nk[0]); nk[0] += 1
        return nk[0]
    for ks in range(QD): rq(ks)
    mixed(True)
    a.dall()
    a('s_branch L_Aq2')
    a.label('L_Anoq')
    vm1 = list(a.vm)
    a('s_waitcnt vmcnt(0)')
    a('s_add_u32 s10, s58, 24')
    a('v_mov_b32 v1, s10')
    a('ds_write_b32 v3, v1 offset:32')
    nk = mixed(False)
    assert nk == 31
    a.dall()
    a.vm = vm1
    a.label('L_Aq2')
    ds(9, 6)
    if 'N' in a.vm: a.vwait('N')
    a('''
    v_readfirstlane_b32 s58, v34
    s_lshl_b32 s10, s15, 4
    s_add_u32 s57, s58, s10
    s_barrier                         ; B1
    ''')
    ds(9, 7)
    def half(g, hh):
        a.dwait('k%d' % g)
        a('v_mfma_f32_16x16x32_bf16 %s, %s, %s, %s' % (R(sreg(g, hh), 4), R(kbuf(g), 4), R(QF(hh, g % 16), 4), R(sreg(g, hh), 4)))
    def last4(g, fill=None):
        for k in range(0, 4):
            half(g + k, 0)
            if fill: fill()
        for k in range(4):
            half(g + k, 1)
            if fill: fill()
    E = 36
    def sm_ops(i):
        S = SS[1] if i == 0 else SS[0]; pb = (i % 2) * 4096
        def ex(hh, rs): return [(lambda hh=hh, r=r: a('v_exp_f32 v%d, v%d' % (E + 4 * hh + r, S[hh] + r))) for r in rs]
        def cw(hh):
            def f():
                for r in range(2):
                    a('v_cvt_pk_bf16_f32 v%d, v%d, v%d' % (32 + 2 * hh + r, E + 4 * hh + 2 * r, E + 4 * hh + 2 * r + 1))
                a.d('ds_write_b64 v4, %s offset:%d' % (R(32 + 2 * hh, 2), pb + 1024 * hh), 'w')
            return f
        def flag():
            a('s_add_u32 s63, s57, %d' % i)
            a('v_mov_b32 v1, s63')
            a.d('ds_write_b32 v3, v1', 'w')
        def mxl(hh):
            def f():
                a('v_add_f32 v%d, v%d, v%d' % (E + 4 * hh, E + 4 * hh, E + 4 * hh + 1))
                a('v_add_f32 v%d, v%d, v%d' % (E + 4 * hh + 2, E + 4 * hh + 2, E + 4 * hh + 3))
                a('v_max3_f32 v%d, v%d, v%d, v%d' % (8 + hh, 8 + hh, S[hh], S[hh] + 1))
                a('v_add_f32 v%d, v%d, v%d' % (6 + hh, 6 + hh, E + 4 * hh))
                a('v_max3_f32 v%d, v%d, v%d, v%d' % (8 + hh, 8 + hh, S[hh] + 2, S[hh] + 3))
                a('v_add_f32 v%d, v%d, v%d' % (6 + hh, 6 + hh, E + 4 * hh + 2))
            return f
        def chk():
            for f in ((0, 1, 2, 3) if i < 3 else (0, 2, 1, 3)):
                a.d('ds_read_b128 %s, v5 offset:%d' % (R(P[f], 4), pb + f * 1024), 'p%d' % f)
        return ex, cw, flag, mxl, chk
    VCK = o.get('vck', 7)
    rk(31)
    ex, cw, flag, mxl, chk = sm_ops(0)
    def pfr(): a.d('ds_read_b32 v1, v0', 'pf')
    def pck():
        a.dwait('pf'); pcheck(); chk()
    e0 = ex(0, range(4)); e1 = ex(1, range(4))
    fl = [[e0[0], e0[1]], [e0[2], e0[3]], [cw(0)], [e1[0], e1[1]], [e1[2], e1[3]], [cw(1)], [flag], [mxl(0)], [mxl(1)], [pfr],
          [lambda: rv(0, 2, 0, pairs[0][0])], [lambda: rv(0, 2, 1, pairs[0][1])], [pck], [], [], []]
    for n in range(16):
        half(24 + n // 2, n % 2)
        for f in fl[n]: f()
    ds(9, 8)
    S = SS[0]
    def ip(hh):
        b = S[hh]
        return [lambda: (a('v_max3_f32 v%d, v%d, v%d, v%d' % (8 + hh, 8 + hh, b, b + 1)), a('v_max3_f32 v%d, v%d, v%d, v%d' % (8 + hh, 8 + hh, b + 2, b + 3))),
                lambda: a('v_exp_f32 v%d, v%d' % (b, b)), lambda: a('v_exp_f32 v%d, v%d' % (b + 1, b + 1)),
                lambda: a('v_exp_f32 v%d, v%d' % (b + 2, b + 2)), lambda: a('v_exp_f32 v%d, v%d' % (b + 3, b + 3)),
                lambda: (a('v_add_f32 v%d, v%d, v%d' % (6 + hh, 6 + hh, b)), a('v_cvt_pk_bf16_f32 v%d, v%d, v%d' % (b, b, b + 1))),
                lambda: (a('v_add_f32 v%d, v%d, v%d' % (6 + hh, 6 + hh, b + 1)), a('v_cvt_pk_bf16_f32 v%d, v%d, v%d' % (b + 1, b + 2, b + 3))),
                lambda: (a('v_add_f32 v%d, v%d, v%d' % (b + 2, b + 2, b + 3)), a.d('ds_write_b64 v4, %s offset:%d' % (R(b, 2), 4096 + 1024 * hh), 'w')),
                lambda: a('v_add_f32 v%d, v%d, v%d' % (6 + hh, 6 + hh, b + 2))]
    flag1 = sm_ops(1)[2]
    q = [None, None, None] + ip(0) + ip(1)[:8] + [lambda: (flag1(), ip(1)[8]())] + [None, None, pfr]
    order0 = [(ct, ks2) for ct in range(6) for ks2 in range(2)] + [(6, 0), (7, 0), (6, 1), (7, 1)]
    vnext = [(0, ct, ks2) for ct in range(3, 8) for ks2 in range(2)] + [(1, 0, 0), (1, 0, 1)]
    def vbuf(i, ct, ks2): return pairs[(ct + 1 - i) % 3][ks2]
    n = 0
    for pos, (ct, ks2) in enumerate(order0):
        a.dwait('v0_%d_%d' % (ct, 1 if (o.get('w2', 0) and pos < 12) else ks2))
        for hh in range(2):
            a.dwait('p%d' % (ks2 * 2 + hh))
            cin = '0' if ks2 == 0 else R(O(hh, ct), 4)
            a('v_mfma_f32_16x16x32_bf16 %s, %s, %s, %s' % (R(O(hh, ct), 4), R(P[ks2 * 2 + hh], 4), R(vbuf(0, ct, ks2), 4), cin))
            if 2 <= pos < 14:
                vi_, vc, vk = vnext[pos - 2]
                if hh == 0: pv_addr(vi_, vc)
                a.d('ds_read_b64_tr_b16 %s, v2 offset:%d' % (R(vbuf(vi_, vc, vk) + 2 * hh, 2), vk * 32768 + hh * 4096), 'v%d_%d_%d' % (vi_, vc, vk))
            if n < len(q) and q[n]: q[n]()
            n += 1
        if pos == 13:
            a.dwait('pf'); pcheck()
            for f in (0, 1): a.d('ds_read_b128 %s, v5 offset:%d' % (R(P[f], 4), 4096 + f * 1024), 'p%d' % f)
            a.dwait('v0_7_1')
            a('v_mov_b32 v1, s57')
            a.d('ds_write_b32 v3, v1 offset:16', 'w')
            a.stamp(8)
            a('s_cmp_lg_u32 s15, 0')
            a('s_cbranch_scc1 L_Arf0')
            a.label('L_Arb0')
        if pos == 14: rv(1, 1, 0, vbuf(1, 1, 0))
    for f in (2, 3): a.d('ds_read_b128 %s, v5 offset:%d' % (R(P[f], 4), 4096 + f * 1024), 'p%d' % f)
    rv(1, 1, 1, vbuf(1, 1, 1))
    ds(9, 9)
    for i in range(1, 3):
        ds(i, 3)
        ex, cw, flag, mxl, chk = sm_ops(i)
        g0 = 16 * (i + 1)
        if i == 2:
            for f in ex(0, range(4)): f()
            cw(0)()
            for f in ex(1, range(4)): f()
            cw(1)()
            flag()
            ds(i, 4)
            mxl(0)(); mxl(1)()
            a.d('ds_read_b32 v1, v0', 'pf')
            n0 = len(a.lines)
            chk()
            redo = [l.strip() for l in a.lines[n0:] if 's_waitcnt' not in l] + ['s_waitcnt lgkmcnt(0)']
            s_init(0, 0); s_init(0, 1)
            a.dwait('pf')
            pcheck(0, '\n'.join(redo))
        ds(i, 5)
        for ct in range(8):
            for ks2 in range(2):
                a.dwait('v%d_%d_%d' % (i, ct, 1 if (o.get('w2', 0) and ct) else ks2))
                for hh in range(2):
                    a.dwait('p%d' % (ks2 * 2 + hh))
                    cin = '0' if (i == 0 and ks2 == 0) else R(O(hh, ct), 4)
                    a('v_mfma_f32_16x16x32_bf16 %s, %s, %s, %s' % (R(O(hh, ct), 4), R(P[ks2 * 2 + hh], 4), R(pairs[ct % 3][ks2], 4), cin))
                    if (3 if i == 2 else 2) <= ct + 2 < 8:
                        if hh == 0: pv_addr(i, ct + 2)
                        a.d('ds_read_b64_tr_b16 %s, v2 offset:%d' % (R(pairs[(ct + 2) % 3][ks2] + 2 * hh, 2), ks2 * 32768 + hh * 4096), 'v%d_%d_%d' % (i, ct + 2, ks2))
                if ct == 0 and ks2 == 0: ds(i, 6)
                if i == 1 and ct == 2: s_init(0, ks2)
                if ct == 4 and ks2 == 0: ds(i, 7)
                if ct == 5 and ks2 == 1: a.d('ds_read_b32 v1, v3 offset:32', 'hf')
                if ct == 6 and ks2 == 1:
                    a.dall()
                    if i >= 0:
                        a('''
                    v_readfirstlane_b32 s62, v1
                    s_sub_u32 s62, s62, s57
                    s_cmp_gt_u32 s62, 15
                    s_cselect_b32 s62, 0, s62
                    ''')
                    if i == 0:
                        a.vall()
                        hcheck(1)
                    if i < 2:
                        a('v_mov_b32 v1, s63')
                        a.d('ds_write_b32 v3, v1 offset:16', 'w')
                        a.stamp(8 + i)
                        a('s_cmp_lg_u32 s15, 0')
                        a('s_cbranch_scc1 L_Arf%d' % i)
                        a.label('L_Arb%d' % i)
                    rk(g0); rk(g0 + 1)
                if ct == 7 and ks2 == 0: rk(g0 + 2); rk(g0 + 3)
        ds(i, 8)
        rk(g0 + 4)
        if i < 2:
            vq = [(ct, ks2) for ct in range(3) for ks2 in range(2)]
            def vfill():
                if vq:
                    ct, ks2 = vq.pop(0)
                    rv(i + 1, ct, ks2, pairs[ct][ks2])
            for s in range(12):
                step(g0 + s, s < 11)
                if s == 0: ds(i, 9)
                if s == 8: ds(i, 10)
                if s == VCK - 3:
                    if i == 1: a('s_add_u32 s63, s57, 4')
                    a.d('ds_read_b32 v1, v0 offset:%d' % (16 + 16 * i), 'ha')
                if s == VCK:
                    a.dwait('ha')
                    pcheck(16 + 16 * i)
                if s > VCK and len(vq) > 2: vfill()
            last4(g0 + 12, vfill)
        else:
            for s in range(8): step(g0 + s, s < 3)
        ds(i, 11)
    a('''
    v_mbcnt_lo_u32_b32 v24, -1, 0
    v_mbcnt_hi_u32_b32 v24, -1, v24
    v_and_b32 v25, 15, v24
    v_lshrrev_b32 v27, 4, v24
    v_lshlrev_b32 v26, 6, v25
    v_lshl_add_u32 v26, v27, 2, v26
    s_lshl_b32 s10, s3, 4
    s_add_u32 s10, s10, 0x%x
    v_add_u32 v26, s10, v26           ; l write addr
    v_lshlrev_b32 v25, 4, v25
    v_lshl_add_u32 v25, v27, 19, v25  ; O store voffset
    v_bfe_u32 v28, v24, 3, 1
    v_lshl_add_u32 v27, v27, 2, v28
    v_bfe_u32 v28, v24, 2, 1
    v_lshl_add_u32 v27, v28, 1, v27
    v_and_b32 v28, 1, v24
    v_lshl_add_u32 v27, v28, 4, v27   ; h(lane)
    v_and_b32 v28, 2, v24
    v_lshlrev_b32 v28, 4, v28
    v_lshl_add_u32 v28, v27, 6, v28
    v_add_u32 v28, 0x%x, v28          ; l read addr
    v_lshlrev_b32 v29, 4, v27         ; MLC voffset
    s_lshl_b32 s10, s3, 15
    s_lshl_b32 s12, s59, 8
    s_add_u32 s10, s10, s12
    s_add_u32 s13, s10, 0x%x
    s_lshl_b32 s12, s59, 2
    s_add_u32 s12, s12, s3
    s_lshl_b32 s12, s12, 9
    s_add_u32 s12, s12, 0x%x
    s_mov_b32 s60, 0xaaaaaaaa
    s_mov_b32 s61, 0xaaaaaaaa
    s_mov_b32 s64, 0x33333333
    s_mov_b32 s65, 0x33333333
    s_add_u32 s63, s57, 6
    ''' % (RLB, RLB, OP, ML))
    a.d('ds_read_b32 v1, v0 offset:32', 'ha')
    a.dwait('ha')
    pcheck(32)
    for ct in range(4):
        for ks2 in range(2): rv(3, ct, ks2, 128 + (ct * 2 + ks2) * 4)
    pv_addr(3, 4)
    a.dall()
    a('s_barrier')
    a.stamp(3)
    ds(3, 3)
    ds(6, 3)
    KL = P + XQ
    for n in range(8):
        a.d('ds_read_b128 %s, v%d offset:%d' % (R(KL[n], 4), 12 + n % 4, (2 + n // 4) * 1024), 'k%d' % n)
    def VF(ct, ks2): return (128 if ct < 4 else 192) + ((ct % 4) * 2 + ks2) * 4
    vl = [(ct, ks2) for ct in range(8) for ks2 in range(2)]
    vi = 8
    def more(n=1):
        nonlocal vi
        for _ in range(n):
            if vi < 16:
                rv(3, vl[vi][0], vl[vi][1], VF(*vl[vi])); vi += 1
    def qk(n, hh):
        a.dwait('k%d' % n)
        a('v_mfma_f32_16x16x32_bf16 %s, %s, %s, %s' % (R(SS[0][hh], 4), R(KL[n], 4), R(QF(hh, 8 + n), 4), R(SS[0][hh], 4)))
    EE = [188, 232]; CV = [182, 236]; pb = 4096
    def ex(hh, r): a('v_exp_f32 v%d, v%d' % (EE[hh] + r, SS[0][hh] + r))
    def cw(hh):
        for r in range(2):
            a('v_cvt_pk_bf16_f32 v%d, v%d, v%d' % (CV[hh] + r, EE[hh] + 2 * r, EE[hh] + 2 * r + 1))
        a.d('ds_write_b64 v4, %s offset:%d' % (R(CV[hh], 2), pb + 1024 * hh), 'w')
    def ladd(hh):
        e = EE[hh]
        a('v_add_f32 v%d, v%d, v%d' % (e, e, e + 1))
        a('v_add_f32 v%d, v%d, v%d' % (e + 2, e + 2, e + 3))
        a('v_add_f32 v%d, v%d, v%d' % (6 + hh, 6 + hh, e))
        a('v_add_f32 v%d, v%d, v%d' % (6 + hh, 6 + hh, e + 2))
    def mx(hh):
        S = SS[0][hh]
        a('v_max3_f32 v%d, v%d, v%d, v%d' % (8 + hh, 8 + hh, S, S + 1))
        a('v_max3_f32 v%d, v%d, v%d, v%d' % (8 + hh, 8 + hh, S + 2, S + 3))
    def rp(f): a.d('ds_read_b128 %s, v5 offset:%d' % (R(P[f], 4), pb + f * 1024), 'p%d' % f)
    for n in range(8):
        qk(n, 0)
        if n == 0: ds(6, 4)
        if n in (3, 5, 7): more()
    ds(6, 5)
    for n in range(8):
        qk(n, 1)
        if n in (1,): more()
        if 3 <= n <= 4: ex(0, 2 * (n - 3)); ex(0, 2 * (n - 3) + 1)
        if n == 5: cw(0)
    ds(6, 6)
    a.dwait('w')
    ds(6, 7)
    a('s_barrier')
    ds(6, 8)
    rp(0); rp(2)
    for r in range(4): ex(1, r)
    cw(1)
    ds(6, 9)
    ds(3, 4)
    ds(4, 3)
    PK = [XQ, [16, 20, 160, 164]]
    CS = 168
    def pack(hh, r):
        for k in range(4):
            a('v_cvt_pk_bf16_f32 v%d, v%d, v%d' % (PK[hh][r] + k, O(hh, 2 * k) + r, O(hh, 2 * k + 1) + r))
    def st(hh, r):
        a('s_add_u32 s11, s13, 0x%x' % ((16 * hh + r) * 131072 + hh * 4096))
        a('buffer_store_dwordx4 %s, v25, s[44:47], s11 offen sc1' % R(PK[hh][r], 4))
    def cs(hh, r):
        b = PK[hh][r]; c = CS + 4 * hh + r
        a('v_add3_u32 v%d, v%d, v%d, v%d' % (c, b, b + 1, b + 2))
        a('v_add_u32 v%d, v%d, v%d' % (c, c, b + 3))
    T = 176
    def stepA(i):
        a('v_add_u32_dpp v%d, v%d, v%d row_ror:8 row_mask:0xf bank_mask:0x3' % (T + i, CS + 2 * i, CS + 2 * i))
        a('v_add_u32_dpp v%d, v%d, v%d row_ror:8 row_mask:0xf bank_mask:0xc' % (T + i, CS + 2 * i + 1, CS + 2 * i + 1))
    def stepB(hh):
        a('v_add_u32_dpp v%d, v%d, v%d row_half_mirror row_mask:0xf bank_mask:0x5' % (T + 4 + hh, T + 2 * hh, T + 2 * hh))
        a('v_add_u32_dpp v%d, v%d, v%d row_half_mirror row_mask:0xf bank_mask:0xa' % (T + 4 + hh, T + 2 * hh + 1, T + 2 * hh + 1))
        a('v_add_u32_dpp v%d, v%d, v%d quad_perm:[1,0,3,2] row_mask:0xf bank_mask:0xf' % (T + 4 + hh, T + 4 + hh, T + 4 + hh))
    def lchk():
        a.d('ds_read_b128 v[224:227], v28', 'rl')
        a.d('ds_read_b128 v[228:231], v28 offset:16', 'rl')
    def ls1():
        a.dwait('rl')
        a('''
        v_add_f32 v224, v224, v225
        v_add_f32 v226, v226, v227
        v_add_f32 v228, v228, v229
        v_add_f32 v230, v230, v231
        ''')
    def ls2():
        a('''
        v_add_f32 v224, v224, v226
        v_add_f32 v228, v228, v230
        v_add_f32 v185, v224, v228
        v_mov_b32 v187, s58
        ''')
    def lw():
        ladd(1)
        a.d('ds_write2st64_b32 v26, v6, v7 offset0:0 offset1:4', 'w')
    def barB():
        a.dwait('w')
        a('s_barrier')
        rp(1); rp(3)
    f0 = {0: lambda: (more(1), ladd(0)), 1: lambda: (more(1), lw()), 2: lambda: more(1), 3: lambda: more(1), 4: barB, 5: lchk, 6: lambda: mx(0), 7: lambda: mx(1)}
    f1 = {0: ls1, 1: ls2, 2: lambda: (pack(0, 0), a('v_add_f32_dpp v185, v185, v185 quad_perm:[2,3,0,1] row_mask:0xf bank_mask:0xf')), 3: lambda: (st(0, 0), pack(0, 1)), 4: lambda: (st(0, 1), pack(0, 2)), 5: lambda: (st(0, 2), pack(0, 3)),
          6: lambda: (st(0, 3), cs(0, 0), cs(0, 1)), 7: lambda: (cs(0, 2), cs(0, 3), stepA(0))}
    for hh in range(2):
        for ct in range(8):
            for ks2 in range(2):
                a.dwait('v3_%d_%d' % (ct, ks2)); a.dwait('p%d' % (ks2 * 2 + hh))
                a('v_mfma_f32_16x16x32_bf16 %s, %s, %s, %s' % (R(O(hh, ct), 4), R(P[ks2 * 2 + hh], 4), R(VF(ct, ks2), 4), R(O(hh, ct), 4)))
            f = (f0 if hh == 0 else f1).get(ct)
            if f: f()
            if hh == 0 and ct in (1, 2, 4, 7): ds(4, {1: 4, 2: 5, 4: 6, 7: 7}[ct])
            if hh == 1 and ct in (2, 7): ds(4, {2: 8, 7: 9}[ct])
    a.stamp(4)
    ds(3, 5)
    stepA(1)
    a("""
    v_subrev_u32 v186, 0x2f800000, v185
    v_cmp_le_u32 vcc, 0x24000000, v186
    """)
    NE = o.get('nearly', 0)
    pack(1, 0)
    stepB(0)
    for r in range(4):
        if r < 3: pack(1, r + 1)
        if r < NE: st(1, r)
        cs(1, r)
        if r == 2: stepA(2)
    a("""
    s_or_b32 s14, vcc_lo, vcc_hi
    s_or_b32 s11, s14, s15
    s_cbranch_scc1 L_Aslow
    v_mov_b32 v184, 0
    L_Aok:
    """)
    stepA(3)
    a('v_sub_u32 v186, v187, v184')
    stepB(1)
    a('v_sub_u32 v186, v186, v185')
    a('v_cndmask_b32 v%d, v%d, v%d, s[60:61]' % (T + 4, T + 4, T + 5))
    a('v_add_u32_dpp v%d, v%d, v%d quad_perm:[2,3,0,1] row_mask:0xf bank_mask:0xf' % (T + 4, T + 4, T + 4))
    a("""
    v_sub_u32 v186, v186, v%d
    s_mov_b64 exec, s[64:65]
    buffer_store_dwordx4 v[184:187], v29, s[44:47], s12 offen sc1
    s_mov_b64 exec, -1
    """ % (T + 4))
    for r in range(NE, 4): st(1, r)
    ds(3, 6)

    def slow():
        for i in range(2):
            a.label('L_Arf%d' % i)
            a('s_waitcnt lgkmcnt(0)')
            a('s_barrier')
            voffs(1, 0)
            for seg in range(4):
                for aa in range(4):
                    a('s_add_u32 m0, s9, 0x%x' % (i * 65536 + aa * 4096 + seg * 1024))
                    a('s_add_u32 s10, s8, 0x%x' % ((i + 2) * 65536 + aa * 4096 + seg * 256))
                    a('buffer_load_dwordx4 v%d, s[40:43], s10 offen nt lds' % (1 if aa < 2 else 0))
            a('''
            v_mbcnt_lo_u32_b32 v0, -1, 0
            v_and_b32 v0, 3, v0
            v_lshlrev_b32 v0, 2, v0
            v_add_u32 v0, 0x%x, v0
            s_waitcnt vmcnt(0)
            s_barrier
            s_branch L_Arb%d
            ''' % (FL, i))
        for t in a.slow: a(t)
        a.label('L_Aslow')
        a("""
        v_lshlrev_b32 v30, 2, v27
        v_add_u32 v30, 0x%x, v30
        s_cmp_lg_u32 s15, 0
        s_cbranch_scc1 L_Aslow2
        ; first pass was unsafe: rerun with the true (rounded up) per-head max
        ds_write2st64_b32 v26, v8, v9 offset0:8 offset1:12
        s_waitcnt lgkmcnt(0)
        s_barrier
        ds_read_b128 v[224:227], v28 offset:2048
        ds_read_b128 v[228:231], v28 offset:2064
        s_waitcnt lgkmcnt(0)
        v_max3_f32 v224, v224, v225, v226
        v_max3_f32 v227, v227, v228, v229
        v_max3_f32 v224, v224, v230, v231
        v_max_f32 v184, v224, v227
        v_max_f32_dpp v184, v184, v184 quad_perm:[2,3,0,1] row_mask:0xf bank_mask:0xf
        v_ceil_f32 v184, v184
        ds_write_b32 v30, v184
        v_and_b32 v31, 15, v24
        v_lshlrev_b32 v30, 2, v31
        v_add_u32 v30, 0x%x, v30
        v_lshrrev_b32 v232, 4, v24
        v_lshlrev_b32 v232, 4, v232
        v_lshl_add_u32 v31, v31, 10, v232
        s_mov_b32 s10, 0x4000
        s_waitcnt vmcnt(0) lgkmcnt(0)
        ds_read_b32 v10, v30
        ds_read_b32 v11, v30 offset:64
        """ % (RB, RB))
        for hh in range(2):
            for ks in range(16):
                a('buffer_load_dwordx4 %s, v31, s[44:47], %s offen offset:%d sc1' % (R(QF(hh, ks), 4), 's10' if hh else '0', ks * 64))
        a("""
        s_mov_b32 s15, 1
        s_waitcnt vmcnt(0) lgkmcnt(0)
        v_sub_f32 v10, 0, v10
        v_sub_f32 v11, 0, v11
        """)
        voffs(3, 0)
        a("""
        s_barrier
        s_branch L_Apass
        L_Aslow2:
        ds_read_b32 v184, v30
        s_waitcnt lgkmcnt(0)
        s_branch L_Aok
        """)
    a.aslow = slow
```

```python
from roleA36 import *

def role_final(a, o):
    a('''
    s_cmp_lg_u32 s3, 0
    s_cbranch_scc1 L_end
    ''')
    a.stamp(5)
    a.srd(48, WS, FP + 86 * 2048)
    a.srd(40, X, 1024)
    a('''
    v_mov_b32 v40, v24
    s_and_b32 s10, s2, 7
    s_lshl_b32 s10, s10, 6
    s_lshr_b32 s11, s2, 3
    s_lshl_b32 s11, s11, 2
    s_add_u32 s10, s10, s11            ; m0
    s_lshl_b32 s11, s10, 2
    s_lshl_b32 s12, s10, 1
    v_lshlrev_b32 v41, 11, v40
    v_and_b32 v42, 3, v40
    v_lshlrev_b32 v43, 1, v42
    buffer_load_ushort v60, v43, s[40:43], s12 offen
    v_and_b32 v44, 1, v40
    v_cmp_eq_u32 s[60:61], 1, v44
    v_and_b32 v44, 2, v40
    v_cmp_eq_u32 s[62:63], 2, v44
    ''')
    def gather4(base, srd, lab, dst):
        a('s_add_u32 s13, s11, 0x%x' % base)
        a('s_add_u32 s14, s11, 0x%x' % (base + 64 * 2048))
        a('s_mov_b32 s8, 0')
        if lab == 'L_gs' and o.get('frep', 4):
            a('''
            s_mov_b32 s64, %s
            s_mov_b32 s65, %s
            s_mov_b64 exec, s[64:65]
            L_gr:
            buffer_load_dword v48, v41, s[44:47], s13 offen sc1
            buffer_load_dword v52, v41, s[44:47], s14 offen sc1
            s_add_u32 s8, s8, 1
            s_waitcnt vmcnt(0)
            v_cmp_ne_u32 s[66:67], -1, v48
            v_cmp_ne_u32 s[68:69], -1, v52
            s_bcnt1_i32_b64 s66, s[66:67]
            s_bcnt1_i32_b64 s68, s[68:69]
            s_add_u32 s66, s66, s68
            s_cmp_gt_u32 s8, SPIN_N
            s_cbranch_scc1 L_gr_x
            s_cmp_lt_u32 s66, %d
            s_cbranch_scc1 L_gr
            L_gr_x:
            ''' % (o.get('fmask', '0x00010001'), o.get('fmask', '0x00010001'), o.get('frep', 4)))
        a('s_mov_b64 s[64:65], -1')
        a('s_mov_b64 s[66:67], -1')
        a.label(lab)
        a('s_sleep FIN_SLEEP')
        a('s_mov_b64 exec, s[64:65]')
        a('s_cbranch_execz %s_a' % lab)
        a('buffer_load_dwordx4 v[48:51], v41, s[%d:%d], s13 offen sc1' % (srd, srd + 3))
        a.label(lab + '_a')
        a('s_mov_b64 exec, s[66:67]')
        a('s_cbranch_execz %s_b' % lab)
        a('buffer_load_dwordx4 v[52:55], v41, s[%d:%d], s14 offen sc1' % (srd, srd + 3))
        a.label(lab + '_b')
        a('''
        s_mov_b64 exec, -1
        s_add_u32 s8, s8, 1
        s_waitcnt vmcnt(0)
        v_max3_u32 v56, v48, v49, v50
        v_max3_u32 v57, v52, v53, v54
        v_max_u32 v56, v56, v51
        v_max_u32 v57, v57, v55
        v_cmp_eq_u32 s[64:65], -1, v56
        v_cmp_eq_u32 s[66:67], -1, v57
        s_cmp_gt_u32 s8, SPIN_N
        s_cbranch_scc1 %s_x
        s_or_b64 s[68:69], s[64:65], s[66:67]
        s_cbranch_scc1 %s
        %s_x:
        v_add_f32 v48, v48, v52
        v_add_f32 v49, v49, v53
        v_add_f32 v50, v50, v54
        v_add_f32 v51, v51, v55
        v_cndmask_b32 v52, v48, v49, s[60:61]
        v_cndmask_b32 v53, v49, v48, s[60:61]
        v_cndmask_b32 v54, v50, v51, s[60:61]
        v_cndmask_b32 v55, v51, v50, s[60:61]
        v_add_f32_dpp v52, v53, v52 quad_perm:[1,0,3,2] row_mask:0xf bank_mask:0xf
        v_add_f32_dpp v54, v55, v54 quad_perm:[1,0,3,2] row_mask:0xf bank_mask:0xf
        v_cndmask_b32 v%d, v52, v54, s[62:63]
        v_cndmask_b32 v53, v54, v52, s[62:63]
        v_add_f32_dpp v%d, v53, v%d quad_perm:[2,3,0,1] row_mask:0xf bank_mask:0xf
        v_add_f32_dpp v%d, v%d, v%d row_ror:4 row_mask:0xf bank_mask:0xf
        v_add_f32_dpp v%d, v%d, v%d row_ror:8 row_mask:0xf bank_mask:0xf
        ''' % ((lab, lab, lab) + (dst,) * 9))
        a.swap_red('v_add_f32', dst, 53, 16)
        a.swap_red('v_add_f32', dst, 53, 32)
    gather4(FP, 48, 'L_gf', 61)
    a.rnd_bf16(61)
    a.silu(61, 53)
    a.rnd_bf16(61)
    a('v_lshlrev_b32 v60, 16, v60')
    a.srd(40, OUT, 1024)
    a.stamp(6)
    gather4(SP, 44, 'L_gs', 62)
    a.rnd_bf16(62)
    a('v_mul_f32 v62, v62, v61')
    a.rnd_bf16(62)
    a('''
    v_add_f32 v62, v62, v60
    v_cvt_pk_bf16_f32 v62, v62, v62
    s_mov_b64 exec, 15
    buffer_store_short v62, v43, s[40:43], s12 offen
    ''')
    a.stamp(7)
    a.write_stamps()
    a('s_endpgm')

def role_As(a, o):
    a.stamps_mute = False
    a.label('L_As')
    ops = [(c, seg, aa) for c in range(2) for seg in range(4) for aa in range(4)]
    AM = o.get('amaj', 1)
    ops = [(c, sp * 2 + sg, aa) for c in range(2) for sp in range(2) for aa in range(4) for sg in range(2)]
    if o.get('hmix', 0): ops = [(c, sp * 2 + sg, aa) for c in range(2) for sp in range(2) for aa in (0, 2, 1, 3) for sg in range(2)]
    def prog(n):
        return {7: 2, 15: 4, 23: 6}.get(n)
    NPRE = o.get('npre', 20); NR = 32 - NPRE
    first = [(i, seg, aa) for i in range(2) for aa in range(4) for seg in range(4)]
    def loads(lo, hi):
        for n in range(lo, hi):
            if n < 0:
                i, seg, aa = first[32 + n]
                a('s_xor_b32 m0, s69, 0x%x' % (65536 + aa * 4096 + seg * 1024))
                a('s_xor_b32 s10, s66, 0x%x' % (65536 + aa * 4096 + seg * 256))
                a.v('buffer_load_dwordx4 v%d, s[40:43], s10 offen nt lds' % (3 if aa < 2 else 0), 'D')
                continue
            c, seg, aa = ops[n]
            a('s_add_u32 s10, s64, 0x%x' % (c * 65536 + aa * 4096 + seg * 256))
            a.v('buffer_load_dwordx4 %s, v%d, s[40:43], s10 offen nt' % (R(128 + 4 * n, 4), 3 if aa < 2 else 0), 'L%d' % n)
    def writes(lo, hi):
        for n in range(lo, hi):
            c, seg, aa = ops[n]
            if ('L%d' % n) in a.vm: a.vwait('L%d' % n)
            a('ds_write_b128 v%d, %s offset:%d' % (100 + c, R(128 + 4 * n, 4), aa * 4096 + seg * 1024))
        a('s_waitcnt lgkmcnt(0)')
    c = [int(x, 16) for x in str(o.get('hsch', 'x64'))[1:]]
    a("""
    s_setprio 3
    s_sub_u32 s3, s3, 4
    s_cmp_lg_u32 s3, 1
    s_cbranch_scc1 L_Apt
    TLBPT s_load_dword s60, s[38:39], 0x1f000
    TLBPT s_load_dword s60, s[26:27], 0x0
    TLBPT s_load_dword s60, s[30:31], 0x0
    TLBPT s_load_dword s60, s[32:33], 0x0
    TLBPT s_load_dword s60, s[24:25], 0x0
    TLBPT s_load_dword s60, s[34:35], 0x0
    TLBPT s_mov_b32 s61, 0x300000
    TLBPT s_load_dword s60, s[38:39], s61
    TLBPT s_load_dword s60, s[26:27], s61
    TLBPT s_load_dword s60, s[24:25], s61
    TLBPT s_mov_b32 s62, 0x502000
    TLBPT s_load_dword s60, s[38:39], s62
    L_Apt:
    s_lshl_b32 s9, s3, 14
    s_add_u32 s64, s8, s9
    s_lshl_b32 s10, s3, 8
    s_or_b32 s66, s64, s10
    s_lshl_b32 s10, s3, 10
    s_or_b32 s69, s9, s10
    s_add_u32 s64, s64, 0x20000
    v_lshl_add_u32 v100, v1, 4, s9
    v_add_u32 v101, 0x10000, v100
    v_mov_b32 v2, 0
    s_mov_b32 s8, 0
    L_Agn:
    s_sleep 8
    global_load_dword v5, v2, s[36:37] sc1
    s_add_u32 s8, s8, 1
    s_waitcnt vmcnt(0)
    v_readfirstlane_b32 s4, v5
    s_cmp_gt_u32 s8, SPIN_N
    s_cbranch_scc1 L_Agn_x
    s_cmp_eq_u32 s4, 0
    s_cbranch_scc1 L_Agn
    L_Agn_x:
    OUTPT global_load_dword v254, v2, s[34:35]
    """)
    K0 = o.get('k0', 12)
    assert K0 >= NR
    a.vm = []
    for n in range(K0):
        if n >= o.get('k0w', 4): a('s_waitcnt vmcnt(%d)' % (o.get('k0w', 4) - 1))
        loads(n - NR, n - NR + 1)
    a("""
    v_lshlrev_b32 v2, QCSH, v1        ; tag voffset
    v_lshlrev_b32 v98, 4, v1          ; data voffset
    QR0 v_lshlrev_b32 v97, 7, v1          ; flag voffset
    QR1 v_lshlrev_b32 v97, 10, v1
    s_lshl_b32 s9, s3, 13             ; QA + u*8192
    s_add_u32 s65, s9, 4096
    s_lshl_b32 s11, s3, QCSH+5
    s_add_u32 s11, s11, 0x%x          ; QC + u*32 entries
    s_lshr_b32 s12, s3, 1
    s_lshl_b32 s12, s12, 14
    s_and_b32 s13, s3, 1
    s_lshl_b32 s13, s13, 7
    s_add_u32 s12, s12, s13
    s_add_u32 s12, s12, 0x%x
    v_and_b32 v6, 7, v1
    v_lshlrev_b32 v6, 4, v6
    v_lshl_add_u32 v6, v1, 8, v6
    v_add_u32 v6, s12, v6             ; LDS write base
    s_lshl_b32 s4, s4, 5              ; expected sum = 32 * nonce
    v_mov_b32 v72, 0
    v_mov_b32 v73, 0
    QR0 s_lshl_b32 s68, s3, 10
    QR1 s_lshl_b32 s68, s3, 13
    QR1 s_and_b32 s12, s2, 7
    QR1 s_lshl_b32 s12, s12, 7
    QR1 s_add_u32 s68, s68, s12
    s_add_u32 s68, s68, 0x10000
    s_mov_b32 s12, REP_MASK
    s_mov_b32 s13, 0
    """ % (QC, STG))
    PE = o.get('pe', 0)
    if PE:
        a('''
        s_mov_b64 exec, s[12:13]
        buffer_load_dwordx2 v[72:73], v97, s[44:47], REPBASE offen sc1
        s_mov_b64 exec, -1
        ''')
        for n in range(K0, K0 + PE):
            if o.get('pew', 1): a('s_waitcnt vmcnt(%d)' % o.get('k0w', 4))
            loads(n - NR, n - NR + 1)
        a('''
        s_mov_b64 exec, s[12:13]
        s_waitcnt vmcnt(%d)
        s_branch L_Agt_c
        ''' % PE)
        K0 += PE
    a("""
    L_Agt:
    s_sleep QT_SLEEP
    s_mov_b64 exec, s[12:13]
    buffer_load_dwordx2 v[72:73], v97, s[44:47], REPBASE offen sc1
    s_add_u32 s8, s8, 1
    s_waitcnt vmcnt(0)
    L_Agt_c:
    v_cmp_ne_u32 s[12:13], v73, v5
    s_cmp_gt_u32 s8, SPIN_N
    s_cbranch_scc1 L_Agt_x
    s_cmp_lg_u32 s12, 0
    s_cbranch_scc1 L_Agt
    L_Agt_x:
    s_mov_b32 exec_lo, -1
    buffer_load_dwordx2 v[72:73], v2, s[44:47], s11 offen sc1
    s_mov_b64 exec, -1
    """)
    def dload(i):
        a('buffer_load_dwordx4 %s, v98, s[44:47], s%d offen offset:%d sc1' % (R(8 + 4 * i, 4), 9 if i < 4 else 65, (i % 4) * 1024))
    def dproc(i):
        a('ds_write_b128 v%d, %s' % (40 + i, R(8 + 4 * i, 4)))
        a('v_add3_u32 v%d, v%d, v%d, v%d' % (80 + i, 8 + 4 * i, 9 + 4 * i, 10 + 4 * i))
        a('v_add_u32 v%d, v%d, v%d' % (80 + i, 80 + i, 11 + 4 * i))
    for i in range(8): dload(i)
    a.stamp(1)
    if a.stamps: a('s_mov_b32 s8, 1')
    if o.get('rlate', 0):
        a("""
        s_waitcnt vmcnt(8)
        L_Agr:
        v_cmp_ne_u32 s[12:13], v73, v5
        s_cmp_eq_u32 s12, 0
        s_cbranch_scc1 L_Agr_x
        s_add_u32 s8, s8, 1
        s_cmp_gt_u32 s8, SPIN_N
        s_cbranch_scc1 L_Agr_x
        s_mov_b32 s13, 0
        s_quadmask_b32 s67, s12
        s_mov_b64 exec, s[12:13]
        buffer_load_dwordx2 v[72:73], v2, s[44:47], s11 offen sc1
        s_mov_b64 exec, -1
        """)
        for i in range(8):
            a('s_bitcmp1_b32 s67, %d' % i)
            a('s_cbranch_scc0 L_Agk%d' % i)
            dload(i)
            a.label('L_Agk%d' % i)
        a("""
        s_waitcnt vmcnt(0)
        s_branch L_Agr
        L_Agr_x:
        """)
    a('s_barrier')
    a.vm = []
    loads(K0 - NR, K0 - NR + c[0]); p = K0 - NR + c[0]
    for i in range(8): a('v_xor_b32 v%d, %d, v6' % (40 + i, i << 4))
    for i in range(8):
        a('s_waitcnt vmcnt(%d)' % (7 - i + c[0]))
        dproc(i)
    a("""
    NODEP s_branch L_Agp_x
    v_cmp_ne_u32 s[12:13], v73, v5
    s_cmp_eq_u32 s12, 0
    s_cbranch_scc1 L_Agc
    L_Agp:
    s_mov_b32 s13, 0
    s_quadmask_b32 s67, s12
    s_mov_b64 exec, s[12:13]
    buffer_load_dwordx2 v[72:73], v2, s[44:47], s11 offen sc1
    s_mov_b64 exec, -1
    """)
    for i in range(8):
        a('s_bitcmp1_b32 s67, %d' % i)
        a('s_cbranch_scc0 L_Agl%d' % i)
        dload(i)
        a.label('L_Agl%d' % i)
    a("""
    s_add_u32 s8, s8, 1
    s_waitcnt vmcnt(0)
    v_cmp_ne_u32 s[12:13], v73, v5
    """)
    for i in range(8):
        a('s_bitcmp1_b32 s67, %d' % i)
        a('s_cbranch_scc0 L_Agw%d' % i)
        dproc(i)
        a.label('L_Agw%d' % i)
    a("""
    s_cmp_gt_u32 s8, SPIN_N
    s_cbranch_scc1 L_Agp_x
    s_cmp_lg_u32 s12, 0
    s_cbranch_scc1 L_Agp
    L_Agc:
    v_add3_u32 v4, v72, v80, v81
    v_add3_u32 v74, v82, v83, v84
    v_add3_u32 v4, v4, v85, v86
    v_add3_u32 v4, v4, v74, v87
    """)
    a.wave_red('v_add_u32', 4, 74)
    a("""
    v_readfirstlane_b32 s10, v4
    s_mov_b32 s12, -1
    s_cmp_lg_u32 s10, s4
    s_cbranch_scc1 L_Agp
    L_Agp_x:
    s_waitcnt lgkmcnt(0)
    """)
    a.stamp(3)
    a('s_barrier')
    a('s_setprio 0')
    loads(p, p + c[1]); p += c[1]
    a('''
    v_and_b32 v102, 3, v1
    v_lshlrev_b32 v102, 2, v102
    v_add_u32 v102, 0x%x, v102        ; YF read addr
    s_lshl_b32 s10, s3, 2
    s_add_u32 s10, s10, 0x%x
    v_mov_b32 v103, s10               ; own HF addr
    s_barrier                         ; B1
    ''' % (FL + 16, FL + 32))
    if p < 0: loads(p, 0); p = 0
    a('v_add_u32 v99, 1, v5')
    if 'D' in a.vm: a.vwait('D')
    a('ds_write_b32 v103, v99')
    K = o.get('hk', 22)
    loads(p, K); p = max(p, K)
    def yspin(i):
        a('''
        s_mov_b32 s11, 0
        L_Ay%d:
        ds_read_b32 v99, v102
        s_add_u32 s11, s11, 1
        s_waitcnt lgkmcnt(0)
        v_sub_u32 v99, v99, v5
        v_subrev_u32 v99, %d, v99
        v_cmp_lt_u32 vcc, 7, v99
        s_cmp_gt_u32 s11, LSPIN
        s_cbranch_scc1 L_Ay%dx
        s_cbranch_vccz L_Ay%dx
        s_sleep YSL
        s_branch L_Ay%d
        L_Ay%dx:
        ''' % (i, i, i, i, i, i))
    NS = 32 - o.get('dma3', 8)
    for n in range(NS):
        if n % 16 == 0:
            if n == 16: loads(p, NS); p = NS
            yspin(n // 16)
            if n == 16:
                a('s_lshl_b32 s9, s3, 14')
                for m in range(NS, 32):
                    cc, seg, aa = ops[m]
                    a('s_add_u32 m0, s9, 0x%x' % (65536 + aa * 4096 + seg * 1024))
                    a('s_add_u32 s10, s64, 0x%x' % (65536 + aa * 4096 + seg * 256))
                    a.v('buffer_load_dwordx4 v%d, s[40:43], s10 offen nt lds' % (3 if aa < 2 else 0), 'L%d' % m)
        cc, seg, aa = ops[n]
        if prog(n): a('v_add_u32 v99, %d, v5' % prog(n))
        if ('L%d' % n) in a.vm: a.vwait('L%d' % n)
        a('ds_write_b128 v%d, %s offset:%d' % (100 + cc, R(128 + 4 * n, 4), aa * 4096 + seg * 1024))
        if prog(n): a('ds_write_b32 v103, v99')
        if n >= o.get('wfirst', 8):
            for _ in range(o.get('lpw', 2)):
                if p < NS: loads(p, p + 1); p += 1
    if NS < 24:
        a('v_add_u32 v99, 6, v5')
        a.vwait('L23')
        a('ds_write_b32 v103, v99')
    a('s_waitcnt vmcnt(0)')
    a('s_waitcnt lgkmcnt(0)')
    a('s_barrier')
    if a.stamps:
        a('s_mul_i32 s78, s8, 100')
        a('s_add_u32 s78, s78, s70')
        a('s_addc_u32 s79, s71, 0')
        a('s_lshl_b32 s2, s2, 2')
        a('s_add_u32 s2, s2, s3')
        a('s_add_u32 s2, s2, 256')
        a('s_barrier')
        a('s_barrier')
        a('s_sleep 127')
        a.write_stamps(vb=104)
    a('s_endpgm')

def layernorm(a):
    for i in range(4):
        a('v_lshlrev_b32 v%d, 16, v%d' % (72 + 2 * i, 68 + i))
        a('v_and_b32 v%d, 0xffff0000, v%d' % (73 + 2 * i, 68 + i))
    a('v_readfirstlane_b32 s60, v72')
    for i in range(8): a('v_subrev_f32 v%d, s60, v%d' % (84 + i, 72 + i))
    a("""
    v_add_f32 v80, v84, v85
    v_mul_f32 v82, v84, v84
    v_add_f32 v81, v86, v87
    v_mul_f32 v83, v85, v85
    v_add_f32 v92, v88, v89
    v_fmac_f32 v82, v86, v86
    v_add_f32 v93, v90, v91
    v_fmac_f32 v83, v87, v87
    v_add_f32 v80, v80, v81
    v_fmac_f32 v82, v88, v88
    v_add_f32 v92, v92, v93
    v_fmac_f32 v83, v89, v89
    v_add_f32 v80, v80, v92
    v_fmac_f32 v82, v90, v90
    v_fmac_f32 v83, v91, v91
    v_add_f32 v82, v82, v83
    """)
    for m in ('quad_perm:[1,0,3,2]', 'quad_perm:[2,3,0,1]', 'row_half_mirror', 'row_mirror'):
        a('v_add_f32_dpp v80, v80, v80 %s row_mask:0xf bank_mask:0xf' % m)
        a('v_add_f32_dpp v82, v82, v82 %s row_mask:0xf bank_mask:0xf' % m)
    for w in (16, 32):
        a('v_mov_b32 v81, v80')
        a('v_mov_b32 v83, v82')
        a('v_permlane%d_swap_b32 v80, v81' % w)
        a('v_permlane%d_swap_b32 v82, v83' % w)
        a('v_add_f32 v80, v80, v81')
        a('v_add_f32 v82, v82, v83')
    a('v_mul_f32 v80, 0x%x, v80' % f2u(1 / 512))
    a('v_mul_f32 v82, 0x%x, v82' % f2u(1 / 512))
    a('v_fma_f32 v82, -v80, v80, v82')
    a('v_add_f32 v80, s60, v80')
    a('v_max_f32 v82, 0, v82')
    a('v_cvt_pk_bf16_f32 v80, v80, v82')
    a('v_and_b32 v82, 0xffff0000, v80')
    a('v_lshlrev_b32 v80, 16, v80')
    a('v_add_f32 v82, 0x%x, v82' % f2u(1e-5))
    for i in range(4):
        a('v_sub_f32 v%d, v%d, v80' % (72 + i, 72 + i))
    a.rnd_bf16(82)
    a('v_sqrt_f32 v82, v82')
    for i in range(4, 8):
        a('v_sub_f32 v%d, v%d, v80' % (72 + i, 72 + i))
    a.rnd_bf16(82)
    a('v_rcp_f32 v82, v82')
    for i in range(4):
        a('v_cvt_pk_bf16_f32 v%d, v%d, v%d' % (68 + i, 72 + 2 * i, 73 + 2 * i))
    for i in range(4):
        a('v_lshlrev_b32 v%d, 16, v%d' % (72 + 2 * i, 68 + i))
        a('v_and_b32 v%d, 0xffff0000, v%d' % (73 + 2 * i, 68 + i))
    for i in range(8):
        a('v_mul_f32 v%d, v%d, v82' % (72 + i, 72 + i))
    for i in range(4):
        a('v_cvt_pk_bf16_f32 v%d, v%d, v%d' % (68 + i, 72 + 2 * i, 73 + 2 * i))

def role_W(a, o):
    WOPOL = o.get('wopol', 'nt'); W1POL = o.get('w1pol', 'nt')
    a.label('L_W')
    a.vm = []; a.lg = []
    a('''
    s_and_b32 s8, s2, 7               ; x
    s_lshr_b32 s9, s2, 3
    s_sub_u32 s9, s9, 16              ; k
    s_lshr_b32 s10, s9, 2
    s_lshl_b32 s11, s8, 2
    s_add_u32 s10, s10, s11           ; h
    s_and_b32 s11, s9, 3              ; j
    s_lshl_b32 s13, s10, 8            ; h*256
    v_lshlrev_b32 v9, 4, v1           ; lane*16
    v_lshrrev_b32 v6, 4, v1           ; g / r
    v_and_b32 v7, 15, v1              ; pc / i
    v_lshlrev_b32 v8, 1, v6
    v_xor_b32 v8, v8, v7
    v_lshlrev_b32 v8, 4, v8           ; (pc ^ (r<<1))*16
    v_lshl_add_u32 v2, v6, 13, v8
    v_xor_b32 v3, 0x80, v2            ; voffB
    s_lshl_b32 s14, s11, 3
    s_add_u32 s14, s14, s3            ; 8j + w
    s_lshl_b32 s15, s14, 17
    s_add_u32 s15, s15, s13           ; (128j + 16w)*8192 + h*256
    s_lshl_b32 s14, s3, 12            ; LDS w*4096
    v_lshlrev_b32 v10, 2, v6
    v_xor_b32 v10, v10, v7
    v_lshlrev_b32 v10, 4, v10
    v_lshl_add_u32 v10, v6, 13, v10
    v_xor_b32 v11, 32, v10
    s_mov_b32 s42, 0x400000
    s_mov_b32 s43, 0x20000
    s_mov_b32 s50, 0x400000
    s_mov_b32 s51, 0x20000
    s_mov_b32 m0, s14
    s_waitcnt lgkmcnt(0)
    s_mov_b32 s40, s20
    s_mov_b32 s41, s21
    s_cmp_lg_u32 s3, 0
    s_cbranch_scc1 L_Wx
    global_load_dwordx4 v[68:71], v9, s[16:17]
    L_Wx:
    ''')
    for i in range(4):
        if i:
            a('s_add_u32 m0, s14, %d' % (i * 1024))
            a('s_add_u32 s60, s15, %d' % (i * 32768))
        a.v('buffer_load_dwordx4 v%d, s[40:43], %s offen nt lds' % (2 if i < 2 else 3, 's60' if i else 's15'), 'WQ')
    a('s_mov_b32 s48, s22')
    a('s_mov_b32 s49, s23')
    if o.get('ukbar', 1): a('s_barrier')
    for i in range(4):
        a('s_add_u32 m0, s14, %d' % (UKL + i * 1024))
        a('s_add_u32 s60, s15, %d' % (i * 32768))
        a.v('buffer_load_dwordx4 v%d, s[48:51], s60 offen nt lds' % (10 if i < 2 else 11), 'UK')
    common2(a)
    if o.get('diag', 0) == 2: a.stamp(5)
    a('v_mov_b32 v14, 0')
    if not o.get('lnfirst', 1):
        a('''
        s_lshl_b32 s12, s9, 3
        s_add_u32 s12, s12, s8            ; fb = 8k + x
        s_cmp_lt_u32 s9, 11
        s_cselect_b32 s12, s12, 1000
        v_mov_b32 v14, 0
        v_lshrrev_b32 v12, 2, v7          ; r' / a
        v_and_b32 v13, 1, v6
        v_lshl_add_u32 v13, v13, 2, v12
        v_lshlrev_b32 v13, 1, v13
        v_bfe_u32 v16, v1, 1, 1
        s_lshl_b32 s60, s3, 1
        v_add_u32 v16, s60, v16
        v_xor_b32 v16, v16, v13
        v_lshlrev_b32 v16, 4, v16
        v_lshl_add_u32 v13, v6, 3, v12
        v_lshl_add_u32 v16, v13, 8, v16
        v_and_b32 v13, 1, v1
        v_lshl_add_u32 v4, v13, 3, v16    ; tr-read base
        v_lshlrev_b32 v5, 4, v6
        v_add_u32 v5, 0x%x, v5            ; SM + g*16
        v_and_b32 v13, 3, v7
        v_and_b32 v16, 2, v12
        v_xor_b32 v16, v16, v6
        v_lshl_add_u32 v16, v13, 2, v16
        v_lshlrev_b32 v16, 4, v16
        v_lshl_add_u32 v16, v7, 8, v16
        s_add_u32 s60, s14, 0x%x
        v_add_u32 v64, s60, v16           ; uk frag read addrs
        v_xor_b32 v65, 64, v64
        v_xor_b32 v66, 0x80, v64
        v_xor_b32 v67, 0xc0, v64
        ''' % (SM, UKL))
    if o.get('qpw', 0):
        a('''
        s_lshl_b32 s60, s10, 12
        s_lshl_b32 s61, s3, 7
        s_add_u32 s60, s60, s61
        s_add_u32 s60, s60, 0x%x
        v_lshlrev_b32 v17, 10, v6
        ''' % QP)
        a.v('buffer_load_dword v254, v17, s[44:47], s60 offen sc1', 'PT')
    a('''
    s_cmp_lg_u32 s3, 0
    s_cbranch_scc1 L_Wln
    s_waitcnt vmcnt(%d)
    s_load_dword s4, s[36:37], 0
    ''' % len(a.vm))
    if o.get('diag', 0) == 2: a.stamp(6)
    layernorm(a)
    if o.get('diag', 0) == 2: a.stamp(7)
    a('''
    v_add_u32 v72, 0x%x, v9
    ds_write_b128 v72, v[68:71]
    s_waitcnt lgkmcnt(0)
    s_mov_b32 s60, 0
    s_branch L_Wn_c
    L_Wn:
    global_load_dword v15, v14, s[36:37] sc1
    s_add_u32 s60, s60, 1
    s_waitcnt vmcnt(0)
    v_readfirstlane_b32 s4, v15
    s_cmp_gt_u32 s60, SPIN_N
    s_cbranch_scc1 L_Wn_x
    L_Wn_c:
    s_cmp_eq_u32 s4, 0
    s_cbranch_scc1 L_Wn
    L_Wn_x:
    v_mov_b32 v72, 0x%x
    v_mov_b32 v15, s4
    ds_write_b32 v72, v15
    s_waitcnt lgkmcnt(0)
    L_Wln:
    ''' % (XN, NB))
    if o.get('lnfirst', 1):
        a('''
        s_lshl_b32 s12, s9, 3
        s_add_u32 s12, s12, s8            ; fb = 8k + x
        s_cmp_lt_u32 s9, 11
        s_cselect_b32 s12, s12, 1000
        v_mov_b32 v14, 0
        v_lshrrev_b32 v12, 2, v7          ; r' / a
        v_and_b32 v13, 1, v6
        v_lshl_add_u32 v13, v13, 2, v12
        v_lshlrev_b32 v13, 1, v13
        v_bfe_u32 v16, v1, 1, 1
        s_lshl_b32 s60, s3, 1
        v_add_u32 v16, s60, v16
        v_xor_b32 v16, v16, v13
        v_lshlrev_b32 v16, 4, v16
        v_lshl_add_u32 v13, v6, 3, v12
        v_lshl_add_u32 v16, v13, 8, v16
        v_and_b32 v13, 1, v1
        v_lshl_add_u32 v4, v13, 3, v16    ; tr-read base
        v_lshlrev_b32 v5, 4, v6
        v_add_u32 v5, 0x%x, v5            ; SM + g*16
        v_and_b32 v13, 3, v7
        v_and_b32 v16, 2, v12
        v_xor_b32 v16, v16, v6
        v_lshl_add_u32 v16, v13, 2, v16
        v_lshlrev_b32 v16, 4, v16
        v_lshl_add_u32 v16, v7, 8, v16
        s_add_u32 s60, s14, 0x%x
        v_add_u32 v64, s60, v16           ; uk frag read addrs
        v_xor_b32 v65, 64, v64
        v_xor_b32 v66, 0x80, v64
        v_xor_b32 v67, 0xc0, v64
        ''' % (SM, UKL))
    if o.get('diag', 0) == 2: a.stamp(8)
    a.vwait('WQ')
    if o.get('diag', 0) == 2: a.stamp(9)
    a('s_barrier')
    a.stamp(1)
    if o.get('diag', 0) == 2: a.stamps_hold = True
    a('s_lshl_b32 s60, s11, 8')
    a('v_add_u32 v13, s60, v5')
    for ks in range(4):
        a.d('ds_read_b128 %s, v13 offset:%d' % (R(52 + 4 * ks - 16 + 16, 4), ks * 64) if False else 'ds_read_b128 %s, v13 offset:%d' % (R(16 + 4 * ks, 4), ks * 64), 'a%d' % ks)
        for rdi in range(2):
            a.d('ds_read_b64_tr_b16 %s, v4 offset:%d' % (R(36 + 4 * ks + 2 * rdi, 2), ks * 8192 + rdi * 1024), 'a%d' % ks)
    a('v_mov_b32 v12, 0x%x' % NB)
    a.d('ds_read_b32 v53, v12', 'n')
    a('''
    s_lshl_b32 s60, s10, 12
    s_lshl_b32 s61, s3, 7
    s_add_u32 s60, s60, s61
    s_add_u32 s60, s60, 0x%x          ; QP + h*4096 + w*128
    s_lshl_b32 s61, s11, 10
    s_add_u32 s61, s61, s60           ; + j*1024
    v_lshlrev_b32 v12, 3, v7          ; d*8
    v_lshl_add_u32 v13, v6, 10, v12   ; jj*1024 + d*8
    v_cmp_ne_u32 s[64:65], s11, v6    ; lanes of the other three
    ''' % QP)
    for ks in range(4):
        a.dwait('a%d' % ks)
        a('v_mfma_f32_16x16x32_bf16 v[32:35], %s, %s, %s' % (R(16 + 4 * ks, 4), R(36 + 4 * ks, 4), 'v[32:35]' if ks else '0'))
    a.dall()
    a('''
    s_lshl_b32 s62, s3, 5
    s_add_u32 s62, s62, 0x%x
    v_lshl_add_u32 v15, v7, 1, s62    ; QB + (16w + d)*2
    v_mov_b32 v55, v53
    v_mov_b32 v52, v32
    v_mov_b32 v54, v32
    s_mov_b64 exec, 0xffff
    buffer_store_dwordx2 v[52:53], v12, s[44:47], s61 offen sc1
    ''' % QB)
    def eflag():
        a('''
        s_or_b32 s5, s3, s11
        s_cmp_lg_u32 s5, 0
        s_cbranch_scc1 L_Wef
        QR0 s_lshl_b32 s5, s10, 7
        QR0 s_add_u32 s5, s5, 0x10000
        QR0 s_mov_b64 exec, 0xffff
        QR0 v_mov_b32 v52, v53
        QR0 buffer_store_dwordx2 v[52:53], v12, s[44:47], s5 offen sc1
        QR1 s_lshl_b32 s5, s10, 10
        QR1 s_add_u32 s5, s5, 0x10000
        QR1 s_mov_b64 exec, -1
        QR1 v_mov_b32 v60, v53
        QR1 v_mov_b32 v61, v53
        QR1 v_mov_b32 v62, v53
        QR1 v_mov_b32 v63, v53
        QR1 buffer_store_dwordx4 v[60:63], v9, s[44:47], s5 offen sc1
        L_Wef:
        ''')
    a('''
    s_mov_b64 exec, -1
    s_lshl_b32 s68, s10, 2
    s_add_u32 s68, s68, s11           ; mi = 4h + j
    s_lshl_b32 s69, s68, 15
    s_lshl_b32 s61, s3, 12
    s_add_u32 s69, s69, s61
    s_lshr_b32 s61, s10, 4
    s_lshl_b32 s61, s61, 12
    s_add_u32 s69, s69, s61
    s_add_u32 s69, s69, 0x%x          ; s69 = inbox base of this wave
    s_lshl_b32 s58, s68, 11
    s_lshl_b32 s61, s3, 8
    s_add_u32 s58, s58, s61
    s_add_u32 s58, s58, 0x%x          ; s58 = SP row of this wave
    s_lshl_b32 s66, s12, 11
    s_add_u32 s66, s66, s61
    s_add_u32 s66, s66, 0x%x          ; s66 = FP row of this wave
    s_cmp_lt_u32 s12, 86
    s_cselect_b32 s66, s66, s58
    s_lshl_b32 s67, s3, 6
    s_add_u32 s67, s67, s11
    s_lshl_b32 s67, s67, 9
    s_lshl_b32 s61, s10, 4
    s_add_u32 s67, s67, s61
    s_add_u32 s67, s67, 0x%x          ; s67 = MLC + (64w + j)*512 + h*16
    v_lshlrev_b32 v11, 2, v1
    v_mov_b32 v56, -1
    ''' % (OP, SP, FP, ML))
    a.v('buffer_store_dword v56, v11, s[44:47], s58 offen sc1', 'PT')
    a.v('buffer_store_dword v56, v11, s[44:47], s66 offen sc1', 'PT')
    EF = o.get('ef', 1)
    if EF == 0: eflag()
    if o.get('qpack', 1): a('s_waitcnt vmcnt(0)')
    if EF == 3: eflag()
    a.stamp(2)
    a('''
    s_mov_b32 s62, 0
    L_Wq:
    s_mov_b64 exec, s[64:65]
    buffer_load_dwordx2 v[54:55], v13, s[44:47], s60 offen sc1
    s_add_u32 s62, s62, 1
    s_waitcnt vmcnt(0)
    v_cmp_ne_u32 s[64:65], v55, v53
    s_cmp_gt_u32 s62, SPIN_N
    s_cbranch_scc1 L_Wq_x
    s_cmp_lg_u64 s[64:65], 0
    s_cbranch_scc1 L_Wq
    L_Wq_x:
    ''')
    if EF == 1: eflag()
    a('s_mov_b64 exec, -1')
    a.vm = []
    for ks in range(4):
        a.d('ds_read_b128 %s, v%d' % (R(16 + 4 * ks, 4), 64 + ks), 'uk')
    a.swap_red('v_add_f32', 54, 55, 16)
    a.swap_red('v_add_f32', 54, 55, 32)
    a('''
    v_cvt_pk_bf16_f32 v54, v54, v54
    ds_write_b16 v15, v54
    ''')
    a.dall()
    a('s_barrier')
    a.stamp(3)
    for ks in range(4):
        a.d('ds_read_b128 %s, v5 offset:%d' % (R(36 + 4 * ks, 4), QB - SM + ks * 64), 'a%d' % ks)
    a('''
    s_lshl_b32 s14, s3, 5
    s_add_u32 s14, s14, 0x%x
    v_lshl_add_u32 v13, v6, 3, s14    ; QO + w*32 + q*8
    v_lshlrev_b32 v12, 4, v7
    v_add_u32 v15, 0x%x, v12          ; QO + (l%%16)*16
    s_lshl_b32 s14, s68, 8
    s_lshl_b32 s15, s68, QCSH
    s_add_u32 s15, s15, 0x%x
    v_add_u32 v56, s14, v12
    v_add_u32 v57, s15, v12
    v_cndmask_b32 v56, v56, v57, s[52:53]
    ''' % (QO, QO, QC))
    for ks in range(4):
        a.dwait('a%d' % ks)
        a('v_mfma_f32_16x16x32_bf16 v[32:35], %s, %s, %s' % (R(16 + 4 * ks, 4), R(36 + 4 * ks, 4), 'v[32:35]' if ks else '0'))
    sc = f2u(128 ** -0.5 * math.log2(math.e))
    a('''
    v_mul_f32 v32, 0x%x, v32
    v_mul_f32 v33, 0x%x, v33
    v_mul_f32 v34, 0x%x, v34
    v_mul_f32 v35, 0x%x, v35
    v_cvt_pk_bf16_f32 v32, v32, v33
    v_cvt_pk_bf16_f32 v33, v34, v35
    ds_write_b64 v13, v[32:33]
    s_waitcnt lgkmcnt(0)
    s_barrier
    s_cmp_lg_u32 s3, 0
    s_cbranch_scc1 L_Wpub
    ds_read_b128 v[32:35], v15
    s_waitcnt lgkmcnt(0)
    v_add3_u32 v36, v32, v33, v34
    v_add_u32 v36, v36, v35
    ''' % (sc, sc, sc, sc))
    a.wave_red('v_add_u32', 36, 37, rows_only=True)
    a('''
    v_sub_u32 v36, v53, v36
    v_cndmask_b32 v32, v32, v36, s[52:53]
    v_cndmask_b32 v33, v33, v53, s[52:53]
    s_mov_b64 exec, QCEX
    buffer_store_dwordx4 v[32:35], v56, s[44:47], 0 offen sc1
    s_mov_b64 exec, -1
    L_Wpub:
    s_barrier
    ''')
    a.stamp(4)
    WW = o.get('wwin', 3)
    W1L, W2L, WOL = 0x8000, 0xC000, 0x10000
    a.srd(40, WUV, 0x400000)
    a.srd(48, WO, 0x400000)
    a("""
    s_mov_b32 s16, s30
    s_mov_b32 s17, s31
    s_mov_b32 s18, %d
    s_mov_b32 s19, 0x20000
    s_mov_b32 s20, s32
    s_mov_b32 s21, s33
    s_mov_b32 s22, %d
    s_mov_b32 s23, 0x20000
    v_readfirstlane_b32 s4, v53
    v_lshrrev_b32 v12, 3, v1          ; r8
    v_and_b32 v13, 7, v1              ; c8
    v_lshlrev_b32 v70, 4, v13
    v_lshl_add_u32 v70, v12, 10, v70  ; r8*1024 + c8*16   (w2 voff)
    v_bfe_u32 v15, v1, 4, 1
    v_lshlrev_b32 v15, 5, v15
    v_xor_b32 v68, v70, v15           ; voffC
    v_xor_b32 v69, 64, v68            ; voffD
    v_mul_u32_u24 v10, 2752, v6
    s_and_b32 s60, s3, 1
    s_lshl_b32 s60, s60, 7
    v_xor_b32 v13, s60, v8
    v_add_u32 v10, v10, v13           ; w1 voff
    s_lshl_b32 s24, s8, 3
    s_add_u32 s24, s24, s3
    s_mul_i32 s24, s24, %d
    s_lshl_b32 s60, s9, 8
    s_add_u32 s24, s24, s60           ; w1 source
    s_lshl_b32 s25, s12, 14
    s_lshl_b32 s60, s3, 7
    s_add_u32 s25, s25, s60           ; w2 source (out of range when not an FFN workgroup)
    s_cmp_lt_u32 s12, 88
    s_cselect_b32 s24, s24, 0x1000000
    s_lshl_b32 s26, s3, 11            ; LDS w*2048
    v_lshl_add_u32 v2, v6, 17, v8
    v_xor_b32 v3, 0x80, v2
    s_lshl_b32 s27, s11, 5
    s_add_u32 s27, s27, s3
    s_lshl_b32 s27, s27, 14
    s_add_u32 s27, s27, s13           ; uv source
    s_lshl_b32 s28, s3, 12            ; LDS w*4096
    s_lshl_b32 s14, s10, 17
    s_lshl_b32 s15, s3, 7
    s_add_u32 s14, s14, s15           ; wo source
    s_lshl_b32 s15, s3, 13
    s_add_u32 s15, s15, 0x%x          ; wo LDS
    v_lshrrev_b32 v71, 2, v7
    v_lshl_add_u32 v71, v6, 3, v71
    v_lshlrev_b32 v71, 7, v71
    v_and_b32 v13, 3, v1
    v_lshl_add_u32 v71, v13, 3, v71
    v_bfe_u32 v13, v1, 3, 2
    v_lshl_add_u32 v71, v13, 5, v71
    v_add_u32 v71, s15, v71
    """ % (512 * 2752, 1376 * 1024, 8 * 2752, WOL))
    if o.get('latew', 0):
        a('''
        s_memrealtime s[60:61]
        s_waitcnt lgkmcnt(0)
        s_sub_u32 s60, s60, s4
        s_cmp_gt_i32 s60, %d
        s_cselect_b32 s29, 1, 0
        ''' % o.get('latet', 370))
    a.vm = []
    WOF = 72
    cnt = [0]; curw = [0]
    def op(kind, n):
        w = curw[0] or (WW if cnt[0] < o.get('wsw', 14) else o.get('wwinb', 4))
        LW_ = o.get('latew', 0)
        if LW_ > w and cnt[0] >= w:
            a.vwait_n(LW_ - 1)
            a('s_cmp_lg_u32 s29, 0')
            a('s_cbranch_scc1 L_Wlw%d' % cnt[0])
            a('s_waitcnt vmcnt(%d)' % (w - 1))
            a.label('L_Wlw%d' % cnt[0])
        else:
            a.vwait_n(w - 1)
        cnt[0] += 1
        if kind == 'w1':
            a('s_add_u32 m0, s26, 0x%x' % (W1L + n * 1024)); a('s_add_u32 s60, s24, %d' % (n * 4 * 2752))
            a.v('buffer_load_dwordx4 v10, s[16:19], s60 offen nt lds', 'F')
        elif kind == 'w2':
            a('s_add_u32 m0, s26, 0x%x' % (W2L + n * 1024)); a('s_add_u32 s60, s25, %d' % (n * 8192))
            a.v('buffer_load_dwordx4 v70, s[20:23], s60 offen nt lds', 'F')
        elif kind == 'uv':
            a('s_add_u32 m0, s28, %d' % (n * 1024)); a('s_add_u32 s60, s27, %d' % ((256 * (n & 1) + (n >> 1)) * 8192))
            a.v('buffer_load_dwordx4 v%d, s[40:43], s60 offen nt lds' % (2 if n < 2 else 3), 'U')
        else:
            a('s_add_u32 m0, s15, %d' % ((n % 8) * 1024)); a('s_add_u32 s60, s14, %d' % (n * 8192))
            a.v('buffer_load_dwordx4 v%d, s[48:51], s60 offen %s lds' % (68 if n % 2 == 0 else 69, WOPOL), 'O%d' % (n // 4))
    def wo_read(ks):
        if ('O%d' % ks) in a.vm: a.vwait('O%d' % ks)
        for mt in range(4):
            a('v_xor_b32 v13, 0x%x, v71' % (mt * 32))
            for rdi in range(2):
                a.d('ds_read_b64_tr_b16 %s, v13 offset:%d' % (R(WOF + (mt * 4 + ks) * 4 + 2 * rdi, 2), (ks % 2) * 4096 + rdi * 512), 'wo')
        a.dall()
    def ffn1():
        if 'F' in a.vm: a.vwait('F')
        a('s_barrier')
        a.stamp(10)
        a("""
        s_cmp_ge_u32 s12, 88
        s_cbranch_scc1 L_Wnf2
        s_lshl_b32 s60, s8, 7
        v_add_u32 v13, s60, v5            ; xn + 64x*2 + g*16
        v_add_u32 v15, 0x8000, v4
        """)
        for ks in range(2):
            a('ds_read_b128 %s, v13 offset:%d' % (R(52 + 4 * ks, 4), ks * 64))
            for rdi in range(2):
                a('ds_read_b64_tr_b16 %s, v15 offset:%d' % (R(36 + 4 * ks + 2 * rdi, 2), ks * 8192 + rdi * 1024))
        a("""
        v_lshrrev_b32 v12, 2, v1
        v_and_b32 v13, 3, v1
        v_lshlrev_b32 v13, 3, v13
        v_lshl_add_u32 v12, v12, 7, v13
        s_lshl_b32 s60, s3, 11
        s_add_u32 s60, s60, 0x%x
        v_add_u32 v12, s60, v12
        s_waitcnt lgkmcnt(0)
        v_mfma_f32_16x16x32_bf16 v[32:35], v[52:55], v[36:39], 0
        v_mfma_f32_16x16x32_bf16 v[32:35], v[56:59], v[40:43], v[32:35]
        """ % W2L)
        for mt in range(4):
            a('ds_read_b64_tr_b16 %s, v12 offset:%d' % (R(44 + 2 * mt, 2), mt * 32))
        a("""
        s_lshl_b32 s60, s12, 10
        s_lshl_b32 s61, s3, 7
        s_add_u32 s60, s60, s61
        s_add_u32 s60, s60, 0x%x          ; HP + (8k+x)*1024 + w*128
        v_lshlrev_b32 v12, 3, v7
        v_mov_b32 v33, s4
        s_mov_b64 exec, 0xffff
        buffer_store_dwordx2 v[32:33], v12, s[44:47], s60 offen sc1
        s_mov_b64 exec, -1
        L_Wnf2:
        s_waitcnt lgkmcnt(0)
        """ % HP)
        a.lg = []
    def ffn2():
        a('''
        s_cmp_ge_u32 s12, 86
        s_cbranch_scc1 L_Wnf3
        s_lshl_b32 s60, s9, 13
        s_lshl_b32 s61, s8, 7
        s_add_u32 s60, s60, s61
        s_add_u32 s60, s60, 0x%x          ; HP + k*8192 + x*128
        v_and_b32 v12, 7, v1
        v_lshlrev_b32 v12, 10, v12
        v_lshl_add_u32 v12, v6, 5, v12    ; producer*1024 + g*32
        s_mov_b32 s61, 0
        L_Wh:
        buffer_load_dwordx4 v[52:55], v12, s[44:47], s60 offen sc1
        buffer_load_dwordx4 v[56:59], v12, s[44:47], s60 offen offset:16 sc1
        s_add_u32 s61, s61, 1
        s_waitcnt vmcnt(0)
        v_xor_b32 v13, v53, v55
        v_xor_b32 v14, v57, v59
        v_xor_b32 v15, s4, v53
        v_or3_b32 v13, v13, v14, v15
        v_xor_b32 v14, v53, v57
        v_or_b32 v13, v13, v14
        v_cmp_ne_u32 vcc, 0, v13
        s_cmp_gt_u32 s61, SPIN_N
        s_cbranch_scc1 L_Wh_x
        s_cbranch_vccnz L_Wh
        L_Wh_x:
        ''' % HP)
        for m in ('quad_perm:[1,0,3,2]', 'quad_perm:[2,3,0,1]', 'row_half_mirror'):
            for r in range(4):
                a('v_add_f32_dpp v%d, v%d, v%d %s row_mask:0xf bank_mask:0xf' % (52 + 2 * r, 52 + 2 * r, 52 + 2 * r, m))
        for r in range(4):
            a.rnd_bf16(52 + 2 * r)
            a.silu(52 + 2 * r, 53)
        a('v_cvt_pk_bf16_f32 v32, v52, v54')
        a('v_cvt_pk_bf16_f32 v33, v56, v58')
        for mt in range(4):
            a('v_mfma_f32_16x16x16_bf16 %s, v[32:33], %s, 0' % (R(52 + 4 * mt, 4), R(44 + 2 * mt, 2)))
        a('''
        v_cndmask_b32 v52, v52, v56, s[52:53]
        v_cndmask_b32 v52, v52, v60, s[54:55]
        v_cndmask_b32 v52, v52, v64, s[56:57]
        buffer_store_dword v52, v11, s[44:47], s66 offen sc1
        L_Wnf3:
        ''')
        a('s_waitcnt vmcnt(0)')
        a.vm = []
    seqs = {
        0: 'a0 o0 a1 o1 b0 o2 b1 o3 o4 o5 u0 F o6 o7 R0 o8 o9 u1 o10 o11 R1 o12 o13 u2 o14 o15 u3 R2 G R3',
        1: 'a0 a1 b0 b1 o0 o1 o2 o3 F o4 o5 o6 o7 R0 o8 o9 u0 o10 o11 u1 R1 o12 o13 u2 o14 o15 u3 R2 G R3',
        7: 'w3 o0 o1 o2 o3 o4 o5 a0 w8 a1 b0 b1 u0 u1 u2 u3 w3 o6 o7 F R0 o8 o9 o10 o11 R1 o12 o13 o14 o15 R2 G R3',
        8: 'w3 o0 o1 o2 a0 w8 a1 b0 b1 u0 u1 u2 u3 w3 o3 o4 o5 F o6 o7 R0 o8 o9 o10 o11 R1 o12 o13 o14 o15 R2 G R3',
        9: 'w2 o0 o1 o2 o3 a0 w5 a1 b0 b1 u0 u1 u2 u3 w3 o4 o5 F o6 o7 R0 o8 o9 o10 o11 R1 o12 o13 o14 o15 R2 G R3',
        10: 'w3 o0 o1 o2 o3 o4 o5 o6 o7 R0 a0 w8 a1 b0 b1 u0 u1 u2 u3 w3 o8 o9 F o10 o11 R1 o12 o13 o14 o15 R2 G R3',
        11: 'w4 o0 o1 o2 o3 o4 o5 o6 o7 R0 o8 o9 o10 o11 R1 a0 a1 b0 b1 w3 o12 o13 o14 F o15 u0 u1 u2 u3 R2 G R3',
        3: 'o0 o1 o2 o3 a0 o4 a1 o5 b0 o6 b1 o7 R0 o8 o9 u0 F o10 o11 u1 R1 o12 o13 u2 o14 o15 u3 R2 R3',
        2: 'o0 o1 o2 o3 a0 o4 a1 o5 b0 o6 b1 o7 R0 o8 o9 u0 F o10 o11 u1 R1 o12 o13 u2 o14 o15 u3 R2 G R3',
    }
    for t in seqs[o.get('wseq', 2)].split():
        if t[0] == 'w': curw[0] = int(t[1:])
        elif t == 'F': ffn1()
        elif t == 'G': ffn2()
        elif t[0] == 'R': wo_read(int(t[1:]))
        else: op({'a': 'w1', 'b': 'w2', 'u': 'uv', 'o': 'wo'}[t[0]], int(t[1:]))
    for p in range(4):
        a('v_cmp_eq_u32 vcc, %d, v7' % (2 * p))
        a('v_mov_b32 v%d, 0' % (56 + p))
        a('v_mov_b32 v64, 0xffff')
        a('v_cndmask_b32 v%d, v%d, v64, vcc' % (56 + p, 56 + p))
        a('v_cmp_eq_u32 vcc, %d, v7' % (2 * p + 1))
        a('v_mov_b32 v64, 0xffff0000')
        a('v_cndmask_b32 v%d, v%d, v64, vcc' % (56 + p, 56 + p))
        for i in range(4): a('v_and_b32 v%d, 0x3f803f80, v%d' % (136 + 4 * i + p, 56 + p))
    a("""
    v_lshrrev_b32 v64, 1, v6
    v_mul_u32_u24 v64, 0x%x, v64
    v_lshl_add_u32 v64, v7, 4, v64
    v_and_b32 v65, 1, v6
    v_lshl_add_u32 v64, v65, 3, v64
    s_mul_i32 s60, s3, 288
    s_add_u32 s60, s60, 0x%x
    v_add_u32 v64, s60, v64
    v_and_b32 v65, 7, v1
    v_mul_u32_u24 v65, 288, v65
    v_add_u32 v65, v65, v5
    s_lshl_b32 s60, s3, 5
    s_add_u32 s60, s60, 0x%x
    v_lshl_add_u32 v66, v7, 1, s60
    """ % (8 * 288, ROWS, CB))
    a('s_waitcnt vmcnt(0)')
    a('s_barrier')
    a.stamp(5)
    for ks in range(4):
        for rdi in range(2):
            a.d('ds_read_b64_tr_b16 %s, v4 offset:%d' % (R(16 + 4 * ks + 2 * rdi, 2), ks * 8192 + rdi * 1024), 'uv')
    a.dall()
    a.stamp(6)
    a('''
    v_lshlrev_b32 v14, 11, v7
    s_lshl_b32 s60, s3, 3
    s_add_u32 s60, s60, 0x%x
    v_mov_b32 v70, s60                ; LW + w*8
    v_and_b32 v71, 7, v1
    v_lshlrev_b32 v71, 3, v71
    v_add_u32 v71, 0x%x, v71          ; LW + (l%%8)*8
    v_and_b32 v12, 3, v1
    v_cmp_eq_u32 s[64:65], v12, v6
    s_mov_b32 s60, 0
    s_mov_b64 s[62:63], -1
    L_Wg1:
    s_sleep ML_SLEEP
    s_mov_b64 exec, s[62:63]
    buffer_load_dwordx4 v[52:55], v14, s[44:47], s67 offen sc1
    s_add_u32 s60, s60, 1
    s_waitcnt vmcnt(0)
    v_cmp_ne_u32 s[62:63], s4, v55
    s_cmp_gt_u32 s60, SPIN_N
    s_cbranch_scc1 L_Wg
    s_cmp_lg_u64 s[62:63], 0
    s_cbranch_scc1 L_Wg1
    ''' % (LW, LW))
    a.label('L_Wg')
    a('s_mov_b64 exec, -1')
    for i in range(4):
        a('buffer_load_dwordx4 %s, v9, s[44:47], s69 offen offset:%d sc1' % (R(36 + 4 * i, 4), i * 1024))
    a("""
    s_add_u32 s60, s60, 1
    v_subrev_u32 v15, s4, v54
    v_add3_u32 v15, v15, v52, v53
    v_cndmask_b32 v15, 0, v15, s[64:65]
    v_cmp_neq_f32 vcc, 0, v52
    s_cbranch_vccnz L_Wgen
    """)
    a.label('L_Wj')
    a.wave_red('v_add_f32', 53, 12, rows_only=True)
    a('ds_write_b64 v70, v[52:53]')
    for i in range(4):
        a('s_waitcnt vmcnt(%d)' % (3 - i))
        a('v_mfma_f32_16x16x32_bf16 v[32:35], %s, %s, %s' % (R(136 + 4 * i, 4), R(36 + 4 * i, 4), 'v[32:35]' if i else '0'))
        a('v_add3_u32 v15, v15, v%d, v%d' % (36 + 4 * i, 37 + 4 * i))
        a('v_add3_u32 v15, v15, v%d, v%d' % (38 + 4 * i, 39 + 4 * i))
    a("""
    v_add_u32_dpp v15, v15, v15 quad_perm:[1,0,3,2] row_mask:0xf bank_mask:0xf
    v_add_u32_dpp v15, v15, v15 quad_perm:[2,3,0,1] row_mask:0xf bank_mask:0xf
    v_cvt_pk_bf16_f32 v32, v32, v33
    v_cvt_pk_bf16_f32 v33, v34, v35
    v_add_u32_dpp v15, v15, v15 row_half_mirror row_mask:0xf bank_mask:0xf
    ds_write_b64 v64, v[32:33]
    v_add_u32_dpp v15, v15, v15 row_mirror row_mask:0xf bank_mask:0xf
    v_cmp_ne_u32 vcc, 0, v15
    s_cbranch_vccnz L_Wretry
    L_Wg_x:
    """)
    a.stamp(7)
    if a.stamps:
        a('s_mul_i32 s92, s60, 100')
        a('s_add_u32 s92, s92, s70')
        a('s_addc_u32 s93, s71, 0')
    a("""
    s_waitcnt lgkmcnt(0)
    s_barrier
    """)
    a.stamp(8)
    for ks in range(4):
        a.d('ds_read_b128 %s, v65 offset:%d' % (R(36 + 4 * ks, 4), ROWS - SM + ks * 64), 'a%d' % ks)
    a.d('ds_read_b64 v[52:53], v71', 'lw')
    for ks in range(4):
        a.dwait('a%d' % ks)
        a('v_mfma_f32_16x16x32_bf16 v[32:35], %s, %s, %s' % (R(36 + 4 * ks, 4), R(16 + 4 * ks, 4), 'v[32:35]' if ks else '0'))
    a.dall()
    a('''
    v_cmp_neq_f32 vcc, 0, v52
    s_cbranch_vccnz L_Wgen2
    L_Wj2:
    v_add_f32_dpp v53, v53, v53 quad_perm:[1,0,3,2] row_mask:0xf bank_mask:0xf
    s_nop 1
    v_add_f32_dpp v53, v53, v53 quad_perm:[2,3,0,1] row_mask:0xf bank_mask:0xf
    s_nop 1
    v_add_f32_dpp v53, v53, v53 row_half_mirror row_mask:0xf bank_mask:0xf
    v_add_f32 v32, v32, v33
    v_add_f32 v34, v34, v35
    v_rcp_f32 v67, v53
    v_add_f32 v32, v32, v34
    ''')
    a.swap_red('v_add_f32', 32, 33, 16)
    a('''
    v_mul_f32 v32, v32, v67
    v_cvt_pk_bf16_f32 v32, v32, v32
    ds_write_b16 v66, v32
    s_waitcnt lgkmcnt(0)
    s_barrier
    ''')
    for ks in range(4):
        a.d('ds_read_b128 %s, v5 offset:%d' % (R(36 + 4 * ks, 4), CB - SM + ks * 64), 'a%d' % ks)
    for ks in range(4):
        a.dwait('a%d' % ks)
        for mt in range(4):
            a('v_mfma_f32_16x16x32_bf16 %s, %s, %s, %s' % (R(16 + 4 * mt, 4), R(36 + 4 * ks, 4), R(WOF + (mt * 4 + ks) * 4, 4), R(16 + 4 * mt, 4) if ks else '0'))
    a('''
    v_cndmask_b32 v16, v16, v20, s[52:53]
    v_cndmask_b32 v16, v16, v24, s[54:55]
    v_cndmask_b32 v16, v16, v28, s[56:57]
    buffer_store_dword v16, v11, s[44:47], s58 offen sc1
    ''')
    a.stamp(9)
    if a.stamps:
        a('s_cmp_lg_u32 s3, %d' % o.get('stw', 0))
        a('s_cbranch_scc1 L_end')
        a.write_stamps()
    a('s_endpgm')

def role_Wslow(a, o):
    a.aslow()
    a.label('L_Wgen')
    a('v_mov_b32 v12, v52')
    a.wave_red('v_max_f32', 12, 13, rows_only=True)
    a('''
    v_sub_f32 v54, v52, v12
    v_exp_f32 v54, v54
    v_mov_b32 v52, v12                ; Mw
    v_and_b32 v54, 0xffff0000, v54
    v_mul_f32 v53, v53, v54
    v_lshrrev_b32 v55, 16, v54
    v_or_b32 v54, v54, v55
    v_lshlrev_b32 v13, 2, v6
    ''')
    for i in range(4):
        a('ds_bpermute_b32 v12, v13, v54 offset:%d' % (16 * i))
        a('s_waitcnt lgkmcnt(0)')
        for p in range(4):
            a('v_and_b32 v%d, v12, v%d' % (136 + 4 * i + p, 56 + p))
    a('s_nop 1')
    a('s_branch L_Wj')
    a('''
    L_Wretry:
    s_cmp_gt_u32 s60, SPIN_N
    s_cbranch_scc1 L_Wg_x
    s_mov_b64 s[62:63], -1
    ''')
    for p in range(4):
        for i in range(4): a('v_and_b32 v%d, 0x3f803f80, v%d' % (136 + 4 * i + p, 56 + p))
    a('s_branch L_Wg1')
    a.label('L_Wgen2')
    a('''
    v_mov_b32 v12, v52
    v_max_f32_dpp v12, v12, v12 quad_perm:[1,0,3,2] row_mask:0xf bank_mask:0xf
    v_max_f32_dpp v12, v12, v12 quad_perm:[2,3,0,1] row_mask:0xf bank_mask:0xf
    v_max_f32_dpp v12, v12, v12 row_half_mirror row_mask:0xf bank_mask:0xf
    v_sub_f32 v54, v52, v12
    v_exp_f32 v54, v54
    v_and_b32 v13, 1, v6
    v_lshlrev_b32 v13, 4, v13
    v_mul_f32 v53, v53, v54
    ''')
    for r in range(4):
        a('ds_bpermute_b32 v12, v13, v54 offset:%d' % (4 * r))
        a('s_waitcnt lgkmcnt(0)')
        a('v_mul_f32 v%d, v%d, v12' % (32 + r, 32 + r))
    a('s_nop 1')
    a('s_branch L_Wj2')

def gen(stamps=False, o=None):
    o = o or {}
    a = G(stamps)
    prologue(a, o)
    role_W(a, o)
    role_A(a, o)
    role_final(a, o)
    role_As(a, o)
    role_Wslow(a, o)
    a.label('L_end')
    txt = a.text()
    for k, v in (('QT_SLEEP', o.get('qtsleep', 1)), ('QT_THR', o.get('qtthr', 2)), ('REP_MASK', o.get('repmask', '0x00010001' if o.get('ef', 1) == 2 else '0xff')), ('LSPIN', 200000), ('SPIN_N', SPIN),
                 ('ML_SLEEP', o.get('mlsleep', 1)), ('FIN_SLEEP', o.get('finsleep', 0)), ('UKGATE', o.get('ukgate', 3))):
        txt = txt.replace(k, str(v))
    txt = txt.replace('W1A ', '; ' if o.get('now1', 0) else '')
    txt = txt.replace('PTA ', '' if o.get('pre', 0) else '; ').replace('ML_OFF', '0x%x' % ML)
    qs = o.get('qcsh', 5)
    txt = txt.replace('QCSH+5', str(qs + 5)).replace('QCSH', str(qs)).replace('QCEX', {4: '0x1ffff', 5: '0x3ffff', 6: '0xfffff', 7: '0xffffff'}[qs]).replace('REP_N', str(o.get('repn', 1)))
    txt = txt.replace('NODEP ', '' if o.get('nodep', 0) else '; ')
    if o.get('nodep', 0): txt = txt.replace('s_or_b32 s14, vcc_lo, vcc_hi', 's_mov_b32 s14, 0')
    if o.get('now1', 0): txt = txt.replace('buffer_load_dwordx4 v14, s[40:43], s14 offen', '; ').replace('buffer_load_dwordx4 v14, s[40:43], s60 offen', '; ')
    txt = txt.replace('OUTPT ', '' if o.get('outpt', 0) else '; ')
    txt = txt.replace('REPBASE', 's11' if o.get('ef', 1) == 2 else 's68')
    txt = txt.replace('AMIX ', '' if o.get('amix', 0) else '; ')
    rm = o.get('remap', 0)
    if rm:
        sh = rm + 2
        code = '''    s_cbranch_scc1 L_end
    s_bfe_u32 s8, s2, 0x%x
    s_lshl_b32 s8, s8, 7
    s_and_b32 s9, s2, 0x%x
    s_lshr_b32 s2, s2, %d
    s_lshl_b32 s2, s2, %d
    s_or_b32 s2, s2, s9
    s_or_b32 s2, s2, s8
''' % ((1 << 16) | sh, (1 << sh) - 1, sh + 1, sh)
        txt = txt.replace('    s_cbranch_scc1 L_end\n', code, 1)
    txt = txt.replace('TLBPT ', '' if o.get('tlbpt', 1) else '; ')
    txt = txt.replace('YSL', str(o.get('ysl', 1)))
    qr = o.get('qr', 0)
    txt = txt.replace('QR0 ', '; ' if qr else '').replace('QR1 ', '' if qr else '; ')
    body = hz.fix(txt)
    return kernel_file([(KN + '_kernel', 256, 512, 163840)], [(KN + '_kernel', body, 256, 96, 256)])

if __name__ == '__main__':
    out = sys.argv[1]
    stamps = 'stamps' in sys.argv[2:]
    o = {}
    for kv in sys.argv[2:]:
        if '=' in kv:
            k, v = kv.split('=')
            o[k] = int(v) if v.lstrip('-').isdigit() else v.replace('_', ' ')
    open(out, 'w').write(gen(stamps, o))
```
